```python
import torch

def _softmax(x, axis=-1):
    return torch.softmax(x, dim=axis)

def _gelu(x):
    return torch.nn.functional.gelu(x, approximate='tanh')

def _silu(x):
    return torch.nn.functional.silu(x)

def _sigmoid(x):
    return torch.sigmoid(x)

def _layernorm(x, axis=-1, eps=1e-05):
    m = x.mean(dim=axis, keepdim=True)
    v = x.var(dim=axis, keepdim=True, unbiased=False)
    return (x - m) / torch.sqrt(v + eps)

def _scatter_add(tgt, idx, src, axis=0):
    return tgt.clone().index_add_(axis, idx, src)

def _segment_sum(src, seg, n):
    out = torch.zeros((n,) + src.shape[1:], dtype=src.dtype)
    return out.index_add_(0, seg, src)

def _pad(x, pw):
    flat = tuple((v for pair in reversed(pw) for v in pair))
    return torch.nn.functional.pad(x, flat)
kernel_name = 'sequential_preLN__sliding_block__mixer_gmlp__prompt'

def setup_inputs():

    _w = lambda a: (lambda t: t.to(torch.bfloat16) if t.is_floating_point() else t)(torch.as_tensor(a))

    def _A_setup():
        B, S, D = (1, 2048, 448)
        return {'x': _w((lambda *s: torch.randn(*s, dtype=torch.bfloat16) * 0.05)(B, S, D)), 'wqkv': _w((lambda *s: torch.randn(*s, dtype=torch.bfloat16) * 0.05)(D, 3 * D)), 'wo': _w((lambda *s: torch.randn(*s, dtype=torch.bfloat16) * 0.05)(D, D))}
    _A_in = _A_setup()

    def _B_setup():
        B, S, D, F = (1, 2048, 448, 1792)
        Fh = F // 2
        return {'x': _w((lambda *s: torch.randn(*s, dtype=torch.bfloat16) * 0.05)(B, S, D)), 'w_in': _w((lambda *s: torch.randn(*s, dtype=torch.bfloat16) * 0.4)(D, 2 * Fh)), 'w_sp': _w(0.01 * (lambda *s: torch.randn(*s, dtype=torch.bfloat16) * 0.4)(S, S)), 'b_sp': _w(1.0 + 0.01 * (lambda *s: torch.randn(*s, dtype=torch.bfloat16) * 0.05)(S)), 'w_out': _w((lambda *s: torch.randn(*s, dtype=torch.bfloat16) * 0.05)(Fh, D))}
    _B_in = _B_setup()
    return {'A_x': _A_in['x'], 'A_wqkv': _A_in['wqkv'], 'A_wo': _A_in['wo'], 'B_x': _B_in['x'], 'B_w_in': _B_in['w_in'], 'B_w_sp': _B_in['w_sp'], 'B_b_sp': _B_in['b_sp'], 'B_w_out': _B_in['w_out']}

def reference(A_x, A_wqkv, A_wo, B_x, B_w_in, B_w_sp, B_b_sp, B_w_out):

    def _A_ref(x, wqkv, wo):
        B, S, D = x.shape
        H = 16
        Dh = D // H
        W = 256
        qkv = (lambda x, *d: x.permute(*d))((x @ wqkv).reshape(B, S, 3, H, Dh), 2, 0, 3, 1, 4)
        q, k, v = (qkv[0], qkv[1], qkv[2])
        scores = torch.einsum('bhqd,bhkd->bhqk', q, k) * Dh ** (-0.5)
        idx = torch.arange(S)
        mask = (idx[:, None] - idx[None, :] >= 0) & (idx[:, None] - idx[None, :] < W)
        scores = torch.where(mask[None, None], scores, -1000000000.0)
        p = _softmax(scores, axis=-1)
        o = torch.einsum('bhqk,bhkd->bhqd', p, v)
        return (lambda x, *d: x.permute(*d))(o, 0, 2, 1, 3).reshape(B, S, D) @ wo

    def _B_ref(x, w_in, w_sp, b_sp, w_out):
        B, S, D = x.shape
        F = w_in.shape[-1]
        Fh = F // 2
        z = _gelu(torch.einsum('bsd,df->bsf', x, w_in))
        z1 = z[..., :Fh].clone()
        z2 = _layernorm(z[..., Fh:], axis=-1)
        g = torch.einsum('ts,bsf->btf', w_sp, z2) + b_sp[None, :, None]
        return torch.einsum('bsf,fd->bsd', z1 * g, w_out)
    x = A_x
    h = x + _A_ref(_layernorm(x, axis=-1), A_wqkv, A_wo)
    h2 = h + _B_ref(_layernorm(h, axis=-1), B_w_in, B_w_sp, B_b_sp, B_w_out)
    return h2
```

```python
import re

REG_RE = re.compile(r'\b([vas])(\d+)\b|\b([vas])\[(\d+):(\d+)\]|\b(vcc|exec|m0|scc)\b')

def regs_of(op):
    out = set()
    for m in REG_RE.finditer(op):
        if m.group(1): out.add((m.group(1), int(m.group(2))))
        elif m.group(3):
            for i in range(int(m.group(4)), int(m.group(5)) + 1): out.add((m.group(3), i))
        else: out.add((m.group(6), 0))
    return out

TRANS = ("v_exp_f32", "v_log_f32", "v_rcp_f32", "v_rsq_f32", "v_sqrt_f32", "v_sin_f32", "v_cos_f32")

class Ins:
    __slots__ = ("text", "mn", "kind", "dst", "src", "passes", "srcC", "nop", "is_label", "wide_store", "dpp", "lds_dma")
    def __init__(self, text):
        self.text = text
        t = text.split(";")[0].strip()
        self.is_label = t.endswith(":")
        self.dst = set(); self.src = set(); self.srcC = set(); self.passes = 0; self.nop = 1
        self.wide_store = False; self.dpp = False; self.lds_dma = False
        if self.is_label or not t or t.startswith("."):
            self.mn = ""; self.kind = "none"; self.nop = 0; return
        parts = t.split(None, 1)
        mn = parts[0]; self.mn = mn
        rest = parts[1] if len(parts) > 1 else ""
        ops = [o.strip() for o in split_ops(rest)]
        R = lambda o: regs_of(o)
        if mn == "s_nop":
            self.kind = "nop"; self.nop = int(ops[0], 0) + 1; return
        if mn.startswith("v_mfma"):
            self.kind = "mfma"; self.dst = R(ops[0]); self.src = R(ops[1]) | R(ops[2]); self.srcC = R(ops[3].split()[0])
            self.passes = 8 if "32x32x16" in mn else 4 if "16x16x32" in mn else 16
            return
        if mn.startswith("buffer_") or mn.startswith("global_"):
            self.kind = "vmem"
            if "lds" in rest.split() or "_lds_" in mn:
                self.lds_dma = True; self.src = set().union(*[R(o) for o in ops]) | {("m0", 0)}
            elif "_store" in mn:
                self.src = set().union(*[R(o) for o in ops]); self.wide_store = mn.endswith("x4") or mn.endswith("x3")
                self.srcC = R(ops[0]) if mn.startswith("buffer_") else R(ops[1])
            elif "atomic" in mn:
                self.src = set().union(*[R(o) for o in ops])
                if "sc0" in rest.split(): self.dst = R(ops[0])
            elif mn in ("buffer_wbl2", "buffer_inv"):
                pass
            else:
                self.dst = R(ops[0]); self.src = set().union(*[R(o) for o in ops[1:]])
            return
        if mn.startswith("ds_"):
            self.kind = "ds"
            if mn.startswith("ds_read") or mn.startswith("ds_bpermute") or mn.startswith("ds_swizzle") or mn.startswith("ds_permute"):
                self.dst = R(ops[0]); self.src = set().union(*[R(o) for o in ops[1:]])
            else:
                self.src = set().union(*[R(o) for o in ops])
            return
        if mn.startswith("v_"):
            self.kind = "trans" if mn.replace("_e32", "").replace("_e64", "") in TRANS else "valu"
            self.dpp = "_dpp" in mn or "quad_perm" in rest or "row_" in rest
            if mn.startswith("v_cmp"):
                self.dst = R(ops[0]); self.src = set().union(*[R(o) for o in ops[1:]])
            elif mn.startswith("v_permlane32_swap") or mn.startswith("v_permlane16_swap"):
                self.dst = R(ops[0]) | R(ops[1]); self.src = set(self.dst); self.kind = "permlane"
            elif mn.startswith("v_readfirstlane") or mn.startswith("v_readlane"):
                self.dst = R(ops[0]); self.src = set().union(*[R(o) for o in ops[1:]]); self.kind = "readlane"
            elif mn.startswith("v_add_co") or mn.startswith("v_sub_co") or mn.startswith("v_addc_co") or mn.startswith("v_subb_co"):
                self.dst = R(ops[0]) | R(ops[1]); self.src = set().union(*[R(o) for o in ops[2:]])
            else:
                self.dst = R(ops[0]); self.src = set().union(*[R(o) for o in ops[1:]]) if len(ops) > 1 else set()
                if mn.startswith("v_fmac") or mn.startswith("v_dot2c") or mn.startswith("v_pk_fmac") or self.dpp or mn.startswith("v_writelane"):
                    self.src |= self.dst
                if mn.startswith("v_cndmask") and len(ops) == 3: self.src |= {("vcc", 0)}
            return
        if mn.startswith("s_"):
            self.kind = "salu"
            if mn.startswith("s_cmp") or mn.startswith("s_cbranch") or mn.startswith("s_branch") or mn in ("s_waitcnt", "s_barrier", "s_endpgm", "s_sleep", "s_setprio") or mn.startswith("s_bitcmp"):
                self.src = set().union(*[R(o) for o in ops]) if ops else set()
            else:
                self.dst = R(ops[0]) if ops else set(); self.src = set().union(*[R(o) for o in ops[1:]]) if len(ops) > 1 else set()
                if "saveexec" in mn: self.dst |= {("exec", 0)}
            return
        raise ValueError("unknown instruction " + text)

def split_ops(rest):
    out = []; depth = 0; cur = ""
    for ch in rest:
        if ch == "[": depth += 1
        if ch == "]": depth -= 1
        if ch == "," and depth == 0:
            out.append(cur); cur = ""
        else: cur += ch
    if cur.strip(): out.append(cur)
    return out

def expand_vcc(s):
    return s

def is_vec(r): return r[0] in ("v", "a")

def need(prod, cons):
    n = 0
    pk, ck = prod.kind, cons.kind
    valu_p = pk in ("valu", "trans", "permlane", "readlane")
    valu_c = ck in ("valu", "trans", "permlane", "readlane")
    pv = {r for r in prod.dst if is_vec(r)}
    ps = {r for r in prod.dst if not is_vec(r)}
    if valu_p:
        if ck == "mfma" and pv & (cons.src | cons.srcC): n = max(n, 2)
        if ck == "readlane" and pv & cons.src: n = max(n, 1)
        if ck == "permlane" and pv & cons.src: n = max(n, 2)
        if valu_c and cons.dpp and pv & cons.src: n = max(n, 2)
        if pk == "trans" and valu_c and ck != "trans" and pv & cons.src: n = max(n, 1)
        if pk == "trans" and ck == "trans" and pv & cons.src: n = max(n, 1)
        if ps:
            if valu_c and ps & cons.src: n = max(n, 4 if ck == "readlane" else 2)
            if ck == "vmem" and ps & cons.src: n = max(n, 5)
            if ("exec", 0) in ps and (valu_c or ck == "mfma"): n = max(n, 5)
    if pk == "mfma":
        p = prod.passes
        raw = {4: 8, 8: 12, 16: 20}[p]; ovl = {4: 6, 8: 10, 16: 18}[p]; war = {4: 3, 8: 7, 16: 15}[p]
        if ck == "mfma":
            if pv & cons.src: n = max(n, raw)
            if pv & cons.srcC:
                if not (cons.srcC == prod.dst and cons.passes == prod.passes): n = max(n, ovl)
            if pv & cons.dst and not (cons.dst == prod.dst): n = max(n, ovl)
        elif valu_c:
            if pv & (cons.src | cons.dst): n = max(n, raw)
            if prod.srcC & cons.dst: n = max(n, war)
        elif ck in ("vmem", "ds"):
            if pv & (cons.src | cons.dst): n = max(n, raw)
            if prod.srcC & cons.dst: n = max(n, war)
    if pk == "salu" and ("m0", 0) in prod.dst and cons.lds_dma: n = max(n, 1)
    if pk == "vmem" and prod.wide_store:
        if prod.srcC & cons.dst: n = max(n, 2 if valu_c else 1)
    return n

def pad_hazards(lines, window=24):
    out = []; hist = []
    for ln in lines:
        ins = Ins(ln)
        if ins.kind == "none":
            out.append(ln); continue
        req = 0; dist = 0
        for p in reversed(hist):
            r = need(p, ins)
            if r > dist: req = max(req, r - dist)
            dist += p.nop
            if dist >= window: break
        while req > 0:
            k = min(req, 16)
            nop = Ins(f"s_nop {k-1}")
            out.append(f"  s_nop {k-1}"); hist.append(nop); req -= k
        out.append(ln); hist.append(ins)
        if len(hist) > 64: hist = hist[-64:]
    return out

class Asm:
    def __init__(self): self.lines = []; self._lab = 0
    def __call__(self, s):
        for x in s.split("\n"):
            x = x.strip()
            if x: self.lines.append(("" if x.endswith(":") else "  ") + x)
    def label(self, base="L"):
        self._lab += 1; return f"{base}_{self._lab}"
    def c(self, s): self.lines.append(f"  ; {s}")
    def flush(self, n=16):
        while n > 0:
            k = min(n, 16); self(f"s_nop {k-1}"); n -= k

def vr(base, n=1):
    return f"v{base}" if n == 1 else f"v[{base}:{base+n-1}]"
def ar(base, n=1):
    return f"a{base}" if n == 1 else f"a[{base}:{base+n-1}]"
def sr(base, n=1):
    return f"s{base}" if n == 1 else f"s[{base}:{base+n-1}]"
```

```python
import sys, math, struct
from asmlib import Asm, pad_hazards

NAME = "sequential_preLN__sliding_block__mixer_gmlp__prompt_kernel"
WS_EPOCH = 0
F_KV = 0x1000
F_O  = 0x2000
F_H  = 0x3000
F_Z  = 0x4000
F_U  = 0x5000
STATS = 0x10000
KVF = 0x100000
OFR = 0x500000
HFR = 0x700000
Z1F = 0x900000
Z2F = 0xD00000
UFR = 0x1100000
HST = 0x80000
DBG = 0x1600000

S_X, S_WQKV, S_WO, S_WIN, S_WSP, S_BSP, S_WOUT, S_OUT, S_WS = 8, 12, 16, 20, 24, 28, 32, 36, 40
S_TAG, S_WAVE, S_XCD, S_SLOT = 44, 45, 46, 47
V_LANE, V_L16, V_L31, V_HH = 1, 2, 3, 4
LOG2E = 1.4426950408889634
MFMA = "v_mfma_f32_32x32x16_bf16"

def f2u(x): return struct.unpack("<I", struct.pack("<f", x))[0]
def lit(x): return "0x%08x" % f2u(x)
def srd(b): return f"s[{b}:{b+3}]"
def V(b, n=1): return f"v{b}" if n == 1 else f"v[{b}:{b+n-1}]"
def A(b, n=1): return f"a{b}" if n == 1 else f"a[{b}:{b+n-1}]"

class Regs:
    def __init__(self, lo, hi): self.lo, self.hi = lo, hi; self.used = set(); self.hw = lo
    def alloc(self, n=1, align=None):
        if align is None: align = 4 if n >= 4 else (2 if n >= 2 else 1)
        b = (self.lo + align - 1) // align * align
        while b + n <= self.hi:
            if not any((b + k) in self.used for k in range(n)):
                for k in range(n): self.used.add(b + k)
                self.hw = max(self.hw, b + n); return b
            b += align
        raise RuntimeError(f"out of registers for {n}")
    def free(self, b, n=1):
        for k in range(n): self.used.discard(b + k)
    def reset(self): self.used = set()

class VM:
    def __init__(self, a): self.a = a; self.ops = []
    def issue(self, text, tag=None): self.a(text); self.ops.append(tag)
    def wait(self, tag):
        idx = [k for k, t in enumerate(self.ops) if t == tag]
        if not idx: return
        last = idx[-1]; n = len(self.ops) - 1 - last
        assert n <= 63, n
        self.a(f"s_waitcnt vmcnt({n})"); self.ops = self.ops[last + 1:]
    def wait_all(self): self.a("s_waitcnt vmcnt(0)"); self.ops = []

class Gen:
    def __init__(self, stop_after="E", stamps=False):
        self.a = Asm(); self.vm = VM(self.a); self.stop_after = stop_after; self.stamps = stamps
        self.nstamp = 0; self.R = Regs(8, 256)
        self.T = [5, 6, 7]

    def stamp(self):
        if not self.stamps: return
        k = self.nstamp; self.nstamp += 1
        assert k < 15
        self.a(f"s_memtime s[{72+2*k}:{73+2*k}]")

    def prologue(self):
        a = self.a
        a("s_cmp_ge_u32 s2, 256"); a("s_cbranch_scc1 L_end")
        a("s_load_dwordx16 s[48:63], s[0:1], 0")
        a("s_load_dwordx4 s[64:67], s[0:1], 64")
        a("s_load_dwordx2 s[68:69], s[0:1], 80")
        a(f"v_and_b32 v{V_LANE}, 63, v0"); a("v_lshrrev_b32 v5, 6, v0")
        a(f"v_lshlrev_b32 v{V_L16}, 4, v{V_LANE}"); a(f"v_and_b32 v{V_L31}, 31, v{V_LANE}"); a(f"v_lshrrev_b32 v{V_HH}, 5, v{V_LANE}")
        a(f"v_readfirstlane_b32 s{S_WAVE}, v5")
        a(f"s_and_b32 s{S_XCD}, s2, 7"); a(f"s_lshr_b32 s{S_SLOT}, s2, 3")
        a("s_waitcnt lgkmcnt(0)")
        def mk(base, lo, size):
            a(f"s_mov_b32 s{base}, s{lo}"); a(f"s_and_b32 s{base+1}, s{lo+1}, 0xffff")
            a(f"s_mov_b32 s{base+2}, {size}"); a(f"s_mov_b32 s{base+3}, 0x20000")
        mk(S_X, 48, 2048*448*2); mk(S_WQKV, 50, 448*1344*2); mk(S_WO, 52, 448*448*2)
        mk(S_WIN, 56, 448*1792*2); mk(S_WSP, 58, 2048*2048*2); mk(S_BSP, 60, 2048*2)
        mk(S_WOUT, 62, 896*448*2); mk(S_OUT, 64, 2048*448*2); mk(S_WS, 68, 0x10000000)
        a(f"s_load_dword s{S_TAG}, s[68:69], {WS_EPOCH}")
        a("s_waitcnt lgkmcnt(0)")
        a(f"s_add_u32 s{S_TAG}, s{S_TAG}, 1")

    def epilogue(self):
        a = self.a
        a("L_fin:")
        a("s_cmp_lg_u32 s2, 0"); a("s_cbranch_scc1 L_noepoch")
        a(f"s_cmp_lg_u32 s{S_WAVE}, 0"); a("s_cbranch_scc1 L_noepoch")
        a(f"v_mov_b32 v5, s{S_TAG}"); a(f"v_mov_b32 v6, {WS_EPOCH}")
        a("s_mov_b64 exec, 1")
        a(f"buffer_store_dword v5, v6, {srd(S_WS)}, 0 offen sc1")
        a("s_mov_b64 exec, -1")
        a("L_noepoch:")
        if self.stamps:
            a("s_waitcnt lgkmcnt(0)")
            a(f"s_lshl_b32 s48, s2, 2"); a(f"s_add_u32 s48, s48, s{S_WAVE}"); a("s_lshl_b32 s48, s48, 6"); a(f"s_add_u32 s48, s48, {DBG}")
            a("v_mov_b32 v6, 0"); a("s_mov_b64 exec, 1")
            for k in range(self.nstamp):
                a(f"v_mov_b32 v5, s{72+2*k}")
                a(f"buffer_store_dword v5, v6, {srd(S_WS)}, s48 offen offset:{4*k}")
            a("s_mov_b64 exec, -1")
        a("L_end:"); a("s_endpgm")

    def set_flag(self, soff):
        a = self.a
        self.vm.wait_all(); a("s_barrier")
        L = a.label("L_nf")
        a(f"s_cmp_lg_u32 s{S_WAVE}, 0"); a(f"s_cbranch_scc1 {L}")
        a(f"v_mov_b32 v5, s{S_TAG}"); a("v_mov_b32 v6, 0"); a("s_mov_b64 exec, 1")
        a(f"buffer_store_dword v5, v6, {srd(S_WS)}, s{soff} offen sc1")
        a("s_mov_b64 exec, -1"); a(f"{L}:")
        self.vm.ops.append("flag")

    def poll(self, soff, nflags, voff=None):
        a = self.a
        self.vm.wait_all()
        if voff is None:
            a(f"v_min_u32 v6, {nflags-1}, v{V_LANE}"); a("v_lshlrev_b32 v6, 2, v6"); voff = 6
        Lp = a.label("L_poll"); Ld = a.label("L_pd")
        a("s_mov_b32 s70, 0"); a(f"{Lp}:")
        a(f"buffer_load_dword v5, v{voff}, {srd(S_WS)}, s{soff} offen sc1")
        a("s_waitcnt vmcnt(0)")
        a(f"v_cmp_ne_u32 vcc, s{S_TAG}, v5")
        a("s_add_u32 s70, s70, 1"); a("s_cmp_gt_u32 s70, 20000"); a(f"s_cbranch_scc1 {Ld}")
        a(f"s_cbranch_vccz {Ld}"); a("s_sleep 1"); a(f"s_branch {Lp}"); a(f"{Ld}:")

    def half_op(self, v, t, op="v_add_f32"):
        a = self.a
        a(f"v_mov_b32 v{t}, v{v}"); a(f"v_permlane32_swap_b32 v{v}, v{t}"); a(f"{op} v{v}, v{v}, v{t}")

    def stats_ops(self, dw, t0, t1, s0, s1, q0, q1):
        a = self.a
        a(f"v_lshlrev_b32 v{t0}, 16, v{dw}"); a(f"v_and_b32 v{t1}, 0xffff0000, v{dw}")
        a(f"v_add_f32 v{s0}, v{s0}, v{t0}"); a(f"v_add_f32 v{s1}, v{s1}, v{t1}")
        a(f"v_fmac_f32 v{q0}, v{t0}, v{t0}"); a(f"v_fmac_f32 v{q1}, v{t1}, v{t1}")

    def finish_stats(self, s0, s1, q0, q1, t, n):
        a = self.a
        a(f"v_add_f32 v{s0}, v{s0}, v{s1}"); a(f"v_add_f32 v{q0}, v{q0}, v{q1}")
        self.half_op(s0, t); self.half_op(q0, t)
        a(f"v_mul_f32 v{s0}, {lit(1/n)}, v{s0}"); a(f"v_mul_f32 v{q0}, {lit(1/n)}, v{q0}")
        a(f"v_fma_f32 v{q0}, -v{s0}, v{s0}, v{q0}"); a(f"v_max_f32 v{q0}, 0, v{q0}")
        a(f"v_add_f32 v{q0}, {lit(1e-5)}, v{q0}"); a(f"v_rsq_f32 v{q0}, v{q0}")

    def tr_base(self, dst, rowbytes, hhrows, t0, t1):
        a = self.a
        a(f"v_lshrrev_b32 v{t0}, 2, v{V_LANE}"); a(f"v_and_b32 v{t0}, 3, v{t0}")
        a(f"v_mul_u32_u24 v{t1}, {hhrows}, v{V_HH}"); a(f"v_add_u32 v{t0}, v{t0}, v{t1}"); a(f"v_mul_u32_u24 v{t0}, {rowbytes}, v{t0}")
        a(f"v_lshrrev_b32 v{t1}, 4, v{V_LANE}"); a(f"v_and_b32 v{t1}, 1, v{t1}"); a(f"v_lshlrev_b32 v{t1}, 5, v{t1}")
        a(f"v_add_u32 v{t0}, v{t0}, v{t1}")
        a(f"v_and_b32 v{t1}, 3, v{V_LANE}"); a(f"v_lshlrev_b32 v{t1}, 3, v{t1}")
        a(f"v_add_u32 v{dst}, v{t0}, v{t1}")

    def phase_A(self):
        a, vm, R = self.a, self.vm, self.R
        R.reset()
        a.c("================ phase A : LN1 + QKV + attention ================")
        SI, SJ, SXB, SWB, SLX, SLW, STQ = 48, 49, 52, 53, 54, 55, 58
        a(f"s_lshr_b32 s50, s{S_XCD}, 1"); a("s_lshl_b32 s50, s50, 2"); a(f"s_lshr_b32 s51, s{S_SLOT}, 3"); a(f"s_add_u32 s{SI}, s50, s51")
        a(f"s_and_b32 s50, s{S_XCD}, 1"); a("s_lshl_b32 s50, s50, 3"); a(f"s_and_b32 s51, s{S_SLOT}, 7"); a(f"s_add_u32 s{SJ}, s50, s51")
        self.stamp()
        LW = 0; LX = 86016; LCS = LX + 65536; LPW = LCS + 1536
        VW0 = R.alloc(3, 1); VXE = R.alloc(); VXO = R.alloc(); t = R.alloc(4, 1)
        for p in range(3):
            a(f"v_add_u32 v{t}, {64*p}, v{V_LANE}")
            a(f"v_mul_u32_u24 v{t+1}, 171, v{t}"); a(f"v_lshrrev_b32 v{t+1}, 11, v{t+1}")
            a(f"v_mul_u32_u24 v{t+2}, 12, v{t+1}"); a(f"v_sub_u32 v{t+2}, v{t}, v{t+2}")
            a(f"v_lshrrev_b32 v{t+3}, 2, v{t+2}"); a(f"v_and_b32 v{t+2}, 3, v{t+2}")
            a(f"v_mul_u32_u24 v{t+1}, 2688, v{t+1}"); a(f"v_mul_u32_u24 v{t+3}, 896, v{t+3}"); a(f"v_lshlrev_b32 v{t+2}, 4, v{t+2}")
            a(f"v_add3_u32 v{VW0+p}, v{t+1}, v{t+3}, v{t+2}")
        a(f"v_lshrrev_b32 v{t}, 3, v{V_LANE}"); a(f"v_and_b32 v{t+1}, 7, v{V_LANE}"); a(f"v_lshrrev_b32 v{t+2}, 4, v{V_LANE}")
        a(f"v_xor_b32 v{t+3}, v{t+1}, v{t+2}"); a(f"v_lshlrev_b32 v{t+3}, 4, v{t+3}"); a(f"v_mul_u32_u24 v{t}, 896, v{t}"); a(f"v_add_u32 v{VXE}, v{t}, v{t+3}")
        a(f"v_add_u32 v{t+2}, 4, v{t+2}"); a(f"v_xor_b32 v{t+3}, v{t+1}, v{t+2}"); a(f"v_lshlrev_b32 v{t+3}, 4, v{t+3}"); a(f"v_add_u32 v{VXO}, v{t}, v{t+3}")
        a(f"s_lshl_b32 s{STQ}, s{SI}, 2"); a(f"s_add_u32 s{STQ}, s{STQ}, s{S_WAVE}"); a(f"s_mul_i32 s{SXB}, s{STQ}, {32*896}")
        a(f"s_mul_i32 s{SWB}, s{SJ}, 56"); a(f"s_mul_i32 s50, s{S_WAVE}, 43008"); a(f"s_add_u32 s{SWB}, s{SWB}, s50")
        a(f"s_lshl_b32 s{SLX}, s{S_WAVE}, 14"); a(f"s_add_u32 s{SLX}, s{SLX}, {LX}")
        a(f"s_mul_i32 s{SLW}, s{S_WAVE}, 3072")
        def dma_x(b):
            for q in range(4):
                a(f"s_add_u32 m0, s{SLX}, {(b%4)*4096 + q*1024}")
                a(f"s_add_u32 s56, s{SXB}, {q*7168 + b*128}")
                vm.issue(f"buffer_load_dwordx4 v{VXE if q%2==0 else VXO}, {srd(S_X)}, s56 offen lds", tag=("x", b))
        def dma_w(m):
            a(f"s_add_u32 s56, s{SWB}, {4*m*43008}")
            for p in range(3):
                a(f"s_add_u32 m0, s{SLW}, {LW + 4*m*3072 + p*1024}")
                a("s_nop 0")
                vm.issue(f"buffer_load_dwordx4 v{VW0+p}, {srd(S_WQKV)}, s56 offen lds", tag=("c", m))
        for m in range(4):
            dma_x(m); dma_w(m)
        if self.stamps == 3: self.stamp()
        for m in range(4, 7): dma_w(m)
        if self.stamps == 3: self.stamp()
        VXA = R.alloc(4, 1)
        a(f"v_lshrrev_b32 v{t}, 1, v{V_L31}"); a(f"v_and_b32 v{t}, 7, v{t}"); a(f"v_xor_b32 v{t}, v{t}, v{V_HH}"); a(f"v_lshlrev_b32 v{t}, 4, v{t}")
        a(f"v_lshlrev_b32 v{VXA}, 7, v{V_L31}"); a(f"v_add_u32 v{VXA}, v{VXA}, v{t}"); a(f"v_add_u32 v{VXA}, s{SLX}, v{VXA}")
        for s in range(1, 4): a(f"v_xor_b32 v{VXA+s}, {s*32}, v{VXA}")
        VWA = R.alloc(); VWB = R.alloc()
        self.tr_base(VWA, 192, 8, t, t+1)
        a(f"v_add_u32 v{VWB}, {14*3072}, v{VWA}")
        XF = R.alloc(32); WF = R.alloc(24); AQ = R.alloc(16); AK = R.alloc(16); AV = R.alloc(16)
        SUM0, SUM1, SQ0, SQ1, CSQ, CSK, CSV, T0, T1, ONES = [R.alloc() for _ in range(10)]
        for r in list(range(AQ, AQ+16)) + list(range(AK, AK+16)) + list(range(AV, AV+16)) + [SUM0, SUM1, SQ0, SQ1, CSQ, CSK, CSV]:
            a(f"v_mov_b32 v{r}, 0")
        a(f"v_mov_b32 v{ONES}, 0x3f803f80")
        def rd_w(s, buf):
            base = VWA if s < 14 else VWB
            so = (s if s < 14 else s - 14) * 3072
            for g in range(3):
                for e in range(2):
                    r = WF + buf*12 + g*4 + e*2
                    a(f"ds_read_b64_tr_b16 v[{r}:{r+1}], v{base} offset:{LW + so + e*768 + g*64}")
        for m in range(7):
            if m >= 4: vm.wait(("x", m))
            if self.stamps == 3 and m == 0: self.stamp()
            vm.wait(("c", m))
            if self.stamps == 3 and m < 3: self.stamp()
            a("s_barrier")
            if self.stamps == 3 and m < 3: self.stamp()
            if self.stamps == 2: self.stamp()
            xb = XF + (m % 2) * 16
            for s in range(4):
                a(f"ds_read_b128 {V(xb+4*s,4)}, v{VXA+s} offset:{(m%4)*4096}")
            rd_w(4*m, 0)
            for sp in range(4):
                s = 4*m + sp
                if sp < 3:
                    rd_w(s+1, (sp+1) % 2); a("s_waitcnt lgkmcnt(6)")
                else:
                    a("s_waitcnt lgkmcnt(0)")
                if sp == 0 and m + 4 < 7: dma_x(m + 4)
                x = xb + 4*sp; wb = WF + (sp % 2) * 12
                st = lambda dw: self.stats_ops(dw, T0, T1, SUM0, SUM1, SQ0, SQ1)
                a(f"{MFMA} {V(AQ,16)}, {V(wb,4)}, {V(x,4)}, {V(AQ,16)}"); st(x)
                a(f"{MFMA} {V(AK,16)}, {V(wb+4,4)}, {V(x,4)}, {V(AK,16)}"); st(x+1); st(x+2)
                a(f"{MFMA} {V(AV,16)}, {V(x,4)}, {V(wb+8,4)}, {V(AV,16)}"); st(x+3)
                L = a.label("L_cs")
                a(f"s_cmp_lg_u32 s{S_WAVE}, {sp}"); a(f"s_cbranch_scc1 {L}")
                for g, acc in enumerate((CSQ, CSK, CSV)):
                    for d in range(4):
                        a(f"v_dot2_f32_bf16 v{acc}, v{wb+4*g+d}, v{ONES}, v{acc}")
                a(f"{L}:")
        self.stamp()
        R.free(XF, 32); R.free(WF, 24)
        self.finish_stats(SUM0, SUM1, SQ0, SQ1, T0, 448)
        MEAN, RSTD = SUM0, SQ0
        self.half_op(CSQ, T0); self.half_op(CSK, T0); self.half_op(CSV, T0)
        VT = R.alloc(4, 1)
        a(f"s_mul_i32 s56, s{S_WAVE}, 384"); a(f"s_add_u32 s56, s56, {LCS}")
        a(f"v_lshlrev_b32 v{VT}, 2, v{V_L31}"); a(f"v_add_u32 v{VT+1}, s56, v{VT}")
        a(f"ds_write_b32 v{VT+1}, v{CSQ}"); a(f"ds_write_b32 v{VT+1}, v{CSK} offset:128"); a(f"ds_write_b32 v{VT+1}, v{CSV} offset:256")
        a(f"s_lshl_b32 s57, s{S_WAVE}, 10"); a(f"s_add_u32 s57, s57, {LPW}")
        a(f"v_add_u32 v{VT+2}, s57, v{VT}")
        MR = SUM1
        a(f"v_mul_f32 v{MR}, v{MEAN}, v{RSTD}")
        a(f"ds_write_b32 v{VT+2}, v{RSTD} offset:384"); a(f"ds_write_b32 v{VT+2}, v{MR} offset:512")
        a("s_waitcnt lgkmcnt(0)"); a("s_barrier")
        a(f"v_add_u32 v{VT+1}, {LCS}, v{VT}")
        P = R.alloc(12)
        for g in range(3):
            for w in range(4):
                a(f"ds_read_b32 v{P+4*g+w}, v{VT+1} offset:{w*384+g*128}")
        a("s_waitcnt lgkmcnt(0)")
        for g, acc in enumerate((CSQ, CSK, CSV)):
            a(f"v_add_f32 v{P+4*g}, v{P+4*g}, v{P+4*g+1}"); a(f"v_add_f32 v{P+4*g+2}, v{P+4*g+2}, v{P+4*g+3}")
            a(f"v_add_f32 v{acc}, v{P+4*g}, v{P+4*g+2}")
        R.free(P, 12)
        a(f"ds_write_b32 v{VT+2}, v{CSQ}"); a(f"ds_write_b32 v{VT+2}, v{CSK} offset:128")
        a("s_waitcnt lgkmcnt(0)")
        a(f"v_lshlrev_b32 v{VT+3}, 4, v{V_HH}"); a(f"v_add_u32 v{VT+3}, s57, v{VT+3}")
        CQ = R.alloc(16); CK = R.alloc(16); RK = R.alloc(16); MK = R.alloc(16)
        for gg in range(4):
            a(f"ds_read_b128 {V(CQ+4*gg,4)}, v{VT+3} offset:{gg*32}")
            a(f"ds_read_b128 {V(CK+4*gg,4)}, v{VT+3} offset:{128+gg*32}")
            a(f"ds_read_b128 {V(RK+4*gg,4)}, v{VT+3} offset:{384+gg*32}")
            a(f"ds_read_b128 {V(MK+4*gg,4)}, v{VT+3} offset:{512+gg*32}")
        a("s_waitcnt lgkmcnt(0)")
        RQ = T1
        qscale = (28 ** -0.5) * LOG2E
        a(f"v_mul_f32 v{RQ}, {lit(qscale)}, v{RSTD}")
        QF = R.alloc(8); KF = R.alloc(8); VF = R.alloc(8)
        MASKH = R.alloc(); MASKD = R.alloc(); ONED = R.alloc()
        a(f"v_cmp_eq_u32 vcc, 0, v{V_HH}"); a(f"v_cndmask_b32 v{MASKH}, 0, -1, vcc")
        a(f"v_cmp_gt_u32 vcc, 28, v{V_L31}"); a(f"v_cndmask_b32 v{MASKD}, 0, -1, vcc")
        a(f"v_cmp_eq_u32 vcc, 28, v{V_L31}"); a(f"v_cndmask_b32 v{ONED}, 0, v{ONES}, vcc")
        for r in range(16):
            a(f"v_fma_f32 v{AQ+r}, -v{MEAN}, v{CQ+r}, v{AQ+r}"); a(f"v_mul_f32 v{AQ+r}, v{AQ+r}, v{RQ}")
            a(f"v_fma_f32 v{AK+r}, -v{MEAN}, v{CK+r}, v{AK+r}"); a(f"v_mul_f32 v{AK+r}, v{AK+r}, v{RSTD}")
            a(f"v_mul_f32 v{MK+r}, v{MK+r}, v{CSV}"); a(f"v_fma_f32 v{AV+r}, v{AV+r}, v{RK+r}, -v{MK+r}")
        for d in range(8):
            a(f"v_cvt_pk_bf16_f32 v{QF+d}, v{AQ+2*d}, v{AQ+2*d+1}")
            a(f"v_cvt_pk_bf16_f32 v{KF+d}, v{AK+2*d}, v{AK+2*d+1}")
            a(f"v_cvt_pk_bf16_f32 v{VF+d}, v{AV+2*d}, v{AV+2*d+1}")
        for d in (6, 7):
            a(f"v_and_b32 v{QF+d}, v{QF+d}, v{MASKH}"); a(f"v_and_b32 v{KF+d}, v{KF+d}, v{MASKH}")
        for d in range(8):
            a(f"v_and_or_b32 v{VF+d}, v{VF+d}, v{MASKD}, v{ONED}")
        a(f"s_lshl_b32 s56, s{SJ}, 6"); a(f"s_add_u32 s56, s56, s{STQ}"); a("s_lshl_b32 s56, s56, 12"); a(f"s_add_u32 s56, s56, {KVF}")
        for part, r in enumerate((KF, KF+4, VF, VF+4)):
            vm.issue(f"buffer_store_dwordx4 {V(r,4)}, v{V_L16}, {srd(S_WS)}, s56 offen offset:{part*1024} sc1")
        a(f"s_lshl_b32 s59, s{SJ}, 7"); a(f"s_lshl_b32 s56, s{SI}, 2"); a("s_add_u32 s59, s59, s56"); a(f"s_add_u32 s59, s59, {F_KV}")
        self.set_flag(59)
        for b, n in ((CQ,16),(CK,16),(RK,16),(MK,16),(AQ,16),(AK,16),(AV,16),(KF,8),(VF,8)): R.free(b, n)
        self.stamp()
        a(f"s_lshl_b32 s59, s{SJ}, 7"); a(f"s_add_u32 s59, s59, {F_KV}")
        a(f"s_sub_i32 s56, s{SI}, 1"); a("s_max_i32 s56, s56, 0"); a(f"s_sub_i32 s57, s{SI}, 2"); a("s_max_i32 s57, s57, 0")
        a("s_lshl_b32 s56, s56, 2"); a("s_lshl_b32 s57, s57, 2")
        a(f"v_mov_b32 v6, s56"); a(f"v_mov_b32 v7, s57"); a(f"v_cmp_eq_u32 vcc, 0, v{V_HH}"); a("v_cndmask_b32 v6, v7, v6, vcc")
        self.poll(59, 2, voff=6)
        self.stamp()
        AKT, AVT = 0, 72
        a(f"s_lshl_b32 s59, s{SJ}, 18"); a(f"s_add_u32 s59, s59, {KVF}")
        for base, off, tg in ((AKT, 0, "k"), (AVT, 2048, "v")):
            for u in range(9):
                a(f"s_add_i32 s56, s{STQ}, {u-8}"); a("s_max_i32 s56, s56, 0"); a("s_lshl_b32 s56, s56, 12"); a("s_add_u32 s56, s56, s59")
                for h in range(2):
                    vm.issue(f"buffer_load_dwordx4 {A(base+8*u+4*h,4)}, v{V_L16}, {srd(S_WS)}, s56 offen offset:{off+h*1024} sc1", tag=(tg, u))
        CD = R.alloc(16); CF = R.alloc(16); CM = R.alloc(16); SA = R.alloc(16); SB = R.alloc(16); O = R.alloc(16); PF = R.alloc(16)
        MX = R.alloc(); BS = R.alloc(); NB = R.alloc()
        a(f"v_lshlrev_b32 v{BS}, 2, v{V_HH}"); a(f"v_sub_u32 v{BS}, v{V_L31}, v{BS}")
        a(f"v_mov_b32 v{NB}, {lit(-1e30)}")
        for r in range(16):
            c = (r & 3) + 8 * (r >> 2)
            a(f"v_cmp_le_i32 vcc, {c}, v{BS}")
            a(f"v_cndmask_b32 v{CD+r}, v{NB}, 0, vcc"); a(f"v_cndmask_b32 v{CF+r}, 0, v{NB}, vcc")
        a(f"v_mov_b32 v{MX}, {lit(-1e30)}")
        a(f"s_sub_i32 s60, 8, s{STQ}"); a("s_max_i32 s60, s60, 0")
        def smfma(dst, u, c):
            a(f"{MFMA} {V(dst,16)}, {A(AKT+8*u,4)}, {V(QF,4)}, {c}")
            a(f"{MFMA} {V(dst,16)}, {A(AKT+8*u+4,4)}, {V(QF+4,4)}, {V(dst,16)}")
        for u in range(9):
            vm.wait(("k", u))
            L = a.label("L_s1")
            if u < 8:
                a(f"s_cmp_gt_u32 s60, {u}"); a(f"s_cbranch_scc1 {L}")
            S = SA if u % 2 == 0 else SB
            smfma(S, u, V(CF,16) if u == 0 else (V(CD,16) if u == 8 else "0"))
            for r in range(0, 16, 2):
                a(f"v_max3_f32 v{MX}, v{S+r}, v{S+r+1}, v{MX}")
            a(f"{L}:")
            a.flush(8)
        self.half_op(MX, T0, "v_max_f32")
        for r in range(16):
            a(f"v_sub_f32 v{CM+r}, 0, v{MX}")
            a(f"v_sub_f32 v{CD+r}, v{CD+r}, v{MX}"); a(f"v_sub_f32 v{CF+r}, v{CF+r}, v{MX}")
            a(f"v_mov_b32 v{O+r}, 0")
        for u in range(9):
            vm.wait(("v", u))
            L = a.label("L_s2")
            if u < 8:
                a(f"s_cmp_gt_u32 s60, {u}"); a(f"s_cbranch_scc1 {L}")
            S = SA if u % 2 == 0 else SB
            P = PF + 8 * (u % 2)
            smfma(S, u, V(CF,16) if u == 0 else (V(CD,16) if u == 8 else V(CM,16)))
            for r in range(16): a(f"v_exp_f32 v{S+r}, v{S+r}")
            for d in range(8): a(f"v_cvt_pk_bf16_f32 v{P+d}, v{S+2*d}, v{S+2*d+1}")
            a(f"{MFMA} {V(O,16)}, {A(AVT+8*u,4)}, {V(P,4)}, {V(O,16)}")
            a(f"{MFMA} {V(O,16)}, {A(AVT+8*u+4,4)}, {V(P+4,4)}, {V(O,16)}")
            a(f"{L}:")
            a.flush(16)
        a(f"v_mov_b32 v{T0}, v{O+12}"); a(f"v_mov_b32 v{T1}, v{O+12}")
        a(f"v_permlane32_swap_b32 v{T0}, v{T1}")
        a(f"v_rcp_f32 v{T1}, v{T1}")
        for r in range(16): a(f"v_mul_f32 v{O+r}, v{O+r}, v{T1}")
        for d in range(8): a(f"v_cvt_pk_bf16_f32 v{PF+d}, v{O+2*d}, v{O+2*d+1}")
        for d in (6, 7): a(f"v_and_b32 v{PF+d}, v{PF+d}, v{MASKH}")
        a(f"s_lshl_b32 s56, s{STQ}, 4"); a(f"s_add_u32 s56, s56, s{SJ}"); a("s_lshl_b32 s56, s56, 11"); a(f"s_add_u32 s56, s56, {OFR}")
        for h in range(2):
            vm.issue(f"buffer_store_dwordx4 {V(PF+4*h,4)}, v{V_L16}, {srd(S_WS)}, s56 offen offset:{h*1024} sc1")
        a(f"s_lshl_b32 s59, s{SI}, 7"); a(f"s_lshl_b32 s56, s{SJ}, 2"); a("s_add_u32 s59, s59, s56"); a(f"s_add_u32 s59, s59, {F_O}")
        self.set_flag(59)
        self.stamp()


    def map_BE(self, skip):
        a = self.a
        a(f"s_cmp_ge_u32 s{S_SLOT}, 28"); a(f"s_cbranch_scc1 {skip}")
        a(f"s_mul_i32 s50, s{S_SLOT}, 37"); a("s_lshr_b32 s50, s50, 8")
        a("s_mul_i32 s51, s50, 7"); a(f"s_sub_u32 s49, s{S_SLOT}, s51")
        a(f"s_lshl_b32 s48, s{S_XCD}, 2"); a("s_add_u32 s48, s48, s50")

    def dma_w128(self, srdw, rowbytes, ninstr_per_wave, t):
        a, vm = self.a, self.vm
        a(f"v_lshrrev_b32 v{t}, 3, v{V_LANE}"); a(f"v_mul_u32_u24 v{t}, {rowbytes}, v{t}")
        a(f"v_lshrrev_b32 v{t+1}, 4, v{V_LANE}"); a(f"v_and_b32 v{t+1}, 1, v{t+1}"); a(f"v_lshlrev_b32 v{t+1}, 2, v{t+1}")
        a(f"v_and_b32 v{t+2}, 7, v{V_LANE}"); a(f"v_xor_b32 v{t+2}, v{t+2}, v{t+1}"); a(f"v_lshlrev_b32 v{t+2}, 4, v{t+2}")
        a(f"v_add_u32 v{t}, v{t}, v{t+2}")
        a(f"s_lshl_b32 s50, s49, 7"); a(f"s_mul_i32 s51, s{S_WAVE}, {8*rowbytes}"); a("s_add_u32 s50, s50, s51")
        a(f"s_lshl_b32 s51, s{S_WAVE}, 10")
        for m in range(ninstr_per_wave):
            a(f"s_add_u32 m0, s51, {m*4096}")
            a(f"s_add_u32 s56, s50, {m*32*rowbytes}")
            vm.issue(f"buffer_load_dwordx4 v{t}, {srd(srdw)}, s56 offen lds", tag="w")

    def w128_bases(self, B0, t, khalf_bytes):
        a = self.a
        a(f"v_lshrrev_b32 v{t}, 2, v{V_LANE}"); a(f"v_and_b32 v{t}, 3, v{t}")
        a(f"v_lshlrev_b32 v{t+1}, 2, v{V_HH}"); a(f"v_add_u32 v{t+1}, v{t+1}, v{t}"); a(f"v_lshlrev_b32 v{t+1}, 7, v{t+1}")
        a(f"v_lshrrev_b32 v{t+2}, 4, v{V_LANE}"); a(f"v_and_b32 v{t+2}, 1, v{t+2}"); a(f"v_lshlrev_b32 v{t+2}, 5, v{t+2}")
        a(f"v_add_u32 v{t+1}, v{t+1}, v{t+2}")
        a(f"v_and_b32 v{t+2}, 3, v{V_LANE}"); a(f"v_lshlrev_b32 v{t+2}, 3, v{t+2}"); a(f"v_add_u32 v{t+1}, v{t+1}, v{t+2}")
        a(f"v_lshrrev_b32 v{t}, 1, v{t}"); a(f"v_lshlrev_b32 v{t}, 6, v{t}")
        a(f"s_lshr_b32 s50, s{S_WAVE}, 1"); a(f"s_mul_i32 s50, s50, {khalf_bytes}")
        a(f"v_add_u32 v{t+1}, s50, v{t+1}")
        a(f"v_add_u32 v{B0}, v{t+1}, v{t}")
        a(f"v_xor_b32 v{t}, 64, v{t}"); a(f"v_add_u32 v{B0+1}, v{t+1}, v{t}")

    def small_gemm(self, nk, row_of_step, act_base, B0, ACC, lexch):
        a, R = self.a, self.R
        WF = R.alloc(16)
        def rd(k, buf):
            for c in range(2):
                for e in range(2):
                    r = WF + buf*8 + c*4 + e*2
                    a(f"ds_read_b64_tr_b16 v[{r}:{r+1}], v{B0+c} offset:{(row_of_step(k) + 8*e)*128}")
        rd(0, 0)
        for k in range(nk):
            if k + 1 < nk:
                rd(k+1, (k+1) % 2); a("s_waitcnt lgkmcnt(4)")
            else: a("s_waitcnt lgkmcnt(0)")
            self.vm.wait(("act", k))
            wb = WF + (k % 2) * 8
            for c in range(2):
                cin = "0" if k == 0 else V(ACC+16*c, 16)
                a(f"{MFMA} {V(ACC+16*c,16)}, {V(wb+4*c,4)}, {V(act_base+4*k,4)}, {cin}")
        R.free(WF, 16)
        t = R.alloc(2, 1)
        a(f"s_lshl_b32 s50, s{S_WAVE}, 12"); a(f"s_add_u32 s50, s50, {lexch}"); a(f"v_add_u32 v{t}, s50, v{V_L16}")
        a(f"s_xor_b32 s51, s{S_WAVE}, 2"); a("s_lshl_b32 s51, s51, 12"); a(f"s_add_u32 s51, s51, {lexch}"); a(f"v_add_u32 v{t+1}, s51, v{V_L16}")
        La = a.label("L_x"); Lb = a.label("L_x")
        a(f"s_cmp_lt_u32 s{S_WAVE}, 2"); a(f"s_cbranch_scc1 {La}")
        for q in range(4): a(f"ds_write_b128 v{t}, {V(ACC+4*q,4)} offset:{q*1024}")
        a("s_nop 1")
        for r in range(16): a(f"v_mov_b32 v{ACC+r}, v{ACC+16+r}")
        a(f"s_branch {Lb}")
        a(f"{La}:"); a.flush(12)
        for q in range(4): a(f"ds_write_b128 v{t}, {V(ACC+16+4*q,4)} offset:{q*1024}")
        a(f"{Lb}:")
        a("s_waitcnt lgkmcnt(0)"); a("s_barrier")
        for q in range(4): a(f"ds_read_b128 {V(ACC+16+4*q,4)}, v{t+1} offset:{q*1024}")
        a("s_waitcnt lgkmcnt(0)")
        for r in range(16): a(f"v_add_f32 v{ACC+r}, v{ACC+r}, v{ACC+16+r}")
        R.free(t, 2)

    def phase_B(self):
        a, vm, R = self.a, self.vm, self.R
        R.reset()
        a.c("================ phase B : h = x + o @ wo ================")
        skip = "L_skipB"
        self.map_BE(skip)
        self.stamp()
        t = R.alloc(4, 1)
        self.dma_w128(S_WO, 896, 15, t)
        a(f"s_and_b32 s52, s{S_WAVE}, 1"); a("s_lshl_b32 s50, s48, 1"); a("s_add_u32 s52, s52, s50"); a(f"s_lshr_b32 s53, s{S_WAVE}, 1")
        XR = R.alloc(8)
        a(f"v_mul_u32_u24 v{t+3}, 896, v{V_L31}"); a(f"v_lshlrev_b32 v{t+2}, 3, v{V_HH}"); a(f"v_add_u32 v{t+3}, v{t+3}, v{t+2}")
        a(f"s_mul_i32 s54, s52, {32*896}"); a("s_lshl_b32 s50, s49, 7"); a("s_add_u32 s54, s54, s50"); a("s_lshl_b32 s50, s53, 6"); a("s_add_u32 s54, s54, s50")
        for g in range(4):
            vm.issue(f"buffer_load_dwordx2 {V(XR+2*g,2)}, v{t+3}, {srd(S_X)}, s54 offen offset:{g*16}", tag="xr")
        B0 = R.alloc(2, 1)
        self.w128_bases(B0, t, 8*28*128)
        a("s_lshr_b32 s55, s48, 1"); a("s_lshl_b32 s55, s55, 7"); a(f"s_add_u32 s55, s55, {F_O}")
        self.poll(55, 16)
        a("s_barrier")
        self.stamp()
        ACT = R.alloc(64)
        a("s_lshl_b32 s55, s52, 4"); a("s_lshl_b32 s50, s53, 3"); a("s_add_u32 s55, s55, s50"); a("s_lshl_b32 s55, s55, 11"); a(f"s_add_u32 s55, s55, {OFR}")
        for k in range(16):
            if k and k % 4 == 0: a("s_add_u32 s55, s55, 4096")
            vm.issue(f"buffer_load_dwordx4 {V(ACT+4*k,4)}, v{V_L16}, {srd(S_WS)}, s55 offen offset:{(k%4)*1024} sc1", tag=("act", k))
        ACC = R.alloc(32)
        self.small_gemm(16, lambda k: 28*(k//2) + 16*(k%2), ACT, B0, ACC, 61440)
        self.stamp()
        T0 = R.alloc(); T1 = R.alloc(); S0 = R.alloc(); Q0 = R.alloc(); PF = R.alloc(8)
        for d in range(8):
            a(f"v_lshlrev_b32 v{T0}, 16, v{XR+d}"); a(f"v_and_b32 v{T1}, 0xffff0000, v{XR+d}")
            a(f"v_add_f32 v{ACC+2*d}, v{ACC+2*d}, v{T0}"); a(f"v_add_f32 v{ACC+2*d+1}, v{ACC+2*d+1}, v{T1}")
            a(f"v_cvt_pk_bf16_f32 v{PF+d}, v{ACC+2*d}, v{ACC+2*d+1}")
        a(f"v_mov_b32 v{S0}, 0"); a(f"v_mov_b32 v{Q0}, 0")
        for r in range(16):
            a(f"v_add_f32 v{S0}, v{S0}, v{ACC+r}"); a(f"v_fmac_f32 v{Q0}, v{ACC+r}, v{ACC+r}")
        self.half_op(S0, T0); self.half_op(Q0, T0)
        a("s_lshl_b32 s50, s49, 1"); a("s_add_u32 s50, s50, s53"); a("s_mul_i32 s51, s52, 14"); a("s_add_u32 s50, s50, s51")
        a("s_lshl_b32 s55, s50, 11"); a(f"s_add_u32 s55, s55, {HFR}")
        for h in range(2):
            vm.issue(f"buffer_store_dwordx4 {V(PF+4*h,4)}, v{V_L16}, {srd(S_WS)}, s55 offen offset:{h*1024} sc1")
        PS = R.alloc(2)
        a(f"v_mov_b32 v{PS}, v{S0}"); a(f"v_mov_b32 v{PS+1}, v{Q0}"); a(f"v_lshlrev_b32 v{T0}, 3, v{V_L31}")
        a("s_lshl_b32 s55, s50, 8"); a(f"s_add_u32 s55, s55, {HST}")
        vm.issue(f"buffer_store_dwordx2 {V(PS,2)}, v{T0}, {srd(S_WS)}, s55 offen sc1")
        a("s_lshr_b32 s55, s48, 1"); a("s_lshl_b32 s55, s55, 7"); a("s_and_b32 s50, s48, 1"); a("s_mul_i32 s50, s50, 7"); a("s_add_u32 s50, s50, s49")
        a("s_lshl_b32 s50, s50, 2"); a("s_add_u32 s55, s55, s50"); a(f"s_add_u32 s55, s55, {F_H}")
        self.set_flag(55)
        a(f"{skip}:")
        self.stamp()

    def cs_reduce(self, accs, LCS, LPW, T0, VT):
        a, R = self.a, self.R
        n = len(accs)
        for acc in accs: self.half_op(acc, T0)
        a(f"s_mul_i32 s56, s{S_WAVE}, {n*128}"); a(f"s_add_u32 s56, s56, {LCS}")
        a(f"v_lshlrev_b32 v{VT}, 2, v{V_L31}"); a(f"v_add_u32 v{VT+1}, s56, v{VT}")
        for g, acc in enumerate(accs): a(f"ds_write_b32 v{VT+1}, v{acc} offset:{g*128}")
        a(f"s_lshl_b32 s57, s{S_WAVE}, 10"); a(f"s_add_u32 s57, s57, {LPW}"); a(f"v_add_u32 v{VT+2}, s57, v{VT}")
        a("s_waitcnt lgkmcnt(0)"); a("s_barrier")
        a(f"v_add_u32 v{VT+1}, {LCS}, v{VT}")
        P = R.alloc(4*n)
        for g in range(n):
            for w in range(4): a(f"ds_read_b32 v{P+4*g+w}, v{VT+1} offset:{w*n*128+g*128}")
        a("s_waitcnt lgkmcnt(0)")
        for g, acc in enumerate(accs):
            a(f"v_add_f32 v{P+4*g}, v{P+4*g}, v{P+4*g+1}"); a(f"v_add_f32 v{P+4*g+2}, v{P+4*g+2}, v{P+4*g+3}")
            a(f"v_add_f32 v{acc}, v{P+4*g}, v{P+4*g+2}")
            a(f"ds_write_b32 v{VT+2}, v{acc} offset:{g*128}")
        R.free(P, 4*n)
        a("s_waitcnt lgkmcnt(0)")

    def gelu(self, x, t0, t1):
        a = self.a
        k0 = -2.0 * LOG2E * math.sqrt(2 / math.pi); k1 = k0 * 0.044715
        a(f"v_mul_f32 v{t0}, v{x}, v{x}")
        a(f"v_fma_f32 v{t0}, v{t0}, s61, v{t1}")
        a(f"v_mul_f32 v{t0}, v{t0}, v{x}")
        a(f"v_exp_f32 v{t0}, v{t0}")
        a(f"v_add_f32 v{t0}, 1.0, v{t0}")
        a(f"v_rcp_f32 v{t0}, v{t0}")
        a(f"v_mul_f32 v{x}, v{x}, v{t0}")

    def phase_C(self):
        a, vm, R = self.a, self.vm, self.R
        R.reset()
        a.c("================ phase C : z = gelu(LN(h) @ w_in) ================")
        skip = "L_skipC"
        a(f"s_cmp_ge_u32 s{S_SLOT}, 28"); a(f"s_cbranch_scc1 {skip}")
        a(f"s_cmp_ge_u32 s{S_SLOT}, 14"); a("s_cselect_b32 s50, 1, 0")
        a("s_mul_i32 s51, s50, 14"); a(f"s_sub_u32 s49, s{S_SLOT}, s51")
        a(f"s_lshl_b32 s48, s{S_XCD}, 1"); a("s_add_u32 s48, s48, s50")
        a(f"s_lshl_b32 s52, s48, 2"); a(f"s_add_u32 s52, s52, s{S_WAVE}")
        self.stamp()
        LCS = 114688; LPW = LCS + 2048; LTR = LPW + 4096
        t = R.alloc(4, 1)
        a(f"v_lshrrev_b32 v{t}, 4, v{V_LANE}"); a(f"v_lshlrev_b32 v{t+1}, 2, v{t}"); a(f"v_and_b32 v{t+2}, 15, v{V_LANE}"); a(f"v_xor_b32 v{t+2}, v{t+2}, v{t+1}")
        a(f"v_mul_u32_u24 v{t}, 3584, v{t}")
        a(f"v_lshlrev_b32 v{t+1}, 4, v{t+2}")
        a(f"v_add_u32 v{t+3}, 1792, v{t+1}"); a(f"v_subrev_u32 v{t+1}, 128, v{t+1}")
        a(f"v_cmp_gt_u32 vcc, 8, v{t+2}"); a(f"v_cndmask_b32 v{t+1}, v{t+1}, v{t+3}, vcc"); a(f"v_add_u32 v{t}, v{t}, v{t+1}")
        a(f"s_lshl_b32 s50, s49, 7"); a(f"s_mul_i32 s51, s{S_WAVE}, {4*3584}"); a("s_add_u32 s50, s50, s51"); a(f"s_lshl_b32 s51, s{S_WAVE}, 10")
        for m in range(28):
            a(f"s_add_u32 m0, s51, {m*4096}"); a(f"s_add_u32 s56, s50, {m*16*3584}")
            vm.issue(f"buffer_load_dwordx4 v{t}, {srd(S_WIN)}, s56 offen lds", tag="w")
        BA = R.alloc(4, 1)
        a(f"v_lshrrev_b32 v{t}, 2, v{V_LANE}"); a(f"v_and_b32 v{t}, 3, v{t}")
        a(f"v_lshlrev_b32 v{t+1}, 2, v{V_HH}"); a(f"v_add_u32 v{t+1}, v{t+1}, v{t}"); a(f"v_lshlrev_b32 v{t+1}, 8, v{t+1}")
        a(f"v_lshrrev_b32 v{t+2}, 4, v{V_LANE}"); a(f"v_and_b32 v{t+2}, 1, v{t+2}"); a(f"v_lshlrev_b32 v{t+2}, 5, v{t+2}"); a(f"v_add_u32 v{t+1}, v{t+1}, v{t+2}")
        a(f"v_and_b32 v{t+2}, 3, v{V_LANE}"); a(f"v_lshlrev_b32 v{t+2}, 3, v{t+2}"); a(f"v_add_u32 v{t+1}, v{t+1}, v{t+2}")
        for tl in range(4):
            a(f"v_xor_b32 v{t+2}, {tl}, v{t}"); a(f"v_lshlrev_b32 v{t+2}, 6, v{t+2}"); a(f"v_add_u32 v{BA+tl}, v{t+1}, v{t+2}")
        BB = R.alloc(4, 1)
        for tl in range(4): a(f"v_add_u32 v{BB+tl}, {14*16*256}, v{BA+tl}")
        WF = R.alloc(32)
        def rd(k, buf):
            for tl in range(4):
                base = (BA if k < 14 else BB) + tl
                for e in range(2):
                    r = WF + buf*16 + tl*4 + e*2
                    a(f"ds_read_b64_tr_b16 v[{r}:{r+1}], v{base} offset:{((k % 14)*16 + 8*e)*256}")
        vm.wait_all(); a("s_barrier")
        CS = [R.alloc() for _ in range(4)]; ONES = R.alloc(); T0 = R.alloc(); T1 = R.alloc(); VT = R.alloc(3, 1)
        a(f"v_mov_b32 v{ONES}, 0x3f803f80")
        for c in CS: a(f"v_mov_b32 v{c}, 0")
        BW = R.alloc(4, 1)
        a(f"s_lshl_b32 s50, s{S_WAVE}, 12")
        for tl in range(4): a(f"v_add_u32 v{BW+tl}, s50, v{BA+tl}")
        for m in range(7):
            off = m * 4 * 4096
            for tl in range(4):
                for e in range(2):
                    r = WF + tl*4 + e*2
                    if off + e*2048 < 65536: a(f"ds_read_b64_tr_b16 v[{r}:{r+1}], v{BW+tl} offset:{off + e*2048}")
                    else:
                        a(f"v_add_u32 v{T0}, {off + e*2048}, v{BW+tl}"); a(f"ds_read_b64_tr_b16 v[{r}:{r+1}], v{T0}")
            a("s_waitcnt lgkmcnt(0)")
            for tl in range(4):
                for d in range(4): a(f"v_dot2_f32_bf16 v{CS[tl]}, v{WF+tl*4+d}, v{ONES}, v{CS[tl]}")
        R.free(BW, 4)
        self.cs_reduce(CS, LCS, LPW, T0, VT)
        a(f"s_lshl_b32 s55, s48, 7"); a(f"s_add_u32 s55, s55, {F_H}")
        self.poll(55, 14)
        self.stamp()
        ACT = R.alloc(112)
        a("s_mul_i32 s55, s52, 14"); a("s_lshl_b32 s54, s55, 11"); a(f"s_add_u32 s54, s54, {HFR}")
        HS = R.alloc(14, 2)
        a(f"v_mul_u32_u24 v{T0}, {7*256}, v{V_HH}"); a(f"v_lshlrev_b32 v{T1}, 3, v{V_L31}"); a(f"v_add_u32 v{T0}, v{T0}, v{T1}")
        a("s_lshl_b32 s55, s55, 8"); a(f"s_add_u32 s55, s55, {HST}")
        for q in range(7):
            vm.issue(f"buffer_load_dwordx2 {V(HS+2*q,2)}, v{T0}, {srd(S_WS)}, s55 offen offset:{q*256} sc1", tag="hs")
        for k in range(28):
            if k and k % 4 == 0: a("s_add_u32 s54, s54, 4096")
            vm.issue(f"buffer_load_dwordx4 {V(ACT+4*k,4)}, v{V_L16}, {srd(S_WS)}, s54 offen offset:{(k%4)*1024} sc1", tag=("act", k))
        ACC = 0
        rd(0, 0)
        for k in range(28):
            if k + 1 < 28:
                rd(k+1, (k+1) % 2); a("s_waitcnt lgkmcnt(8)")
            else: a("s_waitcnt lgkmcnt(0)")
            vm.wait(("act", k))
            wb = WF + (k % 2) * 16
            for tl in range(4):
                cin = "0" if k == 0 else A(16*tl, 16)
                a(f"{MFMA} {A(16*tl,16)}, {V(wb+4*tl,4)}, {V(ACT+4*k,4)}, {cin}")
        self.stamp()
        R.free(ACT, 112); R.free(WF, 32)
        MEAN = R.alloc(); RSTD = R.alloc()
        a(f"v_mov_b32 v{MEAN}, v{HS}"); a(f"v_mov_b32 v{RSTD}, v{HS+1}")
        for q in range(1, 7):
            a(f"v_add_f32 v{MEAN}, v{MEAN}, v{HS+2*q}"); a(f"v_add_f32 v{RSTD}, v{RSTD}, v{HS+2*q+1}")
        self.half_op(MEAN, T0); self.half_op(RSTD, T0)
        a(f"v_mul_f32 v{MEAN}, {lit(1/448)}, v{MEAN}"); a(f"v_mul_f32 v{RSTD}, {lit(1/448)}, v{RSTD}")
        a(f"v_fma_f32 v{RSTD}, -v{MEAN}, v{MEAN}, v{RSTD}"); a(f"v_max_f32 v{RSTD}, 0, v{RSTD}")
        a(f"v_add_f32 v{RSTD}, {lit(1e-5)}, v{RSTD}"); a(f"v_rsq_f32 v{RSTD}, v{RSTD}")
        R.free(HS, 14)
        k0 = -2.0 * LOG2E * math.sqrt(2 / math.pi); k1 = k0 * 0.044715
        K0 = R.alloc()
        a(f"s_mov_b32 s61, {lit(k1)}"); a(f"v_mov_b32 v{K0}, {lit(k0)}")
        Z = R.alloc(64); CSR = R.alloc(16)
        a(f"v_lshlrev_b32 v{VT}, 4, v{V_HH}"); a(f"v_add_u32 v{VT}, s57, v{VT}")
        def epi(tl):
            for gg in range(4): a(f"ds_read_b128 {V(CSR+4*gg,4)}, v{VT} offset:{tl*128+gg*32}")
            for r in range(16): a(f"v_accvgpr_read_b32 v{Z+16*tl+r}, a{16*tl+r}")
            a("s_waitcnt lgkmcnt(0)")
            for r in range(16):
                z = Z + 16*tl + r
                a(f"v_fma_f32 v{z}, -v{MEAN}, v{CSR+r}, v{z}"); a(f"v_mul_f32 v{z}, v{z}, v{RSTD}")
                self.gelu(z, T0, K0)
        epi(0); epi(1)
        S0 = R.alloc(); Q0 = R.alloc()
        a(f"v_mov_b32 v{S0}, 0"); a(f"v_mov_b32 v{Q0}, 0")
        for r in range(32):
            a(f"v_add_f32 v{S0}, v{S0}, v{Z+r}"); a(f"v_fmac_f32 v{Q0}, v{Z+r}, v{Z+r}")
        self.half_op(S0, T0); self.half_op(Q0, T0)
        G = R.alloc(4)
        a(f"v_mov_b32 v{G}, v{S0}"); a(f"v_mov_b32 v{G+1}, v{Q0}"); a(f"v_mov_b32 v{G+2}, s{S_TAG}"); a(f"v_mov_b32 v{G+3}, s{S_TAG}")
        a("s_mul_i32 s55, s48, 14"); a("s_add_u32 s55, s55, s49"); a("s_lshl_b32 s55, s55, 11"); a(f"s_lshl_b32 s50, s{S_WAVE}, 9"); a("s_add_u32 s55, s55, s50")
        a(f"s_add_u32 s55, s55, {STATS}")
        a(f"v_lshlrev_b32 v{T1}, 4, v{V_L31}")
        vm.issue(f"buffer_store_dwordx4 {V(G,4)}, v{T1}, {srd(S_WS)}, s55 offen sc1")
        epi(2); epi(3)
        PF = R.alloc(16)
        for c in range(2):
            for d in range(8): a(f"v_cvt_pk_bf16_f32 v{PF+8*c+d}, v{Z+32+16*c+2*d}, v{Z+32+16*c+2*d+1}")
        a("s_mul_i32 s55, s52, 28"); a("s_lshl_b32 s50, s49, 1"); a("s_add_u32 s55, s55, s50"); a("s_lshl_b32 s55, s55, 11"); a(f"s_add_u32 s55, s55, {Z1F}")
        for q in range(4):
            vm.issue(f"buffer_store_dwordx4 {V(PF+4*q,4)}, v{V_L16}, {srd(S_WS)}, s55 offen offset:{q*1024} sc1")
        self.stamp()
        GR = R.alloc(28)
        a(f"v_mul_u32_u24 v{T0}, {7*2048}, v{V_HH}"); a(f"v_add_u32 v{T1}, v{T1}, v{T0}")
        a("s_mul_i32 s55, s48, 14"); a("s_lshl_b32 s55, s55, 11"); a(f"s_lshl_b32 s50, s{S_WAVE}, 9"); a("s_add_u32 s55, s55, s50"); a(f"s_add_u32 s55, s55, {STATS}")
        Lp = a.label("L_sp"); Ld = a.label("L_sd")
        vm.wait_all()
        a("s_mov_b32 s70, 0"); a(f"{Lp}:")
        a("s_mov_b32 s54, s55")
        for q in range(7):
            if q and q % 2 == 0: a("s_add_u32 s54, s54, 4096")
            a(f"buffer_load_dwordx4 {V(GR+4*q,4)}, v{T1}, {srd(S_WS)}, s54 offen offset:{(q%2)*2048} sc1")
        a("s_waitcnt vmcnt(0)")
        a(f"v_xor_b32 v{T0}, s{S_TAG}, v{GR+2}")
        for q in range(1, 7):
            a(f"v_xor_b32 v{G}, s{S_TAG}, v{GR+4*q+2}"); a(f"v_or_b32 v{T0}, v{T0}, v{G}")
        a(f"v_cmp_ne_u32 vcc, 0, v{T0}")
        a("s_add_u32 s70, s70, 1"); a("s_cmp_gt_u32 s70, 20000"); a(f"s_cbranch_scc1 {Ld}")
        a(f"s_cbranch_vccz {Ld}"); a("s_sleep 1"); a(f"s_branch {Lp}"); a(f"{Ld}:")
        self.stamp()
        for q in range(1, 7):
            a(f"v_add_f32 v{GR}, v{GR}, v{GR+4*q}"); a(f"v_add_f32 v{GR+1}, v{GR+1}, v{GR+4*q+1}")
        self.half_op(GR, T0); self.half_op(GR+1, T0)
        M3, R3 = GR, GR+1
        a(f"v_mul_f32 v{M3}, {lit(1/896)}, v{M3}"); a(f"v_mul_f32 v{R3}, {lit(1/896)}, v{R3}")
        a(f"v_fma_f32 v{R3}, -v{M3}, v{M3}, v{R3}"); a(f"v_max_f32 v{R3}, 0, v{R3}")
        a(f"v_add_f32 v{R3}, {lit(1e-5)}, v{R3}"); a(f"v_rsq_f32 v{R3}, v{R3}")
        a(f"v_mul_f32 v{M3}, v{M3}, v{R3}")
        for r in range(32): a(f"v_fma_f32 v{Z+r}, v{Z+r}, v{R3}, -v{M3}")
        for c in range(2):
            for d in range(8): a(f"v_cvt_pk_bf16_f32 v{PF+8*c+d}, v{Z+16*c+2*d}, v{Z+16*c+2*d+1}")
        WA = R.alloc(); RA = R.alloc(2, 1)
        a(f"s_lshl_b32 s50, s{S_WAVE}, 12"); a(f"s_add_u32 s50, s50, {LTR}")
        a(f"v_lshrrev_b32 v{T0}, 1, v{V_L31}"); a(f"v_and_b32 v{T0}, 7, v{T0}"); a(f"v_xor_b32 v{T0}, v{T0}, v{V_HH}"); a(f"v_lshlrev_b32 v{T0}, 3, v{T0}")
        a(f"v_lshlrev_b32 v{WA}, 6, v{V_L31}"); a(f"v_add_u32 v{WA}, v{WA}, v{T0}"); a(f"v_add_u32 v{WA}, s50, v{WA}")
        for c in range(2):
            for g in range(4):
                if g == 0: a(f"ds_write_b64 v{WA}, {V(PF+8*c,2)} offset:{c*2048}")
                else:
                    a(f"v_xor_b32 v{T0}, {g<<4}, v{WA}"); a(f"ds_write_b64 v{T0}, {V(PF+8*c+2*g,2)} offset:{c*2048}")
        a(f"v_lshrrev_b32 v{T0}, 2, v{V_LANE}"); a(f"v_and_b32 v{T0}, 3, v{T0}")
        a(f"v_lshlrev_b32 v{T1}, 3, v{V_HH}"); a(f"v_add_u32 v{T1}, v{T1}, v{T0}"); a(f"v_lshlrev_b32 v{RA}, 6, v{T1}")
        a(f"v_lshrrev_b32 v{T0}, 1, v{T0}"); a(f"v_lshlrev_b32 v{T1}, 2, v{V_HH}"); a(f"v_add_u32 v{T0}, v{T0}, v{T1}")
        a(f"v_lshrrev_b32 v{T1}, 4, v{V_LANE}"); a(f"v_and_b32 v{T1}, 1, v{T1}"); a(f"v_lshlrev_b32 v{T1}, 2, v{T1}")
        a(f"v_and_b32 v{G}, 3, v{V_LANE}"); a(f"v_add_u32 v{T1}, v{T1}, v{G}"); a(f"v_xor_b32 v{T0}, v{T0}, v{T1}"); a(f"v_lshlrev_b32 v{T0}, 3, v{T0}")
        a(f"v_add_u32 v{RA}, v{RA}, v{T0}"); a(f"v_add_u32 v{RA}, s50, v{RA}"); a(f"v_xor_b32 v{RA+1}, 16, v{RA}")
        a("s_waitcnt lgkmcnt(0)")
        for c in range(2):
            for st in range(2):
                for e in range(2):
                    r = PF + 8*c + 4*st + 2*e
                    a(f"ds_read_b64_tr_b16 v[{r}:{r+1}], v{RA+e} offset:{c*2048 + st*1024 + e*256}")
        a("s_waitcnt lgkmcnt(0)")
        for c in range(2):
            a("s_lshl_b32 s55, s49, 1"); a(f"s_add_u32 s55, s55, {c}"); a("s_lshl_b32 s55, s55, 6"); a("s_add_u32 s55, s55, s52"); a("s_lshl_b32 s55, s55, 11"); a(f"s_add_u32 s55, s55, {Z2F}")
            for st in range(2):
                vm.issue(f"buffer_store_dwordx4 {V(PF+8*c+4*st,4)}, v{V_L16}, {srd(S_WS)}, s55 offen offset:{st*1024} sc1")
        a("s_lshl_b32 s55, s49, 7"); a("s_lshl_b32 s50, s48, 2"); a("s_add_u32 s55, s55, s50"); a(f"s_add_u32 s55, s55, {F_Z}")
        self.set_flag(55)
        a(f"{skip}:")
        self.stamp()

    def phase_D(self):
        a, vm, R = self.a, self.vm, self.R
        R.reset()
        a.c("================ phase D : g = w_sp @ z2n + b ; u = z1*g ================")
        skip = "L_skipD"
        a(f"s_and_b32 s50, s{S_XCD}, 1"); a("s_lshl_b32 s50, s50, 2"); a(f"s_lshr_b32 s51, s{S_SLOT}, 3"); a("s_add_u32 s49, s50, s51")
        a("s_cmp_ge_u32 s49, 7"); a(f"s_cbranch_scc1 {skip}")
        a(f"s_lshr_b32 s50, s{S_XCD}, 1"); a("s_lshl_b32 s50, s50, 3"); a(f"s_and_b32 s51, s{S_SLOT}, 7"); a("s_add_u32 s48, s50, s51")
        self.stamp()
        t = R.alloc(4, 1); VE = R.alloc(); VO = R.alloc()
        a(f"v_lshrrev_b32 v{t}, 3, v{V_LANE}"); a(f"v_and_b32 v{t+1}, 7, v{V_LANE}"); a(f"v_lshrrev_b32 v{t+2}, 4, v{V_LANE}")
        a(f"v_xor_b32 v{t+3}, v{t+1}, v{t+2}"); a(f"v_lshlrev_b32 v{t+3}, 4, v{t+3}"); a(f"v_lshlrev_b32 v{t}, 12, v{t}"); a(f"v_add_u32 v{VE}, v{t}, v{t+3}")
        a(f"v_add_u32 v{t+2}, 4, v{t+2}"); a(f"v_xor_b32 v{t+3}, v{t+1}, v{t+2}"); a(f"v_lshlrev_b32 v{t+3}, 4, v{t+3}"); a(f"v_add_u32 v{VO}, v{t}, v{t+3}")
        a("s_lshl_b32 s52, s48, 18"); a(f"s_lshl_b32 s50, s{S_WAVE}, 10"); a("s_add_u32 s52, s52, s50"); a(f"s_mul_i32 s53, s{S_WAVE}, 24576")
        def dma(blk):
            for q in range(8):
                a(f"s_add_u32 m0, s53, {(blk%3)*8192 + q*1024}"); a(f"s_add_u32 s56, s52, {q*8*4096 + blk*128}")
                vm.issue(f"buffer_load_dwordx4 v{VE if q%2==0 else VO}, {srd(S_WSP)}, s56 offen lds", tag=("w", blk))
        dma(0); dma(1); dma(2)
        FA = R.alloc(4, 1)
        a(f"v_lshrrev_b32 v{t}, 1, v{V_L31}"); a(f"v_and_b32 v{t}, 7, v{t}"); a(f"v_xor_b32 v{t}, v{t}, v{V_HH}"); a(f"v_lshlrev_b32 v{t}, 4, v{t}")
        a(f"v_lshlrev_b32 v{FA}, 7, v{V_L31}"); a(f"v_add_u32 v{FA}, v{FA}, v{t}"); a(f"v_add_u32 v{FA}, s53, v{FA}")
        for s in range(1, 4): a(f"v_xor_b32 v{FA+s}, {s*32}, v{FA}")
        BI = R.alloc(2, 1)
        a(f"v_lshlrev_b32 v{t}, 1, v{V_L31}"); a("s_lshl_b32 s54, s48, 7")
        for tc in range(2):
            vm.issue(f"buffer_load_ushort v{BI+tc}, v{t}, {srd(S_BSP)}, s54 offen offset:{tc*64}", tag="bi")
        a(f"v_and_b32 v6, 15, v{V_LANE}"); a("v_lshlrev_b32 v6, 2, v6"); a(f"v_lshrrev_b32 v7, 4, v{V_LANE}"); a("v_and_b32 v7, 1, v7"); a("v_lshlrev_b32 v7, 7, v7"); a("v_add_u32 v6, v6, v7")
        a("s_lshl_b32 s55, s49, 8"); a(f"s_add_u32 s55, s55, {F_Z}")
        self.poll(55, 32, voff=6)
        self.stamp()
        ND = 5
        ZR = R.alloc(16 * ND); WF = R.alloc(16)
        for c in range(4):
            a("s_lshl_b32 s50, s49, 2"); a(f"s_add_u32 s50, s50, {c}"); a("s_lshl_b32 s50, s50, 6"); a(f"s_lshl_b32 s51, s{S_WAVE}, 4"); a("s_add_u32 s50, s50, s51")
            a("s_lshl_b32 s50, s50, 11"); a(f"s_add_u32 s{60+c}, s50, {Z2F}")
        def ldz(k):
            for c in range(4):
                if k % 4 == 0 and k > 0: a(f"s_add_u32 s{60+c}, s{60+c}, 4096")
                r = ZR + 16*(k % ND) + 4*c
                vm.issue(f"buffer_load_dwordx4 {V(r,4)}, v{V_L16}, {srd(S_WS)}, s{60+c} offen offset:{(k%4)*1024} sc1", tag=("z", k))
        for k in range(ND - 1): ldz(k)
        def rdw(k, buf):
            blk, sp = k // 4, k % 4
            for tc in range(2):
                r = WF + buf*8 + tc*4
                a(f"ds_read_b128 {V(r,4)}, v{FA+sp} offset:{(blk%3)*8192 + tc*4096}")
        rdw(0, 0)
        for k in range(32):
            blk, sp = k // 4, k % 4
            if k + ND - 1 < 32: ldz(k + ND - 1)
            if k + 1 < 32:
                if (k + 1) % 4 == 0: vm.wait(("w", (k+1)//4))
                rdw(k+1, (k+1) % 2); a("s_waitcnt lgkmcnt(2)")
            else: a("s_waitcnt lgkmcnt(0)")
            if sp == 0 and blk >= 1 and blk + 2 < 8:
                pass
            vm.wait(("z", k))
            wb = WF + (k % 2) * 8; zb = ZR + 16*(k % ND)
            for c in range(4):
                for tc in range(2):
                    acc = A(32*c + 16*tc, 16)
                    a(f"{MFMA} {acc}, {V(zb+4*c,4)}, {V(wb+4*tc,4)}, {'0' if k == 0 else acc}")
            if sp == 3 and blk + 3 < 8:
                dma(blk + 3)
        self.stamp()
        R.free(ZR, 16*ND); R.free(WF, 16)
        Z1 = R.alloc(16)
        for tc in range(2):
            a("s_lshl_b32 s50, s48, 1"); a(f"s_add_u32 s50, s50, {tc}"); a("s_mul_i32 s50, s50, 28"); a("s_lshl_b32 s51, s49, 2"); a("s_add_u32 s50, s50, s51"); a(f"s_add_u32 s50, s50, s{S_WAVE}")
            a(f"s_lshl_b32 s{60+tc}, s50, 11"); a(f"s_add_u32 s50, s{60+tc}, {Z1F}")
            for h in range(2):
                vm.issue(f"buffer_load_dwordx4 {V(Z1+8*tc+4*h,4)}, v{V_L16}, {srd(S_WS)}, s50 offen offset:{h*1024} sc1", tag="z1")
        a("s_barrier")
        a.flush(16)
        for c in range(4):
            L = a.label("L_r")
            a(f"s_cmp_eq_u32 s{S_WAVE}, {c}"); a(f"s_cbranch_scc1 {L}")
            a(f"s_sub_u32 s50, s{S_WAVE}, {c+1}"); a("s_and_b32 s50, s50, 3"); a("s_lshl_b32 s50, s50, 13"); a(f"s_add_u32 s50, s50, {c*24576}")
            a(f"v_add_u32 v{t}, s50, v{V_L16}")
            for q in range(8):
                a(f"ds_write_b128 v{t}, {A(32*c+4*q,4)} offset:{q*1024}")
            a(f"{L}:")
        a("s_waitcnt lgkmcnt(0)"); a("s_barrier")
        G = R.alloc(32); TM = R.alloc(32)
        Lj = a.label("L_j")
        for c in range(4):
            L = a.label("L_o")
            a(f"s_cmp_lg_u32 s{S_WAVE}, {c}"); a(f"s_cbranch_scc1 {L}")
            for r in range(32): a(f"v_accvgpr_read_b32 v{G+r}, a{32*c+r}")
            a(f"s_branch {Lj}")
            a(f"{L}:")
        a(f"{Lj}:")
        a(f"s_mul_i32 s50, s{S_WAVE}, 24576"); a(f"v_add_u32 v{t}, s50, v{V_L16}")
        for sl in range(3):
            for q in range(8): a(f"ds_read_b128 {V(TM+4*q,4)}, v{t} offset:{sl*8192+q*1024}")
            a("s_waitcnt lgkmcnt(0)")
            for r in range(32): a(f"v_add_f32 v{G+r}, v{G+r}, v{TM+r}")
        vm.wait("z1")
        T0 = R.alloc(); T1 = R.alloc()
        for tc in range(2):
            a(f"v_lshlrev_b32 v{BI+tc}, 16, v{BI+tc}")
            for d in range(8):
                g0 = G + 16*tc + 2*d
                a(f"v_add_f32 v{g0}, v{g0}, v{BI+tc}"); a(f"v_add_f32 v{g0+1}, v{g0+1}, v{BI+tc}")
                a(f"v_lshlrev_b32 v{T0}, 16, v{Z1+8*tc+d}"); a(f"v_and_b32 v{T1}, 0xffff0000, v{Z1+8*tc+d}")
                a(f"v_mul_f32 v{g0}, v{g0}, v{T0}"); a(f"v_mul_f32 v{g0+1}, v{g0+1}, v{T1}")
                a(f"v_cvt_pk_bf16_f32 v{TM+8*tc+d}, v{g0}, v{g0+1}")
            a(f"s_add_u32 s50, s{60+tc}, {UFR}")
            for h in range(2):
                vm.issue(f"buffer_store_dwordx4 {V(TM+8*tc+4*h,4)}, v{V_L16}, {srd(S_WS)}, s50 offen offset:{h*1024} sc1")
        a("s_lshl_b32 s55, s48, 7"); a("s_lshl_b32 s50, s49, 2"); a("s_add_u32 s55, s55, s50"); a(f"s_add_u32 s55, s55, {F_U}")
        self.set_flag(55)
        a(f"{skip}:")
        self.stamp()

    def phase_E(self):
        a, vm, R = self.a, self.vm, self.R
        R.reset()
        a.c("================ phase E : out = h + u @ w_out ================")
        skip = "L_skipE"
        self.map_BE(skip)
        self.stamp()
        t = R.alloc(4, 1)
        self.dma_w128(S_WOUT, 896, 28, t)
        a(f"s_and_b32 s52, s{S_WAVE}, 1"); a("s_lshl_b32 s50, s48, 1"); a("s_add_u32 s52, s52, s50"); a(f"s_lshr_b32 s53, s{S_WAVE}, 1")
        HR = R.alloc(8)
        a("s_lshl_b32 s50, s49, 1"); a("s_add_u32 s50, s50, s53"); a("s_mul_i32 s51, s52, 14"); a("s_add_u32 s50, s50, s51")
        a("s_lshl_b32 s55, s50, 11"); a(f"s_add_u32 s55, s55, {HFR}")
        B0 = R.alloc(2, 1)
        self.w128_bases(B0, t, 14*32*128)
        a("s_mov_b32 s54, s55")
        a("s_lshl_b32 s55, s48, 7"); a(f"s_add_u32 s55, s55, {F_U}")
        self.poll(55, 7)
        a("s_barrier")
        self.stamp()
        for h in range(2):
            vm.issue(f"buffer_load_dwordx4 {V(HR+4*h,4)}, v{V_L16}, {srd(S_WS)}, s54 offen offset:{h*1024} sc1", tag="hr")
        ACT = R.alloc(112)
        a("s_mul_i32 s55, s52, 28"); a("s_mul_i32 s50, s53, 14"); a("s_add_u32 s55, s55, s50"); a("s_lshl_b32 s55, s55, 11"); a(f"s_add_u32 s55, s55, {UFR}")
        for k in range(28):
            if k and k % 4 == 0: a("s_add_u32 s55, s55, 4096")
            vm.issue(f"buffer_load_dwordx4 {V(ACT+4*k,4)}, v{V_L16}, {srd(S_WS)}, s55 offen offset:{(k%4)*1024} sc1", tag=("act", k))
        ACC = R.alloc(32)
        self.small_gemm(28, lambda k: 16*k, ACT, B0, ACC, 114688)
        self.stamp()
        T0 = R.alloc(); T1 = R.alloc(); PF = R.alloc(8)
        for d in range(8):
            a(f"v_lshlrev_b32 v{T0}, 16, v{HR+d}"); a(f"v_and_b32 v{T1}, 0xffff0000, v{HR+d}")
            a(f"v_add_f32 v{ACC+2*d}, v{ACC+2*d}, v{T0}"); a(f"v_add_f32 v{ACC+2*d+1}, v{ACC+2*d+1}, v{T1}")
            a(f"v_cvt_pk_bf16_f32 v{PF+d}, v{ACC+2*d}, v{ACC+2*d+1}")
        a("s_nop 1")
        for p in range(2):
            a(f"v_permlane32_swap_b32 v{PF+4*p}, v{PF+4*p+2}"); a(f"v_permlane32_swap_b32 v{PF+4*p+1}, v{PF+4*p+3}")
        a(f"v_mul_u32_u24 v{T0}, 896, v{V_L31}"); a(f"v_lshlrev_b32 v{T1}, 4, v{V_HH}"); a(f"v_add_u32 v{T0}, v{T0}, v{T1}")
        a(f"s_mul_i32 s54, s52, {32*896}"); a("s_lshl_b32 s50, s49, 7"); a("s_add_u32 s54, s54, s50"); a("s_lshl_b32 s50, s53, 6"); a("s_add_u32 s54, s54, s50")
        for p in range(2):
            vm.issue(f"buffer_store_dwordx4 {V(PF+4*p,4)}, v{T0}, {srd(S_OUT)}, s54 offen offset:{p*32}")
        a(f"{skip}:")
        self.stamp()

    def build(self):
        self.prologue()
        for ph in "ABCDE":
            getattr(self, "phase_" + ph)()
            if ph == self.stop_after: break
        self.epilogue()
        body = pad_hazards(self.a.lines)
        hdr = open("cdna_kernels/" + NAME[:-7] + ".s.ref").read().split("; Override")[0]
        s = hdr + f"; @launch grid=(256,1,1) block=(256,1,1) lds={LDS_BYTES}\n"
        s += '.amdgcn_target "amdgcn-amd-amdhsa--gfx950"\n.text\n'
        s += f".globl {NAME}\n.p2align 8\n.type {NAME},@function\n{NAME}:\n" + "\n".join(body) + "\n"
        s += f""".section .rodata,"a"
.p2align 6
.amdhsa_kernel {NAME}
  .amdhsa_next_free_vgpr 512
  .amdhsa_next_free_sgpr 102
  .amdhsa_accum_offset 256
  .amdhsa_group_segment_fixed_size 0
  .amdhsa_kernarg_size 88
  .amdhsa_user_sgpr_count 2
  .amdhsa_user_sgpr_kernarg_segment_ptr 1
  .amdhsa_system_sgpr_workgroup_id_x 1
.end_amdhsa_kernel
"""
        return s

LDS_BYTES = 163840

if __name__ == "__main__":
    out = sys.argv[1]; stop = sys.argv[2] if len(sys.argv) > 2 else "E"; stamps = int(sys.argv[3]) if len(sys.argv) > 3 else 0
    import phases2
    g = Gen(stop, stamps)
    open(out, "w").write(g.build())
```

```python
import re

REG_RE = re.compile(r'\b([vas])(\d+)\b|\b([vas])\[(\d+):(\d+)\]|\b(vcc|exec|m0|scc)\b')

def regs_of(op):
    out = set()
    for m in REG_RE.finditer(op):
        if m.group(1): out.add((m.group(1), int(m.group(2))))
        elif m.group(3):
            for i in range(int(m.group(4)), int(m.group(5)) + 1): out.add((m.group(3), i))
        else: out.add((m.group(6), 0))
    return out

TRANS = ("v_exp_f32", "v_log_f32", "v_rcp_f32", "v_rsq_f32", "v_sqrt_f32", "v_sin_f32", "v_cos_f32")

class Ins:
    __slots__ = ("text", "mn", "kind", "dst", "src", "passes", "srcC", "nop", "is_label", "wide_store", "dpp", "lds_dma")
    def __init__(self, text):
        self.text = text
        t = text.split(";")[0].strip()
        self.is_label = t.endswith(":")
        self.dst = set(); self.src = set(); self.srcC = set(); self.passes = 0; self.nop = 1
        self.wide_store = False; self.dpp = False; self.lds_dma = False
        if self.is_label or not t or t.startswith("."):
            self.mn = ""; self.kind = "none"; self.nop = 0; return
        parts = t.split(None, 1)
        mn = parts[0]; self.mn = mn
        rest = parts[1] if len(parts) > 1 else ""
        ops = [o.strip() for o in split_ops(rest)]
        R = lambda o: regs_of(o)
        if mn == "s_nop":
            self.kind = "nop"; self.nop = int(ops[0], 0) + 1; return
        if mn.startswith("v_mfma"):
            self.kind = "mfma"; self.dst = R(ops[0]); self.src = R(ops[1]) | R(ops[2]); self.srcC = R(ops[3].split()[0])
            self.passes = 8 if "32x32x16" in mn else 4 if "16x16x32" in mn else 16
            return
        if mn.startswith("buffer_") or mn.startswith("global_"):
            self.kind = "vmem"
            if "lds" in rest.split() or "_lds_" in mn:
                self.lds_dma = True; self.src = set().union(*[R(o) for o in ops]) | {("m0", 0)}
            elif "_store" in mn:
                self.src = set().union(*[R(o) for o in ops]); self.wide_store = mn.endswith("x4") or mn.endswith("x3")
                self.srcC = R(ops[0]) if mn.startswith("buffer_") else R(ops[1])
            elif "atomic" in mn:
                self.src = set().union(*[R(o) for o in ops])
                if "sc0" in rest.split(): self.dst = R(ops[0])
            elif mn in ("buffer_wbl2", "buffer_inv"):
                pass
            else:
                self.dst = R(ops[0]); self.src = set().union(*[R(o) for o in ops[1:]])
            return
        if mn.startswith("ds_"):
            self.kind = "ds"
            if mn.startswith("ds_read") or mn.startswith("ds_bpermute") or mn.startswith("ds_swizzle") or mn.startswith("ds_permute"):
                self.dst = R(ops[0]); self.src = set().union(*[R(o) for o in ops[1:]])
            else:
                self.src = set().union(*[R(o) for o in ops])
            return
        if mn.startswith("v_"):
            self.kind = "trans" if mn.replace("_e32", "").replace("_e64", "") in TRANS else "valu"
            self.dpp = "_dpp" in mn or "quad_perm" in rest or "row_" in rest
            if mn.startswith("v_cmp"):
                self.dst = R(ops[0]); self.src = set().union(*[R(o) for o in ops[1:]])
            elif mn.startswith("v_permlane32_swap") or mn.startswith("v_permlane16_swap"):
                self.dst = R(ops[0]) | R(ops[1]); self.src = set(self.dst); self.kind = "permlane"
            elif mn.startswith("v_readfirstlane") or mn.startswith("v_readlane"):
                self.dst = R(ops[0]); self.src = set().union(*[R(o) for o in ops[1:]]); self.kind = "readlane"
            elif mn.startswith("v_add_co") or mn.startswith("v_sub_co") or mn.startswith("v_addc_co") or mn.startswith("v_subb_co"):
                self.dst = R(ops[0]) | R(ops[1]); self.src = set().union(*[R(o) for o in ops[2:]])
            else:
                self.dst = R(ops[0]); self.src = set().union(*[R(o) for o in ops[1:]]) if len(ops) > 1 else set()
                if mn.startswith("v_fmac") or mn.startswith("v_dot2c") or mn.startswith("v_pk_fmac") or self.dpp or mn.startswith("v_writelane"):
                    self.src |= self.dst
                if mn.startswith("v_cndmask") and len(ops) == 3: self.src |= {("vcc", 0)}
            return
        if mn.startswith("s_"):
            self.kind = "salu"
            if mn.startswith("s_cmp") or mn.startswith("s_cbranch") or mn.startswith("s_branch") or mn in ("s_waitcnt", "s_barrier", "s_endpgm", "s_sleep", "s_setprio") or mn.startswith("s_bitcmp"):
                self.src = set().union(*[R(o) for o in ops]) if ops else set()
            else:
                self.dst = R(ops[0]) if ops else set(); self.src = set().union(*[R(o) for o in ops[1:]]) if len(ops) > 1 else set()
                if "saveexec" in mn: self.dst |= {("exec", 0)}
            return
        raise ValueError("unknown instruction " + text)

def split_ops(rest):
    out = []; depth = 0; cur = ""
    for ch in rest:
        if ch == "[": depth += 1
        if ch == "]": depth -= 1
        if ch == "," and depth == 0:
            out.append(cur); cur = ""
        else: cur += ch
    if cur.strip(): out.append(cur)
    return out

def expand_vcc(s):
    return s

def is_vec(r): return r[0] in ("v", "a")

def need(prod, cons):
    n = 0
    pk, ck = prod.kind, cons.kind
    valu_p = pk in ("valu", "trans", "permlane", "readlane")
    valu_c = ck in ("valu", "trans", "permlane", "readlane")
    pv = {r for r in prod.dst if is_vec(r)}
    ps = {r for r in prod.dst if not is_vec(r)}
    if valu_p:
        if ck == "mfma" and pv & (cons.src | cons.srcC): n = max(n, 2)
        if ck == "readlane" and pv & cons.src: n = max(n, 1)
        if ck == "permlane" and pv & cons.src: n = max(n, 2)
        if valu_c and cons.dpp and pv & cons.src: n = max(n, 2)
        if pk == "trans" and valu_c and ck != "trans" and pv & cons.src: n = max(n, 1)
        if pk == "trans" and ck == "trans" and pv & cons.src: n = max(n, 1)
        if ps:
            if valu_c and ps & cons.src: n = max(n, 4 if ck == "readlane" else 2)
            if ck == "vmem" and ps & cons.src: n = max(n, 5)
            if ("exec", 0) in ps and (valu_c or ck == "mfma"): n = max(n, 5)
    if prod.mn.startswith("v_dot2"):
        if pv & (cons.src | cons.srcC | cons.dst):
            same_acc = cons.mn == prod.mn and not (pv & (cons.src - cons.dst))
            if not (cons.mn == prod.mn and cons.dst == prod.dst): n = max(n, 3)
    if pk == "mfma":
        p = prod.passes
        raw = {4: 8, 8: 12, 16: 20}[p]; ovl = {4: 6, 8: 10, 16: 18}[p]; war = {4: 3, 8: 7, 16: 15}[p]
        if ck == "mfma":
            if pv & cons.src: n = max(n, raw)
            if pv & cons.srcC:
                if not (cons.srcC == prod.dst and cons.passes == prod.passes): n = max(n, ovl)
            if pv & cons.dst and not (cons.dst == prod.dst): n = max(n, ovl)
        elif valu_c:
            if pv & (cons.src | cons.dst): n = max(n, raw)
            if prod.srcC & cons.dst: n = max(n, war)
        elif ck in ("vmem", "ds"):
            if pv & (cons.src | cons.dst): n = max(n, raw)
            if prod.srcC & cons.dst: n = max(n, war)
    if pk == "salu" and ("m0", 0) in prod.dst and cons.lds_dma: n = max(n, 1)
    if pk == "vmem" and prod.wide_store:
        if prod.srcC & cons.dst: n = max(n, 2 if valu_c else 1)
    return n

def pad_hazards(lines, window=24):
    out = []; hists = [[]]
    pending = {}
    seen_labels = {}
    flat = []
    def req_for(ins, hist):
        req = 0; dist = 0
        for p in reversed(hist):
            r = need(p, ins)
            if r > dist: req = max(req, r - dist)
            dist += p.nop
            if dist >= window: break
        return req
    for ln in lines:
        ins = Ins(ln)
        if ins.kind == "none":
            if ins.is_label:
                lab = ln.strip()[:-1]
                seen_labels[lab] = len(flat)
                if lab in pending:
                    hists = hists + pending.pop(lab)
                    hists = [h for h in hists if h is not None]
                    if not hists: hists = [[]]
            out.append(ln); continue
        live = [h for h in hists if h is not None]
        req = max([req_for(ins, h) for h in live] or [0])
        while req > 0:
            k = min(req, 16)
            nop = Ins(f"s_nop {k-1}")
            out.append(f"  s_nop {k-1}"); flat.append(nop)
            for h in live: h.append(nop)
            req -= k
        out.append(ln); flat.append(ins)
        for h in live: h.append(ins)
        trimmed = []
        for h in live:
            hh = h[-40:]
            if not any(len(hh) == len(t) and all(x is y for x, y in zip(hh, t)) for t in trimmed): trimmed.append(hh)
        ded = []
        for h in trimmed:
            key = tuple(id(x) for x in h[-window:])
            if key not in [k for k, _ in ded]: ded.append((key, h))
        hists = [h for _, h in ded]
        if ins.mn.startswith("s_cbranch") or ins.mn == "s_branch":
            tgt = ln.split()[-1]
            if tgt in seen_labels:
                tail = list(hists[0]); pos = seen_labels[tgt]; acc = list(tail)
                states = 0
                for q in flat[pos:pos+window]:
                    if req_for(q, acc) > 0:
                        raise RuntimeError(f"hazard across back edge to {tgt}: {q.text}")
                    acc.append(q)
            else:
                pending.setdefault(tgt, []).extend([list(h) for h in hists])
            if ins.mn == "s_branch": hists = [None]
        if ins.mn == "s_endpgm": hists = [None]
    return out

class Asm:
    def __init__(self): self.lines = []; self._lab = 0
    def __call__(self, s):
        for x in s.split("\n"):
            x = x.strip()
            if x: self.lines.append(("" if x.endswith(":") else "  ") + x)
    def label(self, base="L"):
        self._lab += 1; return f"{base}_{self._lab}"
    def c(self, s): self.lines.append(f"  ; {s}")
    def flush(self, n=16):
        while n > 0:
            k = min(n, 16); self(f"s_nop {k-1}"); n -= k

def vr(base, n=1):
    return f"v{base}" if n == 1 else f"v[{base}:{base+n-1}]"
def ar(base, n=1):
    return f"a{base}" if n == 1 else f"a[{base}:{base+n-1}]"
def sr(base, n=1):
    return f"s{base}" if n == 1 else f"s[{base}:{base+n-1}]"
```

```python
import sys, math, struct
from asmlib import Asm, pad_hazards

NAME = "sequential_preLN__sliding_block__mixer_gmlp__prompt_kernel"
WS_EPOCH = 0
F_KV = 0x1000; F_O = 0x2000; F_H = 0x3000; F_Z = 0x4000; F_U = 0x5000
STATS = 0x10000
HST = 0x80000
STAT1 = 0xC0000
KVF = 0x100000; OFR = 0x500000; HFR = 0x700000; Z1F = 0x900000; Z2F = 0xD00000; UFR = 0x1100000
DBG = 0x1600000

S_X, S_WQKV, S_WO, S_WIN, S_WSP, S_BSP, S_WOUT, S_OUT, S_WS = 8, 12, 16, 20, 24, 28, 32, 36, 40
S_TAG, S_WAVE, S_XCD, S_SLOT = 44, 45, 46, 47
V_LANE, V_L16, V_L31, V_HH = 1, 2, 3, 4
V_DUMMY = 252
V_TOUCH = 251
LOG2E = 1.4426950408889634
MFMA = "v_mfma_f32_32x32x16_bf16"
LDS_BYTES = 163840

def f2u(x): return struct.unpack("<I", struct.pack("<f", x))[0]
def lit(x): return "0x%08x" % f2u(x)
def srd(b): return f"s[{b}:{b+3}]"
def V(b, n=1): return f"v{b}" if n == 1 else f"v[{b}:{b+n-1}]"
def A(b, n=1): return f"a{b}" if n == 1 else f"a[{b}:{b+n-1}]"

class Regs:
    def __init__(self, lo, hi): self.lo, self.hi = lo, hi; self.used = set()
    def alloc(self, n=1, align=None):
        if align is None: align = 4 if n >= 4 else (2 if n >= 2 else 1)
        b = (self.lo + align - 1) // align * align
        while b + n <= self.hi:
            if not any((b + k) in self.used for k in range(n)):
                for k in range(n): self.used.add(b + k)
                return b
            b += align
        raise RuntimeError(f"out of registers for {n}")
    def free(self, b, n=1):
        for k in range(n): self.used.discard(b + k)
    def reset(self): self.used = set()

class VM:
    def __init__(self, a): self.a = a; self.ops = []
    def issue(self, text, tag=None): self.a(text); self.ops.append(tag)
    def wait(self, tag):
        idx = [k for k, t in enumerate(self.ops) if t == tag]
        if not idx: return
        last = idx[-1]; n = len(self.ops) - 1 - last
        assert n <= 63, n
        self.a(f"s_waitcnt vmcnt({n})"); self.ops = self.ops[last + 1:]
    def wait_all(self): self.a("s_waitcnt vmcnt(0)"); self.ops = []

def interleave(a, main, fill):
    n = len(main); m = len(fill); k = 0
    for i, x in enumerate(main):
        a(x)
        tgt = (i + 1) * m // n
        while k < tgt: a(fill[k]); k += 1

class Gen:
    def __init__(self, stop_after="E", stamps="", opts=None):
        self.a = Asm(); self.vm = VM(self.a); self.stop_after = stop_after; self.stamps = stamps
        self.nstamp = 0; self.stamp_names = []; self.R = Regs(10, 251); self.o = opts or {}

    def stamp(self, tag):
        if not self.stamps: return
        sel = self.stamps.split(",")
        coarse = ("A@0", "A@3", "A@6", "B@1", "B@3", "C@1", "C@5", "D@1", "D@3", "E@1", "E@3")
        if not (tag in sel or tag[0] in sel or ("c" in sel and tag in coarse)): return
        self.stamp_names.append(tag)
        k = self.nstamp; self.nstamp += 1
        assert k < 15
        self.a(f"s_memtime s[{72+2*k}:{73+2*k}]")

    def prologue(self):
        a = self.a
        a("s_getpc_b64 s[4:5]")
        a("s_load_dwordx16 s[48:63], s[0:1], 0")
        a("s_load_dwordx4 s[64:67], s[0:1], 64")
        a("s_load_dwordx2 s[68:69], s[0:1], 80")
        a("s_cmp_ge_u32 s2, 256"); a("s_cbranch_scc1 L_end")
        a(f"s_lshr_b32 s{S_SLOT}, s2, 3")
        a(f"s_mul_i32 s6, s{S_SLOT}, CODE_SLICE")
        a("v_lshlrev_b32 v5, 4, v0")
        a("v_cmp_gt_u32 vcc, CODE_SLICE, v5")
        a("s_mov_b64 s[70:71], vcc")
        a("v_add_u32 v5, s6, v5")
        a("v_cmp_gt_u32 vcc, CODE_BYTES, v5")
        a("s_and_b64 vcc, vcc, s[70:71]")
        a("s_and_saveexec_b64 s[6:7], vcc")
        a(f"global_load_dwordx4 {V(V_DUMMY,4)}, v5, s[4:5]")
        a("s_mov_b64 exec, s[6:7]")
        self.vm.ops.append("code")
        a(f"v_and_b32 v{V_LANE}, 63, v0"); a("v_lshrrev_b32 v5, 6, v0")
        a(f"v_lshlrev_b32 v{V_L16}, 4, v{V_LANE}"); a(f"v_and_b32 v{V_L31}, 31, v{V_LANE}"); a(f"v_lshrrev_b32 v{V_HH}, 5, v{V_LANE}")
        a(f"v_readfirstlane_b32 s{S_WAVE}, v5")
        a(f"s_and_b32 s{S_XCD}, s2, 7")
        self.phase_A_pre()
        a("s_waitcnt lgkmcnt(0)")
        a(f"s_load_dword s{S_TAG}, s[68:69], {WS_EPOCH}")
        def mk(base, lo, size):
            a(f"s_mov_b32 s{base}, s{lo}"); a(f"s_and_b32 s{base+1}, s{lo+1}, 0xffff")
            a(f"s_mov_b32 s{base+2}, {size}"); a(f"s_mov_b32 s{base+3}, 0x20000")
        mk(S_X, 48, 2048*448*2); mk(S_WQKV, 50, 448*1344*2); mk(S_WS, 68, 0x10000000); mk(S_WO, 52, 448*448*2)
        mk(S_WIN, 56, 448*1792*2); mk(S_WSP, 58, 2048*2048*2); mk(S_BSP, 60, 2048*2)
        mk(S_WOUT, 62, 896*448*2); mk(S_OUT, 64, 2048*448*2)
        self.tag_pending = True

    def tag_ready(self):
        if self.tag_pending:
            self.a("s_waitcnt lgkmcnt(0)"); self.a(f"s_add_u32 s{S_TAG}, s{S_TAG}, 1"); self.tag_pending = False

    def epilogue(self):
        a = self.a
        a("s_cmp_lg_u32 s2, 0"); a("s_cbranch_scc1 L_noepoch")
        a(f"s_cmp_lg_u32 s{S_WAVE}, 0"); a("s_cbranch_scc1 L_noepoch")
        a(f"v_mov_b32 v5, s{S_TAG}"); a(f"v_mov_b32 v6, {WS_EPOCH}")
        a("s_mov_b64 exec, 1")
        a(f"buffer_store_dword v5, v6, {srd(S_WS)}, 0 offen sc1")
        a("s_mov_b64 exec, -1")
        a("L_noepoch:")
        if self.stamps:
            a("s_waitcnt lgkmcnt(0)")
            a(f"s_lshl_b32 s48, s2, 2"); a(f"s_add_u32 s48, s48, s{S_WAVE}"); a("s_lshl_b32 s48, s48, 6"); a(f"s_add_u32 s48, s48, {DBG}")
            a("v_mov_b32 v6, 0"); a("s_mov_b64 exec, 1")
            for k in range(self.nstamp):
                a(f"v_mov_b32 v5, s{72+2*k}")
                a(f"buffer_store_dword v5, v6, {srd(S_WS)}, s48 offen offset:{4*k}")
            a("s_mov_b64 exec, -1")
        a("L_end:"); a("s_endpgm")

    def set_flag(self, soff):
        a = self.a
        self.vm.wait_all(); a("s_barrier")
        L = a.label("L_nf")
        a(f"s_cmp_lg_u32 s{S_WAVE}, 0"); a(f"s_cbranch_scc1 {L}")
        a(f"v_mov_b32 v5, s{S_TAG}"); a("v_mov_b32 v6, 0"); a("s_mov_b64 exec, 1")
        a(f"buffer_store_dword v5, v6, {srd(S_WS)}, s{soff} offen sc1")
        a("s_mov_b64 exec, -1"); a(f"{L}:")
        self.vm.ops.append("flag")

    def poll(self, soff, nflags, voff=None, drain=True):
        a = self.a
        if voff is None:
            a(f"v_min_u32 v9, {nflags-1}, v{V_LANE}"); a("v_lshlrev_b32 v9, 2, v9"); voff = 9
        Lp = a.label("L_poll"); Ld = a.label("L_pd"); Lo = a.label("L_po")
        a(f"s_cmp_lg_u32 s{S_WAVE}, 0"); a(f"s_cbranch_scc1 {Lo}")
        ld = lambda r: a(f"buffer_load_dword v{r}, v{voff}, {srd(S_WS)}, s{soff} offen sc1")
        for r in (5, 6, 7):
            ld(r); a("s_sleep 1")
        ld(8)
        a("s_mov_b32 s70, 0"); a(f"{Lp}:")
        for r in (5, 6, 7, 8):
            a("s_waitcnt vmcnt(3)")
            a(f"v_cmp_ne_u32 vcc, s{S_TAG}, v{r}")
            a(f"s_cbranch_vccz {Ld}")
            ld(r)
        a("s_add_u32 s70, s70, 1"); a("s_cmp_lt_u32 s70, 20000"); a(f"s_cbranch_scc1 {Lp}")
        a(f"s_branch {Ld}")
        a(f"{Lo}:")
        if drain: a("s_waitcnt vmcnt(0)")
        a(f"{Ld}:")
        a("s_barrier")
        if drain: self.vm.ops = ["p", "p", "p"]

    def half_op(self, v, t, op="v_add_f32"):
        a = self.a
        a(f"v_mov_b32 v{t}, v{v}"); a(f"v_permlane32_swap_b32 v{v}, v{t}"); a(f"{op} v{v}, v{v}, v{t}")

    def warm(self, srdb, nbytes, base_s=None):
        a, vm = self.a, self.vm
        per_wg = nbytes // 32; per_wave = per_wg // 4
        n = (per_wave + 1023) // 1024
        a(f"s_lshl_b32 s70, s{S_SLOT}, 2"); a(f"s_add_u32 s70, s70, s{S_WAVE}"); a(f"s_mul_i32 s70, s70, {per_wave}")
        if base_s is not None: a(f"s_add_u32 s70, s70, s{base_s}")
        for k in range(n):
            if k and k % 4 == 0: a("s_add_u32 s70, s70, 4096")
            vm.issue(f"buffer_load_dwordx4 {V(V_DUMMY,4)}, v{V_L16}, {srd(srdb)}, s70 offen offset:{(k%4)*1024}", tag="warm")

    def tr_base(self, dst, rowbytes, hhrows, t0, t1):
        a = self.a
        a(f"v_lshrrev_b32 v{t0}, 2, v{V_LANE}"); a(f"v_and_b32 v{t0}, 3, v{t0}")
        a(f"v_mul_u32_u24 v{t1}, {hhrows}, v{V_HH}"); a(f"v_add_u32 v{t0}, v{t0}, v{t1}"); a(f"v_mul_u32_u24 v{t0}, {rowbytes}, v{t0}")
        a(f"v_lshrrev_b32 v{t1}, 4, v{V_LANE}"); a(f"v_and_b32 v{t1}, 1, v{t1}"); a(f"v_lshlrev_b32 v{t1}, 5, v{t1}")
        a(f"v_add_u32 v{t0}, v{t0}, v{t1}")
        a(f"v_and_b32 v{t1}, 3, v{V_LANE}"); a(f"v_lshlrev_b32 v{t1}, 3, v{t1}")
        a(f"v_add_u32 v{dst}, v{t0}, v{t1}")

    def sched(self, mf, fill, lead=0):
        a = self.a
        tot = sum(c for _, c in fill); n = len(mf); k = 0; done = 0
        for i, x in enumerate(mf):
            a(x)
            tgt = tot * (i + 1) / n
            while k < len(fill) and (done + fill[k][1] / 2 <= tgt or i == n - 1):
                self.emit_fill(fill[k][0]); done += fill[k][1]; k += 1

    def emit_fill(self, x):
        if callable(x): x()
        else: self.a(x)

    def phase_A_pre(self):
        a, R = self.a, self.R
        R.reset()
        P = self.PA = {}
        P["VW0"] = VW0 = R.alloc(3, 1); P["VXE"] = VXE = R.alloc(); P["VXO"] = VXO = R.alloc(); P["t"] = t = R.alloc(4, 1); P["VSR"] = VSR = R.alloc()
        SI, SJ, STQ, SMM = 48, 49, 58, 62
        a(f"v_mul_u32_u24 v{t}, 896, v{V_HH}"); a(f"v_lshlrev_b32 v{t+1}, 4, v{V_L31}"); a(f"v_add_u32 v{t}, v{t}, v{t+1}")
        a(f"v_cmp_gt_u32 vcc, 28, v{V_L31}"); a(f"v_mov_b32 v{t+1}, 0x7ffffff0"); a(f"v_cndmask_b32 v{VSR}, v{t+1}, v{t}, vcc")
        a(f"v_lshrrev_b32 v{t}, 3, v{V_LANE}"); a(f"v_and_b32 v{t+1}, 7, v{V_LANE}"); a(f"v_lshrrev_b32 v{t+2}, 4, v{V_LANE}")
        a(f"v_xor_b32 v{t+3}, v{t+1}, v{t+2}"); a(f"v_lshlrev_b32 v{t+3}, 4, v{t+3}"); a(f"v_mul_u32_u24 v{t}, 896, v{t}"); a(f"v_add_u32 v{VXE}, v{t}, v{t+3}")
        a(f"v_add_u32 v{t+2}, 4, v{t+2}"); a(f"v_xor_b32 v{t+3}, v{t+1}, v{t+2}"); a(f"v_lshlrev_b32 v{t+3}, 4, v{t+3}"); a(f"v_add_u32 v{VXO}, v{t}, v{t+3}")
        a(f"v_lshrrev_b32 v{t}, 3, v{V_LANE}"); a(f"v_lshrrev_b32 v{t+1}, 4, v{V_LANE}"); a(f"v_lshrrev_b32 v{t+2}, 2, v{V_LANE}")
        a(f"v_xor_b32 v{t+1}, v{t+1}, v{t+2}"); a(f"v_and_b32 v{t+1}, 1, v{t+1}"); a(f"v_mul_u32_u24 v{t+1}, 896, v{t+1}")
        a(f"v_mul_u32_u24 v{t}, 2688, v{t}"); a(f"v_and_b32 v{t+3}, 3, v{V_LANE}"); a(f"v_lshlrev_b32 v{t+3}, 4, v{t+3}")
        a(f"v_add3_u32 v{VW0}, v{t}, v{t+1}, v{t+3}"); a(f"v_add_u32 v{VW0}, 896, v{VW0}")
        a(f"v_mul_u32_u24 v{t+2}, 2688, v{t+2}"); a(f"v_add_u32 v{VW0+1}, v{t+2}, v{t+3}")

    def phase_A(self):
        a, vm, R = self.a, self.vm, self.R
        a.c("================ phase A : LN1 + QKV + attention ================")
        P = self.PA; VW0, VXE, VXO, t, VSR = P["VW0"], P["VXE"], P["VXO"], P["t"], P["VSR"]
        SI, SJ, SXB, SWB, SLX, SLW, STQ = 48, 49, 52, 53, 54, 55, 58
        SMM = 62
        a(f"s_lshr_b32 s50, s{S_XCD}, 1"); a("s_lshl_b32 s50, s50, 2"); a(f"s_lshr_b32 s51, s{S_SLOT}, 3"); a(f"s_add_u32 s{SI}, s50, s51")
        a(f"s_and_b32 s50, s{S_XCD}, 1"); a("s_lshl_b32 s50, s50, 3"); a(f"s_and_b32 s71, s{S_SLOT}, 7"); a(f"s_add_u32 s{SJ}, s50, s71")
        a(f"s_lshl_b32 s{STQ}, s{SI}, 2"); a(f"s_add_u32 s{STQ}, s{STQ}, s{S_WAVE}"); a(f"s_mul_i32 s{SXB}, s{STQ}, {32*896}")
        self.stamp("A@0")
        LW = 0; LQ = 57344; LX = 86016; LPW = 151552; LKV = 102400
        SR = R.alloc(8)
        a(f"s_lshl_b32 s50, s{SI}, 7"); a(f"s_lshl_b32 s70, s{SJ}, 3"); a("s_add_u32 s50, s50, s70"); a(f"s_lshl_b32 s70, s{S_WAVE}, 1"); a("s_add_u32 s59, s50, s70")
        a("s_mul_i32 s50, s59, 896")
        vm.issue(f"buffer_load_dwordx4 {V(SR,4)}, v{VSR}, {srd(S_X)}, s50 offen", tag="sr")
        vm.issue(f"buffer_load_dwordx4 {V(SR+4,4)}, v{VSR}, {srd(S_X)}, s50 offen offset:448", tag="sr")
        a(f"s_lshl_b32 s51, s51, 1"); a(f"s_add_u32 s51, s51, s{SJ}"); a("s_mul_i32 s50, s51, 37"); a("s_lshr_b32 s50, s50, 8"); a("s_mul_i32 s50, s50, 7"); a("s_sub_u32 s51, s51, s50")
        if not self.o.get("rot_a", 1): a("s_mov_b32 s51, 0")
        a(f"s_lshl_b32 s{SMM}, s51, 7")
        a(f"s_lshl_b32 s{SLX}, s{S_WAVE}, 14"); a(f"s_add_u32 s{SLX}, s{SLX}, {LX}")
        a(f"s_mul_i32 s{SWB}, s{SJ}, 56"); a(f"s_mul_i32 s50, s{S_WAVE}, {16*2688}"); a(f"s_add_u32 s{SWB}, s{SWB}, s50")
        a(f"s_lshl_b32 s{SLW}, s{S_WAVE}, 11")
        def dma_list(m):
            out = []
            def pre():
                if m > 0:
                    a(f"s_add_u32 s{SMM+m}, s{SMM+m-1}, 128"); a(f"s_cmp_ge_u32 s{SMM+m}, 896"); a("s_cselect_b32 s71, 896, 0"); a(f"s_sub_u32 s{SMM+m}, s{SMM+m}, s71")
                a(f"s_add_u32 s57, s{SXB}, s{SMM+m}"); a(f"s_mul_i32 s61, s{SMM+m}, 1344"); a(f"s_add_u32 s61, s61, s{SWB}")
            out.append((pre, 16))
            for q in range(4):
                def f(q=q):
                    a(f"s_add_u32 m0, s{SLX}, {(m%4)*4096 + q*1024}"); a(f"s_add_u32 s56, s57, {q*7168}")
                    vm.issue(f"buffer_load_dwordx4 v{VXE if q%2==0 else VXO}, {srd(S_X)}, s56 offen lds", tag=("c", m))
                out.append((f, 16))
            for p in range(2):
                def f(p=p):
                    a(f"s_add_u32 m0, s{SLW}, {LW + m*8192 + p*1024}"); a(f"s_add_u32 s56, s61, {p*8*2688}")
                    vm.issue(f"buffer_load_dwordx4 v{VW0}, {srd(S_WQKV)}, s56 offen lds", tag=("c", m))
                out.append((f, 16))
            return out
        def dma_q(m):
            def f():
                a(f"s_mul_i32 s61, s{SMM+m}, 1344"); a(f"s_add_u32 s61, s61, s{SWB}")
                a(f"s_lshr_b32 s56, s{SLW}, 1"); a(f"s_add_u32 m0, s56, {LQ + m*4096}"); a("s_nop 0")
                vm.issue(f"buffer_load_dwordx4 v{VW0+1}, {srd(S_WQKV)}, s61 offen lds", tag="q")
            return [(f, 24)]
        for m in range(2):
            for f, _ in dma_list(m): f()
        self.stamp("A@1")
        ONES = R.alloc(4); S0 = R.alloc(); Q0 = R.alloc(); T0 = R.alloc(); T1 = R.alloc()
        for k in range(4): a(f"v_mov_b32 v{ONES+k}, 0x3f803f80")
        a(f"v_mov_b32 v{S0}, 0"); a(f"v_mov_b32 v{Q0}, 0")
        VXA = R.alloc(4, 1)
        a(f"v_lshrrev_b32 v{t}, 1, v{V_L31}"); a(f"v_and_b32 v{t}, 7, v{t}"); a(f"v_xor_b32 v{t}, v{t}, v{V_HH}"); a(f"v_lshlrev_b32 v{t}, 4, v{t}")
        a(f"v_lshlrev_b32 v{VXA}, 7, v{V_L31}"); a(f"v_add_u32 v{VXA}, v{VXA}, v{t}"); a(f"v_add_u32 v{VXA}, s{SLX}, v{VXA}")
        for s in range(1, 4): a(f"v_xor_b32 v{VXA+s}, {s*32}, v{VXA}")
        VWK = R.alloc(); VWV = R.alloc(); VWQ = R.alloc()
        self.tr_base(VWK, 128, 8, t, t+1)
        a(f"v_lshrrev_b32 v{t}, 3, v{V_LANE}"); a(f"v_and_b32 v{t}, 1, v{t}"); a(f"v_lshlrev_b32 v{t}, 6, v{t}")
        a(f"v_xor_b32 v{t+1}, 64, v{t}"); a(f"v_add_u32 v{VWV}, v{VWK}, v{t+1}"); a(f"v_add_u32 v{VWK}, v{VWK}, v{t}")
        self.tr_base(VWQ, 64, 8, t, t+1)
        a(f"v_add_u32 v{VWQ}, {LQ}, v{VWQ}")
        AK = R.alloc(16); AV = R.alloc(16); CK = R.alloc(16); CV = R.alloc(16)
        vm.wait("sr")
        for d in range(8):
            a(f"v_dot2_f32_bf16 v{S0}, v{SR+d}, v{ONES}, v{S0}"); a(f"v_dot2_f32_bf16 v{Q0}, v{SR+d}, v{SR+d}, v{Q0}")
        for rr in (8, 4, 2, 1):
            for v in (S0, Q0): a(f"v_add_f32_dpp v{v}, v{v}, v{v} row_ror:{rr} row_mask:0xf bank_mask:0xf")
        a(f"v_mov_b32 v{T0}, v{S0}"); a(f"v_mov_b32 v{T1}, v{Q0}")
        a(f"v_permlane16_swap_b32 v{S0}, v{T0}"); a(f"v_permlane16_swap_b32 v{Q0}, v{T1}")
        a(f"v_add_f32 v{S0}, v{S0}, v{T0}"); a(f"v_add_f32 v{Q0}, v{Q0}, v{T1}")
        a(f"v_mul_f32 v{S0}, {lit(1/448)}, v{S0}"); a(f"v_mul_f32 v{Q0}, {lit(1/448)}, v{Q0}")
        a(f"v_fma_f32 v{Q0}, -v{S0}, v{S0}, v{Q0}"); a(f"v_max_f32 v{Q0}, 0, v{Q0}")
        a(f"v_add_f32 v{Q0}, {lit(1e-5)}, v{Q0}"); a(f"v_rsq_f32 v{Q0}, v{Q0}")
        self.tag_ready()
        a(f"v_mov_b32 v{SR}, v{S0}"); a(f"v_mov_b32 v{SR+2}, s{S_TAG}"); a(f"v_mov_b32 v{SR+3}, s{S_TAG}"); a(f"v_mov_b32 v{SR+1}, v{Q0}")
        a(f"v_lshlrev_b32 v{T0}, 4, v{V_HH}"); a(f"s_lshl_b32 s50, s59, 4"); a(f"s_add_u32 s50, s50, {STAT1}")
        a("s_mov_b32 exec_lo, 1"); a("s_mov_b32 exec_hi, 1")
        vm.issue(f"buffer_store_dwordx4 {V(SR,4)}, v{T0}, {srd(S_WS)}, s50 offen sc1", tag="st1")
        a("s_mov_b64 exec, -1")
        NB = 2
        WF = R.alloc(8 * NB)
        def rd_x(m): return [(f"ds_read_b128 {A(16*m+4*s,4)}, v{VXA+s} offset:{(m%4)*4096}", 4) for s in range(4)]
        def rd_w(s):
            buf = s % NB; out = []
            for g, base in enumerate((VWK, VWV)):
                for e in range(2):
                    r = WF + buf*8 + g*4 + e*2
                    out.append((f"ds_read_b64_tr_b16 v[{r}:{r+1}], v{base} offset:{LW + s*2048 + e*512}", 4))
            return out
        def chunk_ready(m):
            vm.wait(("c", m)); a("s_barrier")
        SG = R.alloc(4); RK = R.alloc(16); MK = R.alloc(16); MR = R.alloc()
        chunk_ready(0)
        self.stamp("g0")
        for x, _ in rd_x(0) + rd_w(0): a(x)
        pend = []
        for s in range(28):
            m, sp = s // 4, s % 4
            fill = []
            if sp == 0 and m + 2 < 7: pend = dma_list(m + 2)
            if sp == 0 and m in (5, 6): pend = sum([dma_q(mq) for mq in (range(4) if m == 5 else range(4, 7))], [])
            a("s_waitcnt lgkmcnt(0)")
            if s + 1 < 28:
                if sp == 3:
                    fill.append((lambda m=m: chunk_ready(m + 1), 8)); fill += rd_x(m + 1)
                fill += rd_w(s + 1)
            take = 2 if sp < 3 else len(pend)
            fill += pend[:take]; pend = pend[take:]
            if s == 20:
                def sg():
                    a(f"v_lshlrev_b32 v{T0}, 4, v{V_L31}"); a(f"s_lshl_b32 s50, s{STQ}, 9"); a(f"s_add_u32 s60, s50, {STAT1}")
                    vm.issue(f"buffer_load_dwordx4 {V(SG,4)}, v{T0}, {srd(S_WS)}, s60 offen sc1", tag="sg")
                fill.append((sg, 16))
            x = A(16*m + 4*sp, 4); wb = WF + (s % NB) * 8
            c = lambda r: '0' if s == 0 else V(r, 16)
            mf = [f"{MFMA} {V(AK,16)}, {V(wb,4)}, {x}, {c(AK)}", f"{MFMA} {V(AV,16)}, {x}, {V(wb+4,4)}, {c(AV)}",
                  f"{MFMA} {V(CK,16)}, {V(wb,4)}, {V(ONES,4)}, {c(CK)}", f"{MFMA} {V(CV,16)}, {V(ONES,4)}, {V(wb+4,4)}, {c(CV)}"]
            self.sched(mf, fill)
        self.stamp("A@2")
        Lp = a.label("L_sg"); Ld = a.label("L_sgd")
        vm.wait("sg")
        a("s_mov_b32 s70, 0"); a(f"{Lp}:")
        a(f"v_cmp_ne_u32 vcc, s{S_TAG}, v{SG+2}"); a(f"s_cbranch_vccz {Ld}")
        a(f"v_lshlrev_b32 v{T0}, 4, v{V_L31}")
        a(f"buffer_load_dwordx4 {V(SG,4)}, v{T0}, {srd(S_WS)}, s60 offen sc1"); a("s_waitcnt vmcnt(0)")
        a("s_add_u32 s70, s70, 1"); a("s_cmp_lt_u32 s70, 20000"); a(f"s_cbranch_scc1 {Lp}")
        a(f"{Ld}:")
        MEAN, RSTD = SG, SG + 1
        a(f"v_mul_f32 v{MR}, v{MEAN}, v{RSTD}")
        a(f"v_lshlrev_b32 v{T1}, 2, v{V_L31}"); a(f"s_lshl_b32 s57, s{S_WAVE}, 8"); a(f"s_add_u32 s57, s57, {LPW}"); a(f"v_add_u32 v{T0}, s57, v{T1}")
        a(f"ds_write_b32 v{T0}, v{RSTD}"); a(f"ds_write_b32 v{T0}, v{MR} offset:128")
        a(f"v_lshlrev_b32 v{T0}, 4, v{V_HH}"); a(f"v_add_u32 v{T0}, s57, v{T0}")
        a("s_waitcnt lgkmcnt(0)")
        for gg in range(4):
            a(f"ds_read_b128 {V(RK+4*gg,4)}, v{T0} offset:{gg*32}"); a(f"ds_read_b128 {V(MK+4*gg,4)}, v{T0} offset:{128+gg*32}")
        KF = R.alloc(8); VF = R.alloc(8); MASKH = R.alloc(); MASKD = R.alloc(); ONED = R.alloc()
        a(f"v_cmp_eq_u32 vcc, 0, v{V_HH}"); a(f"v_cndmask_b32 v{MASKH}, 0, -1, vcc")
        a(f"v_cmp_gt_u32 vcc, 28, v{V_L31}"); a(f"v_cndmask_b32 v{MASKD}, 0, -1, vcc")
        a(f"v_cmp_eq_u32 vcc, 28, v{V_L31}"); a(f"v_cndmask_b32 v{ONED}, 0, v{ONES}, vcc")
        for r in range(0, 16, 2):
            a(f"v_pk_fma_f32 {V(AK+r,2)}, {V(MEAN,2)}, {V(CK+r,2)}, {V(AK+r,2)} op_sel_hi:[0,1,1] neg_lo:[1,0,0] neg_hi:[1,0,0]")
        for r in range(0, 16, 2):
            a(f"v_pk_mul_f32 {V(AK+r,2)}, {V(AK+r,2)}, {V(MEAN,2)} op_sel:[0,1] op_sel_hi:[1,1]")
        for d in range(8): a(f"v_cvt_pk_bf16_f32 v{KF+d}, v{AK+2*d}, v{AK+2*d+1}")
        for d in (6, 7): a(f"v_and_b32 v{KF+d}, v{KF+d}, v{MASKH}")
        a(f"s_lshl_b32 s56, s{SJ}, 6"); a(f"s_add_u32 s56, s56, s{STQ}"); a("s_lshl_b32 s56, s56, 12"); a(f"s_add_u32 s56, s56, {KVF}")
        for part, r in enumerate((KF, KF+4)):
            vm.issue(f"buffer_store_dwordx4 {V(r,4)}, v{V_L16}, {srd(S_WS)}, s56 offen offset:{part*1024} sc1")
        a("s_waitcnt lgkmcnt(0)")
        for r in range(0, 16, 2):
            a(f"v_pk_mul_f32 {V(MK+r,2)}, {V(MK+r,2)}, {V(CV+r,2)}")
            a(f"v_pk_fma_f32 {V(AV+r,2)}, {V(AV+r,2)}, {V(RK+r,2)}, {V(MK+r,2)} neg_lo:[0,0,1] neg_hi:[0,0,1]")
        for d in range(8): a(f"v_cvt_pk_bf16_f32 v{VF+d}, v{AV+2*d}, v{AV+2*d+1}")
        for d in range(8): a(f"v_and_or_b32 v{VF+d}, v{VF+d}, v{MASKD}, v{ONED}")
        for part, r in enumerate((VF, VF+4)):
            vm.issue(f"buffer_store_dwordx4 {V(r,4)}, v{V_L16}, {srd(S_WS)}, s56 offen offset:{2048+part*1024} sc1")
        vm.wait("q")
        a("s_barrier")
        a(f"s_lshl_b32 s50, s{S_WAVE}, 12"); a(f"s_add_u32 s50, s50, {LKV + 8*4096}"); a(f"v_add_u32 v{T0}, s50, v{V_L16}")
        for part, r in enumerate((KF, KF+4, VF, VF+4)):
            a(f"ds_write_b128 v{T0}, {V(r,4)} offset:{part*1024}")
        for b, n in ((CK,16),(CV,16),(RK,16),(MK,16),(AK,16),(AV,16),(WF,8*NB)): R.free(b, n)
        AQ = R.alloc(16); CQ = R.alloc(16); QW = R.alloc(16)
        def rd_q(s):
            return [(f"ds_read_b64_tr_b16 v[{QW+(s%4)*4+e*2}:{QW+(s%4)*4+e*2+1}], v{VWQ} offset:{s*1024 + e*256}", 4) for e in range(2)]
        for s in range(2):
            for x, _ in rd_q(s): a(x)
        a(f"s_lshl_b32 s59, s{SJ}, 7"); a(f"s_lshl_b32 s56, s{SI}, 2"); a("s_add_u32 s59, s59, s56"); a(f"s_add_u32 s59, s59, {F_KV}")
        R.free(KF, 8); R.free(VF, 8)
        for s in range(28):
            fill = rd_q(s + 2) if s + 2 < 28 else []
            a(f"s_waitcnt lgkmcnt({2 if s + 1 < 28 else 0})")
            c = lambda r: '0' if s == 0 else V(r, 16)
            q = V(QW + (s % 4)*4, 4)
            self.sched([f"{MFMA} {V(AQ,16)}, {q}, {A(4*s,4)}, {c(AQ)}", f"{MFMA} {V(CQ,16)}, {q}, {V(ONES,4)}, {c(CQ)}"], fill)
            if s == self.o.get("kvflag_at", 12):
                self.set_flag(59)
                self.stamp("A@3")
        RQ = R.alloc(2); QF = R.alloc(8)
        qscale = (28 ** -0.5) * LOG2E
        a(f"v_mul_f32 v{RQ}, {lit(qscale)}, v{RSTD}")
        CD = R.alloc(16); CF = R.alloc(16); CM = R.alloc(16); BS = R.alloc(); NBG = R.alloc()
        a(f"v_lshlrev_b32 v{BS}, 2, v{V_HH}"); a(f"v_sub_u32 v{BS}, v{V_L31}, v{BS}"); a(f"v_mov_b32 v{NBG}, {lit(-1e30)}")
        for r in range(16):
            c = (r & 3) + 8 * (r >> 2)
            a(f"v_cmp_le_i32 vcc, {c}, v{BS}")
            a(f"v_cndmask_b32 v{CD+r}, v{NBG}, 0, vcc"); a(f"v_cndmask_b32 v{CF+r}, 0, v{NBG}, vcc")
        for r in range(0, 16, 2):
            a(f"v_pk_fma_f32 {V(AQ+r,2)}, {V(MEAN,2)}, {V(CQ+r,2)}, {V(AQ+r,2)} op_sel_hi:[0,1,1] neg_lo:[1,0,0] neg_hi:[1,0,0]")
        for r in range(0, 16, 2):
            a(f"v_pk_mul_f32 {V(AQ+r,2)}, {V(AQ+r,2)}, {V(RQ,2)} op_sel_hi:[1,0]")
        for d in range(8): a(f"v_cvt_pk_bf16_f32 v{QF+d}, v{AQ+2*d}, v{AQ+2*d+1}")
        for d in (6, 7): a(f"v_and_b32 v{QF+d}, v{QF+d}, v{MASKH}")
        R.free(AQ, 16); R.free(QW, 16); R.free(CQ, 16)
        a(f"s_lshl_b32 s59, s{SJ}, 7"); a(f"s_add_u32 s59, s59, {F_KV}")
        a(f"s_sub_i32 s56, s{SI}, 1"); a("s_max_i32 s56, s56, 0"); a(f"s_sub_i32 s57, s{SI}, 2"); a("s_max_i32 s57, s57, 0")
        a("s_lshl_b32 s56, s56, 2"); a("s_lshl_b32 s57, s57, 2")
        a(f"v_mov_b32 v9, s56"); a(f"v_mov_b32 v{T0}, s57"); a(f"v_cmp_eq_u32 vcc, 0, v{V_HH}"); a(f"v_cndmask_b32 v9, v{T0}, v9, vcc")
        self.poll(59, 2, voff=9)
        self.stamp("A@4")
        a(f"s_lshl_b32 s59, s{SJ}, 18"); a(f"s_add_u32 s59, s59, {KVF}")
        for tt in range(2):
            a(f"s_lshl_b32 s56, s{SI}, 2"); a(f"s_lshl_b32 s57, s{S_WAVE}, 1"); a("s_add_u32 s56, s56, s57"); a(f"s_add_i32 s56, s56, {tt-8}"); a("s_max_i32 s56, s56, 0")
            a("s_lshl_b32 s56, s56, 12"); a("s_add_u32 s56, s56, s59")
            a(f"s_lshl_b32 s57, s{S_WAVE}, 13"); a(f"s_add_u32 s57, s57, {LKV + tt*4096}")
            for part in range(4):
                a(f"s_add_u32 m0, s57, {part*1024}"); a(f"s_add_u32 s50, s56, {part*1024}")
                vm.issue(f"buffer_load_dwordx4 v{V_L16}, {srd(S_WS)}, s50 offen sc1 lds", tag="kv")
        KA = R.alloc()
        a(f"s_lshl_b32 s50, s{S_WAVE}, 12"); a(f"s_add_u32 s50, s50, {LKV}"); a(f"v_add_u32 v{KA}, s50, v{V_L16}")
        a(f"s_sub_i32 s60, 8, s{STQ}"); a("s_max_i32 s60, s60, 0")
        SA = R.alloc(16); SB = R.alloc(16); O = R.alloc(16); PF = R.alloc(16); KR = R.alloc(16); VR = R.alloc(16); MX = R.alloc(2)
        a(f"v_mov_b32 v{MX}, {lit(-1e30)}"); a(f"v_mov_b32 v{MX+1}, {lit(-1e30)}")
        vm.wait("kv"); a("s_barrier")
        self.stamp("A@5")
        rk = lambda u: [(f"ds_read_b128 {V(KR+8*(u%2)+4*h,4)}, v{KA} offset:{u*4096+h*1024}", 4) for h in range(2)]
        rv = lambda u: [(f"ds_read_b128 {V(VR+8*(u%2)+4*h,4)}, v{KA} offset:{u*4096+2048+h*1024}", 4) for h in range(2)]
        def smf(u, c):
            S = SA if u % 2 == 0 else SB; k = KR + 8*(u % 2)
            return [f"{MFMA} {V(S,16)}, {V(k,4)}, {V(QF,4)}, {c}", f"{MFMA} {V(S,16)}, {V(k+4,4)}, {V(QF+4,4)}, {V(S,16)}"]
        def pvm(u):
            P = PF + 8*(u % 2); vr = VR + 8*(u % 2)
            return [f"{MFMA} {V(O,16)}, {V(vr,4)}, {V(P,4)}, {'0' if u == 0 else V(O,16)}", f"{MFMA} {V(O,16)}, {V(vr+4,4)}, {V(P+4,4)}, {V(O,16)}"]
        warm = (self.touch_list(S_WO, 448*448*2) + self.touch_list(S_WIN, 448*1792*2)) if self.o.get("warm", 1) else []
        Lslow = a.label("L_slow"); Ljoin = a.label("L_join")
        a("s_cmp_gt_u32 s60, 0"); a(f"s_cbranch_scc1 {Lslow}")
        saved_ops = list(vm.ops)
        cop1 = lambda u: V(CF,16) if u == 0 else (V(CD,16) if u == 8 else "0")
        for x, _ in rk(0) + rk(1): a(x)
        a("s_waitcnt lgkmcnt(2)")
        for x in smf(0, cop1(0)): a(x)
        for u in range(9):
            S = SA if u % 2 == 0 else SB
            mx = [(f"v_max3_f32 v{MX+(r//2)%2}, v{S+r}, v{S+r+1}, v{MX+(r//2)%2}", 4) for r in range(0, 16, 2)]
            if u + 1 < 9:
                a("s_waitcnt lgkmcnt(0)")
                self.sched(smf(u + 1, cop1(u + 1)), (rk(u + 2) if u + 2 < 9 else []) + mx)
            else:
                for x, _ in mx: a(x)
        self.stamp("p1")
        self.attn_mid(MX, T0, CM, CD, CF)
        self.stamp("p2")
        cop2 = lambda u: V(CF,16) if u == 0 else (V(CD,16) if u == 8 else V(CM,16))
        for x, _ in rk(0) + rk(1): a(x)
        a("s_waitcnt lgkmcnt(2)")
        for x in smf(0, cop2(0)): a(x)
        for u in range(10):
            mf = []; fill = []
            a("s_waitcnt lgkmcnt(0)")
            if u + 1 < 9: mf += smf(u + 1, cop2(u + 1))
            if u >= 1: mf += pvm(u - 1)
            if u < 9:
                S = SA if u % 2 == 0 else SB; P = PF + 8*(u % 2)
                fill += rv(u)
                if u + 2 < 9: fill += rk(u + 2)
                for d in range(8):
                    fill += [(f"v_exp_f32 v{S+2*d}, v{S+2*d}", 8), (f"v_exp_f32 v{S+2*d+1}, v{S+2*d+1}", 8)]
                    if d >= 1: fill.append((f"v_cvt_pk_bf16_f32 v{P+d-1}, v{S+2*d-2}, v{S+2*d-1}", 4))
                fill.append((f"v_cvt_pk_bf16_f32 v{P+7}, v{S+14}, v{S+15}", 4))
                fill += warm[:1]; warm = warm[1:]
            self.sched(mf, fill)
        for f, _ in warm: self.emit_fill(f)
        self.stamp("p3")
        a(f"s_branch {Ljoin}")
        fast_ops = list(vm.ops); vm.ops = saved_ops
        a(f"{Lslow}:")
        for u in range(9):
            L = a.label("L_s1")
            if u < 8: a(f"s_cmp_gt_u32 s60, {u}"); a(f"s_cbranch_scc1 {L}")
            for x, _ in rk(u): a(x)
            a("s_waitcnt lgkmcnt(0)")
            for x in smf(u, cop1(u)): a(x)
            S = SA if u % 2 == 0 else SB
            for r in range(0, 16, 2): a(f"v_max3_f32 v{MX}, v{S+r}, v{S+r+1}, v{MX}")
            a(f"{L}:")
        self.attn_mid(MX, T0, CM, CD, CF)
        for r in range(16): a(f"v_mov_b32 v{O+r}, 0")
        for u in range(9):
            L = a.label("L_s2")
            if u < 8: a(f"s_cmp_gt_u32 s60, {u}"); a(f"s_cbranch_scc1 {L}")
            S = SA if u % 2 == 0 else SB; P = PF + 8*(u % 2); vr = VR + 8*(u % 2)
            for x, _ in rk(u) + rv(u): a(x)
            a("s_waitcnt lgkmcnt(0)")
            for x in smf(u, cop2(u)): a(x)
            for r in range(16): a(f"v_exp_f32 v{S+r}, v{S+r}")
            for d in range(8): a(f"v_cvt_pk_bf16_f32 v{P+d}, v{S+2*d}, v{S+2*d+1}")
            a(f"{MFMA} {V(O,16)}, {V(vr,4)}, {V(P,4)}, {V(O,16)}")
            a(f"{MFMA} {V(O,16)}, {V(vr+4,4)}, {V(P+4,4)}, {V(O,16)}")
            a(f"{L}:")
        if self.o.get("warm", 1):
            for f, _ in self.touch_list(S_WO, 448*448*2) + self.touch_list(S_WIN, 448*1792*2): self.emit_fill(f)
        vm.ops = fast_ops
        a(f"{Ljoin}:")
        a(f"v_mov_b32 v{T0}, v{O+12}"); a(f"v_mov_b32 v{MX}, v{O+12}")
        a(f"v_permlane32_swap_b32 v{T0}, v{MX}")
        a(f"v_rcp_f32 v{MX}, v{MX}")
        for r in range(0, 16, 2): a(f"v_pk_mul_f32 {V(O+r,2)}, {V(O+r,2)}, {V(MX,2)} op_sel_hi:[1,0]")
        for d in range(8): a(f"v_cvt_pk_bf16_f32 v{PF+d}, v{O+2*d}, v{O+2*d+1}")
        for d in (6, 7): a(f"v_and_b32 v{PF+d}, v{PF+d}, v{MASKH}")
        a(f"s_lshl_b32 s56, s{STQ}, 4"); a(f"s_add_u32 s56, s56, s{SJ}"); a("s_lshl_b32 s56, s56, 11"); a(f"s_add_u32 s56, s56, {OFR}")
        for h in range(2):
            vm.issue(f"buffer_store_dwordx4 {V(PF+4*h,4)}, v{V_L16}, {srd(S_WS)}, s56 offen offset:{h*1024} sc1")
        a(f"s_lshl_b32 s59, s{SI}, 7"); a(f"s_lshl_b32 s56, s{SJ}, 2"); a("s_add_u32 s59, s59, s56"); a(f"s_add_u32 s59, s59, {F_O}")
        self.set_flag(59)
        self.stamp("A@6")

    def warm_list(self, srdb, nbytes, sreg=69):
        a, vm = self.a, self.vm
        per_wave = nbytes // 128; n = (per_wave + 1023) // 1024; out = []
        for k in range(n):
            def f(k=k):
                if k == 0:
                    a(f"s_lshl_b32 s{sreg}, s{S_SLOT}, 2"); a(f"s_add_u32 s{sreg}, s{sreg}, s{S_WAVE}"); a(f"s_mul_i32 s{sreg}, s{sreg}, {per_wave}")
                elif k % 4 == 0: a(f"s_add_u32 s{sreg}, s{sreg}, 4096")
                vm.issue(f"buffer_load_dwordx4 {V(V_DUMMY,4)}, v{V_L16}, {srd(srdb)}, s{sreg} offen offset:{(k%4)*1024}", tag="warm")
            out.append((f, 8))
        return out

    def attn_mid(self, MX, T0, CM, CD, CF):
        a = self.a
        a(f"v_max_f32 v{MX}, v{MX}, v{MX+1}")
        self.half_op(MX, T0, "v_max_f32")
        for r in range(16): a(f"v_sub_f32 v{CM+r}, 0, v{MX}")
        for r in range(0, 16, 2):
            a(f"v_pk_add_f32 {V(CD+r,2)}, {V(CD+r,2)}, {V(CM,2)}"); a(f"v_pk_add_f32 {V(CF+r,2)}, {V(CF+r,2)}, {V(CM,2)}")

    def touch_list(self, srdb, nbytes, sreg=69, base=None):
        a, vm = self.a, self.vm
        per_wave = (nbytes // 128 + 63) // 64 * 64; n = (per_wave + 4095) // 4096; out = []
        for k in range(n):
            def f(k=k):
                if k == 0:
                    a(f"s_lshl_b32 s{sreg}, s{S_SLOT}, 2"); a(f"s_add_u32 s{sreg}, s{sreg}, s{S_WAVE}"); a(f"s_mul_i32 s{sreg}, s{sreg}, {per_wave}")
                    if base is not None: a(f"s_add_u32 s{sreg}, s{sreg}, s{base}")
                    a(f"v_lshlrev_b32 v{V_TOUCH}, 6, v{V_LANE}")
                else: a(f"s_add_u32 s{sreg}, s{sreg}, 4096")
                vm.issue(f"buffer_load_dword v{V_DUMMY}, v{V_TOUCH}, {srd(srdb)}, s{sreg} offen", tag="warm")
            out.append((f, 12))
        return out

    def idle_prefetch(self, skip, part):
        a = self.a
        Lo = a.label("L_ip")
        a(f"s_branch {Lo}")
        a(f"{skip}:")
        idn = self.o.get("idle_n", [6, 10])
        n = idn[part] if part < 2 else 13
        first = 0 if part != 1 else idn[0]
        if n:
            if part < 2: a(f"s_lshl_b32 s50, s{S_XCD}, 20")
            else: a("s_mov_b32 s50, 0")
            a(f"s_sub_u32 s51, s{S_SLOT}, 28"); a("s_lshl_b32 s51, s51, 2"); a(f"s_add_u32 s51, s51, s{S_WAVE}"); a("s_lshl_b32 s51, s51, 12"); a("s_add_u32 s50, s50, s51")
            a(f"s_add_u32 s50, s50, {first*16*4096}")
            a(f"v_lshlrev_b32 v{V_TOUCH}, 6, v{V_LANE}")
            Ll = a.label("L_il")
            a(f"s_mov_b32 s51, {n}")
            a(f"{Ll}:")
            a(f"buffer_load_dword v{V_DUMMY}, v{V_TOUCH}, {srd(S_WSP if part < 2 else S_WOUT)}, s50 offen")
            a(f"s_add_u32 s50, s50, {16*4096}"); a("s_sub_u32 s51, s51, 1"); a("s_cmp_lg_u32 s51, 0"); a(f"s_cbranch_scc1 {Ll}")
            a("s_waitcnt vmcnt(0)")
        a(f"{Lo}:")

    def dma_by_all(self, items, tagf):
        a, vm = self.a, self.vm
        assert len(items) % 4 == 0
        Lnp = a.label("L_np")
        for wv in range(4):
            Lw = a.label("L_w")
            if wv < 3:
                a(f"s_cmp_lg_u32 s{S_WAVE}, {wv}"); a(f"s_cbranch_scc1 {Lw}")
            state = {}
            for n, it in enumerate(items):
                if n % 4 == wv: it(state)
            if wv < 3:
                a(f"s_branch {Lnp}")
                a(f"{Lw}:")
        a(f"{Lnp}:")
        vm.ops += [tagf(n) for n in range(len(items)) if n % 4 == 0]

    def dma_by_123(self, items, tagf):
        a, vm = self.a, self.vm
        Lnp = a.label("L_np")
        a(f"s_cmp_eq_u32 s{S_WAVE}, 0"); a(f"s_cbranch_scc1 {Lnp}")
        for wv in (1, 2, 3):
            Lw = a.label("L_w")
            if wv < 3:
                a(f"s_cmp_lg_u32 s{S_WAVE}, {wv}"); a(f"s_cbranch_scc1 {Lw}")
            state = {}
            for n, it in enumerate(items):
                if n % 3 == wv - 1: it(state)
            if wv < 3:
                a(f"s_branch {Lnp}")
                a(f"{Lw}:")
        a(f"{Lnp}:")
        mod = [tagf(n) for n in range(len(items)) if n % 3 == 0]
        mod.pop(); vm.ops += mod

    def d_map(self):
        a = self.a
        a(f"s_mul_i32 s50, s{S_SLOT}, 37"); a("s_lshr_b32 s50, s50, 8")
        a("s_mul_i32 s51, s50, 7"); a(f"s_sub_u32 s94, s{S_SLOT}, s51")
        a(f"s_lshl_b32 s95, s{S_XCD}, 2"); a("s_add_u32 s95, s95, s50")
        a(f"s_mul_i32 s96, s50, {self.o.get('rotm', 0)}"); a("s_and_b32 s51, s94, 3"); a(f"s_mul_i32 s51, s51, {self.o.get('rotf', 0)}"); a("s_add_u32 s96, s96, s51")
        a("s_lshl_b32 s97, s95, 18")

    def d_lanes(self, VE, VO, t):
        a = self.a
        a(f"v_lshrrev_b32 v{t}, 3, v{V_LANE}"); a(f"v_and_b32 v{t+1}, 7, v{V_LANE}"); a(f"v_lshrrev_b32 v{t+2}, 4, v{V_LANE}")
        a(f"v_xor_b32 v{t+3}, v{t+1}, v{t+2}"); a(f"v_lshlrev_b32 v{t+3}, 4, v{t+3}"); a(f"v_lshlrev_b32 v{t}, 12, v{t}"); a(f"v_add_u32 v{VE}, v{t}, v{t+3}")
        a(f"v_add_u32 v{t+2}, 4, v{t+2}"); a(f"v_xor_b32 v{t+3}, v{t+1}, v{t+2}"); a(f"v_lshlrev_b32 v{t+3}, 4, v{t+3}"); a(f"v_add_u32 v{VO}, v{t}, v{t+3}")

    def d_early_items(self, VE, VO, NS=8):
        a, vm = self.a, self.vm
        out = []
        blocks = [(b, kh) for b in range(NS) for kh in range(2) if kh*NS*8192 + b*8192 + 8192 <= 114688]
        for (b, kh) in blocks:
            for h in range(2):
                def f(b=b, kh=kh, h=h):
                    if h == 0:
                        a(f"s_add_u32 s98, s96, {b}"); a("s_and_b32 s98, s98, 15"); a("s_lshl_b32 s98, s98, 7"); a("s_add_u32 s98, s98, s97")
                        a(f"s_lshl_b32 s99, s{S_WAVE}, 16"); a("s_add_u32 s98, s98, s99")
                    a(f"s_lshl_b32 s99, s{S_WAVE}, 11"); a(f"s_add_u32 m0, s99, {kh*NS*8192 + b*8192 + h*1024}")
                    a(f"s_add_u32 s99, s98, {kh*2048 + h*8*4096}")
                    vm.issue(f"buffer_load_dwordx4 v{VE if h == 0 else VO}, {srd(S_WSP)}, s99 offen lds", tag=("w", b))
                out.append((f, 28))
        return out, blocks

    def map_BE(self, skip):
        a = self.a
        a(f"s_cmp_ge_u32 s{S_SLOT}, 28"); a(f"s_cbranch_scc1 {skip}")
        a(f"s_mul_i32 s50, s{S_SLOT}, 37"); a("s_lshr_b32 s50, s50, 8")
        a("s_mul_i32 s51, s50, 7"); a(f"s_sub_u32 s49, s{S_SLOT}, s51")
        a(f"s_lshl_b32 s48, s{S_XCD}, 2"); a("s_add_u32 s48, s48, s50")
        a(f"s_and_b32 s52, s{S_WAVE}, 1"); a("s_lshl_b32 s50, s48, 1"); a("s_add_u32 s52, s52, s50"); a(f"s_lshr_b32 s53, s{S_WAVE}, 1")

    def w128_lane(self, dst, rowbytes, t):
        a = self.a
        a(f"v_lshrrev_b32 v{t}, 3, v{V_LANE}"); a(f"v_mul_u32_u24 v{t}, {rowbytes}, v{t}")
        a(f"v_lshrrev_b32 v{t+1}, 4, v{V_LANE}"); a(f"v_and_b32 v{t+1}, 1, v{t+1}"); a(f"v_lshlrev_b32 v{t+1}, 2, v{t+1}")
        a(f"v_and_b32 v{t+2}, 7, v{V_LANE}"); a(f"v_xor_b32 v{t+2}, v{t+2}, v{t+1}"); a(f"v_lshlrev_b32 v{t+2}, 4, v{t+2}")
        a(f"v_add_u32 v{dst}, v{t}, v{t+2}")

    def w128_bases(self, B0, t, wave_bytes_reg=None, const=0):
        a = self.a
        a(f"v_lshrrev_b32 v{t}, 2, v{V_LANE}"); a(f"v_and_b32 v{t}, 3, v{t}")
        a(f"v_lshlrev_b32 v{t+1}, 2, v{V_HH}"); a(f"v_add_u32 v{t+1}, v{t+1}, v{t}"); a(f"v_lshlrev_b32 v{t+1}, 7, v{t+1}")
        a(f"v_lshrrev_b32 v{t+2}, 4, v{V_LANE}"); a(f"v_and_b32 v{t+2}, 1, v{t+2}"); a(f"v_lshlrev_b32 v{t+2}, 5, v{t+2}")
        a(f"v_add_u32 v{t+1}, v{t+1}, v{t+2}")
        a(f"v_and_b32 v{t+2}, 3, v{V_LANE}"); a(f"v_lshlrev_b32 v{t+2}, 3, v{t+2}"); a(f"v_add_u32 v{t+1}, v{t+1}, v{t+2}")
        a(f"v_lshrrev_b32 v{t}, 1, v{t}"); a(f"v_lshlrev_b32 v{t}, 6, v{t}")
        if wave_bytes_reg is not None: a(f"v_add_u32 v{t+1}, s{wave_bytes_reg}, v{t+1}")
        if const: a(f"v_add_u32 v{t+1}, {const}, v{t+1}")
        a(f"v_add_u32 v{B0}, v{t+1}, v{t}")
        a(f"v_xor_b32 v{t}, 64, v{t}"); a(f"v_add_u32 v{B0+1}, v{t+1}, v{t}")

    def small_phase(self, ph):
        a, vm, R = self.a, self.vm, self.R
        R.reset()
        isB = ph == "B"
        NB = 8 if isB else 14
        rows_per_blk = 28 if isB else 32
        SW = S_WO if isB else S_WOUT
        ACTB = OFR if isB else UFR; nact = 16 if isB else 28
        skip = f"L_skip{ph}"
        self.map_BE(skip)
        self.stamp(f"{ph}@0")
        t = R.alloc(4, 1); VW = R.alloc()
        self.w128_lane(VW, 896, t)
        a(f"s_{'mov_b32 s54, s49' if isB else 'lshl_b32 s54, s49, 1'}" if self.o.get("rot_" + ph.lower(), 0) else "s_mov_b32 s54, 0")
        a("s_lshl_b32 s55, s49, 7")
        a(f"s_lshl_b32 s58, s52, {4 if isB else 0}") if isB else a("s_mul_i32 s58, s52, 28")
        a(f"s_mul_i32 s50, s53, {NB}"); a("s_add_u32 s58, s58, s50"); a("s_lshl_b32 s58, s58, 11"); a(f"s_add_u32 s58, s58, {ACTB}")
        items = []
        for b in range(NB):
            for kh_ in range(2):
                for g in range(4):
                    def it(st, b=b, kh_=kh_, g=g):
                        if st.get("b") != b:
                            a(f"s_add_u32 s56, s54, {b}"); a(f"s_cmp_ge_u32 s56, {NB}"); a(f"s_cselect_b32 s50, {NB}, 0"); a("s_sub_u32 s56, s56, s50")
                            a(f"s_mul_i32 s56, s56, {rows_per_blk*896}"); a("s_add_u32 s56, s56, s55"); st["b"] = b
                        a(f"s_mov_b32 m0, {(kh_*NB + b)*4096 + g*1024}"); a(f"s_add_u32 s50, s56, {kh_*NB*rows_per_blk*896 + g*8*896}")
                        a(f"buffer_load_dwordx4 v{VW}, {srd(SW)}, s50 offen lds")
                    items.append(it)
        self.dma_by_all(items, lambda n: "w")
        XR = R.alloc(8)
        if isB:
            a(f"v_mul_u32_u24 v{t+3}, 896, v{V_L31}"); a(f"v_lshlrev_b32 v{t+2}, 3, v{V_HH}"); a(f"v_add_u32 v{t+3}, v{t+3}, v{t+2}")
            a(f"s_mul_i32 s54, s52, {32*896}"); a("s_lshl_b32 s50, s49, 7"); a("s_add_u32 s54, s54, s50"); a("s_lshl_b32 s50, s53, 6"); a("s_add_u32 s54, s54, s50")
            for g in range(4):
                vm.issue(f"buffer_load_dwordx2 {V(XR+2*g,2)}, v{t+3}, {srd(S_X)}, s54 offen offset:{g*16}", tag="xr")
        B0 = R.alloc(2, 1)
        a(f"s_mul_i32 s51, s53, {NB*4096}")
        self.w128_bases(B0, t, 51)
        if isB:
            a("s_lshr_b32 s55, s48, 1"); a("s_lshl_b32 s55, s55, 7"); a(f"s_add_u32 s55, s55, {F_O}"); self.poll(55, 16, drain=False)
        else:
            a("s_lshl_b32 s55, s48, 7"); a(f"s_add_u32 s55, s55, {F_U}"); self.poll(55, 7, drain=False)
        self.stamp(f"{ph}@1")
        ACT = R.alloc(8 * NB)
        a(f"s_{'mov_b32 s54, s49' if isB else 'lshl_b32 s54, s49, 1'}" if self.o.get("rot_" + ph.lower(), 0) else "s_mov_b32 s54, 0")
        def ld_act(k):
            b, st = k // 2, k % 2
            def f():
                if st == 0:
                    a(f"s_cmp_ge_u32 s54, {NB}"); a(f"s_cselect_b32 s50, {NB}, 0"); a("s_sub_u32 s54, s54, s50")
                    a("s_lshl_b32 s59, s54, 11"); a("s_add_u32 s59, s59, s58"); a("s_add_u32 s54, s54, 1")
                vm.issue(f"buffer_load_dwordx4 {V(ACT+8*b+4*st,4)}, v{V_L16}, {srd(S_WS)}, s59 offen offset:{st*1024} sc1", tag=("act", k))
            return [(f, 16 if st == 0 else 4)]
        PD = self.o.get("pd_small", 6)
        for k in range(PD):
            for f, _ in ld_act(k): f()
        def ld_res():
            a("s_lshl_b32 s50, s49, 1"); a("s_add_u32 s50, s50, s53"); a("s_mul_i32 s51, s52, 14"); a("s_add_u32 s50, s50, s51")
            a("s_lshl_b32 s55, s50, 11"); a(f"s_add_u32 s55, s55, {HFR}")
            for h in range(2):
                vm.issue(f"buffer_load_dwordx4 {V(XR+4*h,4)}, v{V_L16}, {srd(S_WS)}, s55 offen offset:{h*1024} sc1", tag="xr")
        vm.wait("w"); a("s_barrier")
        ACC = R.alloc(32); WF = R.alloc(24)
        nk = 2 * NB
        def rd(k):
            out = []
            for c in range(2):
                for e in range(2):
                    r = WF + (k % 3)*8 + c*4 + e*2
                    out.append((f"ds_read_b64_tr_b16 v[{r}:{r+1}], v{B0+c} offset:{(k//2)*4096 + ((k%2)*16 + 8*e)*128}", 4))
            return out
        for k in range(2):
            for x, _ in rd(k): a(x)
        for k in range(nk):
            a(f"s_waitcnt lgkmcnt({4 if k + 1 < nk else 0})")
            vm.wait(("act", k))
            wb = WF + (k % 3) * 8
            mf = [f"{MFMA} {V(ACC+16*c,16)}, {V(wb+4*c,4)}, {V(ACT+4*k,4)}, {'0' if k == 0 else V(ACC+16*c,16)}" for c in range(2)]
            fill = (ld_act(k + PD) if k + PD < nk else []) + (rd(k + 2) if k + 2 < nk else [])
            if not isB and k == nk - PD: fill.append((ld_res, 32))
            self.sched(mf, fill)
        R.free(WF, 24); R.free(ACT, 8*NB)
        LEX = 65536 if isB else 114688
        a(f"s_lshl_b32 s50, s{S_WAVE}, 12"); a(f"s_add_u32 s50, s50, {LEX}"); a(f"v_add_u32 v{t}, s50, v{V_L16}")
        a(f"s_xor_b32 s51, s{S_WAVE}, 2"); a("s_lshl_b32 s51, s51, 12"); a(f"s_add_u32 s51, s51, {LEX}"); a(f"v_add_u32 v{t+1}, s51, v{V_L16}")
        La = a.label("L_x"); Lb = a.label("L_x")
        a(f"s_cmp_lt_u32 s{S_WAVE}, 2"); a(f"s_cbranch_scc1 {La}")
        for q in range(4): a(f"ds_write_b128 v{t}, {V(ACC+4*q,4)} offset:{q*1024}")
        a("s_nop 1")
        for r in range(0, 16, 2): a(f"v_pk_mul_f32 {V(ACC+r,2)}, {V(ACC+16+r,2)}, 1.0 op_sel_hi:[1,0]")
        a(f"s_branch {Lb}")
        a(f"{La}:")
        for q in range(4): a(f"ds_write_b128 v{t}, {V(ACC+16+4*q,4)} offset:{q*1024}")
        a(f"{Lb}:")
        a("s_waitcnt lgkmcnt(0)"); a("s_barrier")
        for q in range(4): a(f"ds_read_b128 {V(ACC+16+4*q,4)}, v{t+1} offset:{q*1024}")
        self.stamp(f"{ph}@2")
        T0 = R.alloc(); T1 = R.alloc(); PF = R.alloc(8); XF = R.alloc(16)
        vm.wait("xr")
        for d in range(8):
            a(f"v_lshlrev_b32 v{XF+2*d}, 16, v{XR+d}"); a(f"v_and_b32 v{XF+2*d+1}, 0xffff0000, v{XR+d}")
        for r in range(0, 16, 2): a(f"v_pk_add_f32 {V(ACC+r,2)}, {V(ACC+r,2)}, {V(XF+r,2)}")
        a("s_waitcnt lgkmcnt(0)")
        for r in range(0, 16, 2): a(f"v_pk_add_f32 {V(ACC+r,2)}, {V(ACC+r,2)}, {V(ACC+16+r,2)}")
        for d in range(8): a(f"v_cvt_pk_bf16_f32 v{PF+d}, v{ACC+2*d}, v{ACC+2*d+1}")
        if isB:
            a("s_lshl_b32 s50, s49, 1"); a("s_add_u32 s50, s50, s53"); a("s_mul_i32 s51, s52, 14"); a("s_add_u32 s50, s50, s51")
            a("s_lshl_b32 s55, s50, 11"); a(f"s_add_u32 s55, s55, {HFR}")
            for h in range(2):
                vm.issue(f"buffer_store_dwordx4 {V(PF+4*h,4)}, v{V_L16}, {srd(S_WS)}, s55 offen offset:{h*1024} sc1")
            PS = R.alloc(2); P2 = R.alloc(2)
            a(f"v_pk_add_f32 {V(PS,2)}, {V(ACC,2)}, {V(ACC+2,2)}"); a(f"v_pk_mul_f32 {V(P2,2)}, {V(ACC,2)}, {V(ACC,2)}")
            a(f"v_pk_fma_f32 {V(P2,2)}, {V(ACC+2,2)}, {V(ACC+2,2)}, {V(P2,2)}")
            for r in range(4, 16, 2):
                a(f"v_pk_add_f32 {V(PS,2)}, {V(PS,2)}, {V(ACC+r,2)}"); a(f"v_pk_fma_f32 {V(P2,2)}, {V(ACC+r,2)}, {V(ACC+r,2)}, {V(P2,2)}")
            a(f"v_add_f32 v{PS}, v{PS}, v{PS+1}"); a(f"v_add_f32 v{PS+1}, v{P2}, v{P2+1}")
            self.half_op(PS, T0); self.half_op(PS+1, T1)
            a(f"v_lshlrev_b32 v{T0}, 3, v{V_L31}")
            a("s_lshl_b32 s55, s50, 8"); a(f"s_add_u32 s55, s55, {HST}")
            vm.issue(f"buffer_store_dwordx2 {V(PS,2)}, v{T0}, {srd(S_WS)}, s55 offen sc1")
            a("s_lshr_b32 s55, s48, 1"); a("s_lshl_b32 s55, s55, 7"); a("s_and_b32 s50, s48, 1"); a("s_mul_i32 s50, s50, 7"); a("s_add_u32 s50, s50, s49")
            a("s_lshl_b32 s50, s50, 2"); a("s_add_u32 s55, s55, s50"); a(f"s_add_u32 s55, s55, {F_H}")
            self.set_flag(55)
        else:
            for p in range(2):
                a(f"v_permlane32_swap_b32 v{PF+4*p}, v{PF+4*p+2}"); a(f"v_permlane32_swap_b32 v{PF+4*p+1}, v{PF+4*p+3}")
            a(f"v_mul_u32_u24 v{T0}, 896, v{V_L31}"); a(f"v_lshlrev_b32 v{T1}, 4, v{V_HH}"); a(f"v_add_u32 v{T0}, v{T0}, v{T1}")
            a(f"s_mul_i32 s54, s52, {32*896}"); a("s_lshl_b32 s50, s49, 7"); a("s_add_u32 s54, s54, s50"); a("s_lshl_b32 s50, s53, 6"); a("s_add_u32 s54, s54, s50")
            for p in range(2):
                vm.issue(f"buffer_store_dwordx4 {V(PF+4*p,4)}, v{T0}, {srd(S_OUT)}, s54 offen offset:{p*32}")
        if isB: self.idle_prefetch(skip, 0)
        else: a(f"{skip}:")
        self.stamp(f"{ph}@3")

    def phase_B(self):
        self.a.c("================ phase B : h = x + o @ wo ================"); self.small_phase("B")
    def phase_E(self):
        self.a.c("================ phase E : out = h + u @ w_out ================"); self.small_phase("E")

    def phase_C(self):
        a, vm, R = self.a, self.vm, self.R
        R.reset()
        a.c("================ phase C : z = gelu(LN(h) @ w_in) ================")
        skip = "L_skipC"
        a(f"s_cmp_ge_u32 s{S_SLOT}, 28"); a(f"s_cbranch_scc1 {skip}")
        a(f"s_cmp_ge_u32 s{S_SLOT}, 14"); a("s_cselect_b32 s50, 1, 0")
        a("s_mul_i32 s51, s50, 14"); a(f"s_sub_u32 s49, s{S_SLOT}, s51")
        a(f"s_lshl_b32 s48, s{S_XCD}, 1"); a("s_add_u32 s48, s48, s50")
        a(f"s_lshl_b32 s52, s48, 2"); a(f"s_add_u32 s52, s52, s{S_WAVE}")
        self.stamp("C@0")
        IMG = (0, 57344)
        LCS = 114688; LTR = LCS + 512
        t = R.alloc(4, 1); VW = R.alloc()
        self.w128_lane(VW, 3584, t)
        a("s_lshl_b32 s54, s49, 1" if self.o.get("rot_c", 0) else "s_mov_b32 s54, 0"); a("s_lshl_b32 s55, s49, 7")
        items = []
        for k in range(28):
            for img in range(2):
                for g in range(2):
                    def it(st, k=k, img=img, g=g):
                        if st.get("k") != k:
                            a(f"s_add_u32 s56, s54, {k}"); a("s_cmp_ge_u32 s56, 28"); a("s_cselect_b32 s50, 28, 0"); a("s_sub_u32 s56, s56, s50")
                            a(f"s_mul_i32 s56, s56, {16*3584}"); a("s_add_u32 s56, s56, s55"); st["k"] = k
                        a(f"s_mov_b32 m0, {IMG[img] + k*2048 + g*1024}"); a(f"s_add_u32 s50, s56, {(1792 if img == 0 else 0) + g*8*3584}")
                        a(f"buffer_load_dwordx4 v{VW}, {srd(S_WIN)}, s50 offen lds")
                    items.append(it)
        self.dma_by_all(items, lambda n: "w")
        B2 = R.alloc(2, 1); B1 = R.alloc(2, 1)
        self.w128_bases(B2, t, None, IMG[0])
        for c in range(2): a(f"v_add_u32 v{B1+c}, {IMG[1]}, v{B2+c}")
        ONES = R.alloc(4)
        for k in range(4): a(f"v_mov_b32 v{ONES+k}, 0x3f803f80")
        BC = R.alloc(); CSA = R.alloc(16)
        a(f"s_lshr_b32 s50, s{S_WAVE}, 1"); a(f"s_mul_i32 s50, s50, {IMG[1]}")
        a(f"s_and_b32 s51, s{S_WAVE}, 1"); a("s_cmp_eq_u32 s51, 0")
        a(f"v_mov_b32 v{BC}, v{B2+1}"); a("s_cselect_b64 vcc, -1, 0"); a(f"v_cndmask_b32 v{BC}, v{BC}, v{B2}, vcc"); a(f"v_add_u32 v{BC}, s50, v{BC}")
        WC = R.alloc(16)
        self.stamp("Cv")
        vm.wait("w"); a("s_barrier")
        self.stamp("Cw")
        def rdc(k): return [(f"ds_read_b64_tr_b16 v[{WC+(k%4)*4+e*2}:{WC+(k%4)*4+e*2+1}], v{BC} offset:{k*2048 + e*1024}", 4) for e in range(2)]
        for k in range(3):
            for x, _ in rdc(k): a(x)
        for k in range(28):
            a(f"s_waitcnt lgkmcnt({min(4, 2*(27-k))})")
            self.sched([f"{MFMA} {V(CSA,16)}, {V(WC+(k%4)*4,4)}, {V(ONES,4)}, {'0' if k == 0 else V(CSA,16)}"], rdc(k + 3) if k + 3 < 28 else [])
        a(f"v_lshlrev_b32 v{t}, 4, v{V_HH}"); a(f"s_lshl_b32 s50, s{S_WAVE}, 7"); a(f"s_add_u32 s50, s50, {LCS}"); a(f"v_add_u32 v{t}, s50, v{t}")
        a("s_mov_b32 exec_lo, 1"); a("s_mov_b32 exec_hi, 1")
        for gg in range(4): a(f"ds_write_b128 v{t}, {V(CSA+4*gg,4)} offset:{gg*32}")
        a("s_mov_b64 exec, -1")
        a("s_waitcnt lgkmcnt(0)")
        self.stamp("Cc")
        R.free(CSA, 16); R.free(WC, 16)
        a(f"s_lshl_b32 s55, s48, 7"); a(f"s_add_u32 s55, s55, {F_H}")
        self.poll(55, 14, drain=False)
        self.stamp("C@1")
        T0 = R.alloc(); T1 = R.alloc()
        HS = R.alloc(14, 2)
        a("s_mul_i32 s55, s52, 14"); a("s_lshl_b32 s54, s55, 11"); a(f"s_add_u32 s54, s54, {HFR}")
        a("s_lshl_b32 s58, s49, 1" if self.o.get("rot_c", 0) else "s_mov_b32 s58, 0")
        def ld_h(k):
            def f():
                a("s_cmp_ge_u32 s58, 28"); a("s_cselect_b32 s50, 28, 0"); a("s_sub_u32 s58, s58, s50")
                a("s_lshl_b32 s56, s58, 10"); a("s_add_u32 s56, s56, s54")
                vm.issue(f"buffer_load_dwordx4 {A(4*k,4)}, v{V_L16}, {srd(S_WS)}, s56 offen sc1", tag=("act", k))
                a("s_add_u32 s58, s58, 1")
            return [(f, 24)]
        def ld_hs():
            a(f"v_mul_u32_u24 v{T0}, {7*256}, v{V_HH}"); a(f"v_lshlrev_b32 v{T1}, 3, v{V_L31}"); a(f"v_add_u32 v{T0}, v{T0}, v{T1}")
            a("s_lshl_b32 s55, s55, 8"); a(f"s_add_u32 s55, s55, {HST}")
            for q in range(7):
                vm.issue(f"buffer_load_dwordx2 {V(HS+2*q,2)}, v{T0}, {srd(S_WS)}, s55 offen offset:{q*256} sc1", tag="hs")
        PD = self.o.get("pd_c", 6)
        for k in range(PD):
            for f, _ in ld_h(k): f()
        self.stamp("Ci")
        Z = R.alloc(64)
        WG = R.alloc(48)
        def rd(k):
            out = []
            for tl, B in enumerate((B2, B2+1, B1, B1+1)):
                for e in range(2):
                    r = WG + (k % 3)*16 + tl*4 + e*2
                    out.append((f"ds_read_b64_tr_b16 v[{r}:{r+1}], v{B} offset:{k*2048 + e*1024}", 4))
            return out
        CSR = R.alloc(32); VT = R.alloc()
        a(f"v_lshlrev_b32 v{VT}, 4, v{V_HH}"); a(f"v_add_u32 v{VT}, {LCS}, v{VT}")
        for x, _ in rd(0) + rd(1): a(x)
        MEAN = R.alloc(2); RSTD = MEAN + 1
        K0 = R.alloc(2); S0 = R.alloc(2); Q0 = R.alloc(2); TT = R.alloc(8)
        k0 = -2.0 * LOG2E * math.sqrt(2 / math.pi); k1 = k0 * 0.044715
        pre = [(lambda: vm.wait("hs"), 4), (f"v_mov_b32 v{MEAN}, v{HS}", 4), (f"v_mov_b32 v{RSTD}, v{HS+1}", 4)]
        for q in range(1, 7): pre += [(f"v_add_f32 v{MEAN}, v{MEAN}, v{HS+2*q}", 4), (f"v_add_f32 v{RSTD}, v{RSTD}, v{HS+2*q+1}", 4)]
        pre += [(lambda: self.half_op(MEAN, T0), 16), (lambda: self.half_op(RSTD, T1), 16)]
        pre += [(f"v_mul_f32 v{MEAN}, {lit(1/448)}, v{MEAN}", 4), (f"v_mul_f32 v{RSTD}, {lit(1/448)}, v{RSTD}", 4), (f"v_fma_f32 v{RSTD}, -v{MEAN}, v{MEAN}, v{RSTD}", 4),
                (f"v_max_f32 v{RSTD}, 0, v{RSTD}", 4), (f"v_add_f32 v{RSTD}, {lit(1e-5)}, v{RSTD}", 4), (f"v_rsq_f32 v{RSTD}, v{RSTD}", 8),
                (f"s_mov_b32 s62, {lit(k1)}", 4), (f"s_mov_b32 s63, {lit(k1)}", 4), (f"v_mov_b32 v{K0}, {lit(k0)}", 4), (f"v_mov_b32 v{K0+1}, {lit(k0)}", 4)]
        for k in range(28):
            a(f"s_waitcnt lgkmcnt({8 if k + 1 < 28 else 0})")
            vm.wait(("act", k))
            if k in (0, 7, 14, 21): self.stamp(f"Ck{k}")
            wb = WG + (k % 3) * 16
            fill = (ld_h(k + PD) if k + PD < 28 else []) + (rd(k + 2) if k + 2 < 28 else [])
            if k == 16: fill.append((ld_hs, 48))
            if k >= 24: fill += pre[:3]; pre = pre[3:]
            if k == 26: fill += [(f"ds_read_b128 {V(CSR+16*c+4*gg,4)}, v{VT} offset:{c*128+gg*32}", 4) for c in range(2) for gg in range(4)]
            mf = [f"{MFMA} {V(Z+16*tl,16)}, {V(wb+4*tl,4)}, {A(4*k,4)}, {'0' if k == 0 else V(Z+16*tl,16)}" for tl in range(4)]
            self.sched(mf, fill)
        for f, _ in pre: self.emit_fill(f)
        if self.o.get("early_d", 1): a("s_barrier")
        self.stamp("C@2")
        R.free(WG, 48)
        touch = []
        if self.o.get("early_d", 1):
            self.d_map(); self.DVE = R.alloc(); self.DVO = R.alloc(); td = R.alloc(4, 1)
            self.d_lanes(self.DVE, self.DVO, td); R.free(td, 4)
            touch, self.d_early_blocks = self.d_early_items(self.DVE, self.DVO)
        PF = R.alloc(16)
        def gelu_pk(zbase, pack, mid=None):
            nonlocal touch
            ins = []
            for r0 in range(0, 32, 8):
                zs = [zbase + r0 + 2*i for i in range(4)]; cs = [CSR + r0 + 2*i for i in range(4)]
                ins += [f"v_pk_fma_f32 {V(z,2)}, {V(MEAN,2)}, {V(c,2)}, {V(z,2)} op_sel_hi:[0,1,1] neg_lo:[1,0,0] neg_hi:[1,0,0]" for z, c in zip(zs, cs)]
                ins += [f"v_pk_mul_f32 {V(z,2)}, {V(z,2)}, {V(MEAN,2)} op_sel:[0,1] op_sel_hi:[1,1]" for z in zs]
                ins += [f"v_pk_mul_f32 {V(TT+2*i,2)}, {V(z,2)}, {V(z,2)}" for i, z in enumerate(zs)]
                ins += [f"v_pk_fma_f32 {V(TT+2*i,2)}, {V(TT+2*i,2)}, s[62:63], {V(K0,2)}" for i in range(4)]
                ins += [f"v_pk_mul_f32 {V(TT+2*i,2)}, {V(TT+2*i,2)}, {V(z,2)}" for i, z in enumerate(zs)]
                ins += [f"v_exp_f32 v{TT+i}, v{TT+i}" for i in range(8)]
                ins += [f"v_pk_add_f32 {V(TT+2*i,2)}, {V(TT+2*i,2)}, 1.0 op_sel_hi:[1,0]" for i in range(4)]
                ins += [f"v_rcp_f32 v{TT+i}, v{TT+i}" for i in range(8)]
                ins += [f"v_pk_mul_f32 {V(z,2)}, {V(z,2)}, {V(TT+2*i,2)}" for i, z in enumerate(zs)]
                if pack:
                    ins += [f"v_cvt_pk_bf16_f32 v{PF + r0//2 + i}, v{z}, v{z+1}" for i, z in enumerate(zs)]
                else:
                    for i, z in enumerate(zs):
                        if r0 == 0 and i == 0:
                            ins += [f"v_pk_mul_f32 {V(Q0,2)}, {V(z,2)}, {V(z,2)}", f"v_pk_mul_f32 {V(S0,2)}, {V(z,2)}, 1.0 op_sel_hi:[1,0]"]
                        else:
                            ins += [f"v_pk_fma_f32 {V(Q0,2)}, {V(z,2)}, {V(z,2)}, {V(Q0,2)}", f"v_pk_add_f32 {V(S0,2)}, {V(S0,2)}, {V(z,2)}"]
                if mid and r0 == 16: ins.append(mid)
            gap = self.o.get("early_gap", 14)
            for n, x in enumerate(ins):
                self.emit_fill(x)
                if touch and n % gap == gap - 1:
                    self.emit_fill(touch[0][0]); touch = touch[1:]
        a("s_waitcnt lgkmcnt(0)")
        gelu_pk(Z, False)
        G = R.alloc(4)
        a(f"v_add_f32 v{G}, v{S0}, v{S0+1}"); a(f"v_add_f32 v{G+1}, v{Q0}, v{Q0+1}")
        for c in range(2):
            for gg in range(4): a(f"ds_read_b128 {V(CSR+16*c+4*gg,4)}, v{VT} offset:{256+c*128+gg*32}")
        self.half_op(G, T0); self.half_op(G+1, T1)
        a(f"v_mov_b32 v{G+2}, s{S_TAG}"); a(f"v_mov_b32 v{G+3}, s{S_TAG}")
        a("s_mul_i32 s55, s48, 14"); a("s_add_u32 s55, s55, s49"); a("s_lshl_b32 s55, s55, 11"); a(f"s_lshl_b32 s50, s{S_WAVE}, 9"); a("s_add_u32 s55, s55, s50")
        a(f"s_add_u32 s55, s55, {STATS}"); a(f"v_lshlrev_b32 v{T1}, 4, v{V_L31}")
        vm.issue(f"buffer_store_dwordx4 {V(G,4)}, v{T1}, {srd(S_WS)}, s55 offen sc1")
        self.stamp("C@3")
        GR = R.alloc(28)
        a(f"v_mul_u32_u24 v{T0}, {7*2048}, v{V_HH}"); a(f"v_add_u32 v{T1}, v{T1}, v{T0}")
        a("s_mul_i32 s55, s48, 14"); a("s_lshl_b32 s55, s55, 11"); a(f"s_lshl_b32 s50, s{S_WAVE}, 9"); a("s_add_u32 s55, s55, s50"); a(f"s_add_u32 s55, s55, {STATS}")
        a("s_waitcnt lgkmcnt(0)")
        def gr_loads():
            a("s_mov_b32 s54, s55")
            for q in range(7):
                if q and q % 2 == 0: a("s_add_u32 s54, s54, 4096")
                vm.issue(f"buffer_load_dwordx4 {V(GR+4*q,4)}, v{T1}, {srd(S_WS)}, s54 offen offset:{(q%2)*2048} sc1", tag="gr")
        gelu_pk(Z + 32, True, gr_loads)
        for f, _ in touch: self.emit_fill(f)
        a("s_mul_i32 s56, s52, 28"); a("s_lshl_b32 s50, s49, 1"); a("s_add_u32 s56, s56, s50"); a("s_lshl_b32 s56, s56, 11"); a(f"s_add_u32 s56, s56, {Z1F}")
        for q in range(4):
            vm.issue(f"buffer_store_dwordx4 {V(PF+4*q,4)}, v{V_L16}, {srd(S_WS)}, s56 offen offset:{q*1024} sc1")
        self.stamp("C@4")
        Lp = a.label("L_sp"); Ld = a.label("L_sd")
        vm.wait("gr")
        a("s_mov_b32 s70, 0"); a(f"{Lp}:")
        a(f"v_xor_b32 v{T0}, s{S_TAG}, v{GR+2}")
        for q in range(1, 7):
            a(f"v_xor_b32 v{G}, s{S_TAG}, v{GR+4*q+2}"); a(f"v_or_b32 v{T0}, v{T0}, v{G}")
        a(f"v_cmp_ne_u32 vcc, 0, v{T0}"); a(f"s_cbranch_vccz {Ld}")
        a("s_mov_b32 s54, s55")
        for q in range(7):
            if q and q % 2 == 0: a("s_add_u32 s54, s54, 4096")
            a(f"buffer_load_dwordx4 {V(GR+4*q,4)}, v{T1}, {srd(S_WS)}, s54 offen offset:{(q%2)*2048} sc1")
        a("s_waitcnt vmcnt(0)")
        a("s_add_u32 s70, s70, 1"); a("s_cmp_lt_u32 s70, 20000"); a(f"s_cbranch_scc1 {Lp}")
        a(f"{Ld}:")
        self.stamp("C@s")
        for q in range(1, 7): a(f"v_pk_add_f32 {V(GR,2)}, {V(GR,2)}, {V(GR+4*q,2)}")
        self.half_op(GR, T0); self.half_op(GR+1, G)
        M3, R3 = GR, GR+1
        a(f"v_mul_f32 v{M3}, {lit(1/896)}, v{M3}"); a(f"v_mul_f32 v{R3}, {lit(1/896)}, v{R3}")
        a(f"v_fma_f32 v{R3}, -v{M3}, v{M3}, v{R3}"); a(f"v_max_f32 v{R3}, 0, v{R3}")
        a(f"v_add_f32 v{R3}, {lit(1e-5)}, v{R3}"); a(f"v_rsq_f32 v{R3}, v{R3}")
        a("s_nop 0")
        a(f"v_mul_f32 v{M3}, v{M3}, v{R3}")
        for r in range(0, 32, 2): a(f"v_pk_fma_f32 {V(Z+r,2)}, {V(Z+r,2)}, {V(M3,2)}, {V(M3,2)} op_sel:[0,1,0] op_sel_hi:[1,1,0] neg_lo:[0,0,1] neg_hi:[0,0,1]")
        PZ = R.alloc(16)
        for c in range(2):
            for d in range(8): a(f"v_cvt_pk_bf16_f32 v{PZ+8*c+d}, v{Z+16*c+2*d}, v{Z+16*c+2*d+1}")
        WA = R.alloc(); RA = R.alloc(2, 1)
        a(f"s_lshl_b32 s50, s{S_WAVE}, 12"); a(f"s_add_u32 s50, s50, {LTR}")
        a(f"v_lshrrev_b32 v{T0}, 1, v{V_L31}"); a(f"v_and_b32 v{T0}, 7, v{T0}"); a(f"v_xor_b32 v{T0}, v{T0}, v{V_HH}"); a(f"v_lshlrev_b32 v{T0}, 3, v{T0}")
        a(f"v_lshlrev_b32 v{WA}, 6, v{V_L31}"); a(f"v_add_u32 v{WA}, v{WA}, v{T0}"); a(f"v_add_u32 v{WA}, s50, v{WA}")
        for g in range(4):
            if g: a(f"v_xor_b32 v{TT+g}, {g<<4}, v{WA}")
        for c in range(2):
            for g in range(4):
                a(f"ds_write_b64 v{WA if g == 0 else TT+g}, {V(PZ+8*c+2*g,2)} offset:{c*2048}")
        a(f"v_lshrrev_b32 v{T0}, 2, v{V_LANE}"); a(f"v_and_b32 v{T0}, 3, v{T0}")
        a(f"v_lshlrev_b32 v{T1}, 3, v{V_HH}"); a(f"v_add_u32 v{T1}, v{T1}, v{T0}"); a(f"v_lshlrev_b32 v{RA}, 6, v{T1}")
        a(f"v_lshrrev_b32 v{T0}, 1, v{T0}"); a(f"v_lshlrev_b32 v{T1}, 2, v{V_HH}"); a(f"v_add_u32 v{T0}, v{T0}, v{T1}")
        a(f"v_lshrrev_b32 v{T1}, 4, v{V_LANE}"); a(f"v_and_b32 v{T1}, 1, v{T1}"); a(f"v_lshlrev_b32 v{T1}, 2, v{T1}")
        a(f"v_and_b32 v{G}, 3, v{V_LANE}"); a(f"v_add_u32 v{T1}, v{T1}, v{G}"); a(f"v_xor_b32 v{T0}, v{T0}, v{T1}"); a(f"v_lshlrev_b32 v{T0}, 3, v{T0}")
        a(f"v_add_u32 v{RA}, v{RA}, v{T0}"); a(f"v_add_u32 v{RA}, s50, v{RA}"); a(f"v_xor_b32 v{RA+1}, 16, v{RA}")
        a("s_waitcnt lgkmcnt(0)")
        for c in range(2):
            for st in range(2):
                for e in range(2):
                    r = PZ + 8*c + 4*st + 2*e
                    a(f"ds_read_b64_tr_b16 v[{r}:{r+1}], v{RA+e} offset:{c*2048 + st*1024 + e*256}")
        for c in range(2):
            a("s_lshl_b32 s55, s49, 1"); a(f"s_add_u32 s55, s55, {c}"); a("s_lshl_b32 s55, s55, 6"); a("s_add_u32 s55, s55, s52"); a("s_lshl_b32 s55, s55, 11"); a(f"s_add_u32 s55, s55, {Z2F}")
            a(f"s_waitcnt lgkmcnt({4 if c == 0 else 0})")
            for st in range(2):
                vm.issue(f"buffer_store_dwordx4 {V(PZ+8*c+4*st,4)}, v{V_L16}, {srd(S_WS)}, s55 offen offset:{st*1024} sc1")
        a("s_lshl_b32 s55, s49, 7"); a("s_lshl_b32 s50, s48, 2"); a("s_add_u32 s55, s55, s50"); a(f"s_add_u32 s55, s55, {F_Z}")
        self.set_flag(55)
        self.idle_prefetch(skip, 1)
        self.stamp("C@5")

    def phase_D(self):
        a, vm, R = self.a, self.vm, self.R
        R.reset()
        a.c("================ phase D : g = w_sp @ z2n + b ; u = z1*g ================")
        skip = "L_skipD"
        a(f"s_cmp_ge_u32 s{S_SLOT}, 28"); a(f"s_cbranch_scc1 {skip}")
        self.d_map()
        a("s_mov_b32 s49, s94"); a("s_mov_b32 s48, s95"); a("s_mov_b32 s54, s96")
        self.stamp("D@0")
        NS = 8
        a(f"s_lshr_b32 s53, s{S_WAVE}, 1"); a(f"s_and_b32 s52, s{S_WAVE}, 1")
        t = R.alloc(4, 1); VE = R.alloc(); VO = R.alloc()
        self.d_lanes(VE, VO, t)
        a("s_lshl_b32 s55, s48, 18"); a("s_lshl_b32 s50, s53, 11"); a("s_add_u32 s55, s55, s50"); a("s_lshl_b32 s50, s52, 17"); a("s_add_u32 s55, s55, s50")
        a(f"s_mul_i32 s57, s53, {NS*8192}"); a("s_lshl_b32 s50, s52, 12"); a("s_add_u32 s57, s57, s50")
        def blk_idx(b, dst):
            a(f"s_add_u32 s{dst}, s54, {b}"); a(f"s_and_b32 s{dst}, s{dst}, 15")
        def dma(b):
            out = []
            def pre(): blk_idx(b, 58); a("s_lshl_b32 s58, s58, 7"); a("s_add_u32 s58, s58, s55")
            out.append((pre, 16))
            for q in range(4):
                def f(q=q):
                    a(f"s_add_u32 m0, s57, {(b%NS)*8192 + q*1024}"); a(f"s_add_u32 s56, s58, {q*8*4096}")
                    vm.issue(f"buffer_load_dwordx4 v{VE if q%2==0 else VO}, {srd(S_WSP)}, s56 offen lds", tag=("w", b))
                out.append((f, 16))
            return out
        early = set(self.d_early_blocks) if self.o.get("early_d", 1) else set()
        NPRE = NS if early else self.o.get("npre", 4)
        a("s_lshl_b32 s61, s48, 18")
        items = []; tags = []
        for b in range(NPRE):
            for kh_ in range(2):
                if (b, kh_) in early: continue
                for q in range(8):
                    def it(st, b=b, kh_=kh_, q=q):
                        if st.get("b") != b:
                            blk_idx(b, 58); a("s_lshl_b32 s58, s58, 7"); a("s_add_u32 s58, s58, s61"); st["b"] = b
                        a(f"s_mov_b32 m0, {kh_*NS*8192 + b*8192 + q*1024}"); a(f"s_add_u32 s56, s58, {kh_*2048 + q*8*4096}")
                        a(f"buffer_load_dwordx4 v{VE if q%2==0 else VO}, {srd(S_WSP)}, s56 offen lds")
                    items.append(it); tags.append(("w", b))
        self.dma_by_123(items, lambda n: tags[n])
        FA = R.alloc(4, 1)
        a(f"v_lshrrev_b32 v{t}, 1, v{V_L31}"); a(f"v_and_b32 v{t}, 7, v{t}"); a(f"v_xor_b32 v{t}, v{t}, v{V_HH}"); a(f"v_lshlrev_b32 v{t}, 4, v{t}")
        a(f"v_lshlrev_b32 v{FA}, 7, v{V_L31}"); a(f"v_add_u32 v{FA}, v{FA}, v{t}"); a(f"s_mul_i32 s50, s53, {NS*8192}"); a(f"v_add_u32 v{FA}, s50, v{FA}")
        for s in range(1, 4): a(f"v_xor_b32 v{FA+s}, {s*32}, v{FA}")
        BI = R.alloc()
        a(f"v_lshlrev_b32 v{t}, 1, v{V_L31}"); a("s_lshl_b32 s50, s48, 7"); a("s_lshl_b32 s51, s53, 6"); a("s_add_u32 s50, s50, s51")
        vm.issue(f"buffer_load_ushort v{BI}, v{t}, {srd(S_BSP)}, s50 offen", tag="bi")
        VZ = R.alloc(2, 1)
        a("s_lshl_b32 s50, s49, 2"); a("s_lshl_b32 s51, s52, 1"); a("s_add_u32 s50, s50, s51"); a("s_lshl_b32 s50, s50, 6"); a("s_lshl_b32 s51, s53, 5"); a("s_add_u32 s50, s50, s51")
        a("s_lshl_b32 s50, s50, 11"); a(f"s_add_u32 s50, s50, {Z2F}"); a(f"v_add_u32 v{VZ}, s50, v{V_L16}"); a(f"v_add_u32 v{VZ+1}, {64*2048}, v{VZ}")
        a(f"v_and_b32 v9, 15, v{V_LANE}"); a("v_lshlrev_b32 v9, 2, v9"); a(f"v_lshrrev_b32 v{t}, 4, v{V_LANE}"); a(f"v_and_b32 v{t}, 1, v{t}"); a(f"v_lshlrev_b32 v{t}, 7, v{t}"); a(f"v_add_u32 v9, v9, v{t}")
        a("s_lshl_b32 s59, s49, 8"); a(f"s_add_u32 s59, s59, {F_Z}")
        self.poll(59, 32, voff=9, drain=False)
        self.stamp("D@1")
        ND = self.o.get("nd", 12)
        ZR = R.alloc(8 * ND); WF = R.alloc(24)
        def ldz(k):
            out = []
            b, sp = k // 4, k % 4
            if sp == 0:
                def pre(): blk_idx(b, 60 + (b % 4)); a(f"s_lshl_b32 s{60 + (b % 4)}, s{60 + (b % 4)}, 12")
                out.append((pre, 12))
            for c in range(2):
                def f(c=c):
                    r = ZR + 8*(k % ND) + 4*c
                    vm.issue(f"buffer_load_dwordx4 {V(r,4)}, v{VZ+c}, {srd(S_WS)}, s{60 + (b % 4)} offen offset:{sp*1024} sc1", tag=("z", k))
                out.append((f, 8))
            return out
        def rdw(k):
            b, sp = k // 4, k % 4
            return [(f"ds_read_b128 {V(WF+(k%3)*8+tc*4,4)}, v{FA+sp} offset:{(b%NS)*8192 + tc*4096}", 4) for tc in range(2)]
        INIT = 4
        for k in range(INIT):
            for f, _ in ldz(k): f()
        nz = INIT
        wout = []
        vm.wait(("w", 0)); a("s_barrier")
        for k in range(2):
            for x, _ in rdw(k): a(x)
        nbw = NPRE
        for k in range(64):
            b, sp = k // 4, k % 4
            fill = []
            a(f"s_waitcnt lgkmcnt({2 if k + 1 < 64 else 0})")
            vm.wait(("z", k))
            if k + 2 < 64:
                if (k + 2) % 4 == 0:
                    nb = (k + 2) // 4
                    def rdy(nb=nb):
                        vm.wait(("w", nb)); a("s_barrier")
                    fill.append((rdy, 8))
                fill += rdw(k + 2)
            for _ in range(2):
                if nz < 64 and nz <= k + ND - 1:
                    fill += ldz(nz); nz += 1
            if wout and k % 8 == 5: fill.append(wout[0]); wout = wout[1:]
            if sp in (1, 3) and nbw < 16 and (nbw < NS or (sp == 3 and nbw - NS <= b - 1)):
                fill += dma(nbw); nbw += 1
            wb = WF + (k % 3) * 8; zb = ZR + 8*(k % ND)
            mf = []
            for c in range(2):
                for tc in range(2):
                    acc = A(32*c + 16*tc, 16)
                    mf.append(f"{MFMA} {acc}, {V(zb+4*c,4)}, {V(wb+4*tc,4)}, {'0' if k == 0 else acc}")
            self.sched(mf, fill)
        self.stamp("D@2")
        R.free(ZR, 8*ND); R.free(WF, 24)
        Z1 = R.alloc(16)
        a("s_lshl_b32 s50, s48, 1"); a("s_add_u32 s50, s50, s53"); a("s_mul_i32 s50, s50, 28"); a("s_lshl_b32 s51, s49, 2"); a("s_add_u32 s50, s50, s51"); a("s_lshl_b32 s51, s52, 1"); a("s_add_u32 s50, s50, s51")
        a("s_lshl_b32 s60, s50, 11"); a(f"s_add_u32 s50, s60, {Z1F}")
        for q in range(4):
            vm.issue(f"buffer_load_dwordx4 {V(Z1+4*q,4)}, v{V_L16}, {srd(S_WS)}, s50 offen offset:{q*1024} sc1", tag="z1")
        a("s_barrier")
        a(f"s_lshl_b32 s50, s{S_WAVE}, 13"); a(f"v_add_u32 v{t}, s50, v{V_L16}")
        a(f"s_xor_b32 s51, s{S_WAVE}, 2"); a("s_lshl_b32 s51, s51, 13"); a(f"v_add_u32 v{t+1}, s51, v{V_L16}")
        G = R.alloc(32); TM = R.alloc(32)
        La = a.label("L_x"); Lb = a.label("L_x")
        a("s_cmp_eq_u32 s53, 0"); a(f"s_cbranch_scc1 {La}")
        for c in range(2):
            for q in range(4): a(f"ds_write_b128 v{t}, {A(32*c+4*q,4)} offset:{c*4096+q*1024}")
        for c in range(2):
            for r in range(16): a(f"v_accvgpr_read_b32 v{G+16*c+r}, a{32*c+16+r}")
        a(f"s_branch {Lb}")
        a(f"{La}:")
        for c in range(2):
            for q in range(4): a(f"ds_write_b128 v{t}, {A(32*c+16+4*q,4)} offset:{c*4096+q*1024}")
        for c in range(2):
            for r in range(16): a(f"v_accvgpr_read_b32 v{G+16*c+r}, a{32*c+r}")
        a(f"{Lb}:")
        a("s_waitcnt lgkmcnt(0)"); a("s_barrier")
        for q in range(8): a(f"ds_read_b128 {V(TM+4*q,4)}, v{t+1} offset:{q*1024}")
        BP = R.alloc(2); ZF = R.alloc(32)
        vm.wait("z1")
        a(f"v_lshlrev_b32 v{BP}, 16, v{BI}")
        for d in range(16):
            a(f"v_lshlrev_b32 v{ZF+2*d}, 16, v{Z1+d}"); a(f"v_and_b32 v{ZF+2*d+1}, 0xffff0000, v{Z1+d}")
        for r in range(0, 32, 2): a(f"v_pk_add_f32 {V(G+r,2)}, {V(G+r,2)}, {V(BP,2)} op_sel_hi:[1,0]")
        a("s_waitcnt lgkmcnt(0)")
        for r in range(0, 32, 2): a(f"v_pk_add_f32 {V(G+r,2)}, {V(G+r,2)}, {V(TM+r,2)}")
        for r in range(0, 32, 2): a(f"v_pk_mul_f32 {V(G+r,2)}, {V(G+r,2)}, {V(ZF+r,2)}")
        for d in range(16): a(f"v_cvt_pk_bf16_f32 v{TM+d}, v{G+2*d}, v{G+2*d+1}")
        a(f"s_add_u32 s50, s60, {UFR}")
        for q in range(4):
            vm.issue(f"buffer_store_dwordx4 {V(TM+4*q,4)}, v{V_L16}, {srd(S_WS)}, s50 offen offset:{q*1024} sc1")
        a("s_lshl_b32 s55, s48, 7"); a("s_lshl_b32 s50, s49, 2"); a("s_add_u32 s55, s55, s50"); a(f"s_add_u32 s55, s55, {F_U}")
        self.set_flag(55)
        self.idle_prefetch(skip, 2)
        self.stamp("D@3")

    def build(self):
        self.prologue()
        for ph in "ABCDE":
            getattr(self, "phase_" + ph)()
            if ph == self.stop_after: break
        self.epilogue()
        body = pad_hazards(self.a.lines)
        hdr = open("cdna_kernels/" + NAME[:-7] + ".s.ref").read().split("; Override")[0]
        s = hdr + f"; @launch grid=(256,1,1) block=(256,1,1) lds={LDS_BYTES}\n"
        s += '.amdgcn_target "amdgcn-amd-amdhsa--gfx950"\n.text\n'
        s += f".set CODE_SLICE, ((L_code_end - {NAME} + 32*128 - 1) / (32*128)) * 128\n"
        s += f".set CODE_BYTES, L_code_end - {NAME} - 32\n"
        s += f".globl {NAME}\n.p2align 8\n.type {NAME},@function\n{NAME}:\n" + "\n".join(body) + "\nL_code_end:\n"
        s += f""".section .rodata,"a"
.p2align 6
.amdhsa_kernel {NAME}
  .amdhsa_next_free_vgpr 512
  .amdhsa_next_free_sgpr 102
  .amdhsa_accum_offset 256
  .amdhsa_group_segment_fixed_size 0
  .amdhsa_kernarg_size 88
  .amdhsa_user_sgpr_count 2
  .amdhsa_user_sgpr_kernarg_segment_ptr 1
  .amdhsa_system_sgpr_workgroup_id_x 1
.end_amdhsa_kernel
"""
        return s

if __name__ == "__main__":
    import json
    out = sys.argv[1]; stop = sys.argv[2] if len(sys.argv) > 2 else "E"
    stamps = sys.argv[3] if len(sys.argv) > 3 and sys.argv[3] != "0" else ""
    opts = json.loads(sys.argv[4]) if len(sys.argv) > 4 else {}
    g = Gen(stop, stamps, opts)
    open(out, "w").write(g.build())
    open(out + ".stamps", "w").write(" ".join(g.stamp_names))
```

```python
import sys, math, struct
from asmlib import Asm, pad_hazards

NAME = "sequential_preLN__sliding_block__mixer_gmlp__prompt_kernel"
WS_EPOCH = 0
F_KV = 0x1000; F_O = 0x2000; F_H = 0x3000; F_Z = 0x4000; F_U = 0x5000
STATS = 0x10000
HST = 0x80000
STAT1 = 0xC0000
KVF = 0x100000; OFR = 0x500000; HFR = 0x700000; Z1F = 0x900000; Z2F = 0xD00000; UFR = 0x1100000
DBG = 0x1600000

S_X, S_WQKV, S_WO, S_WIN, S_WSP, S_BSP, S_WOUT, S_OUT, S_WS = 8, 12, 16, 20, 24, 28, 32, 36, 40
S_TAG, S_WAVE, S_XCD, S_SLOT = 44, 45, 46, 47
V_LANE, V_L16, V_L31, V_HH = 1, 2, 3, 4
V_DUMMY = 252
V_TOUCH = 251
LOG2E = 1.4426950408889634
MFMA = "v_mfma_f32_32x32x16_bf16"
LDS_BYTES = 163840

def f2u(x): return struct.unpack("<I", struct.pack("<f", x))[0]
def lit(x): return "0x%08x" % f2u(x)
def srd(b): return f"s[{b}:{b+3}]"
def V(b, n=1): return f"v{b}" if n == 1 else f"v[{b}:{b+n-1}]"
def A(b, n=1): return f"a{b}" if n == 1 else f"a[{b}:{b+n-1}]"

class Regs:
    def __init__(self, lo, hi): self.lo, self.hi = lo, hi; self.used = set()
    def alloc(self, n=1, align=None):
        if align is None: align = 4 if n >= 4 else (2 if n >= 2 else 1)
        b = (self.lo + align - 1) // align * align
        while b + n <= self.hi:
            if not any((b + k) in self.used for k in range(n)):
                for k in range(n): self.used.add(b + k)
                return b
            b += align
        raise RuntimeError(f"out of registers for {n}")
    def free(self, b, n=1):
        for k in range(n): self.used.discard(b + k)
    def reset(self): self.used = set()

class VM:
    def __init__(self, a): self.a = a; self.ops = []
    def issue(self, text, tag=None): self.a(text); self.ops.append(tag)
    def wait(self, tag):
        idx = [k for k, t in enumerate(self.ops) if t == tag]
        if not idx: return
        last = idx[-1]; n = len(self.ops) - 1 - last
        assert n <= 63, n
        self.a(f"s_waitcnt vmcnt({n})"); self.ops = self.ops[last + 1:]
    def wait_all(self): self.a("s_waitcnt vmcnt(0)"); self.ops = []

def interleave(a, main, fill):
    n = len(main); m = len(fill); k = 0
    for i, x in enumerate(main):
        a(x)
        tgt = (i + 1) * m // n
        while k < tgt: a(fill[k]); k += 1

class Gen:
    def __init__(self, stop_after="E", stamps="", opts=None):
        self.a = Asm(); self.vm = VM(self.a); self.stop_after = stop_after; self.stamps = stamps
        self.nstamp = 0; self.stamp_names = []; self.R = Regs(10, 251); self.o = opts or {}

    def stamp(self, tag):
        if not self.stamps: return
        sel = self.stamps.split(",")
        coarse = ("A@0", "A@3", "A@6", "B@1", "B@3", "C@1", "C@5", "D@1", "D@3", "E@1", "E@3")
        if not (tag in sel or tag[0] in sel or ("c" in sel and tag in coarse)): return
        self.stamp_names.append(tag)
        k = self.nstamp; self.nstamp += 1
        assert k < 15
        self.a(f"s_memtime s[{72+2*k}:{73+2*k}]")

    def prologue(self):
        a = self.a
        a("s_getpc_b64 s[4:5]")
        a("s_load_dwordx16 s[48:63], s[0:1], 0")
        a("s_load_dwordx4 s[64:67], s[0:1], 64")
        a("s_load_dwordx2 s[68:69], s[0:1], 80")
        a("s_cmp_ge_u32 s2, 256"); a("s_cbranch_scc1 L_end")
        a(f"s_lshr_b32 s{S_SLOT}, s2, 3")
        a(f"s_mul_i32 s6, s{S_SLOT}, CODE_SLICE")
        a("v_lshlrev_b32 v5, 4, v0")
        a("v_cmp_gt_u32 vcc, CODE_SLICE, v5")
        a("s_mov_b64 s[70:71], vcc")
        a("v_add_u32 v5, s6, v5")
        a("v_cmp_gt_u32 vcc, CODE_BYTES, v5")
        a("s_and_b64 vcc, vcc, s[70:71]")
        a("s_and_saveexec_b64 s[6:7], vcc")
        a(f"global_load_dwordx4 {V(V_DUMMY,4)}, v5, s[4:5]")
        a("s_mov_b64 exec, s[6:7]")
        self.vm.ops.append("code")
        a(f"v_and_b32 v{V_LANE}, 63, v0"); a("v_lshrrev_b32 v5, 6, v0")
        a(f"v_lshlrev_b32 v{V_L16}, 4, v{V_LANE}"); a(f"v_and_b32 v{V_L31}, 31, v{V_LANE}"); a(f"v_lshrrev_b32 v{V_HH}, 5, v{V_LANE}")
        a(f"v_readfirstlane_b32 s{S_WAVE}, v5")
        a(f"s_and_b32 s{S_XCD}, s2, 7")
        self.phase_A_pre()
        a("s_waitcnt lgkmcnt(0)")
        a(f"s_load_dword s{S_TAG}, s[68:69], {WS_EPOCH}")
        def mk(base, lo, size):
            a(f"s_mov_b32 s{base}, s{lo}"); a(f"s_and_b32 s{base+1}, s{lo+1}, 0xffff")
            a(f"s_mov_b32 s{base+2}, {size}"); a(f"s_mov_b32 s{base+3}, 0x20000")
        mk(S_X, 48, 2048*448*2); mk(S_WQKV, 50, 448*1344*2); mk(S_WS, 68, 0x10000000); mk(S_WO, 52, 448*448*2)
        mk(S_WIN, 56, 448*1792*2); mk(S_WSP, 58, 2048*2048*2); mk(S_BSP, 60, 2048*2)
        mk(S_WOUT, 62, 896*448*2); mk(S_OUT, 64, 2048*448*2)
        self.tag_pending = True

    def tag_ready(self):
        if self.tag_pending:
            self.a("s_waitcnt lgkmcnt(0)"); self.a(f"s_add_u32 s{S_TAG}, s{S_TAG}, 1"); self.tag_pending = False

    def epilogue(self):
        a = self.a
        a("s_cmp_lg_u32 s2, 0"); a("s_cbranch_scc1 L_noepoch")
        a(f"s_cmp_lg_u32 s{S_WAVE}, 0"); a("s_cbranch_scc1 L_noepoch")
        a(f"v_mov_b32 v5, s{S_TAG}"); a(f"v_mov_b32 v6, {WS_EPOCH}")
        a("s_mov_b64 exec, 1")
        a(f"buffer_store_dword v5, v6, {srd(S_WS)}, 0 offen sc1")
        a("s_mov_b64 exec, -1")
        a("L_noepoch:")
        if self.stamps:
            a("s_waitcnt lgkmcnt(0)")
            a(f"s_lshl_b32 s48, s2, 2"); a(f"s_add_u32 s48, s48, s{S_WAVE}"); a("s_lshl_b32 s48, s48, 6"); a(f"s_add_u32 s48, s48, {DBG}")
            a("v_mov_b32 v6, 0"); a("s_mov_b64 exec, 1")
            for k in range(self.nstamp):
                a(f"v_mov_b32 v5, s{72+2*k}")
                a(f"buffer_store_dword v5, v6, {srd(S_WS)}, s48 offen offset:{4*k}")
            a("s_mov_b64 exec, -1")
        a("L_end:"); a("s_endpgm")

    def set_flag(self, soff):
        a = self.a
        self.vm.wait_all(); a("s_barrier")
        L = a.label("L_nf")
        a(f"s_cmp_lg_u32 s{S_WAVE}, 0"); a(f"s_cbranch_scc1 {L}")
        a(f"v_mov_b32 v5, s{S_TAG}"); a("v_mov_b32 v6, 0"); a("s_mov_b64 exec, 1")
        a(f"buffer_store_dword v5, v6, {srd(S_WS)}, s{soff} offen sc1")
        a("s_mov_b64 exec, -1"); a(f"{L}:")
        self.vm.ops.append("flag")

    def poll(self, soff, nflags, voff=None, drain=True):
        a = self.a
        if voff is None:
            a(f"v_min_u32 v9, {nflags-1}, v{V_LANE}"); a("v_lshlrev_b32 v9, 2, v9"); voff = 9
        Lp = a.label("L_poll"); Ld = a.label("L_pd"); Lo = a.label("L_po")
        a(f"s_cmp_lg_u32 s{S_WAVE}, 0"); a(f"s_cbranch_scc1 {Lo}")
        ld = lambda r: a(f"buffer_load_dword v{r}, v{voff}, {srd(S_WS)}, s{soff} offen sc1")
        for r in (5, 6, 7):
            ld(r); a("s_sleep 1")
        ld(8)
        a("s_mov_b32 s70, 0"); a(f"{Lp}:")
        for r in (5, 6, 7, 8):
            a("s_waitcnt vmcnt(3)")
            a(f"v_cmp_ne_u32 vcc, s{S_TAG}, v{r}")
            a(f"s_cbranch_vccz {Ld}")
            ld(r)
        a("s_add_u32 s70, s70, 1"); a("s_cmp_lt_u32 s70, 20000"); a(f"s_cbranch_scc1 {Lp}")
        a(f"s_branch {Ld}")
        a(f"{Lo}:")
        if drain: a("s_waitcnt vmcnt(0)")
        a(f"{Ld}:")
        a("s_barrier")
        if drain: self.vm.ops = ["p", "p", "p"]

    def half_op(self, v, t, op="v_add_f32"):
        a = self.a
        a(f"v_mov_b32 v{t}, v{v}"); a(f"v_permlane32_swap_b32 v{v}, v{t}"); a(f"{op} v{v}, v{v}, v{t}")

    def warm(self, srdb, nbytes, base_s=None):
        a, vm = self.a, self.vm
        per_wg = nbytes // 32; per_wave = per_wg // 4
        n = (per_wave + 1023) // 1024
        a(f"s_lshl_b32 s70, s{S_SLOT}, 2"); a(f"s_add_u32 s70, s70, s{S_WAVE}"); a(f"s_mul_i32 s70, s70, {per_wave}")
        if base_s is not None: a(f"s_add_u32 s70, s70, s{base_s}")
        for k in range(n):
            if k and k % 4 == 0: a("s_add_u32 s70, s70, 4096")
            vm.issue(f"buffer_load_dwordx4 {V(V_DUMMY,4)}, v{V_L16}, {srd(srdb)}, s70 offen offset:{(k%4)*1024}", tag="warm")

    def tr_base(self, dst, rowbytes, hhrows, t0, t1):
        a = self.a
        a(f"v_lshrrev_b32 v{t0}, 2, v{V_LANE}"); a(f"v_and_b32 v{t0}, 3, v{t0}")
        a(f"v_mul_u32_u24 v{t1}, {hhrows}, v{V_HH}"); a(f"v_add_u32 v{t0}, v{t0}, v{t1}"); a(f"v_mul_u32_u24 v{t0}, {rowbytes}, v{t0}")
        a(f"v_lshrrev_b32 v{t1}, 4, v{V_LANE}"); a(f"v_and_b32 v{t1}, 1, v{t1}"); a(f"v_lshlrev_b32 v{t1}, 5, v{t1}")
        a(f"v_add_u32 v{t0}, v{t0}, v{t1}")
        a(f"v_and_b32 v{t1}, 3, v{V_LANE}"); a(f"v_lshlrev_b32 v{t1}, 3, v{t1}")
        a(f"v_add_u32 v{dst}, v{t0}, v{t1}")

    def sched(self, mf, fill, lead=0):
        a = self.a
        tot = sum(c for _, c in fill); n = len(mf); k = 0; done = 0
        for i, x in enumerate(mf):
            a(x)
            tgt = tot * (i + 1) / n
            while k < len(fill) and (done + fill[k][1] / 2 <= tgt or i == n - 1):
                self.emit_fill(fill[k][0]); done += fill[k][1]; k += 1

    def emit_fill(self, x):
        if callable(x): x()
        else: self.a(x)

    def phase_A_pre(self):
        a, R = self.a, self.R
        R.reset()
        P = self.PA = {}
        P["VW0"] = VW0 = R.alloc(3, 1); P["VXE"] = VXE = R.alloc(); P["VXO"] = VXO = R.alloc(); P["t"] = t = R.alloc(4, 1); P["VSR"] = VSR = R.alloc()
        SI, SJ, STQ, SMM = 48, 49, 58, 62
        a(f"v_mul_u32_u24 v{t}, 896, v{V_HH}"); a(f"v_lshlrev_b32 v{t+1}, 4, v{V_L31}"); a(f"v_add_u32 v{t}, v{t}, v{t+1}")
        a(f"v_cmp_gt_u32 vcc, 28, v{V_L31}"); a(f"v_mov_b32 v{t+1}, 0x7ffffff0"); a(f"v_cndmask_b32 v{VSR}, v{t+1}, v{t}, vcc")
        a(f"v_lshrrev_b32 v{t}, 3, v{V_LANE}"); a(f"v_and_b32 v{t+1}, 7, v{V_LANE}"); a(f"v_lshrrev_b32 v{t+2}, 4, v{V_LANE}")
        a(f"v_xor_b32 v{t+3}, v{t+1}, v{t+2}"); a(f"v_lshlrev_b32 v{t+3}, 4, v{t+3}"); a(f"v_mul_u32_u24 v{t}, 896, v{t}"); a(f"v_add_u32 v{VXE}, v{t}, v{t+3}")
        a(f"v_add_u32 v{t+2}, 4, v{t+2}"); a(f"v_xor_b32 v{t+3}, v{t+1}, v{t+2}"); a(f"v_lshlrev_b32 v{t+3}, 4, v{t+3}"); a(f"v_add_u32 v{VXO}, v{t}, v{t+3}")
        a(f"v_lshrrev_b32 v{t}, 3, v{V_LANE}"); a(f"v_lshrrev_b32 v{t+1}, 4, v{V_LANE}"); a(f"v_lshrrev_b32 v{t+2}, 2, v{V_LANE}")
        a(f"v_xor_b32 v{t+1}, v{t+1}, v{t+2}"); a(f"v_and_b32 v{t+1}, 1, v{t+1}"); a(f"v_mul_u32_u24 v{t+1}, 896, v{t+1}")
        a(f"v_mul_u32_u24 v{t}, 2688, v{t}"); a(f"v_and_b32 v{t+3}, 3, v{V_LANE}"); a(f"v_lshlrev_b32 v{t+3}, 4, v{t+3}")
        a(f"v_add3_u32 v{VW0}, v{t}, v{t+1}, v{t+3}"); a(f"v_add_u32 v{VW0}, 896, v{VW0}")
        a(f"v_mul_u32_u24 v{t+2}, 2688, v{t+2}"); a(f"v_add_u32 v{VW0+1}, v{t+2}, v{t+3}")

    def phase_A(self):
        a, vm, R = self.a, self.vm, self.R
        a.c("================ phase A : LN1 + QKV + attention ================")
        P = self.PA; VW0, VXE, VXO, t, VSR = P["VW0"], P["VXE"], P["VXO"], P["t"], P["VSR"]
        SI, SJ, SXB, SWB, SLX, SLW, STQ = 48, 49, 52, 53, 54, 55, 58
        SMM = 62
        a(f"s_lshr_b32 s50, s{S_XCD}, 1"); a("s_lshl_b32 s50, s50, 2"); a(f"s_lshr_b32 s51, s{S_SLOT}, 3"); a(f"s_add_u32 s{SI}, s50, s51")
        a(f"s_and_b32 s50, s{S_XCD}, 1"); a("s_lshl_b32 s50, s50, 3"); a(f"s_and_b32 s71, s{S_SLOT}, 7"); a(f"s_add_u32 s{SJ}, s50, s71")
        a(f"s_lshl_b32 s{STQ}, s{SI}, 2"); a(f"s_add_u32 s{STQ}, s{STQ}, s{S_WAVE}"); a(f"s_mul_i32 s{SXB}, s{STQ}, {32*896}")
        self.stamp("A@0")
        LW = 0; LQ = 57344; LX = 86016; LPW = 151552; LKV = 102400
        SR = R.alloc(8)
        a(f"s_lshl_b32 s50, s{SI}, 7"); a(f"s_lshl_b32 s70, s{SJ}, 3"); a("s_add_u32 s50, s50, s70"); a(f"s_lshl_b32 s70, s{S_WAVE}, 1"); a("s_add_u32 s59, s50, s70")
        a("s_mul_i32 s50, s59, 896")
        vm.issue(f"buffer_load_dwordx4 {V(SR,4)}, v{VSR}, {srd(S_X)}, s50 offen", tag="sr")
        vm.issue(f"buffer_load_dwordx4 {V(SR+4,4)}, v{VSR}, {srd(S_X)}, s50 offen offset:448", tag="sr")
        a(f"s_lshl_b32 s51, s51, 1"); a(f"s_add_u32 s51, s51, s{SJ}"); a("s_mul_i32 s50, s51, 37"); a("s_lshr_b32 s50, s50, 8"); a("s_mul_i32 s50, s50, 7"); a("s_sub_u32 s51, s51, s50")
        if not self.o.get("rot_a", 1): a("s_mov_b32 s51, 0")
        a(f"s_lshl_b32 s{SMM}, s51, 7")
        a(f"s_lshl_b32 s{SLX}, s{S_WAVE}, 14"); a(f"s_add_u32 s{SLX}, s{SLX}, {LX}")
        a(f"s_mul_i32 s{SWB}, s{SJ}, 56"); a(f"s_mul_i32 s50, s{S_WAVE}, {16*2688}"); a(f"s_add_u32 s{SWB}, s{SWB}, s50")
        a(f"s_lshl_b32 s{SLW}, s{S_WAVE}, 11")
        def dma_list(m):
            out = []
            def pre():
                if m > 0:
                    a(f"s_add_u32 s{SMM+m}, s{SMM+m-1}, 128"); a(f"s_cmp_ge_u32 s{SMM+m}, 896"); a("s_cselect_b32 s71, 896, 0"); a(f"s_sub_u32 s{SMM+m}, s{SMM+m}, s71")
                a(f"s_add_u32 s57, s{SXB}, s{SMM+m}"); a(f"s_mul_i32 s61, s{SMM+m}, 1344"); a(f"s_add_u32 s61, s61, s{SWB}")
            out.append((pre, 16))
            for q in range(4):
                def f(q=q):
                    a(f"s_add_u32 m0, s{SLX}, {(m%4)*4096 + q*1024}"); a(f"s_add_u32 s56, s57, {q*7168}")
                    vm.issue(f"buffer_load_dwordx4 v{VXE if q%2==0 else VXO}, {srd(S_X)}, s56 offen lds", tag=("c", m))
                out.append((f, 16))
            for p in range(2):
                def f(p=p):
                    a(f"s_add_u32 m0, s{SLW}, {LW + m*8192 + p*1024}"); a(f"s_add_u32 s56, s61, {p*8*2688}")
                    vm.issue(f"buffer_load_dwordx4 v{VW0}, {srd(S_WQKV)}, s56 offen lds", tag=("c", m))
                out.append((f, 16))
            return out
        def dma_q(m):
            def f():
                a(f"s_mul_i32 s61, s{SMM+m}, 1344"); a(f"s_add_u32 s61, s61, s{SWB}")
                a(f"s_lshr_b32 s56, s{SLW}, 1"); a(f"s_add_u32 m0, s56, {LQ + m*4096}"); a("s_nop 0")
                vm.issue(f"buffer_load_dwordx4 v{VW0+1}, {srd(S_WQKV)}, s61 offen lds", tag="q")
            return [(f, 24)]
        for m in range(2):
            for f, _ in dma_list(m): f()
        if self.o.get("tlb", 1): self.tlb_warm()
        self.stamp("A@1")
        ONES = R.alloc(4); S0 = R.alloc(); Q0 = R.alloc(); T0 = R.alloc(); T1 = R.alloc()
        for k in range(4): a(f"v_mov_b32 v{ONES+k}, 0x3f803f80")
        a(f"v_mov_b32 v{S0}, 0"); a(f"v_mov_b32 v{Q0}, 0")
        VXA = R.alloc(4, 1)
        a(f"v_lshrrev_b32 v{t}, 1, v{V_L31}"); a(f"v_and_b32 v{t}, 7, v{t}"); a(f"v_xor_b32 v{t}, v{t}, v{V_HH}"); a(f"v_lshlrev_b32 v{t}, 4, v{t}")
        a(f"v_lshlrev_b32 v{VXA}, 7, v{V_L31}"); a(f"v_add_u32 v{VXA}, v{VXA}, v{t}"); a(f"v_add_u32 v{VXA}, s{SLX}, v{VXA}")
        for s in range(1, 4): a(f"v_xor_b32 v{VXA+s}, {s*32}, v{VXA}")
        VWK = R.alloc(); VWV = R.alloc(); VWQ = R.alloc()
        self.tr_base(VWK, 128, 8, t, t+1)
        a(f"v_lshrrev_b32 v{t}, 3, v{V_LANE}"); a(f"v_and_b32 v{t}, 1, v{t}"); a(f"v_lshlrev_b32 v{t}, 6, v{t}")
        a(f"v_xor_b32 v{t+1}, 64, v{t}"); a(f"v_add_u32 v{VWV}, v{VWK}, v{t+1}"); a(f"v_add_u32 v{VWK}, v{VWK}, v{t}")
        self.tr_base(VWQ, 64, 8, t, t+1)
        a(f"v_add_u32 v{VWQ}, {LQ}, v{VWQ}")
        AK = R.alloc(16); AV = R.alloc(16); CK = R.alloc(16); CV = R.alloc(16)
        vm.wait("sr")
        for d in range(8):
            a(f"v_dot2_f32_bf16 v{S0}, v{SR+d}, v{ONES}, v{S0}"); a(f"v_dot2_f32_bf16 v{Q0}, v{SR+d}, v{SR+d}, v{Q0}")
        for rr in (8, 4, 2, 1):
            for v in (S0, Q0): a(f"v_add_f32_dpp v{v}, v{v}, v{v} row_ror:{rr} row_mask:0xf bank_mask:0xf")
        a(f"v_mov_b32 v{T0}, v{S0}"); a(f"v_mov_b32 v{T1}, v{Q0}")
        a(f"v_permlane16_swap_b32 v{S0}, v{T0}"); a(f"v_permlane16_swap_b32 v{Q0}, v{T1}")
        a(f"v_add_f32 v{S0}, v{S0}, v{T0}"); a(f"v_add_f32 v{Q0}, v{Q0}, v{T1}")
        a(f"v_mul_f32 v{S0}, {lit(1/448)}, v{S0}"); a(f"v_mul_f32 v{Q0}, {lit(1/448)}, v{Q0}")
        a(f"v_fma_f32 v{Q0}, -v{S0}, v{S0}, v{Q0}"); a(f"v_max_f32 v{Q0}, 0, v{Q0}")
        a(f"v_add_f32 v{Q0}, {lit(1e-5)}, v{Q0}"); a(f"v_rsq_f32 v{Q0}, v{Q0}")
        self.tag_ready()
        a(f"v_mov_b32 v{SR}, v{S0}"); a(f"v_mov_b32 v{SR+2}, s{S_TAG}"); a(f"v_mov_b32 v{SR+3}, s{S_TAG}"); a(f"v_mov_b32 v{SR+1}, v{Q0}")
        a(f"v_lshlrev_b32 v{T0}, 4, v{V_HH}"); a(f"s_lshl_b32 s50, s59, 4"); a(f"s_add_u32 s50, s50, {STAT1}")
        a("s_mov_b32 exec_lo, 1"); a("s_mov_b32 exec_hi, 1")
        vm.issue(f"buffer_store_dwordx4 {V(SR,4)}, v{T0}, {srd(S_WS)}, s50 offen sc1", tag="st1")
        a("s_mov_b64 exec, -1")
        NB = 2
        WF = R.alloc(8 * NB)
        def rd_x(m): return [(f"ds_read_b128 {A(16*m+4*s,4)}, v{VXA+s} offset:{(m%4)*4096}", 4) for s in range(4)]
        def rd_w(s):
            buf = s % NB; out = []
            for g, base in enumerate((VWK, VWV)):
                for e in range(2):
                    r = WF + buf*8 + g*4 + e*2
                    out.append((f"ds_read_b64_tr_b16 v[{r}:{r+1}], v{base} offset:{LW + s*2048 + e*512}", 4))
            return out
        def chunk_ready(m):
            vm.wait(("c", m)); a("s_barrier")
        SG = R.alloc(4); RK = R.alloc(16); MK = R.alloc(16); MR = R.alloc()
        chunk_ready(0)
        self.stamp("g0")
        for x, _ in rd_x(0) + rd_w(0): a(x)
        pend = []
        for s in range(28):
            m, sp = s // 4, s % 4
            fill = []
            if sp == 0 and m + 2 < 7: pend = dma_list(m + 2)
            if sp == 0 and m in (5, 6): pend = sum([dma_q(mq) for mq in (range(4) if m == 5 else range(4, 7))], [])
            a("s_waitcnt lgkmcnt(0)")
            if s + 1 < 28:
                if sp == 3:
                    fill.append((lambda m=m: chunk_ready(m + 1), 8)); fill += rd_x(m + 1)
                fill += rd_w(s + 1)
            take = 2 if sp < 3 else len(pend)
            fill += pend[:take]; pend = pend[take:]
            if s == 20:
                def sg():
                    a(f"v_lshlrev_b32 v{T0}, 4, v{V_L31}"); a(f"s_lshl_b32 s50, s{STQ}, 9"); a(f"s_add_u32 s60, s50, {STAT1}")
                    vm.issue(f"buffer_load_dwordx4 {V(SG,4)}, v{T0}, {srd(S_WS)}, s60 offen sc1", tag="sg")
                fill.append((sg, 16))
            x = A(16*m + 4*sp, 4); wb = WF + (s % NB) * 8
            c = lambda r: '0' if s == 0 else V(r, 16)
            mf = [f"{MFMA} {V(AK,16)}, {V(wb,4)}, {x}, {c(AK)}", f"{MFMA} {V(AV,16)}, {x}, {V(wb+4,4)}, {c(AV)}",
                  f"{MFMA} {V(CK,16)}, {V(wb,4)}, {V(ONES,4)}, {c(CK)}", f"{MFMA} {V(CV,16)}, {V(ONES,4)}, {V(wb+4,4)}, {c(CV)}"]
            self.sched(mf, fill)
        self.stamp("A@2")
        Lp = a.label("L_sg"); Ld = a.label("L_sgd")
        vm.wait("sg")
        a("s_mov_b32 s70, 0"); a(f"{Lp}:")
        a(f"v_cmp_ne_u32 vcc, s{S_TAG}, v{SG+2}"); a(f"s_cbranch_vccz {Ld}")
        a(f"v_lshlrev_b32 v{T0}, 4, v{V_L31}")
        a(f"buffer_load_dwordx4 {V(SG,4)}, v{T0}, {srd(S_WS)}, s60 offen sc1"); a("s_waitcnt vmcnt(0)")
        a("s_add_u32 s70, s70, 1"); a("s_cmp_lt_u32 s70, 20000"); a(f"s_cbranch_scc1 {Lp}")
        a(f"{Ld}:")
        MEAN, RSTD = SG, SG + 1
        a(f"v_mul_f32 v{MR}, v{MEAN}, v{RSTD}")
        a(f"v_lshlrev_b32 v{T1}, 2, v{V_L31}"); a(f"s_lshl_b32 s57, s{S_WAVE}, 8"); a(f"s_add_u32 s57, s57, {LPW}"); a(f"v_add_u32 v{T0}, s57, v{T1}")
        a(f"ds_write_b32 v{T0}, v{RSTD}"); a(f"ds_write_b32 v{T0}, v{MR} offset:128")
        a(f"v_lshlrev_b32 v{T0}, 4, v{V_HH}"); a(f"v_add_u32 v{T0}, s57, v{T0}")
        a("s_waitcnt lgkmcnt(0)")
        for gg in range(4):
            a(f"ds_read_b128 {V(RK+4*gg,4)}, v{T0} offset:{gg*32}"); a(f"ds_read_b128 {V(MK+4*gg,4)}, v{T0} offset:{128+gg*32}")
        KF = R.alloc(8); VF = R.alloc(8); MASKH = R.alloc(); MASKD = R.alloc(); ONED = R.alloc()
        a(f"v_cmp_eq_u32 vcc, 0, v{V_HH}"); a(f"v_cndmask_b32 v{MASKH}, 0, -1, vcc")
        a(f"v_cmp_gt_u32 vcc, 28, v{V_L31}"); a(f"v_cndmask_b32 v{MASKD}, 0, -1, vcc")
        a(f"v_cmp_eq_u32 vcc, 28, v{V_L31}"); a(f"v_cndmask_b32 v{ONED}, 0, v{ONES}, vcc")
        for r in range(0, 16, 2):
            a(f"v_pk_fma_f32 {V(AK+r,2)}, {V(MEAN,2)}, {V(CK+r,2)}, {V(AK+r,2)} op_sel_hi:[0,1,1] neg_lo:[1,0,0] neg_hi:[1,0,0]")
        for r in range(0, 16, 2):
            a(f"v_pk_mul_f32 {V(AK+r,2)}, {V(AK+r,2)}, {V(MEAN,2)} op_sel:[0,1] op_sel_hi:[1,1]")
        for d in range(8): a(f"v_cvt_pk_bf16_f32 v{KF+d}, v{AK+2*d}, v{AK+2*d+1}")
        for d in (6, 7): a(f"v_and_b32 v{KF+d}, v{KF+d}, v{MASKH}")
        a(f"s_lshl_b32 s56, s{SJ}, 6"); a(f"s_add_u32 s56, s56, s{STQ}"); a("s_lshl_b32 s56, s56, 12"); a(f"s_add_u32 s56, s56, {KVF}")
        for part, r in enumerate((KF, KF+4)):
            vm.issue(f"buffer_store_dwordx4 {V(r,4)}, v{V_L16}, {srd(S_WS)}, s56 offen offset:{part*1024} sc1")
        a("s_waitcnt lgkmcnt(0)")
        for r in range(0, 16, 2):
            a(f"v_pk_mul_f32 {V(MK+r,2)}, {V(MK+r,2)}, {V(CV+r,2)}")
            a(f"v_pk_fma_f32 {V(AV+r,2)}, {V(AV+r,2)}, {V(RK+r,2)}, {V(MK+r,2)} neg_lo:[0,0,1] neg_hi:[0,0,1]")
        for d in range(8): a(f"v_cvt_pk_bf16_f32 v{VF+d}, v{AV+2*d}, v{AV+2*d+1}")
        for d in range(8): a(f"v_and_or_b32 v{VF+d}, v{VF+d}, v{MASKD}, v{ONED}")
        for part, r in enumerate((VF, VF+4)):
            vm.issue(f"buffer_store_dwordx4 {V(r,4)}, v{V_L16}, {srd(S_WS)}, s56 offen offset:{2048+part*1024} sc1")
        vm.wait("q")
        a("s_barrier")
        a(f"s_lshl_b32 s50, s{S_WAVE}, 12"); a(f"s_add_u32 s50, s50, {LKV + 8*4096}"); a(f"v_add_u32 v{T0}, s50, v{V_L16}")
        for part, r in enumerate((KF, KF+4, VF, VF+4)):
            a(f"ds_write_b128 v{T0}, {V(r,4)} offset:{part*1024}")
        for b, n in ((CK,16),(CV,16),(RK,16),(MK,16),(AK,16),(AV,16),(WF,8*NB)): R.free(b, n)
        AQ = R.alloc(16); CQ = R.alloc(16); QW = R.alloc(16)
        def rd_q(s):
            return [(f"ds_read_b64_tr_b16 v[{QW+(s%4)*4+e*2}:{QW+(s%4)*4+e*2+1}], v{VWQ} offset:{s*1024 + e*256}", 4) for e in range(2)]
        for s in range(2):
            for x, _ in rd_q(s): a(x)
        a(f"s_lshl_b32 s59, s{SJ}, 7"); a(f"s_lshl_b32 s56, s{SI}, 2"); a("s_add_u32 s59, s59, s56"); a(f"s_add_u32 s59, s59, {F_KV}")
        R.free(KF, 8); R.free(VF, 8)
        for s in range(28):
            fill = rd_q(s + 2) if s + 2 < 28 else []
            a(f"s_waitcnt lgkmcnt({2 if s + 1 < 28 else 0})")
            c = lambda r: '0' if s == 0 else V(r, 16)
            q = V(QW + (s % 4)*4, 4)
            self.sched([f"{MFMA} {V(AQ,16)}, {q}, {A(4*s,4)}, {c(AQ)}", f"{MFMA} {V(CQ,16)}, {q}, {V(ONES,4)}, {c(CQ)}"], fill)
            if s == self.o.get("kvflag_at", 12):
                self.set_flag(59)
                self.stamp("A@3")
        RQ = R.alloc(2); QF = R.alloc(8)
        qscale = (28 ** -0.5) * LOG2E
        a(f"v_mul_f32 v{RQ}, {lit(qscale)}, v{RSTD}")
        CD = R.alloc(16); CF = R.alloc(16); CM = R.alloc(16); BS = R.alloc(); NBG = R.alloc()
        a(f"v_lshlrev_b32 v{BS}, 2, v{V_HH}"); a(f"v_sub_u32 v{BS}, v{V_L31}, v{BS}"); a(f"v_mov_b32 v{NBG}, {lit(-1e30)}")
        for r in range(16):
            c = (r & 3) + 8 * (r >> 2)
            a(f"v_cmp_le_i32 vcc, {c}, v{BS}")
            a(f"v_cndmask_b32 v{CD+r}, v{NBG}, 0, vcc"); a(f"v_cndmask_b32 v{CF+r}, 0, v{NBG}, vcc")
        for r in range(0, 16, 2):
            a(f"v_pk_fma_f32 {V(AQ+r,2)}, {V(MEAN,2)}, {V(CQ+r,2)}, {V(AQ+r,2)} op_sel_hi:[0,1,1] neg_lo:[1,0,0] neg_hi:[1,0,0]")
        for r in range(0, 16, 2):
            a(f"v_pk_mul_f32 {V(AQ+r,2)}, {V(AQ+r,2)}, {V(RQ,2)} op_sel_hi:[1,0]")
        for d in range(8): a(f"v_cvt_pk_bf16_f32 v{QF+d}, v{AQ+2*d}, v{AQ+2*d+1}")
        for d in (6, 7): a(f"v_and_b32 v{QF+d}, v{QF+d}, v{MASKH}")
        R.free(AQ, 16); R.free(QW, 16); R.free(CQ, 16)
        a(f"s_lshl_b32 s59, s{SJ}, 7"); a(f"s_add_u32 s59, s59, {F_KV}")
        a(f"s_sub_i32 s56, s{SI}, 1"); a("s_max_i32 s56, s56, 0"); a(f"s_sub_i32 s57, s{SI}, 2"); a("s_max_i32 s57, s57, 0")
        a("s_lshl_b32 s56, s56, 2"); a("s_lshl_b32 s57, s57, 2")
        a(f"v_mov_b32 v9, s56"); a(f"v_mov_b32 v{T0}, s57"); a(f"v_cmp_eq_u32 vcc, 0, v{V_HH}"); a(f"v_cndmask_b32 v9, v{T0}, v9, vcc")
        self.poll(59, 2, voff=9)
        self.stamp("A@4")
        a(f"s_lshl_b32 s59, s{SJ}, 18"); a(f"s_add_u32 s59, s59, {KVF}")
        for tt in range(2):
            a(f"s_lshl_b32 s56, s{SI}, 2"); a(f"s_lshl_b32 s57, s{S_WAVE}, 1"); a("s_add_u32 s56, s56, s57"); a(f"s_add_i32 s56, s56, {tt-8}"); a("s_max_i32 s56, s56, 0")
            a("s_lshl_b32 s56, s56, 12"); a("s_add_u32 s56, s56, s59")
            a(f"s_lshl_b32 s57, s{S_WAVE}, 13"); a(f"s_add_u32 s57, s57, {LKV + tt*4096}")
            for part in range(4):
                a(f"s_add_u32 m0, s57, {part*1024}"); a(f"s_add_u32 s50, s56, {part*1024}")
                vm.issue(f"buffer_load_dwordx4 v{V_L16}, {srd(S_WS)}, s50 offen sc1 lds", tag="kv")
        KA = R.alloc()
        a(f"s_lshl_b32 s50, s{S_WAVE}, 12"); a(f"s_add_u32 s50, s50, {LKV}"); a(f"v_add_u32 v{KA}, s50, v{V_L16}")
        a(f"s_sub_i32 s60, 8, s{STQ}"); a("s_max_i32 s60, s60, 0")
        SA = R.alloc(16); SB = R.alloc(16); O = R.alloc(16); PF = R.alloc(16); KR = R.alloc(16); VR = R.alloc(16); MX = R.alloc(2)
        a(f"v_mov_b32 v{MX}, {lit(-1e30)}"); a(f"v_mov_b32 v{MX+1}, {lit(-1e30)}")
        vm.wait("kv"); a("s_barrier")
        self.stamp("A@5")
        rk = lambda u: [(f"ds_read_b128 {V(KR+8*(u%2)+4*h,4)}, v{KA} offset:{u*4096+h*1024}", 4) for h in range(2)]
        rv = lambda u: [(f"ds_read_b128 {V(VR+8*(u%2)+4*h,4)}, v{KA} offset:{u*4096+2048+h*1024}", 4) for h in range(2)]
        def smf(u, c):
            S = SA if u % 2 == 0 else SB; k = KR + 8*(u % 2)
            return [f"{MFMA} {V(S,16)}, {V(k,4)}, {V(QF,4)}, {c}", f"{MFMA} {V(S,16)}, {V(k+4,4)}, {V(QF+4,4)}, {V(S,16)}"]
        def pvm(u):
            P = PF + 8*(u % 2); vr = VR + 8*(u % 2)
            return [f"{MFMA} {V(O,16)}, {V(vr,4)}, {V(P,4)}, {'0' if u == 0 else V(O,16)}", f"{MFMA} {V(O,16)}, {V(vr+4,4)}, {V(P+4,4)}, {V(O,16)}"]
        warm = (self.touch_list(S_WO, 448*448*2) + self.touch_list(S_WIN, 448*1792*2)) if self.o.get("warm", 1) else []
        Lslow = a.label("L_slow"); Ljoin = a.label("L_join")
        a("s_cmp_gt_u32 s60, 0"); a(f"s_cbranch_scc1 {Lslow}")
        saved_ops = list(vm.ops)
        cop1 = lambda u: V(CF,16) if u == 0 else (V(CD,16) if u == 8 else "0")
        for x, _ in rk(0) + rk(1): a(x)
        a("s_waitcnt lgkmcnt(2)")
        for x in smf(0, cop1(0)): a(x)
        for u in range(9):
            S = SA if u % 2 == 0 else SB
            mx = [(f"v_max3_f32 v{MX+(r//2)%2}, v{S+r}, v{S+r+1}, v{MX+(r//2)%2}", 4) for r in range(0, 16, 2)]
            if u + 1 < 9:
                a("s_waitcnt lgkmcnt(0)")
                self.sched(smf(u + 1, cop1(u + 1)), (rk(u + 2) if u + 2 < 9 else []) + mx)
            else:
                for x, _ in mx: a(x)
        self.stamp("p1")
        self.attn_mid(MX, T0, CM, CD, CF)
        self.stamp("p2")
        cop2 = lambda u: V(CF,16) if u == 0 else (V(CD,16) if u == 8 else V(CM,16))
        for x, _ in rk(0) + rk(1): a(x)
        a("s_waitcnt lgkmcnt(2)")
        for x in smf(0, cop2(0)): a(x)
        for u in range(10):
            mf = []; fill = []
            a("s_waitcnt lgkmcnt(0)")
            if u + 1 < 9: mf += smf(u + 1, cop2(u + 1))
            if u >= 1: mf += pvm(u - 1)
            if u < 9:
                S = SA if u % 2 == 0 else SB; P = PF + 8*(u % 2)
                fill += rv(u)
                if u + 2 < 9: fill += rk(u + 2)
                for d in range(8):
                    fill += [(f"v_exp_f32 v{S+2*d}, v{S+2*d}", 8), (f"v_exp_f32 v{S+2*d+1}, v{S+2*d+1}", 8)]
                    if d >= 1: fill.append((f"v_cvt_pk_bf16_f32 v{P+d-1}, v{S+2*d-2}, v{S+2*d-1}", 4))
                fill.append((f"v_cvt_pk_bf16_f32 v{P+7}, v{S+14}, v{S+15}", 4))
                fill += warm[:1]; warm = warm[1:]
            self.sched(mf, fill)
        for f, _ in warm: self.emit_fill(f)
        self.stamp("p3")
        a(f"s_branch {Ljoin}")
        fast_ops = list(vm.ops); vm.ops = saved_ops
        a(f"{Lslow}:")
        for u in range(9):
            L = a.label("L_s1")
            if u < 8: a(f"s_cmp_gt_u32 s60, {u}"); a(f"s_cbranch_scc1 {L}")
            for x, _ in rk(u): a(x)
            a("s_waitcnt lgkmcnt(0)")
            for x in smf(u, cop1(u)): a(x)
            S = SA if u % 2 == 0 else SB
            for r in range(0, 16, 2): a(f"v_max3_f32 v{MX}, v{S+r}, v{S+r+1}, v{MX}")
            a(f"{L}:")
        self.attn_mid(MX, T0, CM, CD, CF)
        for r in range(16): a(f"v_mov_b32 v{O+r}, 0")
        for u in range(9):
            L = a.label("L_s2")
            if u < 8: a(f"s_cmp_gt_u32 s60, {u}"); a(f"s_cbranch_scc1 {L}")
            S = SA if u % 2 == 0 else SB; P = PF + 8*(u % 2); vr = VR + 8*(u % 2)
            for x, _ in rk(u) + rv(u): a(x)
            a("s_waitcnt lgkmcnt(0)")
            for x in smf(u, cop2(u)): a(x)
            for r in range(16): a(f"v_exp_f32 v{S+r}, v{S+r}")
            for d in range(8): a(f"v_cvt_pk_bf16_f32 v{P+d}, v{S+2*d}, v{S+2*d+1}")
            a(f"{MFMA} {V(O,16)}, {V(vr,4)}, {V(P,4)}, {V(O,16)}")
            a(f"{MFMA} {V(O,16)}, {V(vr+4,4)}, {V(P+4,4)}, {V(O,16)}")
            a(f"{L}:")
        if self.o.get("warm", 1):
            for f, _ in self.touch_list(S_WO, 448*448*2) + self.touch_list(S_WIN, 448*1792*2): self.emit_fill(f)
        vm.ops = fast_ops
        a(f"{Ljoin}:")
        a(f"v_mov_b32 v{T0}, v{O+12}"); a(f"v_mov_b32 v{MX}, v{O+12}")
        a(f"v_permlane32_swap_b32 v{T0}, v{MX}")
        a(f"v_rcp_f32 v{MX}, v{MX}")
        for r in range(0, 16, 2): a(f"v_pk_mul_f32 {V(O+r,2)}, {V(O+r,2)}, {V(MX,2)} op_sel_hi:[1,0]")
        for d in range(8): a(f"v_cvt_pk_bf16_f32 v{PF+d}, v{O+2*d}, v{O+2*d+1}")
        for d in (6, 7): a(f"v_and_b32 v{PF+d}, v{PF+d}, v{MASKH}")
        a(f"s_lshl_b32 s56, s{STQ}, 4"); a(f"s_add_u32 s56, s56, s{SJ}"); a("s_lshl_b32 s56, s56, 11"); a(f"s_add_u32 s56, s56, {OFR}")
        for h in range(2):
            vm.issue(f"buffer_store_dwordx4 {V(PF+4*h,4)}, v{V_L16}, {srd(S_WS)}, s56 offen offset:{h*1024} sc1")
        a(f"s_lshl_b32 s59, s{SI}, 7"); a(f"s_lshl_b32 s56, s{SJ}, 2"); a("s_add_u32 s59, s59, s56"); a(f"s_add_u32 s59, s59, {F_O}")
        self.set_flag(59)
        self.stamp("A@6")

    def tlb_warm(self):
        a, vm = self.a, self.vm
        a(f"v_lshlrev_b32 v{V_TOUCH}, 21, v{V_LANE}")
        a("s_mov_b64 exec, 0xfff")
        vm.issue(f"buffer_load_dword v{V_DUMMY}, v{V_TOUCH}, {srd(S_WS)}, 0 offen", tag="tlb")
        a("s_mov_b64 exec, 0xf")
        vm.issue(f"buffer_load_dword v{V_DUMMY}, v{V_TOUCH}, {srd(S_WSP)}, 0 offen", tag="tlb")
        a("s_mov_b64 exec, 1")
        for sb in (S_WO, S_WIN, S_WOUT, S_BSP, S_OUT):
            vm.issue(f"buffer_load_dword v{V_DUMMY}, v{V_TOUCH}, {srd(sb)}, 0 offen", tag="tlb")
        a("s_mov_b64 exec, -1")

    def warm_list(self, srdb, nbytes, sreg=69):
        a, vm = self.a, self.vm
        per_wave = nbytes // 128; n = (per_wave + 1023) // 1024; out = []
        for k in range(n):
            def f(k=k):
                if k == 0:
                    a(f"s_lshl_b32 s{sreg}, s{S_SLOT}, 2"); a(f"s_add_u32 s{sreg}, s{sreg}, s{S_WAVE}"); a(f"s_mul_i32 s{sreg}, s{sreg}, {per_wave}")
                elif k % 4 == 0: a(f"s_add_u32 s{sreg}, s{sreg}, 4096")
                vm.issue(f"buffer_load_dwordx4 {V(V_DUMMY,4)}, v{V_L16}, {srd(srdb)}, s{sreg} offen offset:{(k%4)*1024}", tag="warm")
            out.append((f, 8))
        return out

    def attn_mid(self, MX, T0, CM, CD, CF):
        a = self.a
        a(f"v_max_f32 v{MX}, v{MX}, v{MX+1}")
        self.half_op(MX, T0, "v_max_f32")
        for r in range(16): a(f"v_sub_f32 v{CM+r}, 0, v{MX}")
        for r in range(0, 16, 2):
            a(f"v_pk_add_f32 {V(CD+r,2)}, {V(CD+r,2)}, {V(CM,2)}"); a(f"v_pk_add_f32 {V(CF+r,2)}, {V(CF+r,2)}, {V(CM,2)}")

    def touch_list(self, srdb, nbytes, sreg=69, base=None):
        a, vm = self.a, self.vm
        per_wave = (nbytes // 128 + 63) // 64 * 64; n = (per_wave + 4095) // 4096; out = []
        for k in range(n):
            def f(k=k):
                if k == 0:
                    a(f"s_lshl_b32 s{sreg}, s{S_SLOT}, 2"); a(f"s_add_u32 s{sreg}, s{sreg}, s{S_WAVE}"); a(f"s_mul_i32 s{sreg}, s{sreg}, {per_wave}")
                    if base is not None: a(f"s_add_u32 s{sreg}, s{sreg}, s{base}")
                    a(f"v_lshlrev_b32 v{V_TOUCH}, 6, v{V_LANE}")
                else: a(f"s_add_u32 s{sreg}, s{sreg}, 4096")
                vm.issue(f"buffer_load_dword v{V_DUMMY}, v{V_TOUCH}, {srd(srdb)}, s{sreg} offen", tag="warm")
            out.append((f, 12))
        return out

    def idle_prefetch(self, skip, part):
        a = self.a
        Lo = a.label("L_ip")
        a(f"s_branch {Lo}")
        a(f"{skip}:")
        idn = self.o.get("idle_n", [6, 10])
        n = idn[part] if part < 2 else 13
        first = 0 if part != 1 else idn[0]
        if n:
            if part < 2: a(f"s_lshl_b32 s50, s{S_XCD}, 20")
            else: a("s_mov_b32 s50, 0")
            a(f"s_sub_u32 s51, s{S_SLOT}, 28"); a("s_lshl_b32 s51, s51, 2"); a(f"s_add_u32 s51, s51, s{S_WAVE}"); a("s_lshl_b32 s51, s51, 12"); a("s_add_u32 s50, s50, s51")
            a(f"s_add_u32 s50, s50, {first*16*4096}")
            a(f"v_lshlrev_b32 v{V_TOUCH}, 6, v{V_LANE}")
            Ll = a.label("L_il")
            a(f"s_mov_b32 s51, {n}")
            a(f"{Ll}:")
            a(f"buffer_load_dword v{V_DUMMY}, v{V_TOUCH}, {srd(S_WSP if part < 2 else S_WOUT)}, s50 offen")
            a(f"s_add_u32 s50, s50, {16*4096}"); a("s_sub_u32 s51, s51, 1"); a("s_cmp_lg_u32 s51, 0"); a(f"s_cbranch_scc1 {Ll}")
            a("s_waitcnt vmcnt(0)")
        a(f"{Lo}:")

    def dma_by_all(self, items, tagf):
        a, vm = self.a, self.vm
        assert len(items) % 4 == 0
        Lnp = a.label("L_np")
        for wv in range(4):
            Lw = a.label("L_w")
            if wv < 3:
                a(f"s_cmp_lg_u32 s{S_WAVE}, {wv}"); a(f"s_cbranch_scc1 {Lw}")
            state = {}
            for n, it in enumerate(items):
                if n % 4 == wv: it(state)
            if wv < 3:
                a(f"s_branch {Lnp}")
                a(f"{Lw}:")
        a(f"{Lnp}:")
        vm.ops += [tagf(n) for n in range(len(items)) if n % 4 == 0]

    def dma_by_123(self, items, tagf):
        a, vm = self.a, self.vm
        Lnp = a.label("L_np")
        a(f"s_cmp_eq_u32 s{S_WAVE}, 0"); a(f"s_cbranch_scc1 {Lnp}")
        for wv in (1, 2, 3):
            Lw = a.label("L_w")
            if wv < 3:
                a(f"s_cmp_lg_u32 s{S_WAVE}, {wv}"); a(f"s_cbranch_scc1 {Lw}")
            state = {}
            for n, it in enumerate(items):
                if n % 3 == wv - 1: it(state)
            if wv < 3:
                a(f"s_branch {Lnp}")
                a(f"{Lw}:")
        a(f"{Lnp}:")
        mod = [tagf(n) for n in range(len(items)) if n % 3 == 0]
        mod.pop(); vm.ops += mod

    def d_map(self):
        a = self.a
        a(f"s_mul_i32 s50, s{S_SLOT}, 37"); a("s_lshr_b32 s50, s50, 8")
        a("s_mul_i32 s51, s50, 7"); a(f"s_sub_u32 s94, s{S_SLOT}, s51")
        a(f"s_lshl_b32 s95, s{S_XCD}, 2"); a("s_add_u32 s95, s95, s50")
        a(f"s_mul_i32 s96, s50, {self.o.get('rotm', 0)}"); a("s_and_b32 s51, s94, 3"); a(f"s_mul_i32 s51, s51, {self.o.get('rotf', 0)}"); a("s_add_u32 s96, s96, s51")
        a("s_lshl_b32 s97, s95, 18")

    def d_lanes(self, VE, VO, t):
        a = self.a
        a(f"v_lshrrev_b32 v{t}, 3, v{V_LANE}"); a(f"v_and_b32 v{t+1}, 7, v{V_LANE}"); a(f"v_lshrrev_b32 v{t+2}, 4, v{V_LANE}")
        a(f"v_xor_b32 v{t+3}, v{t+1}, v{t+2}"); a(f"v_lshlrev_b32 v{t+3}, 4, v{t+3}"); a(f"v_lshlrev_b32 v{t}, 12, v{t}"); a(f"v_add_u32 v{VE}, v{t}, v{t+3}")
        a(f"v_add_u32 v{t+2}, 4, v{t+2}"); a(f"v_xor_b32 v{t+3}, v{t+1}, v{t+2}"); a(f"v_lshlrev_b32 v{t+3}, 4, v{t+3}"); a(f"v_add_u32 v{VO}, v{t}, v{t+3}")

    def d_early_items(self, VE, VO, NS=8):
        a, vm = self.a, self.vm
        out = []
        blocks = [(b, kh) for b in range(NS) for kh in range(2) if kh*NS*8192 + b*8192 + 8192 <= 114688]
        for (b, kh) in blocks:
            for h in range(2):
                def f(b=b, kh=kh, h=h):
                    if h == 0:
                        a(f"s_add_u32 s98, s96, {b}"); a("s_and_b32 s98, s98, 15"); a("s_lshl_b32 s98, s98, 7"); a("s_add_u32 s98, s98, s97")
                        a(f"s_lshl_b32 s99, s{S_WAVE}, 16"); a("s_add_u32 s98, s98, s99")
                    a(f"s_lshl_b32 s99, s{S_WAVE}, 11"); a(f"s_add_u32 m0, s99, {kh*NS*8192 + b*8192 + h*1024}")
                    a(f"s_add_u32 s99, s98, {kh*2048 + h*8*4096}")
                    vm.issue(f"buffer_load_dwordx4 v{VE if h == 0 else VO}, {srd(S_WSP)}, s99 offen lds", tag=("w", b))
                out.append((f, 28))
        return out, blocks

    def map_BE(self, skip):
        a = self.a
        a(f"s_cmp_ge_u32 s{S_SLOT}, 28"); a(f"s_cbranch_scc1 {skip}")
        a(f"s_mul_i32 s50, s{S_SLOT}, 37"); a("s_lshr_b32 s50, s50, 8")
        a("s_mul_i32 s51, s50, 7"); a(f"s_sub_u32 s49, s{S_SLOT}, s51")
        a(f"s_lshl_b32 s48, s{S_XCD}, 2"); a("s_add_u32 s48, s48, s50")
        a(f"s_and_b32 s52, s{S_WAVE}, 1"); a("s_lshl_b32 s50, s48, 1"); a("s_add_u32 s52, s52, s50"); a(f"s_lshr_b32 s53, s{S_WAVE}, 1")

    def w128_lane(self, dst, rowbytes, t):
        a = self.a
        a(f"v_lshrrev_b32 v{t}, 3, v{V_LANE}"); a(f"v_mul_u32_u24 v{t}, {rowbytes}, v{t}")
        a(f"v_lshrrev_b32 v{t+1}, 4, v{V_LANE}"); a(f"v_and_b32 v{t+1}, 1, v{t+1}"); a(f"v_lshlrev_b32 v{t+1}, 2, v{t+1}")
        a(f"v_and_b32 v{t+2}, 7, v{V_LANE}"); a(f"v_xor_b32 v{t+2}, v{t+2}, v{t+1}"); a(f"v_lshlrev_b32 v{t+2}, 4, v{t+2}")
        a(f"v_add_u32 v{dst}, v{t}, v{t+2}")

    def w128_bases(self, B0, t, wave_bytes_reg=None, const=0):
        a = self.a
        a(f"v_lshrrev_b32 v{t}, 2, v{V_LANE}"); a(f"v_and_b32 v{t}, 3, v{t}")
        a(f"v_lshlrev_b32 v{t+1}, 2, v{V_HH}"); a(f"v_add_u32 v{t+1}, v{t+1}, v{t}"); a(f"v_lshlrev_b32 v{t+1}, 7, v{t+1}")
        a(f"v_lshrrev_b32 v{t+2}, 4, v{V_LANE}"); a(f"v_and_b32 v{t+2}, 1, v{t+2}"); a(f"v_lshlrev_b32 v{t+2}, 5, v{t+2}")
        a(f"v_add_u32 v{t+1}, v{t+1}, v{t+2}")
        a(f"v_and_b32 v{t+2}, 3, v{V_LANE}"); a(f"v_lshlrev_b32 v{t+2}, 3, v{t+2}"); a(f"v_add_u32 v{t+1}, v{t+1}, v{t+2}")
        a(f"v_lshrrev_b32 v{t}, 1, v{t}"); a(f"v_lshlrev_b32 v{t}, 6, v{t}")
        if wave_bytes_reg is not None: a(f"v_add_u32 v{t+1}, s{wave_bytes_reg}, v{t+1}")
        if const: a(f"v_add_u32 v{t+1}, {const}, v{t+1}")
        a(f"v_add_u32 v{B0}, v{t+1}, v{t}")
        a(f"v_xor_b32 v{t}, 64, v{t}"); a(f"v_add_u32 v{B0+1}, v{t+1}, v{t}")

    def small_phase(self, ph):
        a, vm, R = self.a, self.vm, self.R
        R.reset()
        isB = ph == "B"
        NB = 8 if isB else 14
        rows_per_blk = 28 if isB else 32
        SW = S_WO if isB else S_WOUT
        ACTB = OFR if isB else UFR; nact = 16 if isB else 28
        skip = f"L_skip{ph}"
        self.map_BE(skip)
        self.stamp(f"{ph}@0")
        t = R.alloc(4, 1); VW = R.alloc()
        self.w128_lane(VW, 896, t)
        a(f"s_{'mov_b32 s54, s49' if isB else 'lshl_b32 s54, s49, 1'}" if self.o.get("rot_" + ph.lower(), 0) else "s_mov_b32 s54, 0")
        a("s_lshl_b32 s55, s49, 7")
        a(f"s_lshl_b32 s58, s52, {4 if isB else 0}") if isB else a("s_mul_i32 s58, s52, 28")
        a(f"s_mul_i32 s50, s53, {NB}"); a("s_add_u32 s58, s58, s50"); a("s_lshl_b32 s58, s58, 11"); a(f"s_add_u32 s58, s58, {ACTB}")
        items = []
        for b in range(NB):
            for kh_ in range(2):
                for g in range(4):
                    def it(st, b=b, kh_=kh_, g=g):
                        if st.get("b") != b:
                            a(f"s_add_u32 s56, s54, {b}"); a(f"s_cmp_ge_u32 s56, {NB}"); a(f"s_cselect_b32 s50, {NB}, 0"); a("s_sub_u32 s56, s56, s50")
                            a(f"s_mul_i32 s56, s56, {rows_per_blk*896}"); a("s_add_u32 s56, s56, s55"); st["b"] = b
                        a(f"s_mov_b32 m0, {(kh_*NB + b)*4096 + g*1024}"); a(f"s_add_u32 s50, s56, {kh_*NB*rows_per_blk*896 + g*8*896}")
                        a(f"buffer_load_dwordx4 v{VW}, {srd(SW)}, s50 offen lds")
                    items.append(it)
        self.dma_by_all(items, lambda n: "w")
        XR = R.alloc(8)
        if isB:
            a(f"v_mul_u32_u24 v{t+3}, 896, v{V_L31}"); a(f"v_lshlrev_b32 v{t+2}, 3, v{V_HH}"); a(f"v_add_u32 v{t+3}, v{t+3}, v{t+2}")
            a(f"s_mul_i32 s54, s52, {32*896}"); a("s_lshl_b32 s50, s49, 7"); a("s_add_u32 s54, s54, s50"); a("s_lshl_b32 s50, s53, 6"); a("s_add_u32 s54, s54, s50")
            for g in range(4):
                vm.issue(f"buffer_load_dwordx2 {V(XR+2*g,2)}, v{t+3}, {srd(S_X)}, s54 offen offset:{g*16}", tag="xr")
        B0 = R.alloc(2, 1)
        a(f"s_mul_i32 s51, s53, {NB*4096}")
        self.w128_bases(B0, t, 51)
        if isB:
            a("s_lshr_b32 s55, s48, 1"); a("s_lshl_b32 s55, s55, 7"); a(f"s_add_u32 s55, s55, {F_O}"); self.poll(55, 16, drain=False)
        else:
            a("s_lshl_b32 s55, s48, 7"); a(f"s_add_u32 s55, s55, {F_U}"); self.poll(55, 7, drain=False)
        self.stamp(f"{ph}@1")
        ACT = R.alloc(8 * NB)
        a(f"s_{'mov_b32 s54, s49' if isB else 'lshl_b32 s54, s49, 1'}" if self.o.get("rot_" + ph.lower(), 0) else "s_mov_b32 s54, 0")
        def ld_act(k):
            b, st = k // 2, k % 2
            def f():
                if st == 0:
                    a(f"s_cmp_ge_u32 s54, {NB}"); a(f"s_cselect_b32 s50, {NB}, 0"); a("s_sub_u32 s54, s54, s50")
                    a("s_lshl_b32 s59, s54, 11"); a("s_add_u32 s59, s59, s58"); a("s_add_u32 s54, s54, 1")
                vm.issue(f"buffer_load_dwordx4 {V(ACT+8*b+4*st,4)}, v{V_L16}, {srd(S_WS)}, s59 offen offset:{st*1024} sc1", tag=("act", k))
            return [(f, 16 if st == 0 else 4)]
        PD = self.o.get("pd_small", 6)
        for k in range(PD):
            for f, _ in ld_act(k): f()
        def ld_res():
            a("s_lshl_b32 s50, s49, 1"); a("s_add_u32 s50, s50, s53"); a("s_mul_i32 s51, s52, 14"); a("s_add_u32 s50, s50, s51")
            a("s_lshl_b32 s55, s50, 11"); a(f"s_add_u32 s55, s55, {HFR}")
            for h in range(2):
                vm.issue(f"buffer_load_dwordx4 {V(XR+4*h,4)}, v{V_L16}, {srd(S_WS)}, s55 offen offset:{h*1024} sc1", tag="xr")
        vm.wait("w"); a("s_barrier")
        ACC = R.alloc(32); WF = R.alloc(24)
        nk = 2 * NB
        def rd(k):
            out = []
            for c in range(2):
                for e in range(2):
                    r = WF + (k % 3)*8 + c*4 + e*2
                    out.append((f"ds_read_b64_tr_b16 v[{r}:{r+1}], v{B0+c} offset:{(k//2)*4096 + ((k%2)*16 + 8*e)*128}", 4))
            return out
        for k in range(2):
            for x, _ in rd(k): a(x)
        for k in range(nk):
            a(f"s_waitcnt lgkmcnt({4 if k + 1 < nk else 0})")
            vm.wait(("act", k))
            wb = WF + (k % 3) * 8
            mf = [f"{MFMA} {V(ACC+16*c,16)}, {V(wb+4*c,4)}, {V(ACT+4*k,4)}, {'0' if k == 0 else V(ACC+16*c,16)}" for c in range(2)]
            fill = (ld_act(k + PD) if k + PD < nk else []) + (rd(k + 2) if k + 2 < nk else [])
            if not isB and k == nk - PD: fill.append((ld_res, 32))
            self.sched(mf, fill)
        R.free(WF, 24); R.free(ACT, 8*NB)
        LEX = 65536 if isB else 114688
        a(f"s_lshl_b32 s50, s{S_WAVE}, 12"); a(f"s_add_u32 s50, s50, {LEX}"); a(f"v_add_u32 v{t}, s50, v{V_L16}")
        a(f"s_xor_b32 s51, s{S_WAVE}, 2"); a("s_lshl_b32 s51, s51, 12"); a(f"s_add_u32 s51, s51, {LEX}"); a(f"v_add_u32 v{t+1}, s51, v{V_L16}")
        La = a.label("L_x"); Lb = a.label("L_x")
        a(f"s_cmp_lt_u32 s{S_WAVE}, 2"); a(f"s_cbranch_scc1 {La}")
        for q in range(4): a(f"ds_write_b128 v{t}, {V(ACC+4*q,4)} offset:{q*1024}")
        a("s_nop 1")
        for r in range(0, 16, 2): a(f"v_pk_mul_f32 {V(ACC+r,2)}, {V(ACC+16+r,2)}, 1.0 op_sel_hi:[1,0]")
        a(f"s_branch {Lb}")
        a(f"{La}:")
        for q in range(4): a(f"ds_write_b128 v{t}, {V(ACC+16+4*q,4)} offset:{q*1024}")
        a(f"{Lb}:")
        a("s_waitcnt lgkmcnt(0)"); a("s_barrier")
        for q in range(4): a(f"ds_read_b128 {V(ACC+16+4*q,4)}, v{t+1} offset:{q*1024}")
        self.stamp(f"{ph}@2")
        T0 = R.alloc(); T1 = R.alloc(); PF = R.alloc(8); XF = R.alloc(16)
        vm.wait("xr")
        for d in range(8):
            a(f"v_lshlrev_b32 v{XF+2*d}, 16, v{XR+d}"); a(f"v_and_b32 v{XF+2*d+1}, 0xffff0000, v{XR+d}")
        for r in range(0, 16, 2): a(f"v_pk_add_f32 {V(ACC+r,2)}, {V(ACC+r,2)}, {V(XF+r,2)}")
        a("s_waitcnt lgkmcnt(0)")
        for r in range(0, 16, 2): a(f"v_pk_add_f32 {V(ACC+r,2)}, {V(ACC+r,2)}, {V(ACC+16+r,2)}")
        for d in range(8): a(f"v_cvt_pk_bf16_f32 v{PF+d}, v{ACC+2*d}, v{ACC+2*d+1}")
        if isB:
            a("s_lshl_b32 s50, s49, 1"); a("s_add_u32 s50, s50, s53"); a("s_mul_i32 s51, s52, 14"); a("s_add_u32 s50, s50, s51")
            a("s_lshl_b32 s55, s50, 11"); a(f"s_add_u32 s55, s55, {HFR}")
            for h in range(2):
                vm.issue(f"buffer_store_dwordx4 {V(PF+4*h,4)}, v{V_L16}, {srd(S_WS)}, s55 offen offset:{h*1024} sc1")
            PS = R.alloc(2); P2 = R.alloc(2)
            a(f"v_pk_add_f32 {V(PS,2)}, {V(ACC,2)}, {V(ACC+2,2)}"); a(f"v_pk_mul_f32 {V(P2,2)}, {V(ACC,2)}, {V(ACC,2)}")
            a(f"v_pk_fma_f32 {V(P2,2)}, {V(ACC+2,2)}, {V(ACC+2,2)}, {V(P2,2)}")
            for r in range(4, 16, 2):
                a(f"v_pk_add_f32 {V(PS,2)}, {V(PS,2)}, {V(ACC+r,2)}"); a(f"v_pk_fma_f32 {V(P2,2)}, {V(ACC+r,2)}, {V(ACC+r,2)}, {V(P2,2)}")
            a(f"v_add_f32 v{PS}, v{PS}, v{PS+1}"); a(f"v_add_f32 v{PS+1}, v{P2}, v{P2+1}")
            self.half_op(PS, T0); self.half_op(PS+1, T1)
            a(f"v_lshlrev_b32 v{T0}, 3, v{V_L31}")
            a("s_lshl_b32 s55, s50, 8"); a(f"s_add_u32 s55, s55, {HST}")
            vm.issue(f"buffer_store_dwordx2 {V(PS,2)}, v{T0}, {srd(S_WS)}, s55 offen sc1")
            a("s_lshr_b32 s55, s48, 1"); a("s_lshl_b32 s55, s55, 7"); a("s_and_b32 s50, s48, 1"); a("s_mul_i32 s50, s50, 7"); a("s_add_u32 s50, s50, s49")
            a("s_lshl_b32 s50, s50, 2"); a("s_add_u32 s55, s55, s50"); a(f"s_add_u32 s55, s55, {F_H}")
            self.set_flag(55)
        else:
            for p in range(2):
                a(f"v_permlane32_swap_b32 v{PF+4*p}, v{PF+4*p+2}"); a(f"v_permlane32_swap_b32 v{PF+4*p+1}, v{PF+4*p+3}")
            a(f"v_mul_u32_u24 v{T0}, 896, v{V_L31}"); a(f"v_lshlrev_b32 v{T1}, 4, v{V_HH}"); a(f"v_add_u32 v{T0}, v{T0}, v{T1}")
            a(f"s_mul_i32 s54, s52, {32*896}"); a("s_lshl_b32 s50, s49, 7"); a("s_add_u32 s54, s54, s50"); a("s_lshl_b32 s50, s53, 6"); a("s_add_u32 s54, s54, s50")
            for p in range(2):
                vm.issue(f"buffer_store_dwordx4 {V(PF+4*p,4)}, v{T0}, {srd(S_OUT)}, s54 offen offset:{p*32}")
        if isB: self.idle_prefetch(skip, 0)
        else: a(f"{skip}:")
        self.stamp(f"{ph}@3")

    def phase_B(self):
        self.a.c("================ phase B : h = x + o @ wo ================"); self.small_phase("B")
    def phase_E(self):
        self.a.c("================ phase E : out = h + u @ w_out ================"); self.small_phase("E")

    def phase_C(self):
        a, vm, R = self.a, self.vm, self.R
        R.reset()
        a.c("================ phase C : z = gelu(LN(h) @ w_in) ================")
        skip = "L_skipC"
        a(f"s_cmp_ge_u32 s{S_SLOT}, 28"); a(f"s_cbranch_scc1 {skip}")
        a(f"s_cmp_ge_u32 s{S_SLOT}, 14"); a("s_cselect_b32 s50, 1, 0")
        a("s_mul_i32 s51, s50, 14"); a(f"s_sub_u32 s49, s{S_SLOT}, s51")
        a(f"s_lshl_b32 s48, s{S_XCD}, 1"); a("s_add_u32 s48, s48, s50")
        a(f"s_lshl_b32 s52, s48, 2"); a(f"s_add_u32 s52, s52, s{S_WAVE}")
        self.stamp("C@0")
        IMG = (0, 57344)
        LCS = 114688; LTR = LCS + 512
        t = R.alloc(4, 1); VW = R.alloc()
        self.w128_lane(VW, 3584, t)
        a("s_lshl_b32 s54, s49, 1" if self.o.get("rot_c", 0) else "s_mov_b32 s54, 0"); a("s_lshl_b32 s55, s49, 7")
        items = []
        for k in range(28):
            for img in range(2):
                for g in range(2):
                    def it(st, k=k, img=img, g=g):
                        if st.get("k") != k:
                            a(f"s_add_u32 s56, s54, {k}"); a("s_cmp_ge_u32 s56, 28"); a("s_cselect_b32 s50, 28, 0"); a("s_sub_u32 s56, s56, s50")
                            a(f"s_mul_i32 s56, s56, {16*3584}"); a("s_add_u32 s56, s56, s55"); st["k"] = k
                        a(f"s_mov_b32 m0, {IMG[img] + k*2048 + g*1024}"); a(f"s_add_u32 s50, s56, {(1792 if img == 0 else 0) + g*8*3584}")
                        a(f"buffer_load_dwordx4 v{VW}, {srd(S_WIN)}, s50 offen lds")
                    items.append(it)
        self.dma_by_all(items, lambda n: "w")
        B2 = R.alloc(2, 1); B1 = R.alloc(2, 1)
        self.w128_bases(B2, t, None, IMG[0])
        for c in range(2): a(f"v_add_u32 v{B1+c}, {IMG[1]}, v{B2+c}")
        ONES = R.alloc(4)
        for k in range(4): a(f"v_mov_b32 v{ONES+k}, 0x3f803f80")
        BC = R.alloc(); CSA = R.alloc(16)
        a(f"s_lshr_b32 s50, s{S_WAVE}, 1"); a(f"s_mul_i32 s50, s50, {IMG[1]}")
        a(f"s_and_b32 s51, s{S_WAVE}, 1"); a("s_cmp_eq_u32 s51, 0")
        a(f"v_mov_b32 v{BC}, v{B2+1}"); a("s_cselect_b64 vcc, -1, 0"); a(f"v_cndmask_b32 v{BC}, v{BC}, v{B2}, vcc"); a(f"v_add_u32 v{BC}, s50, v{BC}")
        WC = R.alloc(16)
        self.stamp("Cv")
        vm.wait("w"); a("s_barrier")
        self.stamp("Cw")
        def rdc(k): return [(f"ds_read_b64_tr_b16 v[{WC+(k%4)*4+e*2}:{WC+(k%4)*4+e*2+1}], v{BC} offset:{k*2048 + e*1024}", 4) for e in range(2)]
        for k in range(3):
            for x, _ in rdc(k): a(x)
        for k in range(28):
            a(f"s_waitcnt lgkmcnt({min(4, 2*(27-k))})")
            self.sched([f"{MFMA} {V(CSA,16)}, {V(WC+(k%4)*4,4)}, {V(ONES,4)}, {'0' if k == 0 else V(CSA,16)}"], rdc(k + 3) if k + 3 < 28 else [])
        a(f"v_lshlrev_b32 v{t}, 4, v{V_HH}"); a(f"s_lshl_b32 s50, s{S_WAVE}, 7"); a(f"s_add_u32 s50, s50, {LCS}"); a(f"v_add_u32 v{t}, s50, v{t}")
        a("s_mov_b32 exec_lo, 1"); a("s_mov_b32 exec_hi, 1")
        for gg in range(4): a(f"ds_write_b128 v{t}, {V(CSA+4*gg,4)} offset:{gg*32}")
        a("s_mov_b64 exec, -1")
        a("s_waitcnt lgkmcnt(0)")
        self.stamp("Cc")
        R.free(CSA, 16); R.free(WC, 16)
        a(f"s_lshl_b32 s55, s48, 7"); a(f"s_add_u32 s55, s55, {F_H}")
        self.poll(55, 14, drain=False)
        self.stamp("C@1")
        T0 = R.alloc(); T1 = R.alloc()
        HS = R.alloc(14, 2)
        a("s_mul_i32 s55, s52, 14"); a("s_lshl_b32 s54, s55, 11"); a(f"s_add_u32 s54, s54, {HFR}")
        a("s_lshl_b32 s58, s49, 1" if self.o.get("rot_c", 0) else "s_mov_b32 s58, 0")
        def ld_h(k):
            def f():
                a("s_cmp_ge_u32 s58, 28"); a("s_cselect_b32 s50, 28, 0"); a("s_sub_u32 s58, s58, s50")
                a("s_lshl_b32 s56, s58, 10"); a("s_add_u32 s56, s56, s54")
                vm.issue(f"buffer_load_dwordx4 {A(4*k,4)}, v{V_L16}, {srd(S_WS)}, s56 offen sc1", tag=("act", k))
                a("s_add_u32 s58, s58, 1")
            return [(f, 24)]
        def ld_hs():
            a(f"v_mul_u32_u24 v{T0}, {7*256}, v{V_HH}"); a(f"v_lshlrev_b32 v{T1}, 3, v{V_L31}"); a(f"v_add_u32 v{T0}, v{T0}, v{T1}")
            a("s_lshl_b32 s55, s55, 8"); a(f"s_add_u32 s55, s55, {HST}")
            for q in range(7):
                vm.issue(f"buffer_load_dwordx2 {V(HS+2*q,2)}, v{T0}, {srd(S_WS)}, s55 offen offset:{q*256} sc1", tag="hs")
        PD = self.o.get("pd_c", 6)
        for k in range(PD):
            for f, _ in ld_h(k): f()
        self.stamp("Ci")
        Z = R.alloc(64)
        WG = R.alloc(48)
        def rd(k):
            out = []
            for tl, B in enumerate((B2, B2+1, B1, B1+1)):
                for e in range(2):
                    r = WG + (k % 3)*16 + tl*4 + e*2
                    out.append((f"ds_read_b64_tr_b16 v[{r}:{r+1}], v{B} offset:{k*2048 + e*1024}", 4))
            return out
        CSR = R.alloc(32); VT = R.alloc()
        a(f"v_lshlrev_b32 v{VT}, 4, v{V_HH}"); a(f"v_add_u32 v{VT}, {LCS}, v{VT}")
        for x, _ in rd(0) + rd(1): a(x)
        MEAN = R.alloc(2); RSTD = MEAN + 1
        K0 = R.alloc(2); S0 = R.alloc(2); Q0 = R.alloc(2); TT = R.alloc(8)
        k0 = -2.0 * LOG2E * math.sqrt(2 / math.pi); k1 = k0 * 0.044715
        pre = [(lambda: vm.wait("hs"), 4), (f"v_mov_b32 v{MEAN}, v{HS}", 4), (f"v_mov_b32 v{RSTD}, v{HS+1}", 4)]
        for q in range(1, 7): pre += [(f"v_add_f32 v{MEAN}, v{MEAN}, v{HS+2*q}", 4), (f"v_add_f32 v{RSTD}, v{RSTD}, v{HS+2*q+1}", 4)]
        pre += [(lambda: self.half_op(MEAN, T0), 16), (lambda: self.half_op(RSTD, T1), 16)]
        pre += [(f"v_mul_f32 v{MEAN}, {lit(1/448)}, v{MEAN}", 4), (f"v_mul_f32 v{RSTD}, {lit(1/448)}, v{RSTD}", 4), (f"v_fma_f32 v{RSTD}, -v{MEAN}, v{MEAN}, v{RSTD}", 4),
                (f"v_max_f32 v{RSTD}, 0, v{RSTD}", 4), (f"v_add_f32 v{RSTD}, {lit(1e-5)}, v{RSTD}", 4), (f"v_rsq_f32 v{RSTD}, v{RSTD}", 8),
                (f"s_mov_b32 s62, {lit(k1)}", 4), (f"s_mov_b32 s63, {lit(k1)}", 4), (f"v_mov_b32 v{K0}, {lit(k0)}", 4), (f"v_mov_b32 v{K0+1}, {lit(k0)}", 4)]
        for k in range(28):
            a(f"s_waitcnt lgkmcnt({8 if k + 1 < 28 else 0})")
            vm.wait(("act", k))
            if k in (0, 7, 14, 21): self.stamp(f"Ck{k}")
            wb = WG + (k % 3) * 16
            fill = (ld_h(k + PD) if k + PD < 28 else []) + (rd(k + 2) if k + 2 < 28 else [])
            if k == 16: fill.append((ld_hs, 48))
            if k >= 24: fill += pre[:3]; pre = pre[3:]
            if k == 26: fill += [(f"ds_read_b128 {V(CSR+16*c+4*gg,4)}, v{VT} offset:{c*128+gg*32}", 4) for c in range(2) for gg in range(4)]
            mf = [f"{MFMA} {V(Z+16*tl,16)}, {V(wb+4*tl,4)}, {A(4*k,4)}, {'0' if k == 0 else V(Z+16*tl,16)}" for tl in range(4)]
            self.sched(mf, fill)
        for f, _ in pre: self.emit_fill(f)
        if self.o.get("early_d", 1): a("s_barrier")
        self.stamp("C@2")
        R.free(WG, 48)
        touch = []
        if self.o.get("early_d", 1):
            self.d_map(); self.DVE = R.alloc(); self.DVO = R.alloc(); td = R.alloc(4, 1)
            self.d_lanes(self.DVE, self.DVO, td); R.free(td, 4)
            touch, self.d_early_blocks = self.d_early_items(self.DVE, self.DVO)
        PF = R.alloc(16)
        def gelu_pk(zbase, pack, mid=None):
            nonlocal touch
            ins = []
            for r0 in range(0, 32, 8):
                zs = [zbase + r0 + 2*i for i in range(4)]; cs = [CSR + r0 + 2*i for i in range(4)]
                ins += [f"v_pk_fma_f32 {V(z,2)}, {V(MEAN,2)}, {V(c,2)}, {V(z,2)} op_sel_hi:[0,1,1] neg_lo:[1,0,0] neg_hi:[1,0,0]" for z, c in zip(zs, cs)]
                ins += [f"v_pk_mul_f32 {V(z,2)}, {V(z,2)}, {V(MEAN,2)} op_sel:[0,1] op_sel_hi:[1,1]" for z in zs]
                ins += [f"v_pk_mul_f32 {V(TT+2*i,2)}, {V(z,2)}, {V(z,2)}" for i, z in enumerate(zs)]
                ins += [f"v_pk_fma_f32 {V(TT+2*i,2)}, {V(TT+2*i,2)}, s[62:63], {V(K0,2)}" for i in range(4)]
                ins += [f"v_pk_mul_f32 {V(TT+2*i,2)}, {V(TT+2*i,2)}, {V(z,2)}" for i, z in enumerate(zs)]
                ins += [f"v_exp_f32 v{TT+i}, v{TT+i}" for i in range(8)]
                ins += [f"v_pk_add_f32 {V(TT+2*i,2)}, {V(TT+2*i,2)}, 1.0 op_sel_hi:[1,0]" for i in range(4)]
                ins += [f"v_rcp_f32 v{TT+i}, v{TT+i}" for i in range(8)]
                ins += [f"v_pk_mul_f32 {V(z,2)}, {V(z,2)}, {V(TT+2*i,2)}" for i, z in enumerate(zs)]
                if pack:
                    ins += [f"v_cvt_pk_bf16_f32 v{PF + r0//2 + i}, v{z}, v{z+1}" for i, z in enumerate(zs)]
                else:
                    for i, z in enumerate(zs):
                        if r0 == 0 and i == 0:
                            ins += [f"v_pk_mul_f32 {V(Q0,2)}, {V(z,2)}, {V(z,2)}", f"v_pk_mul_f32 {V(S0,2)}, {V(z,2)}, 1.0 op_sel_hi:[1,0]"]
                        else:
                            ins += [f"v_pk_fma_f32 {V(Q0,2)}, {V(z,2)}, {V(z,2)}, {V(Q0,2)}", f"v_pk_add_f32 {V(S0,2)}, {V(S0,2)}, {V(z,2)}"]
                if mid and r0 == 16: ins.append(mid)
            gap = self.o.get("early_gap", 14)
            for n, x in enumerate(ins):
                self.emit_fill(x)
                if touch and n % gap == gap - 1:
                    self.emit_fill(touch[0][0]); touch = touch[1:]
        a("s_waitcnt lgkmcnt(0)")
        gelu_pk(Z, False)
        G = R.alloc(4)
        a(f"v_add_f32 v{G}, v{S0}, v{S0+1}"); a(f"v_add_f32 v{G+1}, v{Q0}, v{Q0+1}")
        for c in range(2):
            for gg in range(4): a(f"ds_read_b128 {V(CSR+16*c+4*gg,4)}, v{VT} offset:{256+c*128+gg*32}")
        self.half_op(G, T0); self.half_op(G+1, T1)
        a(f"v_mov_b32 v{G+2}, s{S_TAG}"); a(f"v_mov_b32 v{G+3}, s{S_TAG}")
        a("s_mul_i32 s55, s48, 14"); a("s_add_u32 s55, s55, s49"); a("s_lshl_b32 s55, s55, 11"); a(f"s_lshl_b32 s50, s{S_WAVE}, 9"); a("s_add_u32 s55, s55, s50")
        a(f"s_add_u32 s55, s55, {STATS}"); a(f"v_lshlrev_b32 v{T1}, 4, v{V_L31}")
        vm.issue(f"buffer_store_dwordx4 {V(G,4)}, v{T1}, {srd(S_WS)}, s55 offen sc1")
        self.stamp("C@3")
        GR = R.alloc(28)
        a(f"v_mul_u32_u24 v{T0}, {7*2048}, v{V_HH}"); a(f"v_add_u32 v{T1}, v{T1}, v{T0}")
        a("s_mul_i32 s55, s48, 14"); a("s_lshl_b32 s55, s55, 11"); a(f"s_lshl_b32 s50, s{S_WAVE}, 9"); a("s_add_u32 s55, s55, s50"); a(f"s_add_u32 s55, s55, {STATS}")
        a("s_waitcnt lgkmcnt(0)")
        def gr_loads():
            a("s_mov_b32 s54, s55")
            for q in range(7):
                if q and q % 2 == 0: a("s_add_u32 s54, s54, 4096")
                vm.issue(f"buffer_load_dwordx4 {V(GR+4*q,4)}, v{T1}, {srd(S_WS)}, s54 offen offset:{(q%2)*2048} sc1", tag="gr")
        gelu_pk(Z + 32, True, gr_loads)
        for f, _ in touch: self.emit_fill(f)
        a("s_mul_i32 s56, s52, 28"); a("s_lshl_b32 s50, s49, 1"); a("s_add_u32 s56, s56, s50"); a("s_lshl_b32 s56, s56, 11"); a(f"s_add_u32 s56, s56, {Z1F}")
        for q in range(4):
            vm.issue(f"buffer_store_dwordx4 {V(PF+4*q,4)}, v{V_L16}, {srd(S_WS)}, s56 offen offset:{q*1024} sc1")
        self.stamp("C@4")
        Lp = a.label("L_sp"); Ld = a.label("L_sd")
        vm.wait("gr")
        a("s_mov_b32 s70, 0"); a(f"{Lp}:")
        a(f"v_xor_b32 v{T0}, s{S_TAG}, v{GR+2}")
        for q in range(1, 7):
            a(f"v_xor_b32 v{G}, s{S_TAG}, v{GR+4*q+2}"); a(f"v_or_b32 v{T0}, v{T0}, v{G}")
        a(f"v_cmp_ne_u32 vcc, 0, v{T0}"); a(f"s_cbranch_vccz {Ld}")
        a("s_mov_b32 s54, s55")
        for q in range(7):
            if q and q % 2 == 0: a("s_add_u32 s54, s54, 4096")
            a(f"buffer_load_dwordx4 {V(GR+4*q,4)}, v{T1}, {srd(S_WS)}, s54 offen offset:{(q%2)*2048} sc1")
        a("s_waitcnt vmcnt(0)")
        a("s_add_u32 s70, s70, 1"); a("s_cmp_lt_u32 s70, 20000"); a(f"s_cbranch_scc1 {Lp}")
        a(f"{Ld}:")
        self.stamp("C@s")
        for q in range(1, 7): a(f"v_pk_add_f32 {V(GR,2)}, {V(GR,2)}, {V(GR+4*q,2)}")
        self.half_op(GR, T0); self.half_op(GR+1, G)
        M3, R3 = GR, GR+1
        a(f"v_mul_f32 v{M3}, {lit(1/896)}, v{M3}"); a(f"v_mul_f32 v{R3}, {lit(1/896)}, v{R3}")
        a(f"v_fma_f32 v{R3}, -v{M3}, v{M3}, v{R3}"); a(f"v_max_f32 v{R3}, 0, v{R3}")
        a(f"v_add_f32 v{R3}, {lit(1e-5)}, v{R3}"); a(f"v_rsq_f32 v{R3}, v{R3}")
        a("s_nop 0")
        a(f"v_mul_f32 v{M3}, v{M3}, v{R3}")
        for r in range(0, 32, 2): a(f"v_pk_fma_f32 {V(Z+r,2)}, {V(Z+r,2)}, {V(M3,2)}, {V(M3,2)} op_sel:[0,1,0] op_sel_hi:[1,1,0] neg_lo:[0,0,1] neg_hi:[0,0,1]")
        PZ = R.alloc(16)
        for c in range(2):
            for d in range(8): a(f"v_cvt_pk_bf16_f32 v{PZ+8*c+d}, v{Z+16*c+2*d}, v{Z+16*c+2*d+1}")
        WA = R.alloc(); RA = R.alloc(2, 1)
        a(f"s_lshl_b32 s50, s{S_WAVE}, 12"); a(f"s_add_u32 s50, s50, {LTR}")
        a(f"v_lshrrev_b32 v{T0}, 1, v{V_L31}"); a(f"v_and_b32 v{T0}, 7, v{T0}"); a(f"v_xor_b32 v{T0}, v{T0}, v{V_HH}"); a(f"v_lshlrev_b32 v{T0}, 3, v{T0}")
        a(f"v_lshlrev_b32 v{WA}, 6, v{V_L31}"); a(f"v_add_u32 v{WA}, v{WA}, v{T0}"); a(f"v_add_u32 v{WA}, s50, v{WA}")
        for g in range(4):
            if g: a(f"v_xor_b32 v{TT+g}, {g<<4}, v{WA}")
        for c in range(2):
            for g in range(4):
                a(f"ds_write_b64 v{WA if g == 0 else TT+g}, {V(PZ+8*c+2*g,2)} offset:{c*2048}")
        a(f"v_lshrrev_b32 v{T0}, 2, v{V_LANE}"); a(f"v_and_b32 v{T0}, 3, v{T0}")
        a(f"v_lshlrev_b32 v{T1}, 3, v{V_HH}"); a(f"v_add_u32 v{T1}, v{T1}, v{T0}"); a(f"v_lshlrev_b32 v{RA}, 6, v{T1}")
        a(f"v_lshrrev_b32 v{T0}, 1, v{T0}"); a(f"v_lshlrev_b32 v{T1}, 2, v{V_HH}"); a(f"v_add_u32 v{T0}, v{T0}, v{T1}")
        a(f"v_lshrrev_b32 v{T1}, 4, v{V_LANE}"); a(f"v_and_b32 v{T1}, 1, v{T1}"); a(f"v_lshlrev_b32 v{T1}, 2, v{T1}")
        a(f"v_and_b32 v{G}, 3, v{V_LANE}"); a(f"v_add_u32 v{T1}, v{T1}, v{G}"); a(f"v_xor_b32 v{T0}, v{T0}, v{T1}"); a(f"v_lshlrev_b32 v{T0}, 3, v{T0}")
        a(f"v_add_u32 v{RA}, v{RA}, v{T0}"); a(f"v_add_u32 v{RA}, s50, v{RA}"); a(f"v_xor_b32 v{RA+1}, 16, v{RA}")
        a("s_waitcnt lgkmcnt(0)")
        for c in range(2):
            for st in range(2):
                for e in range(2):
                    r = PZ + 8*c + 4*st + 2*e
                    a(f"ds_read_b64_tr_b16 v[{r}:{r+1}], v{RA+e} offset:{c*2048 + st*1024 + e*256}")
        for c in range(2):
            a("s_lshl_b32 s55, s49, 1"); a(f"s_add_u32 s55, s55, {c}"); a("s_lshl_b32 s55, s55, 6"); a("s_add_u32 s55, s55, s52"); a("s_lshl_b32 s55, s55, 11"); a(f"s_add_u32 s55, s55, {Z2F}")
            a(f"s_waitcnt lgkmcnt({4 if c == 0 else 0})")
            for st in range(2):
                vm.issue(f"buffer_store_dwordx4 {V(PZ+8*c+4*st,4)}, v{V_L16}, {srd(S_WS)}, s55 offen offset:{st*1024} sc1")
        a("s_lshl_b32 s55, s49, 7"); a("s_lshl_b32 s50, s48, 2"); a("s_add_u32 s55, s55, s50"); a(f"s_add_u32 s55, s55, {F_Z}")
        self.set_flag(55)
        self.idle_prefetch(skip, 1)
        self.stamp("C@5")

    def phase_D(self):
        a, vm, R = self.a, self.vm, self.R
        R.reset()
        a.c("================ phase D : g = w_sp @ z2n + b ; u = z1*g ================")
        skip = "L_skipD"
        a(f"s_cmp_ge_u32 s{S_SLOT}, 28"); a(f"s_cbranch_scc1 {skip}")
        self.d_map()
        a("s_mov_b32 s49, s94"); a("s_mov_b32 s48, s95"); a("s_mov_b32 s54, s96")
        self.stamp("D@0")
        NS = 8
        a(f"s_lshr_b32 s53, s{S_WAVE}, 1"); a(f"s_and_b32 s52, s{S_WAVE}, 1")
        t = R.alloc(4, 1); VE = R.alloc(); VO = R.alloc()
        self.d_lanes(VE, VO, t)
        a("s_lshl_b32 s55, s48, 18"); a("s_lshl_b32 s50, s53, 11"); a("s_add_u32 s55, s55, s50"); a("s_lshl_b32 s50, s52, 17"); a("s_add_u32 s55, s55, s50")
        a(f"s_mul_i32 s57, s53, {NS*8192}"); a("s_lshl_b32 s50, s52, 12"); a("s_add_u32 s57, s57, s50")
        def blk_idx(b, dst):
            a(f"s_add_u32 s{dst}, s54, {b}"); a(f"s_and_b32 s{dst}, s{dst}, 15")
        def dma(b):
            out = []
            def pre(): blk_idx(b, 58); a("s_lshl_b32 s58, s58, 7"); a("s_add_u32 s58, s58, s55")
            out.append((pre, 16))
            for q in range(4):
                def f(q=q):
                    a(f"s_add_u32 m0, s57, {(b%NS)*8192 + q*1024}"); a(f"s_add_u32 s56, s58, {q*8*4096}")
                    vm.issue(f"buffer_load_dwordx4 v{VE if q%2==0 else VO}, {srd(S_WSP)}, s56 offen lds", tag=("w", b))
                out.append((f, 16))
            return out
        early = set(self.d_early_blocks) if self.o.get("early_d", 1) else set()
        NPRE = NS if early else self.o.get("npre", 4)
        a("s_lshl_b32 s61, s48, 18")
        items = []; tags = []
        for b in range(NPRE):
            for kh_ in range(2):
                if (b, kh_) in early: continue
                for q in range(8):
                    def it(st, b=b, kh_=kh_, q=q):
                        if st.get("b") != b:
                            blk_idx(b, 58); a("s_lshl_b32 s58, s58, 7"); a("s_add_u32 s58, s58, s61"); st["b"] = b
                        a(f"s_mov_b32 m0, {kh_*NS*8192 + b*8192 + q*1024}"); a(f"s_add_u32 s56, s58, {kh_*2048 + q*8*4096}")
                        a(f"buffer_load_dwordx4 v{VE if q%2==0 else VO}, {srd(S_WSP)}, s56 offen lds")
                    items.append(it); tags.append(("w", b))
        self.dma_by_123(items, lambda n: tags[n])
        FA = R.alloc(4, 1)
        a(f"v_lshrrev_b32 v{t}, 1, v{V_L31}"); a(f"v_and_b32 v{t}, 7, v{t}"); a(f"v_xor_b32 v{t}, v{t}, v{V_HH}"); a(f"v_lshlrev_b32 v{t}, 4, v{t}")
        a(f"v_lshlrev_b32 v{FA}, 7, v{V_L31}"); a(f"v_add_u32 v{FA}, v{FA}, v{t}"); a(f"s_mul_i32 s50, s53, {NS*8192}"); a(f"v_add_u32 v{FA}, s50, v{FA}")
        for s in range(1, 4): a(f"v_xor_b32 v{FA+s}, {s*32}, v{FA}")
        BI = R.alloc()
        a(f"v_lshlrev_b32 v{t}, 1, v{V_L31}"); a("s_lshl_b32 s50, s48, 7"); a("s_lshl_b32 s51, s53, 6"); a("s_add_u32 s50, s50, s51")
        vm.issue(f"buffer_load_ushort v{BI}, v{t}, {srd(S_BSP)}, s50 offen", tag="bi")
        VZ = R.alloc(2, 1)
        a("s_lshl_b32 s50, s49, 2"); a("s_lshl_b32 s51, s52, 1"); a("s_add_u32 s50, s50, s51"); a("s_lshl_b32 s50, s50, 6"); a("s_lshl_b32 s51, s53, 5"); a("s_add_u32 s50, s50, s51")
        a("s_lshl_b32 s50, s50, 11"); a(f"s_add_u32 s50, s50, {Z2F}"); a(f"v_add_u32 v{VZ}, s50, v{V_L16}"); a(f"v_add_u32 v{VZ+1}, {64*2048}, v{VZ}")
        a(f"v_and_b32 v9, 15, v{V_LANE}"); a("v_lshlrev_b32 v9, 2, v9"); a(f"v_lshrrev_b32 v{t}, 4, v{V_LANE}"); a(f"v_and_b32 v{t}, 1, v{t}"); a(f"v_lshlrev_b32 v{t}, 7, v{t}"); a(f"v_add_u32 v9, v9, v{t}")
        a("s_lshl_b32 s59, s49, 8"); a(f"s_add_u32 s59, s59, {F_Z}")
        self.poll(59, 32, voff=9, drain=False)
        self.stamp("D@1")
        ND = self.o.get("nd", 12)
        ZR = R.alloc(8 * ND); WF = R.alloc(24)
        def ldz(k):
            out = []
            b, sp = k // 4, k % 4
            if sp == 0:
                def pre(): blk_idx(b, 60 + (b % 4)); a(f"s_lshl_b32 s{60 + (b % 4)}, s{60 + (b % 4)}, 12")
                out.append((pre, 12))
            for c in range(2):
                def f(c=c):
                    r = ZR + 8*(k % ND) + 4*c
                    vm.issue(f"buffer_load_dwordx4 {V(r,4)}, v{VZ+c}, {srd(S_WS)}, s{60 + (b % 4)} offen offset:{sp*1024} sc1", tag=("z", k))
                out.append((f, 8))
            return out
        def rdw(k):
            b, sp = k // 4, k % 4
            return [(f"ds_read_b128 {V(WF+(k%3)*8+tc*4,4)}, v{FA+sp} offset:{(b%NS)*8192 + tc*4096}", 4) for tc in range(2)]
        INIT = 4
        for k in range(INIT):
            for f, _ in ldz(k): f()
        nz = INIT
        wout = []
        vm.wait(("w", 0)); a("s_barrier")
        for k in range(2):
            for x, _ in rdw(k): a(x)
        nbw = NPRE
        for k in range(64):
            b, sp = k // 4, k % 4
            fill = []
            a(f"s_waitcnt lgkmcnt({2 if k + 1 < 64 else 0})")
            vm.wait(("z", k))
            if k + 2 < 64:
                if (k + 2) % 4 == 0:
                    nb = (k + 2) // 4
                    def rdy(nb=nb):
                        vm.wait(("w", nb)); a("s_barrier")
                    fill.append((rdy, 8))
                fill += rdw(k + 2)
            for _ in range(2):
                if nz < 64 and nz <= k + ND - 1:
                    fill += ldz(nz); nz += 1
            if wout and k % 8 == 5: fill.append(wout[0]); wout = wout[1:]
            if sp in (1, 3) and nbw < 16 and (nbw < NS or (sp == 3 and nbw - NS <= b - 1)):
                fill += dma(nbw); nbw += 1
            wb = WF + (k % 3) * 8; zb = ZR + 8*(k % ND)
            mf = []
            for c in range(2):
                for tc in range(2):
                    acc = A(32*c + 16*tc, 16)
                    mf.append(f"{MFMA} {acc}, {V(zb+4*c,4)}, {V(wb+4*tc,4)}, {'0' if k == 0 else acc}")
            self.sched(mf, fill)
        self.stamp("D@2")
        R.free(ZR, 8*ND); R.free(WF, 24)
        Z1 = R.alloc(16)
        a("s_lshl_b32 s50, s48, 1"); a("s_add_u32 s50, s50, s53"); a("s_mul_i32 s50, s50, 28"); a("s_lshl_b32 s51, s49, 2"); a("s_add_u32 s50, s50, s51"); a("s_lshl_b32 s51, s52, 1"); a("s_add_u32 s50, s50, s51")
        a("s_lshl_b32 s60, s50, 11"); a(f"s_add_u32 s50, s60, {Z1F}")
        for q in range(4):
            vm.issue(f"buffer_load_dwordx4 {V(Z1+4*q,4)}, v{V_L16}, {srd(S_WS)}, s50 offen offset:{q*1024} sc1", tag="z1")
        a("s_barrier")
        a(f"s_lshl_b32 s50, s{S_WAVE}, 13"); a(f"v_add_u32 v{t}, s50, v{V_L16}")
        a(f"s_xor_b32 s51, s{S_WAVE}, 2"); a("s_lshl_b32 s51, s51, 13"); a(f"v_add_u32 v{t+1}, s51, v{V_L16}")
        G = R.alloc(32); TM = R.alloc(32)
        La = a.label("L_x"); Lb = a.label("L_x")
        a("s_cmp_eq_u32 s53, 0"); a(f"s_cbranch_scc1 {La}")
        for c in range(2):
            for q in range(4): a(f"ds_write_b128 v{t}, {A(32*c+4*q,4)} offset:{c*4096+q*1024}")
        for c in range(2):
            for r in range(16): a(f"v_accvgpr_read_b32 v{G+16*c+r}, a{32*c+16+r}")
        a(f"s_branch {Lb}")
        a(f"{La}:")
        for c in range(2):
            for q in range(4): a(f"ds_write_b128 v{t}, {A(32*c+16+4*q,4)} offset:{c*4096+q*1024}")
        for c in range(2):
            for r in range(16): a(f"v_accvgpr_read_b32 v{G+16*c+r}, a{32*c+r}")
        a(f"{Lb}:")
        a("s_waitcnt lgkmcnt(0)"); a("s_barrier")
        for q in range(8): a(f"ds_read_b128 {V(TM+4*q,4)}, v{t+1} offset:{q*1024}")
        BP = R.alloc(2); ZF = R.alloc(32)
        vm.wait("z1")
        a(f"v_lshlrev_b32 v{BP}, 16, v{BI}")
        for d in range(16):
            a(f"v_lshlrev_b32 v{ZF+2*d}, 16, v{Z1+d}"); a(f"v_and_b32 v{ZF+2*d+1}, 0xffff0000, v{Z1+d}")
        for r in range(0, 32, 2): a(f"v_pk_add_f32 {V(G+r,2)}, {V(G+r,2)}, {V(BP,2)} op_sel_hi:[1,0]")
        a("s_waitcnt lgkmcnt(0)")
        for r in range(0, 32, 2): a(f"v_pk_add_f32 {V(G+r,2)}, {V(G+r,2)}, {V(TM+r,2)}")
        for r in range(0, 32, 2): a(f"v_pk_mul_f32 {V(G+r,2)}, {V(G+r,2)}, {V(ZF+r,2)}")
        for d in range(16): a(f"v_cvt_pk_bf16_f32 v{TM+d}, v{G+2*d}, v{G+2*d+1}")
        a(f"s_add_u32 s50, s60, {UFR}")
        for q in range(4):
            vm.issue(f"buffer_store_dwordx4 {V(TM+4*q,4)}, v{V_L16}, {srd(S_WS)}, s50 offen offset:{q*1024} sc1")
        a("s_lshl_b32 s55, s48, 7"); a("s_lshl_b32 s50, s49, 2"); a("s_add_u32 s55, s55, s50"); a(f"s_add_u32 s55, s55, {F_U}")
        self.set_flag(55)
        self.idle_prefetch(skip, 2)
        self.stamp("D@3")

    def build(self):
        self.prologue()
        for ph in "ABCDE":
            getattr(self, "phase_" + ph)()
            if ph == self.stop_after: break
        self.epilogue()
        body = pad_hazards(self.a.lines)
        hdr = open("cdna_kernels/" + NAME[:-7] + ".s.ref").read().split("; Override")[0]
        s = hdr + f"; @launch grid=(256,1,1) block=(256,1,1) lds={LDS_BYTES}\n"
        s += '.amdgcn_target "amdgcn-amd-amdhsa--gfx950"\n.text\n'
        s += f".set CODE_SLICE, ((L_code_end - {NAME} + 32*128 - 1) / (32*128)) * 128\n"
        s += f".set CODE_BYTES, L_code_end - {NAME} - 32\n"
        s += f".globl {NAME}\n.p2align 8\n.type {NAME},@function\n{NAME}:\n" + "\n".join(body) + "\nL_code_end:\n"
        s += f""".section .rodata,"a"
.p2align 6
.amdhsa_kernel {NAME}
  .amdhsa_next_free_vgpr 512
  .amdhsa_next_free_sgpr 102
  .amdhsa_accum_offset 256
  .amdhsa_group_segment_fixed_size 0
  .amdhsa_kernarg_size 88
  .amdhsa_user_sgpr_count 2
  .amdhsa_user_sgpr_kernarg_segment_ptr 1
  .amdhsa_system_sgpr_workgroup_id_x 1
.end_amdhsa_kernel
"""
        return s

if __name__ == "__main__":
    import json
    out = sys.argv[1]; stop = sys.argv[2] if len(sys.argv) > 2 else "E"
    stamps = sys.argv[3] if len(sys.argv) > 3 and sys.argv[3] != "0" else ""
    opts = json.loads(sys.argv[4]) if len(sys.argv) > 4 else {}
    g = Gen(stop, stamps, opts)
    open(out, "w").write(g.build())
    open(out + ".stamps", "w").write(" ".join(g.stamp_names))
```

```python
import sys, math, struct
from asmlib import Asm, pad_hazards

NAME = "sequential_preLN__sliding_block__mixer_gmlp__prompt_kernel"
WS_EPOCH = 0
F_KV = 0x1000; F_O = 0x2000; F_H = 0x3000; F_Z = 0x4000; F_U = 0x5000
STATS = 0x10000
HST = 0x80000
STAT1 = 0xC0000
KVF = 0x100000; OFR = 0x500000; HFR = 0x700000; Z1F = 0x900000; Z2F = 0xD00000; UFR = 0x1100000
DBG = 0x1600000

S_X, S_WQKV, S_WO, S_WIN, S_WSP, S_BSP, S_WOUT, S_OUT, S_WS = 8, 12, 16, 20, 24, 28, 32, 36, 40
S_TAG, S_WAVE, S_XCD, S_SLOT = 44, 45, 46, 47
V_LANE, V_L16, V_L31, V_HH = 1, 2, 3, 4
V_DUMMY = 252
V_TOUCH = 251
LOG2E = 1.4426950408889634
MFMA = "v_mfma_f32_32x32x16_bf16"
LDS_BYTES = 163840

def f2u(x): return struct.unpack("<I", struct.pack("<f", x))[0]
def lit(x): return "0x%08x" % f2u(x)
def srd(b): return f"s[{b}:{b+3}]"
def V(b, n=1): return f"v{b}" if n == 1 else f"v[{b}:{b+n-1}]"
def A(b, n=1): return f"a{b}" if n == 1 else f"a[{b}:{b+n-1}]"

class Regs:
    def __init__(self, lo, hi): self.lo, self.hi = lo, hi; self.used = set()
    def alloc(self, n=1, align=None):
        if align is None: align = 4 if n >= 4 else (2 if n >= 2 else 1)
        b = (self.lo + align - 1) // align * align
        while b + n <= self.hi:
            if not any((b + k) in self.used for k in range(n)):
                for k in range(n): self.used.add(b + k)
                return b
            b += align
        raise RuntimeError(f"out of registers for {n}")
    def free(self, b, n=1):
        for k in range(n): self.used.discard(b + k)
    def reset(self): self.used = set()

class VM:
    def __init__(self, a): self.a = a; self.ops = []
    def issue(self, text, tag=None): self.a(text); self.ops.append(tag)
    def wait(self, tag):
        idx = [k for k, t in enumerate(self.ops) if t == tag]
        if not idx: return
        last = idx[-1]; n = len(self.ops) - 1 - last
        assert n <= 63, n
        self.a(f"s_waitcnt vmcnt({n})"); self.ops = self.ops[last + 1:]
    def wait_all(self): self.a("s_waitcnt vmcnt(0)"); self.ops = []

def interleave(a, main, fill):
    n = len(main); m = len(fill); k = 0
    for i, x in enumerate(main):
        a(x)
        tgt = (i + 1) * m // n
        while k < tgt: a(fill[k]); k += 1

class Gen:
    def __init__(self, stop_after="E", stamps="", opts=None):
        self.a = Asm(); self.vm = VM(self.a); self.stop_after = stop_after; self.stamps = stamps
        self.nstamp = 0; self.stamp_names = []; self.R = Regs(10, 251); self.o = opts or {}

    def stamp(self, tag):
        if not self.stamps: return
        sel = self.stamps.split(",")
        coarse = ("A@0", "A@3", "A@6", "B@1", "B@3", "C@1", "C@5", "D@1", "D@3", "E@1", "E@3")
        if not (tag in sel or tag[0] in sel or ("c" in sel and tag in coarse)): return
        self.stamp_names.append(tag)
        k = self.nstamp; self.nstamp += 1
        assert k < 15
        self.a(f"s_memtime s[{72+2*k}:{73+2*k}]")

    def prologue(self):
        a = self.a
        if self.stamps and self.o.get("dbgout"):
            a("s_memrealtime s[100:101]"); a("s_memtime s[72:73]"); self.nstamp = 1; self.stamp_names.append("start")
            a("s_waitcnt lgkmcnt(0)"); a("s_mov_b32 s3, s100")
        a("s_getpc_b64 s[4:5]")
        a("s_load_dwordx16 s[48:63], s[0:1], 0")
        a("s_load_dwordx4 s[64:67], s[0:1], 64")
        a("s_load_dwordx2 s[68:69], s[0:1], 80")
        a("s_cmp_ge_u32 s2, 256"); a("s_cbranch_scc1 L_end")
        a(f"s_lshr_b32 s{S_SLOT}, s2, 3")
        a(f"s_mul_i32 s6, s{S_SLOT}, CODE_SLICE")
        a("v_lshlrev_b32 v5, 4, v0")
        a("v_cmp_gt_u32 vcc, CODE_SLICE, v5")
        a("s_mov_b64 s[70:71], vcc")
        a("v_add_u32 v5, s6, v5")
        a("v_cmp_gt_u32 vcc, CODE_BYTES, v5")
        a("s_and_b64 vcc, vcc, s[70:71]")
        a("s_and_saveexec_b64 s[6:7], vcc")
        a(f"global_load_dwordx4 {V(V_DUMMY,4)}, v5, s[4:5]")
        a("s_mov_b64 exec, s[6:7]")
        self.vm.ops.append("code")
        a(f"v_and_b32 v{V_LANE}, 63, v0"); a("v_lshrrev_b32 v5, 6, v0")
        a(f"v_lshlrev_b32 v{V_L16}, 4, v{V_LANE}"); a(f"v_and_b32 v{V_L31}, 31, v{V_LANE}"); a(f"v_lshrrev_b32 v{V_HH}, 5, v{V_LANE}")
        a(f"v_readfirstlane_b32 s{S_WAVE}, v5")
        a(f"s_and_b32 s{S_XCD}, s2, 7")
        self.phase_A_pre()
        a("s_waitcnt lgkmcnt(0)")
        a(f"s_load_dword s{S_TAG}, s[68:69], {WS_EPOCH}")
        def mk(base, lo, size):
            a(f"s_mov_b32 s{base}, s{lo}"); a(f"s_and_b32 s{base+1}, s{lo+1}, 0xffff")
            a(f"s_mov_b32 s{base+2}, {size}"); a(f"s_mov_b32 s{base+3}, 0x20000")
        mk(S_X, 48, 2048*448*2); mk(S_WQKV, 50, 448*1344*2); mk(S_WS, 68, 0x10000000); mk(S_WO, 52, 448*448*2)
        mk(S_WIN, 56, 448*1792*2); mk(S_WSP, 58, 2048*2048*2); mk(S_BSP, 60, 2048*2)
        mk(S_WOUT, 62, 896*448*2); mk(S_OUT, 64, 2048*448*2)
        self.tag_pending = True

    def tag_ready(self):
        if self.tag_pending:
            self.a("s_waitcnt lgkmcnt(0)"); self.a(f"s_add_u32 s{S_TAG}, s{S_TAG}, 1"); self.tag_pending = False

    def epilogue(self):
        a = self.a
        a("s_cmp_lg_u32 s2, 0"); a("s_cbranch_scc1 L_noepoch")
        a(f"s_cmp_lg_u32 s{S_WAVE}, 0"); a("s_cbranch_scc1 L_noepoch")
        a(f"v_mov_b32 v5, s{S_TAG}"); a(f"v_mov_b32 v6, {WS_EPOCH}")
        a("s_mov_b64 exec, 1")
        a(f"buffer_store_dword v5, v6, {srd(S_WS)}, 0 offen sc1")
        a("s_mov_b64 exec, -1")
        a("L_noepoch:")
        if self.stamps:
            a("s_waitcnt lgkmcnt(0)")
            a(f"s_lshl_b32 s48, s2, 2"); a(f"s_add_u32 s48, s48, s{S_WAVE}"); a("s_lshl_b32 s48, s48, 6"); a(f"s_add_u32 s48, s48, {DBG}")
            a("v_mov_b32 v6, 0"); a("s_mov_b64 exec, 1")
            for k in range(self.nstamp):
                a(f"v_mov_b32 v5, s{72+2*k}")
                a(f"buffer_store_dword v5, v6, {srd(S_WS)}, s48 offen offset:{4*k}")
            a("s_mov_b64 exec, -1")
        if self.stamps and self.o.get("dbgout"):
            a("s_memrealtime s[6:7]")
            a("s_load_dwordx2 s[50:51], s[0:1], 72")
            a("s_waitcnt lgkmcnt(0)")
            a(f"s_cmp_lg_u32 s2, {self.o['dbgout']}"); a("s_cbranch_scc1 L_end")
            a(f"s_cmp_lg_u32 s{S_WAVE}, 0"); a("s_cbranch_scc1 L_end")
            a("s_mov_b32 s52, s50"); a("s_and_b32 s53, s51, 0xffff"); a("s_mov_b32 s54, 256"); a("s_mov_b32 s55, 0x20000")
            a("v_mov_b32 v6, 0"); a("s_mov_b64 exec, 1")
            for k in range(1, self.nstamp):
                a(f"s_sub_u32 s56, s{72+2*k}, s{72+2*(k-1)}"); a("v_mov_b32 v5, s56")
                a(f"buffer_store_dword v5, v6, s[52:55], 0 offen offset:{4*(k-1)}")
            a("s_sub_u32 s56, s6, s3"); a("v_mov_b32 v5, s56")
            a(f"buffer_store_dword v5, v6, s[52:55], 0 offen offset:60")
            a("s_mov_b64 exec, -1")
        a("L_end:"); a("s_endpgm")

    def set_flag(self, soff):
        a = self.a
        self.vm.wait_all(); a("s_barrier")
        L = a.label("L_nf")
        a(f"s_cmp_lg_u32 s{S_WAVE}, 0"); a(f"s_cbranch_scc1 {L}")
        a(f"v_mov_b32 v5, s{S_TAG}"); a("v_mov_b32 v6, 0"); a("s_mov_b64 exec, 1")
        a(f"buffer_store_dword v5, v6, {srd(S_WS)}, s{soff} offen sc1")
        a("s_mov_b64 exec, -1"); a(f"{L}:")
        self.vm.ops.append("flag")

    def poll(self, soff, nflags, voff=None, drain=True):
        a = self.a
        if voff is None:
            a(f"v_min_u32 v9, {nflags-1}, v{V_LANE}"); a("v_lshlrev_b32 v9, 2, v9"); voff = 9
        Lp = a.label("L_poll"); Ld = a.label("L_pd"); Lo = a.label("L_po")
        a(f"s_cmp_lg_u32 s{S_WAVE}, 0"); a(f"s_cbranch_scc1 {Lo}")
        ld = lambda r: a(f"buffer_load_dword v{r}, v{voff}, {srd(S_WS)}, s{soff} offen sc1")
        for r in (5, 6, 7):
            ld(r); a("s_sleep 1")
        ld(8)
        a("s_mov_b32 s70, 0"); a(f"{Lp}:")
        for r in (5, 6, 7, 8):
            a("s_waitcnt vmcnt(3)")
            a(f"v_cmp_ne_u32 vcc, s{S_TAG}, v{r}")
            a(f"s_cbranch_vccz {Ld}")
            ld(r)
        a("s_add_u32 s70, s70, 1"); a("s_cmp_lt_u32 s70, 20000"); a(f"s_cbranch_scc1 {Lp}")
        a(f"s_branch {Ld}")
        a(f"{Lo}:")
        if drain: a("s_waitcnt vmcnt(0)")
        a(f"{Ld}:")
        a("s_barrier")
        if drain: self.vm.ops = ["p", "p", "p"]

    def half_op(self, v, t, op="v_add_f32"):
        a = self.a
        a(f"v_mov_b32 v{t}, v{v}"); a(f"v_permlane32_swap_b32 v{v}, v{t}"); a(f"{op} v{v}, v{v}, v{t}")

    def warm(self, srdb, nbytes, base_s=None):
        a, vm = self.a, self.vm
        per_wg = nbytes // 32; per_wave = per_wg // 4
        n = (per_wave + 1023) // 1024
        a(f"s_lshl_b32 s70, s{S_SLOT}, 2"); a(f"s_add_u32 s70, s70, s{S_WAVE}"); a(f"s_mul_i32 s70, s70, {per_wave}")
        if base_s is not None: a(f"s_add_u32 s70, s70, s{base_s}")
        for k in range(n):
            if k and k % 4 == 0: a("s_add_u32 s70, s70, 4096")
            vm.issue(f"buffer_load_dwordx4 {V(V_DUMMY,4)}, v{V_L16}, {srd(srdb)}, s70 offen offset:{(k%4)*1024}", tag="warm")

    def tr_base(self, dst, rowbytes, hhrows, t0, t1):
        a = self.a
        a(f"v_lshrrev_b32 v{t0}, 2, v{V_LANE}"); a(f"v_and_b32 v{t0}, 3, v{t0}")
        a(f"v_mul_u32_u24 v{t1}, {hhrows}, v{V_HH}"); a(f"v_add_u32 v{t0}, v{t0}, v{t1}"); a(f"v_mul_u32_u24 v{t0}, {rowbytes}, v{t0}")
        a(f"v_lshrrev_b32 v{t1}, 4, v{V_LANE}"); a(f"v_and_b32 v{t1}, 1, v{t1}"); a(f"v_lshlrev_b32 v{t1}, 5, v{t1}")
        a(f"v_add_u32 v{t0}, v{t0}, v{t1}")
        a(f"v_and_b32 v{t1}, 3, v{V_LANE}"); a(f"v_lshlrev_b32 v{t1}, 3, v{t1}")
        a(f"v_add_u32 v{dst}, v{t0}, v{t1}")

    def sched(self, mf, fill, lead=0):
        a = self.a
        tot = sum(c for _, c in fill); n = len(mf); k = 0; done = 0
        for i, x in enumerate(mf):
            a(x)
            tgt = tot * (i + 1) / n
            while k < len(fill) and (done + fill[k][1] / 2 <= tgt or i == n - 1):
                self.emit_fill(fill[k][0]); done += fill[k][1]; k += 1

    def emit_fill(self, x):
        if callable(x): x()
        else: self.a(x)

    def phase_A_pre(self):
        a, R = self.a, self.R
        R.reset()
        P = self.PA = {}
        P["VW0"] = VW0 = R.alloc(3, 1); P["VXE"] = VXE = R.alloc(); P["VXO"] = VXO = R.alloc(); P["t"] = t = R.alloc(4, 1); P["VSR"] = VSR = R.alloc()
        SI, SJ, STQ, SMM = 48, 49, 58, 62
        a(f"v_mul_u32_u24 v{t}, 896, v{V_HH}"); a(f"v_lshlrev_b32 v{t+1}, 4, v{V_L31}"); a(f"v_add_u32 v{t}, v{t}, v{t+1}")
        a(f"v_cmp_gt_u32 vcc, 28, v{V_L31}"); a(f"v_mov_b32 v{t+1}, 0x7ffffff0"); a(f"v_cndmask_b32 v{VSR}, v{t+1}, v{t}, vcc")
        a(f"v_lshrrev_b32 v{t}, 3, v{V_LANE}"); a(f"v_and_b32 v{t+1}, 7, v{V_LANE}"); a(f"v_lshrrev_b32 v{t+2}, 4, v{V_LANE}")
        a(f"v_xor_b32 v{t+3}, v{t+1}, v{t+2}"); a(f"v_lshlrev_b32 v{t+3}, 4, v{t+3}"); a(f"v_mul_u32_u24 v{t}, 896, v{t}"); a(f"v_add_u32 v{VXE}, v{t}, v{t+3}")
        a(f"v_add_u32 v{t+2}, 4, v{t+2}"); a(f"v_xor_b32 v{t+3}, v{t+1}, v{t+2}"); a(f"v_lshlrev_b32 v{t+3}, 4, v{t+3}"); a(f"v_add_u32 v{VXO}, v{t}, v{t+3}")
        a(f"v_lshrrev_b32 v{t}, 3, v{V_LANE}"); a(f"v_lshrrev_b32 v{t+1}, 4, v{V_LANE}"); a(f"v_lshrrev_b32 v{t+2}, 2, v{V_LANE}")
        a(f"v_xor_b32 v{t+1}, v{t+1}, v{t+2}"); a(f"v_and_b32 v{t+1}, 1, v{t+1}"); a(f"v_mul_u32_u24 v{t+1}, 896, v{t+1}")
        a(f"v_mul_u32_u24 v{t}, 2688, v{t}"); a(f"v_and_b32 v{t+3}, 3, v{V_LANE}"); a(f"v_lshlrev_b32 v{t+3}, 4, v{t+3}")
        a(f"v_add3_u32 v{VW0}, v{t}, v{t+1}, v{t+3}"); a(f"v_add_u32 v{VW0}, 896, v{VW0}")
        a(f"v_mul_u32_u24 v{t+2}, 2688, v{t+2}"); a(f"v_add_u32 v{VW0+1}, v{t+2}, v{t+3}")

    def phase_A(self):
        a, vm, R = self.a, self.vm, self.R
        a.c("================ phase A : LN1 + QKV + attention ================")
        P = self.PA; VW0, VXE, VXO, t, VSR = P["VW0"], P["VXE"], P["VXO"], P["t"], P["VSR"]
        SI, SJ, SXB, SWB, SLX, SLW, STQ = 48, 49, 52, 53, 54, 55, 58
        SMM = 62
        a(f"s_lshr_b32 s50, s{S_XCD}, 1"); a("s_lshl_b32 s50, s50, 2"); a(f"s_lshr_b32 s51, s{S_SLOT}, 3"); a(f"s_add_u32 s{SI}, s50, s51")
        a(f"s_and_b32 s50, s{S_XCD}, 1"); a("s_lshl_b32 s50, s50, 3"); a(f"s_and_b32 s71, s{S_SLOT}, 7"); a(f"s_add_u32 s{SJ}, s50, s71")
        a(f"s_lshl_b32 s{STQ}, s{SI}, 2"); a(f"s_add_u32 s{STQ}, s{STQ}, s{S_WAVE}"); a(f"s_mul_i32 s{SXB}, s{STQ}, {32*896}")
        self.stamp("A@0")
        LW = 0; LQ = 57344; LX = 86016; LPW = 151552; LKV = 102400
        SR = R.alloc(8)
        a(f"s_lshl_b32 s50, s{SI}, 7"); a(f"s_lshl_b32 s70, s{SJ}, 3"); a("s_add_u32 s50, s50, s70"); a(f"s_lshl_b32 s70, s{S_WAVE}, 1"); a("s_add_u32 s59, s50, s70")
        a("s_mul_i32 s50, s59, 896")
        vm.issue(f"buffer_load_dwordx4 {V(SR,4)}, v{VSR}, {srd(S_X)}, s50 offen", tag="sr")
        vm.issue(f"buffer_load_dwordx4 {V(SR+4,4)}, v{VSR}, {srd(S_X)}, s50 offen offset:448", tag="sr")
        a(f"s_lshl_b32 s51, s51, 1"); a(f"s_add_u32 s51, s51, s{SJ}"); a("s_mul_i32 s50, s51, 37"); a("s_lshr_b32 s50, s50, 8"); a("s_mul_i32 s50, s50, 7"); a("s_sub_u32 s51, s51, s50")
        if not self.o.get("rot_a", 1): a("s_mov_b32 s51, 0")
        a(f"s_lshl_b32 s{SMM}, s51, 7")
        a(f"s_lshl_b32 s{SLX}, s{S_WAVE}, 14"); a(f"s_add_u32 s{SLX}, s{SLX}, {LX}")
        a(f"s_mul_i32 s{SWB}, s{SJ}, 56"); a(f"s_mul_i32 s50, s{S_WAVE}, {16*2688}"); a(f"s_add_u32 s{SWB}, s{SWB}, s50")
        a(f"s_lshl_b32 s{SLW}, s{S_WAVE}, 11")
        def dma_list(m):
            out = []
            def pre():
                if m > 0:
                    a(f"s_add_u32 s{SMM+m}, s{SMM+m-1}, 128"); a(f"s_cmp_ge_u32 s{SMM+m}, 896"); a("s_cselect_b32 s71, 896, 0"); a(f"s_sub_u32 s{SMM+m}, s{SMM+m}, s71")
                a(f"s_add_u32 s57, s{SXB}, s{SMM+m}"); a(f"s_mul_i32 s61, s{SMM+m}, 1344"); a(f"s_add_u32 s61, s61, s{SWB}")
            out.append((pre, 16))
            for q in range(4):
                def f(q=q):
                    a(f"s_add_u32 m0, s{SLX}, {(m%4)*4096 + q*1024}"); a(f"s_add_u32 s56, s57, {q*7168}")
                    vm.issue(f"buffer_load_dwordx4 v{VXE if q%2==0 else VXO}, {srd(S_X)}, s56 offen lds", tag=("c", m))
                out.append((f, 16))
            for p in range(2):
                def f(p=p):
                    a(f"s_add_u32 m0, s{SLW}, {LW + m*8192 + p*1024}"); a(f"s_add_u32 s56, s61, {p*8*2688}")
                    vm.issue(f"buffer_load_dwordx4 v{VW0}, {srd(S_WQKV)}, s56 offen lds", tag=("c", m))
                out.append((f, 16))
            return out
        def dma_q(m):
            def f():
                a(f"s_mul_i32 s61, s{SMM+m}, 1344"); a(f"s_add_u32 s61, s61, s{SWB}")
                a(f"s_lshr_b32 s56, s{SLW}, 1"); a(f"s_add_u32 m0, s56, {LQ + m*4096}"); a("s_nop 0")
                vm.issue(f"buffer_load_dwordx4 v{VW0+1}, {srd(S_WQKV)}, s61 offen lds", tag="q")
            return [(f, 24)]
        for m in range(2):
            for f, _ in dma_list(m): f()
        if self.o.get("tlb", 1): self.tlb_warm()
        self.stamp("A@1")
        ONES = R.alloc(4); S0 = R.alloc(); Q0 = R.alloc(); T0 = R.alloc(); T1 = R.alloc()
        for k in range(4): a(f"v_mov_b32 v{ONES+k}, 0x3f803f80")
        a(f"v_mov_b32 v{S0}, 0"); a(f"v_mov_b32 v{Q0}, 0")
        VXA = R.alloc(4, 1)
        a(f"v_lshrrev_b32 v{t}, 1, v{V_L31}"); a(f"v_and_b32 v{t}, 7, v{t}"); a(f"v_xor_b32 v{t}, v{t}, v{V_HH}"); a(f"v_lshlrev_b32 v{t}, 4, v{t}")
        a(f"v_lshlrev_b32 v{VXA}, 7, v{V_L31}"); a(f"v_add_u32 v{VXA}, v{VXA}, v{t}"); a(f"v_add_u32 v{VXA}, s{SLX}, v{VXA}")
        for s in range(1, 4): a(f"v_xor_b32 v{VXA+s}, {s*32}, v{VXA}")
        VWK = R.alloc(); VWV = R.alloc(); VWQ = R.alloc()
        self.tr_base(VWK, 128, 8, t, t+1)
        a(f"v_lshrrev_b32 v{t}, 3, v{V_LANE}"); a(f"v_and_b32 v{t}, 1, v{t}"); a(f"v_lshlrev_b32 v{t}, 6, v{t}")
        a(f"v_xor_b32 v{t+1}, 64, v{t}"); a(f"v_add_u32 v{VWV}, v{VWK}, v{t+1}"); a(f"v_add_u32 v{VWK}, v{VWK}, v{t}")
        self.tr_base(VWQ, 64, 8, t, t+1)
        a(f"v_add_u32 v{VWQ}, {LQ}, v{VWQ}")
        AK = R.alloc(16); AV = R.alloc(16); CK = R.alloc(16); CV = R.alloc(16)
        vm.wait("sr")
        for d in range(8):
            a(f"v_dot2_f32_bf16 v{S0}, v{SR+d}, v{ONES}, v{S0}"); a(f"v_dot2_f32_bf16 v{Q0}, v{SR+d}, v{SR+d}, v{Q0}")
        for rr in (8, 4, 2, 1):
            for v in (S0, Q0): a(f"v_add_f32_dpp v{v}, v{v}, v{v} row_ror:{rr} row_mask:0xf bank_mask:0xf")
        a(f"v_mov_b32 v{T0}, v{S0}"); a(f"v_mov_b32 v{T1}, v{Q0}")
        a(f"v_permlane16_swap_b32 v{S0}, v{T0}"); a(f"v_permlane16_swap_b32 v{Q0}, v{T1}")
        a(f"v_add_f32 v{S0}, v{S0}, v{T0}"); a(f"v_add_f32 v{Q0}, v{Q0}, v{T1}")
        a(f"v_mul_f32 v{S0}, {lit(1/448)}, v{S0}"); a(f"v_mul_f32 v{Q0}, {lit(1/448)}, v{Q0}")
        a(f"v_fma_f32 v{Q0}, -v{S0}, v{S0}, v{Q0}"); a(f"v_max_f32 v{Q0}, 0, v{Q0}")
        a(f"v_add_f32 v{Q0}, {lit(1e-5)}, v{Q0}"); a(f"v_rsq_f32 v{Q0}, v{Q0}")
        self.tag_ready()
        a(f"v_mov_b32 v{SR}, v{S0}"); a(f"v_mov_b32 v{SR+2}, s{S_TAG}"); a(f"v_mov_b32 v{SR+3}, s{S_TAG}"); a(f"v_mov_b32 v{SR+1}, v{Q0}")
        a(f"v_lshlrev_b32 v{T0}, 4, v{V_HH}"); a(f"s_lshl_b32 s50, s59, 4"); a(f"s_add_u32 s50, s50, {STAT1}")
        a("s_mov_b32 exec_lo, 1"); a("s_mov_b32 exec_hi, 1")
        vm.issue(f"buffer_store_dwordx4 {V(SR,4)}, v{T0}, {srd(S_WS)}, s50 offen sc1", tag="st1")
        a("s_mov_b64 exec, -1")
        NB = 2
        WF = R.alloc(8 * NB)
        def rd_x(m): return [(f"ds_read_b128 {A(16*m+4*s,4)}, v{VXA+s} offset:{(m%4)*4096}", 4) for s in range(4)]
        def rd_w(s):
            buf = s % NB; out = []
            for g, base in enumerate((VWK, VWV)):
                for e in range(2):
                    r = WF + buf*8 + g*4 + e*2
                    out.append((f"ds_read_b64_tr_b16 v[{r}:{r+1}], v{base} offset:{LW + s*2048 + e*512}", 4))
            return out
        def chunk_ready(m):
            vm.wait(("c", m)); a("s_barrier")
        SG = R.alloc(4); RK = R.alloc(16); MK = R.alloc(16); MR = R.alloc()
        chunk_ready(0)
        self.stamp("g0")
        for x, _ in rd_x(0) + rd_w(0): a(x)
        pend = []
        for s in range(28):
            m, sp = s // 4, s % 4
            fill = []
            if sp == 0 and m + 2 < 7: pend = dma_list(m + 2)
            if sp == 0 and m in (5, 6): pend = sum([dma_q(mq) for mq in (range(4) if m == 5 else range(4, 7))], [])
            a("s_waitcnt lgkmcnt(0)")
            if s + 1 < 28:
                if sp == 3:
                    fill.append((lambda m=m: chunk_ready(m + 1), 8)); fill += rd_x(m + 1)
                fill += rd_w(s + 1)
            take = 2 if sp < 3 else len(pend)
            fill += pend[:take]; pend = pend[take:]
            if s == 20:
                def sg():
                    a(f"v_lshlrev_b32 v{T0}, 4, v{V_L31}"); a(f"s_lshl_b32 s50, s{STQ}, 9"); a(f"s_add_u32 s60, s50, {STAT1}")
                    vm.issue(f"buffer_load_dwordx4 {V(SG,4)}, v{T0}, {srd(S_WS)}, s60 offen sc1", tag="sg")
                fill.append((sg, 16))
            x = A(16*m + 4*sp, 4); wb = WF + (s % NB) * 8
            c = lambda r: '0' if s == 0 else V(r, 16)
            mf = [f"{MFMA} {V(AK,16)}, {V(wb,4)}, {x}, {c(AK)}", f"{MFMA} {V(AV,16)}, {x}, {V(wb+4,4)}, {c(AV)}",
                  f"{MFMA} {V(CK,16)}, {V(wb,4)}, {V(ONES,4)}, {c(CK)}", f"{MFMA} {V(CV,16)}, {V(ONES,4)}, {V(wb+4,4)}, {c(CV)}"]
            self.sched(mf, fill)
        self.stamp("A@2")
        Lp = a.label("L_sg"); Ld = a.label("L_sgd")
        vm.wait("sg")
        a("s_mov_b32 s70, 0"); a(f"{Lp}:")
        a(f"v_cmp_ne_u32 vcc, s{S_TAG}, v{SG+2}"); a(f"s_cbranch_vccz {Ld}")
        a(f"v_lshlrev_b32 v{T0}, 4, v{V_L31}")
        a(f"buffer_load_dwordx4 {V(SG,4)}, v{T0}, {srd(S_WS)}, s60 offen sc1"); a("s_waitcnt vmcnt(0)")
        a("s_add_u32 s70, s70, 1"); a("s_cmp_lt_u32 s70, 20000"); a(f"s_cbranch_scc1 {Lp}")
        a(f"{Ld}:")
        MEAN, RSTD = SG, SG + 1
        a(f"v_mul_f32 v{MR}, v{MEAN}, v{RSTD}")
        a(f"v_lshlrev_b32 v{T1}, 2, v{V_L31}"); a(f"s_lshl_b32 s57, s{S_WAVE}, 8"); a(f"s_add_u32 s57, s57, {LPW}"); a(f"v_add_u32 v{T0}, s57, v{T1}")
        a(f"ds_write_b32 v{T0}, v{RSTD}"); a(f"ds_write_b32 v{T0}, v{MR} offset:128")
        a(f"v_lshlrev_b32 v{T0}, 4, v{V_HH}"); a(f"v_add_u32 v{T0}, s57, v{T0}")
        a("s_waitcnt lgkmcnt(0)")
        for gg in range(4):
            a(f"ds_read_b128 {V(RK+4*gg,4)}, v{T0} offset:{gg*32}"); a(f"ds_read_b128 {V(MK+4*gg,4)}, v{T0} offset:{128+gg*32}")
        KF = R.alloc(8); VF = R.alloc(8); MASKH = R.alloc(); MASKD = R.alloc(); ONED = R.alloc()
        a(f"v_cmp_eq_u32 vcc, 0, v{V_HH}"); a(f"v_cndmask_b32 v{MASKH}, 0, -1, vcc")
        a(f"v_cmp_gt_u32 vcc, 28, v{V_L31}"); a(f"v_cndmask_b32 v{MASKD}, 0, -1, vcc")
        a(f"v_cmp_eq_u32 vcc, 28, v{V_L31}"); a(f"v_cndmask_b32 v{ONED}, 0, v{ONES}, vcc")
        for r in range(0, 16, 2):
            a(f"v_pk_fma_f32 {V(AK+r,2)}, {V(MEAN,2)}, {V(CK+r,2)}, {V(AK+r,2)} op_sel_hi:[0,1,1] neg_lo:[1,0,0] neg_hi:[1,0,0]")
        for r in range(0, 16, 2):
            a(f"v_pk_mul_f32 {V(AK+r,2)}, {V(AK+r,2)}, {V(MEAN,2)} op_sel:[0,1] op_sel_hi:[1,1]")
        for d in range(8): a(f"v_cvt_pk_bf16_f32 v{KF+d}, v{AK+2*d}, v{AK+2*d+1}")
        for d in (6, 7): a(f"v_and_b32 v{KF+d}, v{KF+d}, v{MASKH}")
        a(f"s_lshl_b32 s56, s{SJ}, 6"); a(f"s_add_u32 s56, s56, s{STQ}"); a("s_lshl_b32 s56, s56, 12"); a(f"s_add_u32 s56, s56, {KVF}")
        for part, r in enumerate((KF, KF+4)):
            vm.issue(f"buffer_store_dwordx4 {V(r,4)}, v{V_L16}, {srd(S_WS)}, s56 offen offset:{part*1024} sc1")
        a("s_waitcnt lgkmcnt(0)")
        for r in range(0, 16, 2):
            a(f"v_pk_mul_f32 {V(MK+r,2)}, {V(MK+r,2)}, {V(CV+r,2)}")
            a(f"v_pk_fma_f32 {V(AV+r,2)}, {V(AV+r,2)}, {V(RK+r,2)}, {V(MK+r,2)} neg_lo:[0,0,1] neg_hi:[0,0,1]")
        for d in range(8): a(f"v_cvt_pk_bf16_f32 v{VF+d}, v{AV+2*d}, v{AV+2*d+1}")
        for d in range(8): a(f"v_and_or_b32 v{VF+d}, v{VF+d}, v{MASKD}, v{ONED}")
        for part, r in enumerate((VF, VF+4)):
            vm.issue(f"buffer_store_dwordx4 {V(r,4)}, v{V_L16}, {srd(S_WS)}, s56 offen offset:{2048+part*1024} sc1")
        vm.wait("q")
        a("s_barrier")
        a(f"s_lshl_b32 s50, s{S_WAVE}, 12"); a(f"s_add_u32 s50, s50, {LKV + 8*4096}"); a(f"v_add_u32 v{T0}, s50, v{V_L16}")
        for part, r in enumerate((KF, KF+4, VF, VF+4)):
            a(f"ds_write_b128 v{T0}, {V(r,4)} offset:{part*1024}")
        for b, n in ((CK,16),(CV,16),(RK,16),(MK,16),(AK,16),(AV,16),(WF,8*NB)): R.free(b, n)
        AQ = R.alloc(16); CQ = R.alloc(16); QW = R.alloc(16)
        def rd_q(s):
            return [(f"ds_read_b64_tr_b16 v[{QW+(s%4)*4+e*2}:{QW+(s%4)*4+e*2+1}], v{VWQ} offset:{s*1024 + e*256}", 4) for e in range(2)]
        for s in range(2):
            for x, _ in rd_q(s): a(x)
        a(f"s_lshl_b32 s59, s{SJ}, 7"); a(f"s_lshl_b32 s56, s{SI}, 2"); a("s_add_u32 s59, s59, s56"); a(f"s_add_u32 s59, s59, {F_KV}")
        R.free(KF, 8); R.free(VF, 8)
        for s in range(28):
            fill = rd_q(s + 2) if s + 2 < 28 else []
            a(f"s_waitcnt lgkmcnt({2 if s + 1 < 28 else 0})")
            c = lambda r: '0' if s == 0 else V(r, 16)
            q = V(QW + (s % 4)*4, 4)
            self.sched([f"{MFMA} {V(AQ,16)}, {q}, {A(4*s,4)}, {c(AQ)}", f"{MFMA} {V(CQ,16)}, {q}, {V(ONES,4)}, {c(CQ)}"], fill)
            if s == self.o.get("kvflag_at", 12):
                self.set_flag(59)
                self.stamp("A@3")
        RQ = R.alloc(2); QF = R.alloc(8)
        qscale = (28 ** -0.5) * LOG2E
        a(f"v_mul_f32 v{RQ}, {lit(qscale)}, v{RSTD}")
        CD = R.alloc(16); CF = R.alloc(16); CM = R.alloc(16); BS = R.alloc(); NBG = R.alloc()
        a(f"v_lshlrev_b32 v{BS}, 2, v{V_HH}"); a(f"v_sub_u32 v{BS}, v{V_L31}, v{BS}"); a(f"v_mov_b32 v{NBG}, {lit(-1e30)}")
        for r in range(16):
            c = (r & 3) + 8 * (r >> 2)
            a(f"v_cmp_le_i32 vcc, {c}, v{BS}")
            a(f"v_cndmask_b32 v{CD+r}, v{NBG}, 0, vcc"); a(f"v_cndmask_b32 v{CF+r}, 0, v{NBG}, vcc")
        for r in range(0, 16, 2):
            a(f"v_pk_fma_f32 {V(AQ+r,2)}, {V(MEAN,2)}, {V(CQ+r,2)}, {V(AQ+r,2)} op_sel_hi:[0,1,1] neg_lo:[1,0,0] neg_hi:[1,0,0]")
        for r in range(0, 16, 2):
            a(f"v_pk_mul_f32 {V(AQ+r,2)}, {V(AQ+r,2)}, {V(RQ,2)} op_sel_hi:[1,0]")
        for d in range(8): a(f"v_cvt_pk_bf16_f32 v{QF+d}, v{AQ+2*d}, v{AQ+2*d+1}")
        for d in (6, 7): a(f"v_and_b32 v{QF+d}, v{QF+d}, v{MASKH}")
        R.free(AQ, 16); R.free(QW, 16); R.free(CQ, 16)
        a(f"s_lshl_b32 s59, s{SJ}, 7"); a(f"s_add_u32 s59, s59, {F_KV}")
        a(f"s_sub_i32 s56, s{SI}, 1"); a("s_max_i32 s56, s56, 0"); a(f"s_sub_i32 s57, s{SI}, 2"); a("s_max_i32 s57, s57, 0")
        a("s_lshl_b32 s56, s56, 2"); a("s_lshl_b32 s57, s57, 2")
        a(f"v_mov_b32 v9, s56"); a(f"v_mov_b32 v{T0}, s57"); a(f"v_cmp_eq_u32 vcc, 0, v{V_HH}"); a(f"v_cndmask_b32 v9, v{T0}, v9, vcc")
        self.poll(59, 2, voff=9)
        self.stamp("A@4")
        a(f"s_lshl_b32 s59, s{SJ}, 18"); a(f"s_add_u32 s59, s59, {KVF}")
        for tt in range(2):
            a(f"s_lshl_b32 s56, s{SI}, 2"); a(f"s_lshl_b32 s57, s{S_WAVE}, 1"); a("s_add_u32 s56, s56, s57"); a(f"s_add_i32 s56, s56, {tt-8}"); a("s_max_i32 s56, s56, 0")
            a("s_lshl_b32 s56, s56, 12"); a("s_add_u32 s56, s56, s59")
            a(f"s_lshl_b32 s57, s{S_WAVE}, 13"); a(f"s_add_u32 s57, s57, {LKV + tt*4096}")
            for part in range(4):
                a(f"s_add_u32 m0, s57, {part*1024}"); a(f"s_add_u32 s50, s56, {part*1024}")
                vm.issue(f"buffer_load_dwordx4 v{V_L16}, {srd(S_WS)}, s50 offen sc1 lds", tag="kv")
        KA = R.alloc()
        a(f"s_lshl_b32 s50, s{S_WAVE}, 12"); a(f"s_add_u32 s50, s50, {LKV}"); a(f"v_add_u32 v{KA}, s50, v{V_L16}")
        a(f"s_sub_i32 s60, 8, s{STQ}"); a("s_max_i32 s60, s60, 0")
        SA = R.alloc(16); SB = R.alloc(16); O = R.alloc(16); PF = R.alloc(16); KR = R.alloc(16); VR = R.alloc(16); MX = R.alloc(2)
        a(f"v_mov_b32 v{MX}, {lit(-1e30)}"); a(f"v_mov_b32 v{MX+1}, {lit(-1e30)}")
        vm.wait("kv"); a("s_barrier")
        self.stamp("A@5")
        rk = lambda u: [(f"ds_read_b128 {V(KR+8*(u%2)+4*h,4)}, v{KA} offset:{u*4096+h*1024}", 4) for h in range(2)]
        rv = lambda u: [(f"ds_read_b128 {V(VR+8*(u%2)+4*h,4)}, v{KA} offset:{u*4096+2048+h*1024}", 4) for h in range(2)]
        def smf(u, c):
            S = SA if u % 2 == 0 else SB; k = KR + 8*(u % 2)
            return [f"{MFMA} {V(S,16)}, {V(k,4)}, {V(QF,4)}, {c}", f"{MFMA} {V(S,16)}, {V(k+4,4)}, {V(QF+4,4)}, {V(S,16)}"]
        def pvm(u):
            P = PF + 8*(u % 2); vr = VR + 8*(u % 2)
            return [f"{MFMA} {V(O,16)}, {V(vr,4)}, {V(P,4)}, {'0' if u == 0 else V(O,16)}", f"{MFMA} {V(O,16)}, {V(vr+4,4)}, {V(P+4,4)}, {V(O,16)}"]
        warm = (self.touch_list(S_WO, 448*448*2) + self.touch_list(S_WIN, 448*1792*2)) if self.o.get("warm", 1) else []
        Lslow = a.label("L_slow"); Ljoin = a.label("L_join")
        a("s_cmp_gt_u32 s60, 0"); a(f"s_cbranch_scc1 {Lslow}")
        saved_ops = list(vm.ops)
        cop1 = lambda u: V(CF,16) if u == 0 else (V(CD,16) if u == 8 else "0")
        for x, _ in rk(0) + rk(1): a(x)
        a("s_waitcnt lgkmcnt(2)")
        for x in smf(0, cop1(0)): a(x)
        for u in range(9):
            S = SA if u % 2 == 0 else SB
            mx = [(f"v_max3_f32 v{MX+(r//2)%2}, v{S+r}, v{S+r+1}, v{MX+(r//2)%2}", 4) for r in range(0, 16, 2)]
            if u + 1 < 9:
                a("s_waitcnt lgkmcnt(0)")
                self.sched(smf(u + 1, cop1(u + 1)), (rk(u + 2) if u + 2 < 9 else []) + mx)
            else:
                for x, _ in mx: a(x)
        self.stamp("p1")
        self.attn_mid(MX, T0, CM, CD, CF)
        self.stamp("p2")
        cop2 = lambda u: V(CF,16) if u == 0 else (V(CD,16) if u == 8 else V(CM,16))
        for x, _ in rk(0) + rk(1): a(x)
        a("s_waitcnt lgkmcnt(2)")
        for x in smf(0, cop2(0)): a(x)
        for u in range(10):
            mf = []; fill = []
            a("s_waitcnt lgkmcnt(0)")
            if u + 1 < 9: mf += smf(u + 1, cop2(u + 1))
            if u >= 1: mf += pvm(u - 1)
            if u < 9:
                S = SA if u % 2 == 0 else SB; P = PF + 8*(u % 2)
                fill += rv(u)
                if u + 2 < 9: fill += rk(u + 2)
                for d in range(8):
                    fill += [(f"v_exp_f32 v{S+2*d}, v{S+2*d}", 8), (f"v_exp_f32 v{S+2*d+1}, v{S+2*d+1}", 8)]
                    if d >= 1: fill.append((f"v_cvt_pk_bf16_f32 v{P+d-1}, v{S+2*d-2}, v{S+2*d-1}", 4))
                fill.append((f"v_cvt_pk_bf16_f32 v{P+7}, v{S+14}, v{S+15}", 4))
                fill += warm[:1]; warm = warm[1:]
            self.sched(mf, fill)
        for f, _ in warm: self.emit_fill(f)
        self.stamp("p3")
        a(f"s_branch {Ljoin}")
        fast_ops = list(vm.ops); vm.ops = saved_ops
        a(f"{Lslow}:")
        for u in range(9):
            L = a.label("L_s1")
            if u < 8: a(f"s_cmp_gt_u32 s60, {u}"); a(f"s_cbranch_scc1 {L}")
            for x, _ in rk(u): a(x)
            a("s_waitcnt lgkmcnt(0)")
            for x in smf(u, cop1(u)): a(x)
            S = SA if u % 2 == 0 else SB
            for r in range(0, 16, 2): a(f"v_max3_f32 v{MX}, v{S+r}, v{S+r+1}, v{MX}")
            a(f"{L}:")
        self.attn_mid(MX, T0, CM, CD, CF)
        for r in range(16): a(f"v_mov_b32 v{O+r}, 0")
        for u in range(9):
            L = a.label("L_s2")
            if u < 8: a(f"s_cmp_gt_u32 s60, {u}"); a(f"s_cbranch_scc1 {L}")
            S = SA if u % 2 == 0 else SB; P = PF + 8*(u % 2); vr = VR + 8*(u % 2)
            for x, _ in rk(u) + rv(u): a(x)
            a("s_waitcnt lgkmcnt(0)")
            for x in smf(u, cop2(u)): a(x)
            for r in range(16): a(f"v_exp_f32 v{S+r}, v{S+r}")
            for d in range(8): a(f"v_cvt_pk_bf16_f32 v{P+d}, v{S+2*d}, v{S+2*d+1}")
            a(f"{MFMA} {V(O,16)}, {V(vr,4)}, {V(P,4)}, {V(O,16)}")
            a(f"{MFMA} {V(O,16)}, {V(vr+4,4)}, {V(P+4,4)}, {V(O,16)}")
            a(f"{L}:")
        if self.o.get("warm", 1):
            for f, _ in self.touch_list(S_WO, 448*448*2) + self.touch_list(S_WIN, 448*1792*2): self.emit_fill(f)
        vm.ops = fast_ops
        a(f"{Ljoin}:")
        a(f"v_mov_b32 v{T0}, v{O+12}"); a(f"v_mov_b32 v{MX}, v{O+12}")
        a(f"v_permlane32_swap_b32 v{T0}, v{MX}")
        a(f"v_rcp_f32 v{MX}, v{MX}")
        for r in range(0, 16, 2): a(f"v_pk_mul_f32 {V(O+r,2)}, {V(O+r,2)}, {V(MX,2)} op_sel_hi:[1,0]")
        for d in range(8): a(f"v_cvt_pk_bf16_f32 v{PF+d}, v{O+2*d}, v{O+2*d+1}")
        for d in (6, 7): a(f"v_and_b32 v{PF+d}, v{PF+d}, v{MASKH}")
        a(f"s_lshl_b32 s56, s{STQ}, 4"); a(f"s_add_u32 s56, s56, s{SJ}"); a("s_lshl_b32 s56, s56, 11"); a(f"s_add_u32 s56, s56, {OFR}")
        for h in range(2):
            vm.issue(f"buffer_store_dwordx4 {V(PF+4*h,4)}, v{V_L16}, {srd(S_WS)}, s56 offen offset:{h*1024} sc1")
        a(f"s_lshl_b32 s59, s{SI}, 7"); a(f"s_lshl_b32 s56, s{SJ}, 2"); a("s_add_u32 s59, s59, s56"); a(f"s_add_u32 s59, s59, {F_O}")
        self.set_flag(59)
        self.stamp("A@6")

    def tlb_warm(self):
        a, vm = self.a, self.vm
        a(f"v_lshlrev_b32 v{V_TOUCH}, 21, v{V_LANE}")
        a("s_mov_b64 exec, 0xfff")
        vm.issue(f"buffer_load_dword v{V_DUMMY}, v{V_TOUCH}, {srd(S_WS)}, 0 offen", tag="tlb")
        a("s_mov_b64 exec, 0xf")
        vm.issue(f"buffer_load_dword v{V_DUMMY}, v{V_TOUCH}, {srd(S_WSP)}, 0 offen", tag="tlb")
        a("s_mov_b64 exec, 1")
        for sb in (S_WO, S_WIN, S_WOUT, S_BSP, S_OUT):
            vm.issue(f"buffer_load_dword v{V_DUMMY}, v{V_TOUCH}, {srd(sb)}, 0 offen", tag="tlb")
        a("s_mov_b64 exec, -1")

    def warm_list(self, srdb, nbytes, sreg=69):
        a, vm = self.a, self.vm
        per_wave = nbytes // 128; n = (per_wave + 1023) // 1024; out = []
        for k in range(n):
            def f(k=k):
                if k == 0:
                    a(f"s_lshl_b32 s{sreg}, s{S_SLOT}, 2"); a(f"s_add_u32 s{sreg}, s{sreg}, s{S_WAVE}"); a(f"s_mul_i32 s{sreg}, s{sreg}, {per_wave}")
                elif k % 4 == 0: a(f"s_add_u32 s{sreg}, s{sreg}, 4096")
                vm.issue(f"buffer_load_dwordx4 {V(V_DUMMY,4)}, v{V_L16}, {srd(srdb)}, s{sreg} offen offset:{(k%4)*1024}", tag="warm")
            out.append((f, 8))
        return out

    def attn_mid(self, MX, T0, CM, CD, CF):
        a = self.a
        a(f"v_max_f32 v{MX}, v{MX}, v{MX+1}")
        self.half_op(MX, T0, "v_max_f32")
        for r in range(16): a(f"v_sub_f32 v{CM+r}, 0, v{MX}")
        for r in range(0, 16, 2):
            a(f"v_pk_add_f32 {V(CD+r,2)}, {V(CD+r,2)}, {V(CM,2)}"); a(f"v_pk_add_f32 {V(CF+r,2)}, {V(CF+r,2)}, {V(CM,2)}")

    def touch_list(self, srdb, nbytes, sreg=69, base=None):
        a, vm = self.a, self.vm
        per_wave = (nbytes // 128 + 63) // 64 * 64; n = (per_wave + 4095) // 4096; out = []
        for k in range(n):
            def f(k=k):
                if k == 0:
                    a(f"s_lshl_b32 s{sreg}, s{S_SLOT}, 2"); a(f"s_add_u32 s{sreg}, s{sreg}, s{S_WAVE}"); a(f"s_mul_i32 s{sreg}, s{sreg}, {per_wave}")
                    if base is not None: a(f"s_add_u32 s{sreg}, s{sreg}, s{base}")
                    a(f"v_lshlrev_b32 v{V_TOUCH}, 6, v{V_LANE}")
                else: a(f"s_add_u32 s{sreg}, s{sreg}, 4096")
                vm.issue(f"buffer_load_dword v{V_DUMMY}, v{V_TOUCH}, {srd(srdb)}, s{sreg} offen", tag="warm")
            out.append((f, 12))
        return out

    def idle_prefetch(self, skip, part):
        a = self.a
        Lo = a.label("L_ip")
        a(f"s_branch {Lo}")
        a(f"{skip}:")
        idn = self.o.get("idle_n", [6, 10])
        n = idn[part] if part < 2 else 13
        first = 0 if part != 1 else idn[0]
        if n:
            if part < 2: a(f"s_lshl_b32 s50, s{S_XCD}, 20")
            else: a("s_mov_b32 s50, 0")
            a(f"s_sub_u32 s51, s{S_SLOT}, 28"); a("s_lshl_b32 s51, s51, 2"); a(f"s_add_u32 s51, s51, s{S_WAVE}"); a("s_lshl_b32 s51, s51, 12"); a("s_add_u32 s50, s50, s51")
            a(f"s_add_u32 s50, s50, {first*16*4096}")
            a(f"v_lshlrev_b32 v{V_TOUCH}, 6, v{V_LANE}")
            Ll = a.label("L_il")
            a(f"s_mov_b32 s51, {n}")
            a(f"{Ll}:")
            a(f"buffer_load_dword v{V_DUMMY}, v{V_TOUCH}, {srd(S_WSP if part < 2 else S_WOUT)}, s50 offen")
            a(f"s_add_u32 s50, s50, {16*4096}"); a("s_sub_u32 s51, s51, 1"); a("s_cmp_lg_u32 s51, 0"); a(f"s_cbranch_scc1 {Ll}")
            a("s_waitcnt vmcnt(0)")
        a(f"{Lo}:")

    def dma_by_all(self, items, tagf):
        a, vm = self.a, self.vm
        assert len(items) % 4 == 0
        Lnp = a.label("L_np")
        for wv in range(4):
            Lw = a.label("L_w")
            if wv < 3:
                a(f"s_cmp_lg_u32 s{S_WAVE}, {wv}"); a(f"s_cbranch_scc1 {Lw}")
            state = {}
            for n, it in enumerate(items):
                if n % 4 == wv: it(state)
            if wv < 3:
                a(f"s_branch {Lnp}")
                a(f"{Lw}:")
        a(f"{Lnp}:")
        vm.ops += [tagf(n) for n in range(len(items)) if n % 4 == 0]

    def dma_by_123(self, items, tagf):
        a, vm = self.a, self.vm
        Lnp = a.label("L_np")
        a(f"s_cmp_eq_u32 s{S_WAVE}, 0"); a(f"s_cbranch_scc1 {Lnp}")
        for wv in (1, 2, 3):
            Lw = a.label("L_w")
            if wv < 3:
                a(f"s_cmp_lg_u32 s{S_WAVE}, {wv}"); a(f"s_cbranch_scc1 {Lw}")
            state = {}
            for n, it in enumerate(items):
                if n % 3 == wv - 1: it(state)
            if wv < 3:
                a(f"s_branch {Lnp}")
                a(f"{Lw}:")
        a(f"{Lnp}:")
        mod = [tagf(n) for n in range(len(items)) if n % 3 == 0]
        mod.pop(); vm.ops += mod

    def d_map(self):
        a = self.a
        a(f"s_mul_i32 s50, s{S_SLOT}, 37"); a("s_lshr_b32 s50, s50, 8")
        a("s_mul_i32 s51, s50, 7"); a(f"s_sub_u32 s94, s{S_SLOT}, s51")
        a(f"s_lshl_b32 s95, s{S_XCD}, 2"); a("s_add_u32 s95, s95, s50")
        a(f"s_mul_i32 s96, s50, {self.o.get('rotm', 0)}"); a("s_and_b32 s51, s94, 3"); a(f"s_mul_i32 s51, s51, {self.o.get('rotf', 0)}"); a("s_add_u32 s96, s96, s51")
        a("s_lshl_b32 s97, s95, 18")

    def d_lanes(self, VE, VO, t):
        a = self.a
        a(f"v_lshrrev_b32 v{t}, 3, v{V_LANE}"); a(f"v_and_b32 v{t+1}, 7, v{V_LANE}"); a(f"v_lshrrev_b32 v{t+2}, 4, v{V_LANE}")
        a(f"v_xor_b32 v{t+3}, v{t+1}, v{t+2}"); a(f"v_lshlrev_b32 v{t+3}, 4, v{t+3}"); a(f"v_lshlrev_b32 v{t}, 12, v{t}"); a(f"v_add_u32 v{VE}, v{t}, v{t+3}")
        a(f"v_add_u32 v{t+2}, 4, v{t+2}"); a(f"v_xor_b32 v{t+3}, v{t+1}, v{t+2}"); a(f"v_lshlrev_b32 v{t+3}, 4, v{t+3}"); a(f"v_add_u32 v{VO}, v{t}, v{t+3}")

    def d_early_items(self, VE, VO, NS=8):
        a, vm = self.a, self.vm
        out = []
        blocks = [(b, kh) for b in range(NS) for kh in range(2) if kh*NS*8192 + b*8192 + 8192 <= 114688]
        for (b, kh) in blocks:
            for h in range(2):
                def f(b=b, kh=kh, h=h):
                    if h == 0:
                        a(f"s_add_u32 s98, s96, {b}"); a("s_and_b32 s98, s98, 15"); a("s_lshl_b32 s98, s98, 7"); a("s_add_u32 s98, s98, s97")
                        a(f"s_lshl_b32 s99, s{S_WAVE}, 16"); a("s_add_u32 s98, s98, s99")
                    a(f"s_lshl_b32 s99, s{S_WAVE}, 11"); a(f"s_add_u32 m0, s99, {kh*NS*8192 + b*8192 + h*1024}")
                    a(f"s_add_u32 s99, s98, {kh*2048 + h*8*4096}")
                    vm.issue(f"buffer_load_dwordx4 v{VE if h == 0 else VO}, {srd(S_WSP)}, s99 offen lds", tag=("w", b))
                out.append((f, 28))
        return out, blocks

    def map_BE(self, skip):
        a = self.a
        a(f"s_cmp_ge_u32 s{S_SLOT}, 28"); a(f"s_cbranch_scc1 {skip}")
        a(f"s_mul_i32 s50, s{S_SLOT}, 37"); a("s_lshr_b32 s50, s50, 8")
        a("s_mul_i32 s51, s50, 7"); a(f"s_sub_u32 s49, s{S_SLOT}, s51")
        a(f"s_lshl_b32 s48, s{S_XCD}, 2"); a("s_add_u32 s48, s48, s50")
        a(f"s_and_b32 s52, s{S_WAVE}, 1"); a("s_lshl_b32 s50, s48, 1"); a("s_add_u32 s52, s52, s50"); a(f"s_lshr_b32 s53, s{S_WAVE}, 1")

    def w128_lane(self, dst, rowbytes, t):
        a = self.a
        a(f"v_lshrrev_b32 v{t}, 3, v{V_LANE}"); a(f"v_mul_u32_u24 v{t}, {rowbytes}, v{t}")
        a(f"v_lshrrev_b32 v{t+1}, 4, v{V_LANE}"); a(f"v_and_b32 v{t+1}, 1, v{t+1}"); a(f"v_lshlrev_b32 v{t+1}, 2, v{t+1}")
        a(f"v_and_b32 v{t+2}, 7, v{V_LANE}"); a(f"v_xor_b32 v{t+2}, v{t+2}, v{t+1}"); a(f"v_lshlrev_b32 v{t+2}, 4, v{t+2}")
        a(f"v_add_u32 v{dst}, v{t}, v{t+2}")

    def w128_bases(self, B0, t, wave_bytes_reg=None, const=0):
        a = self.a
        a(f"v_lshrrev_b32 v{t}, 2, v{V_LANE}"); a(f"v_and_b32 v{t}, 3, v{t}")
        a(f"v_lshlrev_b32 v{t+1}, 2, v{V_HH}"); a(f"v_add_u32 v{t+1}, v{t+1}, v{t}"); a(f"v_lshlrev_b32 v{t+1}, 7, v{t+1}")
        a(f"v_lshrrev_b32 v{t+2}, 4, v{V_LANE}"); a(f"v_and_b32 v{t+2}, 1, v{t+2}"); a(f"v_lshlrev_b32 v{t+2}, 5, v{t+2}")
        a(f"v_add_u32 v{t+1}, v{t+1}, v{t+2}")
        a(f"v_and_b32 v{t+2}, 3, v{V_LANE}"); a(f"v_lshlrev_b32 v{t+2}, 3, v{t+2}"); a(f"v_add_u32 v{t+1}, v{t+1}, v{t+2}")
        a(f"v_lshrrev_b32 v{t}, 1, v{t}"); a(f"v_lshlrev_b32 v{t}, 6, v{t}")
        if wave_bytes_reg is not None: a(f"v_add_u32 v{t+1}, s{wave_bytes_reg}, v{t+1}")
        if const: a(f"v_add_u32 v{t+1}, {const}, v{t+1}")
        a(f"v_add_u32 v{B0}, v{t+1}, v{t}")
        a(f"v_xor_b32 v{t}, 64, v{t}"); a(f"v_add_u32 v{B0+1}, v{t+1}, v{t}")

    def small_phase(self, ph):
        a, vm, R = self.a, self.vm, self.R
        R.reset()
        isB = ph == "B"
        NB = 8 if isB else 14
        rows_per_blk = 28 if isB else 32
        SW = S_WO if isB else S_WOUT
        ACTB = OFR if isB else UFR; nact = 16 if isB else 28
        skip = f"L_skip{ph}"
        self.map_BE(skip)
        self.stamp(f"{ph}@0")
        t = R.alloc(4, 1); VW = R.alloc()
        self.w128_lane(VW, 896, t)
        a(f"s_{'mov_b32 s54, s49' if isB else 'lshl_b32 s54, s49, 1'}" if self.o.get("rot_" + ph.lower(), 0) else "s_mov_b32 s54, 0")
        a("s_lshl_b32 s55, s49, 7")
        a(f"s_lshl_b32 s58, s52, {4 if isB else 0}") if isB else a("s_mul_i32 s58, s52, 28")
        a(f"s_mul_i32 s50, s53, {NB}"); a("s_add_u32 s58, s58, s50"); a("s_lshl_b32 s58, s58, 11"); a(f"s_add_u32 s58, s58, {ACTB}")
        items = []
        for b in range(NB):
            for kh_ in range(2):
                for g in range(4):
                    def it(st, b=b, kh_=kh_, g=g):
                        if st.get("b") != b:
                            a(f"s_add_u32 s56, s54, {b}"); a(f"s_cmp_ge_u32 s56, {NB}"); a(f"s_cselect_b32 s50, {NB}, 0"); a("s_sub_u32 s56, s56, s50")
                            a(f"s_mul_i32 s56, s56, {rows_per_blk*896}"); a("s_add_u32 s56, s56, s55"); st["b"] = b
                        a(f"s_mov_b32 m0, {(kh_*NB + b)*4096 + g*1024}"); a(f"s_add_u32 s50, s56, {kh_*NB*rows_per_blk*896 + g*8*896}")
                        a(f"buffer_load_dwordx4 v{VW}, {srd(SW)}, s50 offen lds")
                    items.append(it)
        self.dma_by_all(items, lambda n: "w")
        XR = R.alloc(8)
        if isB:
            a(f"v_mul_u32_u24 v{t+3}, 896, v{V_L31}"); a(f"v_lshlrev_b32 v{t+2}, 3, v{V_HH}"); a(f"v_add_u32 v{t+3}, v{t+3}, v{t+2}")
            a(f"s_mul_i32 s54, s52, {32*896}"); a("s_lshl_b32 s50, s49, 7"); a("s_add_u32 s54, s54, s50"); a("s_lshl_b32 s50, s53, 6"); a("s_add_u32 s54, s54, s50")
            for g in range(4):
                vm.issue(f"buffer_load_dwordx2 {V(XR+2*g,2)}, v{t+3}, {srd(S_X)}, s54 offen offset:{g*16}", tag="xr")
        B0 = R.alloc(2, 1)
        a(f"s_mul_i32 s51, s53, {NB*4096}")
        self.w128_bases(B0, t, 51)
        if isB:
            a("s_lshr_b32 s55, s48, 1"); a("s_lshl_b32 s55, s55, 7"); a(f"s_add_u32 s55, s55, {F_O}"); self.poll(55, 16, drain=False)
        else:
            a("s_lshl_b32 s55, s48, 7"); a(f"s_add_u32 s55, s55, {F_U}"); self.poll(55, 7, drain=False)
        self.stamp(f"{ph}@1")
        ACT = R.alloc(8 * NB)
        a(f"s_{'mov_b32 s54, s49' if isB else 'lshl_b32 s54, s49, 1'}" if self.o.get("rot_" + ph.lower(), 0) else "s_mov_b32 s54, 0")
        def ld_act(k):
            b, st = k // 2, k % 2
            def f():
                if st == 0:
                    a(f"s_cmp_ge_u32 s54, {NB}"); a(f"s_cselect_b32 s50, {NB}, 0"); a("s_sub_u32 s54, s54, s50")
                    a("s_lshl_b32 s59, s54, 11"); a("s_add_u32 s59, s59, s58"); a("s_add_u32 s54, s54, 1")
                vm.issue(f"buffer_load_dwordx4 {V(ACT+8*b+4*st,4)}, v{V_L16}, {srd(S_WS)}, s59 offen offset:{st*1024} sc1", tag=("act", k))
            return [(f, 16 if st == 0 else 4)]
        PD = self.o.get("pd_small", 6)
        for k in range(PD):
            for f, _ in ld_act(k): f()
        def ld_res():
            a("s_lshl_b32 s50, s49, 1"); a("s_add_u32 s50, s50, s53"); a("s_mul_i32 s51, s52, 14"); a("s_add_u32 s50, s50, s51")
            a("s_lshl_b32 s55, s50, 11"); a(f"s_add_u32 s55, s55, {HFR}")
            for h in range(2):
                vm.issue(f"buffer_load_dwordx4 {V(XR+4*h,4)}, v{V_L16}, {srd(S_WS)}, s55 offen offset:{h*1024} sc1", tag="xr")
        vm.wait("w"); a("s_barrier")
        ACC = R.alloc(32); WF = R.alloc(24)
        nk = 2 * NB
        def rd(k):
            out = []
            for c in range(2):
                for e in range(2):
                    r = WF + (k % 3)*8 + c*4 + e*2
                    out.append((f"ds_read_b64_tr_b16 v[{r}:{r+1}], v{B0+c} offset:{(k//2)*4096 + ((k%2)*16 + 8*e)*128}", 4))
            return out
        for k in range(2):
            for x, _ in rd(k): a(x)
        for k in range(nk):
            a(f"s_waitcnt lgkmcnt({4 if k + 1 < nk else 0})")
            vm.wait(("act", k))
            wb = WF + (k % 3) * 8
            mf = [f"{MFMA} {V(ACC+16*c,16)}, {V(wb+4*c,4)}, {V(ACT+4*k,4)}, {'0' if k == 0 else V(ACC+16*c,16)}" for c in range(2)]
            fill = (ld_act(k + PD) if k + PD < nk else []) + (rd(k + 2) if k + 2 < nk else [])
            if not isB and k == nk - PD: fill.append((ld_res, 32))
            self.sched(mf, fill)
        R.free(WF, 24); R.free(ACT, 8*NB)
        LEX = 65536 if isB else 114688
        a(f"s_lshl_b32 s50, s{S_WAVE}, 12"); a(f"s_add_u32 s50, s50, {LEX}"); a(f"v_add_u32 v{t}, s50, v{V_L16}")
        a(f"s_xor_b32 s51, s{S_WAVE}, 2"); a("s_lshl_b32 s51, s51, 12"); a(f"s_add_u32 s51, s51, {LEX}"); a(f"v_add_u32 v{t+1}, s51, v{V_L16}")
        La = a.label("L_x"); Lb = a.label("L_x")
        a(f"s_cmp_lt_u32 s{S_WAVE}, 2"); a(f"s_cbranch_scc1 {La}")
        for q in range(4): a(f"ds_write_b128 v{t}, {V(ACC+4*q,4)} offset:{q*1024}")
        a("s_nop 1")
        for r in range(0, 16, 2): a(f"v_pk_mul_f32 {V(ACC+r,2)}, {V(ACC+16+r,2)}, 1.0 op_sel_hi:[1,0]")
        a(f"s_branch {Lb}")
        a(f"{La}:")
        for q in range(4): a(f"ds_write_b128 v{t}, {V(ACC+16+4*q,4)} offset:{q*1024}")
        a(f"{Lb}:")
        a("s_waitcnt lgkmcnt(0)"); a("s_barrier")
        for q in range(4): a(f"ds_read_b128 {V(ACC+16+4*q,4)}, v{t+1} offset:{q*1024}")
        self.stamp(f"{ph}@2")
        T0 = R.alloc(); T1 = R.alloc(); PF = R.alloc(8); XF = R.alloc(16)
        vm.wait("xr")
        for d in range(8):
            a(f"v_lshlrev_b32 v{XF+2*d}, 16, v{XR+d}"); a(f"v_and_b32 v{XF+2*d+1}, 0xffff0000, v{XR+d}")
        for r in range(0, 16, 2): a(f"v_pk_add_f32 {V(ACC+r,2)}, {V(ACC+r,2)}, {V(XF+r,2)}")
        a("s_waitcnt lgkmcnt(0)")
        for r in range(0, 16, 2): a(f"v_pk_add_f32 {V(ACC+r,2)}, {V(ACC+r,2)}, {V(ACC+16+r,2)}")
        for d in range(8): a(f"v_cvt_pk_bf16_f32 v{PF+d}, v{ACC+2*d}, v{ACC+2*d+1}")
        if isB:
            a("s_lshl_b32 s50, s49, 1"); a("s_add_u32 s50, s50, s53"); a("s_mul_i32 s51, s52, 14"); a("s_add_u32 s50, s50, s51")
            a("s_lshl_b32 s55, s50, 11"); a(f"s_add_u32 s55, s55, {HFR}")
            for h in range(2):
                vm.issue(f"buffer_store_dwordx4 {V(PF+4*h,4)}, v{V_L16}, {srd(S_WS)}, s55 offen offset:{h*1024} sc1")
            PS = R.alloc(2); P2 = R.alloc(2)
            a(f"v_pk_add_f32 {V(PS,2)}, {V(ACC,2)}, {V(ACC+2,2)}"); a(f"v_pk_mul_f32 {V(P2,2)}, {V(ACC,2)}, {V(ACC,2)}")
            a(f"v_pk_fma_f32 {V(P2,2)}, {V(ACC+2,2)}, {V(ACC+2,2)}, {V(P2,2)}")
            for r in range(4, 16, 2):
                a(f"v_pk_add_f32 {V(PS,2)}, {V(PS,2)}, {V(ACC+r,2)}"); a(f"v_pk_fma_f32 {V(P2,2)}, {V(ACC+r,2)}, {V(ACC+r,2)}, {V(P2,2)}")
            a(f"v_add_f32 v{PS}, v{PS}, v{PS+1}"); a(f"v_add_f32 v{PS+1}, v{P2}, v{P2+1}")
            self.half_op(PS, T0); self.half_op(PS+1, T1)
            a(f"v_lshlrev_b32 v{T0}, 3, v{V_L31}")
            a("s_lshl_b32 s55, s50, 8"); a(f"s_add_u32 s55, s55, {HST}")
            vm.issue(f"buffer_store_dwordx2 {V(PS,2)}, v{T0}, {srd(S_WS)}, s55 offen sc1")
            a("s_lshr_b32 s55, s48, 1"); a("s_lshl_b32 s55, s55, 7"); a("s_and_b32 s50, s48, 1"); a("s_mul_i32 s50, s50, 7"); a("s_add_u32 s50, s50, s49")
            a("s_lshl_b32 s50, s50, 2"); a("s_add_u32 s55, s55, s50"); a(f"s_add_u32 s55, s55, {F_H}")
            self.set_flag(55)
        else:
            for p in range(2):
                a(f"v_permlane32_swap_b32 v{PF+4*p}, v{PF+4*p+2}"); a(f"v_permlane32_swap_b32 v{PF+4*p+1}, v{PF+4*p+3}")
            a(f"v_mul_u32_u24 v{T0}, 896, v{V_L31}"); a(f"v_lshlrev_b32 v{T1}, 4, v{V_HH}"); a(f"v_add_u32 v{T0}, v{T0}, v{T1}")
            a(f"s_mul_i32 s54, s52, {32*896}"); a("s_lshl_b32 s50, s49, 7"); a("s_add_u32 s54, s54, s50"); a("s_lshl_b32 s50, s53, 6"); a("s_add_u32 s54, s54, s50")
            for p in range(2):
                vm.issue(f"buffer_store_dwordx4 {V(PF+4*p,4)}, v{T0}, {srd(S_OUT)}, s54 offen offset:{p*32}")
        if isB: self.idle_prefetch(skip, 0)
        else: a(f"{skip}:")
        self.stamp(f"{ph}@3")

    def phase_B(self):
        self.a.c("================ phase B : h = x + o @ wo ================"); self.small_phase("B")
    def phase_E(self):
        self.a.c("================ phase E : out = h + u @ w_out ================"); self.small_phase("E")

    def phase_C(self):
        a, vm, R = self.a, self.vm, self.R
        R.reset()
        a.c("================ phase C : z = gelu(LN(h) @ w_in) ================")
        skip = "L_skipC"
        a(f"s_cmp_ge_u32 s{S_SLOT}, 28"); a(f"s_cbranch_scc1 {skip}")
        a(f"s_cmp_ge_u32 s{S_SLOT}, 14"); a("s_cselect_b32 s50, 1, 0")
        a("s_mul_i32 s51, s50, 14"); a(f"s_sub_u32 s49, s{S_SLOT}, s51")
        a(f"s_lshl_b32 s48, s{S_XCD}, 1"); a("s_add_u32 s48, s48, s50")
        a(f"s_lshl_b32 s52, s48, 2"); a(f"s_add_u32 s52, s52, s{S_WAVE}")
        self.stamp("C@0")
        IMG = (0, 57344)
        LCS = 114688; LTR = LCS + 512
        t = R.alloc(4, 1); VW = R.alloc()
        self.w128_lane(VW, 3584, t)
        a("s_lshl_b32 s54, s49, 1" if self.o.get("rot_c", 0) else "s_mov_b32 s54, 0"); a("s_lshl_b32 s55, s49, 7")
        items = []
        for k in range(28):
            for img in range(2):
                for g in range(2):
                    def it(st, k=k, img=img, g=g):
                        if st.get("k") != k:
                            a(f"s_add_u32 s56, s54, {k}"); a("s_cmp_ge_u32 s56, 28"); a("s_cselect_b32 s50, 28, 0"); a("s_sub_u32 s56, s56, s50")
                            a(f"s_mul_i32 s56, s56, {16*3584}"); a("s_add_u32 s56, s56, s55"); st["k"] = k
                        a(f"s_mov_b32 m0, {IMG[img] + k*2048 + g*1024}"); a(f"s_add_u32 s50, s56, {(1792 if img == 0 else 0) + g*8*3584}")
                        a(f"buffer_load_dwordx4 v{VW}, {srd(S_WIN)}, s50 offen lds")
                    items.append(it)
        self.dma_by_all(items, lambda n: "w")
        B2 = R.alloc(2, 1); B1 = R.alloc(2, 1)
        self.w128_bases(B2, t, None, IMG[0])
        for c in range(2): a(f"v_add_u32 v{B1+c}, {IMG[1]}, v{B2+c}")
        ONES = R.alloc(4)
        for k in range(4): a(f"v_mov_b32 v{ONES+k}, 0x3f803f80")
        BC = R.alloc(); CSA = R.alloc(16)
        a(f"s_lshr_b32 s50, s{S_WAVE}, 1"); a(f"s_mul_i32 s50, s50, {IMG[1]}")
        a(f"s_and_b32 s51, s{S_WAVE}, 1"); a("s_cmp_eq_u32 s51, 0")
        a(f"v_mov_b32 v{BC}, v{B2+1}"); a("s_cselect_b64 vcc, -1, 0"); a(f"v_cndmask_b32 v{BC}, v{BC}, v{B2}, vcc"); a(f"v_add_u32 v{BC}, s50, v{BC}")
        WC = R.alloc(16)
        self.stamp("Cv")
        vm.wait("w"); a("s_barrier")
        self.stamp("Cw")
        def rdc(k): return [(f"ds_read_b64_tr_b16 v[{WC+(k%4)*4+e*2}:{WC+(k%4)*4+e*2+1}], v{BC} offset:{k*2048 + e*1024}", 4) for e in range(2)]
        for k in range(3):
            for x, _ in rdc(k): a(x)
        for k in range(28):
            a(f"s_waitcnt lgkmcnt({min(4, 2*(27-k))})")
            self.sched([f"{MFMA} {V(CSA,16)}, {V(WC+(k%4)*4,4)}, {V(ONES,4)}, {'0' if k == 0 else V(CSA,16)}"], rdc(k + 3) if k + 3 < 28 else [])
        a(f"v_lshlrev_b32 v{t}, 4, v{V_HH}"); a(f"s_lshl_b32 s50, s{S_WAVE}, 7"); a(f"s_add_u32 s50, s50, {LCS}"); a(f"v_add_u32 v{t}, s50, v{t}")
        a("s_mov_b32 exec_lo, 1"); a("s_mov_b32 exec_hi, 1")
        for gg in range(4): a(f"ds_write_b128 v{t}, {V(CSA+4*gg,4)} offset:{gg*32}")
        a("s_mov_b64 exec, -1")
        a("s_waitcnt lgkmcnt(0)")
        self.stamp("Cc")
        R.free(CSA, 16); R.free(WC, 16)
        a(f"s_lshl_b32 s55, s48, 7"); a(f"s_add_u32 s55, s55, {F_H}")
        self.poll(55, 14, drain=False)
        self.stamp("C@1")
        T0 = R.alloc(); T1 = R.alloc()
        HS = R.alloc(14, 2)
        a("s_mul_i32 s55, s52, 14"); a("s_lshl_b32 s54, s55, 11"); a(f"s_add_u32 s54, s54, {HFR}")
        a("s_lshl_b32 s58, s49, 1" if self.o.get("rot_c", 0) else "s_mov_b32 s58, 0")
        def ld_h(k):
            def f():
                a("s_cmp_ge_u32 s58, 28"); a("s_cselect_b32 s50, 28, 0"); a("s_sub_u32 s58, s58, s50")
                a("s_lshl_b32 s56, s58, 10"); a("s_add_u32 s56, s56, s54")
                vm.issue(f"buffer_load_dwordx4 {A(4*k,4)}, v{V_L16}, {srd(S_WS)}, s56 offen sc1", tag=("act", k))
                a("s_add_u32 s58, s58, 1")
            return [(f, 24)]
        def ld_hs():
            a(f"v_mul_u32_u24 v{T0}, {7*256}, v{V_HH}"); a(f"v_lshlrev_b32 v{T1}, 3, v{V_L31}"); a(f"v_add_u32 v{T0}, v{T0}, v{T1}")
            a("s_lshl_b32 s55, s55, 8"); a(f"s_add_u32 s55, s55, {HST}")
            for q in range(7):
                vm.issue(f"buffer_load_dwordx2 {V(HS+2*q,2)}, v{T0}, {srd(S_WS)}, s55 offen offset:{q*256} sc1", tag="hs")
        PD = self.o.get("pd_c", 6)
        for k in range(PD):
            for f, _ in ld_h(k): f()
        self.stamp("Ci")
        Z = R.alloc(64)
        WG = R.alloc(48)
        def rd(k):
            out = []
            for tl, B in enumerate((B2, B2+1, B1, B1+1)):
                for e in range(2):
                    r = WG + (k % 3)*16 + tl*4 + e*2
                    out.append((f"ds_read_b64_tr_b16 v[{r}:{r+1}], v{B} offset:{k*2048 + e*1024}", 4))
            return out
        CSR = R.alloc(32); VT = R.alloc()
        a(f"v_lshlrev_b32 v{VT}, 4, v{V_HH}"); a(f"v_add_u32 v{VT}, {LCS}, v{VT}")
        for x, _ in rd(0) + rd(1): a(x)
        MEAN = R.alloc(2); RSTD = MEAN + 1
        K0 = R.alloc(2); S0 = R.alloc(2); Q0 = R.alloc(2); TT = R.alloc(8)
        k0 = -2.0 * LOG2E * math.sqrt(2 / math.pi); k1 = k0 * 0.044715
        pre = [(lambda: vm.wait("hs"), 4), (f"v_mov_b32 v{MEAN}, v{HS}", 4), (f"v_mov_b32 v{RSTD}, v{HS+1}", 4)]
        for q in range(1, 7): pre += [(f"v_add_f32 v{MEAN}, v{MEAN}, v{HS+2*q}", 4), (f"v_add_f32 v{RSTD}, v{RSTD}, v{HS+2*q+1}", 4)]
        pre += [(lambda: self.half_op(MEAN, T0), 16), (lambda: self.half_op(RSTD, T1), 16)]
        pre += [(f"v_mul_f32 v{MEAN}, {lit(1/448)}, v{MEAN}", 4), (f"v_mul_f32 v{RSTD}, {lit(1/448)}, v{RSTD}", 4), (f"v_fma_f32 v{RSTD}, -v{MEAN}, v{MEAN}, v{RSTD}", 4),
                (f"v_max_f32 v{RSTD}, 0, v{RSTD}", 4), (f"v_add_f32 v{RSTD}, {lit(1e-5)}, v{RSTD}", 4), (f"v_rsq_f32 v{RSTD}, v{RSTD}", 8),
                (f"s_mov_b32 s62, {lit(k1)}", 4), (f"s_mov_b32 s63, {lit(k1)}", 4), (f"v_mov_b32 v{K0}, {lit(k0)}", 4), (f"v_mov_b32 v{K0+1}, {lit(k0)}", 4)]
        for k in range(28):
            a(f"s_waitcnt lgkmcnt({8 if k + 1 < 28 else 0})")
            vm.wait(("act", k))
            if k in (0, 7, 14, 21): self.stamp(f"Ck{k}")
            wb = WG + (k % 3) * 16
            fill = (ld_h(k + PD) if k + PD < 28 else []) + (rd(k + 2) if k + 2 < 28 else [])
            if k == 16: fill.append((ld_hs, 48))
            if k >= 24: fill += pre[:3]; pre = pre[3:]
            if k == 26: fill += [(f"ds_read_b128 {V(CSR+16*c+4*gg,4)}, v{VT} offset:{c*128+gg*32}", 4) for c in range(2) for gg in range(4)]
            mf = [f"{MFMA} {V(Z+16*tl,16)}, {V(wb+4*tl,4)}, {A(4*k,4)}, {'0' if k == 0 else V(Z+16*tl,16)}" for tl in range(4)]
            self.sched(mf, fill)
        for f, _ in pre: self.emit_fill(f)
        if self.o.get("early_d", 1): a("s_barrier")
        self.stamp("C@2")
        R.free(WG, 48)
        touch = []
        if self.o.get("early_d", 1):
            self.d_map(); self.DVE = R.alloc(); self.DVO = R.alloc(); td = R.alloc(4, 1)
            self.d_lanes(self.DVE, self.DVO, td); R.free(td, 4)
            touch, self.d_early_blocks = self.d_early_items(self.DVE, self.DVO)
        PF = R.alloc(16)
        def gelu_pk(zbase, pack, mid=None):
            nonlocal touch
            ins = []
            for r0 in range(0, 32, 8):
                zs = [zbase + r0 + 2*i for i in range(4)]; cs = [CSR + r0 + 2*i for i in range(4)]
                ins += [f"v_pk_fma_f32 {V(z,2)}, {V(MEAN,2)}, {V(c,2)}, {V(z,2)} op_sel_hi:[0,1,1] neg_lo:[1,0,0] neg_hi:[1,0,0]" for z, c in zip(zs, cs)]
                ins += [f"v_pk_mul_f32 {V(z,2)}, {V(z,2)}, {V(MEAN,2)} op_sel:[0,1] op_sel_hi:[1,1]" for z in zs]
                ins += [f"v_pk_mul_f32 {V(TT+2*i,2)}, {V(z,2)}, {V(z,2)}" for i, z in enumerate(zs)]
                ins += [f"v_pk_fma_f32 {V(TT+2*i,2)}, {V(TT+2*i,2)}, s[62:63], {V(K0,2)}" for i in range(4)]
                ins += [f"v_pk_mul_f32 {V(TT+2*i,2)}, {V(TT+2*i,2)}, {V(z,2)}" for i, z in enumerate(zs)]
                ins += [f"v_exp_f32 v{TT+i}, v{TT+i}" for i in range(8)]
                ins += [f"v_pk_add_f32 {V(TT+2*i,2)}, {V(TT+2*i,2)}, 1.0 op_sel_hi:[1,0]" for i in range(4)]
                ins += [f"v_rcp_f32 v{TT+i}, v{TT+i}" for i in range(8)]
                ins += [f"v_pk_mul_f32 {V(z,2)}, {V(z,2)}, {V(TT+2*i,2)}" for i, z in enumerate(zs)]
                if pack:
                    ins += [f"v_cvt_pk_bf16_f32 v{PF + r0//2 + i}, v{z}, v{z+1}" for i, z in enumerate(zs)]
                else:
                    for i, z in enumerate(zs):
                        if r0 == 0 and i == 0:
                            ins += [f"v_pk_mul_f32 {V(Q0,2)}, {V(z,2)}, {V(z,2)}", f"v_pk_mul_f32 {V(S0,2)}, {V(z,2)}, 1.0 op_sel_hi:[1,0]"]
                        else:
                            ins += [f"v_pk_fma_f32 {V(Q0,2)}, {V(z,2)}, {V(z,2)}, {V(Q0,2)}", f"v_pk_add_f32 {V(S0,2)}, {V(S0,2)}, {V(z,2)}"]
                if mid and r0 == 16: ins.append(mid)
            gap = self.o.get("early_gap", 14)
            for n, x in enumerate(ins):
                self.emit_fill(x)
                if touch and n % gap == gap - 1:
                    self.emit_fill(touch[0][0]); touch = touch[1:]
        a("s_waitcnt lgkmcnt(0)")
        gelu_pk(Z, False)
        G = R.alloc(4)
        a(f"v_add_f32 v{G}, v{S0}, v{S0+1}"); a(f"v_add_f32 v{G+1}, v{Q0}, v{Q0+1}")
        for c in range(2):
            for gg in range(4): a(f"ds_read_b128 {V(CSR+16*c+4*gg,4)}, v{VT} offset:{256+c*128+gg*32}")
        self.half_op(G, T0); self.half_op(G+1, T1)
        a(f"v_mov_b32 v{G+2}, s{S_TAG}"); a(f"v_mov_b32 v{G+3}, s{S_TAG}")
        a("s_mul_i32 s55, s48, 14"); a("s_add_u32 s55, s55, s49"); a("s_lshl_b32 s55, s55, 11"); a(f"s_lshl_b32 s50, s{S_WAVE}, 9"); a("s_add_u32 s55, s55, s50")
        a(f"s_add_u32 s55, s55, {STATS}"); a(f"v_lshlrev_b32 v{T1}, 4, v{V_L31}")
        vm.issue(f"buffer_store_dwordx4 {V(G,4)}, v{T1}, {srd(S_WS)}, s55 offen sc1")
        self.stamp("C@3")
        GR = R.alloc(28)
        a(f"v_mul_u32_u24 v{T0}, {7*2048}, v{V_HH}"); a(f"v_add_u32 v{T1}, v{T1}, v{T0}")
        a("s_mul_i32 s55, s48, 14"); a("s_lshl_b32 s55, s55, 11"); a(f"s_lshl_b32 s50, s{S_WAVE}, 9"); a("s_add_u32 s55, s55, s50"); a(f"s_add_u32 s55, s55, {STATS}")
        a("s_waitcnt lgkmcnt(0)")
        def gr_loads():
            a("s_mov_b32 s54, s55")
            for q in range(7):
                if q and q % 2 == 0: a("s_add_u32 s54, s54, 4096")
                vm.issue(f"buffer_load_dwordx4 {V(GR+4*q,4)}, v{T1}, {srd(S_WS)}, s54 offen offset:{(q%2)*2048} sc1", tag="gr")
        gelu_pk(Z + 32, True, gr_loads)
        for f, _ in touch: self.emit_fill(f)
        a("s_mul_i32 s56, s52, 28"); a("s_lshl_b32 s50, s49, 1"); a("s_add_u32 s56, s56, s50"); a("s_lshl_b32 s56, s56, 11"); a(f"s_add_u32 s56, s56, {Z1F}")
        for q in range(4):
            vm.issue(f"buffer_store_dwordx4 {V(PF+4*q,4)}, v{V_L16}, {srd(S_WS)}, s56 offen offset:{q*1024} sc1")
        self.stamp("C@4")
        Lp = a.label("L_sp"); Ld = a.label("L_sd")
        vm.wait("gr")
        a("s_mov_b32 s70, 0"); a(f"{Lp}:")
        a(f"v_xor_b32 v{T0}, s{S_TAG}, v{GR+2}")
        for q in range(1, 7):
            a(f"v_xor_b32 v{G}, s{S_TAG}, v{GR+4*q+2}"); a(f"v_or_b32 v{T0}, v{T0}, v{G}")
        a(f"v_cmp_ne_u32 vcc, 0, v{T0}"); a(f"s_cbranch_vccz {Ld}")
        a("s_mov_b32 s54, s55")
        for q in range(7):
            if q and q % 2 == 0: a("s_add_u32 s54, s54, 4096")
            a(f"buffer_load_dwordx4 {V(GR+4*q,4)}, v{T1}, {srd(S_WS)}, s54 offen offset:{(q%2)*2048} sc1")
        a("s_waitcnt vmcnt(0)")
        a("s_add_u32 s70, s70, 1"); a("s_cmp_lt_u32 s70, 20000"); a(f"s_cbranch_scc1 {Lp}")
        a(f"{Ld}:")
        self.stamp("C@s")
        for q in range(1, 7): a(f"v_pk_add_f32 {V(GR,2)}, {V(GR,2)}, {V(GR+4*q,2)}")
        self.half_op(GR, T0); self.half_op(GR+1, G)
        M3, R3 = GR, GR+1
        a(f"v_mul_f32 v{M3}, {lit(1/896)}, v{M3}"); a(f"v_mul_f32 v{R3}, {lit(1/896)}, v{R3}")
        a(f"v_fma_f32 v{R3}, -v{M3}, v{M3}, v{R3}"); a(f"v_max_f32 v{R3}, 0, v{R3}")
        a(f"v_add_f32 v{R3}, {lit(1e-5)}, v{R3}"); a(f"v_rsq_f32 v{R3}, v{R3}")
        a("s_nop 0")
        a(f"v_mul_f32 v{M3}, v{M3}, v{R3}")
        for r in range(0, 32, 2): a(f"v_pk_fma_f32 {V(Z+r,2)}, {V(Z+r,2)}, {V(M3,2)}, {V(M3,2)} op_sel:[0,1,0] op_sel_hi:[1,1,0] neg_lo:[0,0,1] neg_hi:[0,0,1]")
        PZ = R.alloc(16)
        for c in range(2):
            for d in range(8): a(f"v_cvt_pk_bf16_f32 v{PZ+8*c+d}, v{Z+16*c+2*d}, v{Z+16*c+2*d+1}")
        WA = R.alloc(); RA = R.alloc(2, 1)
        a(f"s_lshl_b32 s50, s{S_WAVE}, 12"); a(f"s_add_u32 s50, s50, {LTR}")
        a(f"v_lshrrev_b32 v{T0}, 1, v{V_L31}"); a(f"v_and_b32 v{T0}, 7, v{T0}"); a(f"v_xor_b32 v{T0}, v{T0}, v{V_HH}"); a(f"v_lshlrev_b32 v{T0}, 3, v{T0}")
        a(f"v_lshlrev_b32 v{WA}, 6, v{V_L31}"); a(f"v_add_u32 v{WA}, v{WA}, v{T0}"); a(f"v_add_u32 v{WA}, s50, v{WA}")
        for g in range(4):
            if g: a(f"v_xor_b32 v{TT+g}, {g<<4}, v{WA}")
        for c in range(2):
            for g in range(4):
                a(f"ds_write_b64 v{WA if g == 0 else TT+g}, {V(PZ+8*c+2*g,2)} offset:{c*2048}")
        a(f"v_lshrrev_b32 v{T0}, 2, v{V_LANE}"); a(f"v_and_b32 v{T0}, 3, v{T0}")
        a(f"v_lshlrev_b32 v{T1}, 3, v{V_HH}"); a(f"v_add_u32 v{T1}, v{T1}, v{T0}"); a(f"v_lshlrev_b32 v{RA}, 6, v{T1}")
        a(f"v_lshrrev_b32 v{T0}, 1, v{T0}"); a(f"v_lshlrev_b32 v{T1}, 2, v{V_HH}"); a(f"v_add_u32 v{T0}, v{T0}, v{T1}")
        a(f"v_lshrrev_b32 v{T1}, 4, v{V_LANE}"); a(f"v_and_b32 v{T1}, 1, v{T1}"); a(f"v_lshlrev_b32 v{T1}, 2, v{T1}")
        a(f"v_and_b32 v{G}, 3, v{V_LANE}"); a(f"v_add_u32 v{T1}, v{T1}, v{G}"); a(f"v_xor_b32 v{T0}, v{T0}, v{T1}"); a(f"v_lshlrev_b32 v{T0}, 3, v{T0}")
        a(f"v_add_u32 v{RA}, v{RA}, v{T0}"); a(f"v_add_u32 v{RA}, s50, v{RA}"); a(f"v_xor_b32 v{RA+1}, 16, v{RA}")
        a("s_waitcnt lgkmcnt(0)")
        for c in range(2):
            for st in range(2):
                for e in range(2):
                    r = PZ + 8*c + 4*st + 2*e
                    a(f"ds_read_b64_tr_b16 v[{r}:{r+1}], v{RA+e} offset:{c*2048 + st*1024 + e*256}")
        for c in range(2):
            a("s_lshl_b32 s55, s49, 1"); a(f"s_add_u32 s55, s55, {c}"); a("s_lshl_b32 s55, s55, 6"); a("s_add_u32 s55, s55, s52"); a("s_lshl_b32 s55, s55, 11"); a(f"s_add_u32 s55, s55, {Z2F}")
            a(f"s_waitcnt lgkmcnt({4 if c == 0 else 0})")
            for st in range(2):
                vm.issue(f"buffer_store_dwordx4 {V(PZ+8*c+4*st,4)}, v{V_L16}, {srd(S_WS)}, s55 offen offset:{st*1024} sc1")
        a("s_lshl_b32 s55, s49, 7"); a("s_lshl_b32 s50, s48, 2"); a("s_add_u32 s55, s55, s50"); a(f"s_add_u32 s55, s55, {F_Z}")
        self.set_flag(55)
        self.idle_prefetch(skip, 1)
        self.stamp("C@5")

    def phase_D(self):
        a, vm, R = self.a, self.vm, self.R
        R.reset()
        a.c("================ phase D : g = w_sp @ z2n + b ; u = z1*g ================")
        skip = "L_skipD"
        a(f"s_cmp_ge_u32 s{S_SLOT}, 28"); a(f"s_cbranch_scc1 {skip}")
        self.d_map()
        a("s_mov_b32 s49, s94"); a("s_mov_b32 s48, s95"); a("s_mov_b32 s54, s96")
        self.stamp("D@0")
        NS = 8
        a(f"s_lshr_b32 s53, s{S_WAVE}, 1"); a(f"s_and_b32 s52, s{S_WAVE}, 1")
        t = R.alloc(4, 1); VE = R.alloc(); VO = R.alloc()
        self.d_lanes(VE, VO, t)
        a("s_lshl_b32 s55, s48, 18"); a("s_lshl_b32 s50, s53, 11"); a("s_add_u32 s55, s55, s50"); a("s_lshl_b32 s50, s52, 17"); a("s_add_u32 s55, s55, s50")
        a(f"s_mul_i32 s57, s53, {NS*8192}"); a("s_lshl_b32 s50, s52, 12"); a("s_add_u32 s57, s57, s50")
        def blk_idx(b, dst):
            a(f"s_add_u32 s{dst}, s54, {b}"); a(f"s_and_b32 s{dst}, s{dst}, 15")
        def dma(b):
            out = []
            def pre(): blk_idx(b, 58); a("s_lshl_b32 s58, s58, 7"); a("s_add_u32 s58, s58, s55")
            out.append((pre, 16))
            for q in range(4):
                def f(q=q):
                    a(f"s_add_u32 m0, s57, {(b%NS)*8192 + q*1024}"); a(f"s_add_u32 s56, s58, {q*8*4096}")
                    vm.issue(f"buffer_load_dwordx4 v{VE if q%2==0 else VO}, {srd(S_WSP)}, s56 offen lds", tag=("w", b))
                out.append((f, 16))
            return out
        early = set(self.d_early_blocks) if self.o.get("early_d", 1) else set()
        NPRE = NS if early else self.o.get("npre", 4)
        a("s_lshl_b32 s61, s48, 18")
        items = []; tags = []
        for b in range(NPRE):
            for kh_ in range(2):
                if (b, kh_) in early: continue
                for q in range(8):
                    def it(st, b=b, kh_=kh_, q=q):
                        if st.get("b") != b:
                            blk_idx(b, 58); a("s_lshl_b32 s58, s58, 7"); a("s_add_u32 s58, s58, s61"); st["b"] = b
                        a(f"s_mov_b32 m0, {kh_*NS*8192 + b*8192 + q*1024}"); a(f"s_add_u32 s56, s58, {kh_*2048 + q*8*4096}")
                        a(f"buffer_load_dwordx4 v{VE if q%2==0 else VO}, {srd(S_WSP)}, s56 offen lds")
                    items.append(it); tags.append(("w", b))
        self.dma_by_123(items, lambda n: tags[n])
        FA = R.alloc(4, 1)
        a(f"v_lshrrev_b32 v{t}, 1, v{V_L31}"); a(f"v_and_b32 v{t}, 7, v{t}"); a(f"v_xor_b32 v{t}, v{t}, v{V_HH}"); a(f"v_lshlrev_b32 v{t}, 4, v{t}")
        a(f"v_lshlrev_b32 v{FA}, 7, v{V_L31}"); a(f"v_add_u32 v{FA}, v{FA}, v{t}"); a(f"s_mul_i32 s50, s53, {NS*8192}"); a(f"v_add_u32 v{FA}, s50, v{FA}")
        for s in range(1, 4): a(f"v_xor_b32 v{FA+s}, {s*32}, v{FA}")
        BI = R.alloc()
        a(f"v_lshlrev_b32 v{t}, 1, v{V_L31}"); a("s_lshl_b32 s50, s48, 7"); a("s_lshl_b32 s51, s53, 6"); a("s_add_u32 s50, s50, s51")
        vm.issue(f"buffer_load_ushort v{BI}, v{t}, {srd(S_BSP)}, s50 offen", tag="bi")
        VZ = R.alloc(2, 1)
        a("s_lshl_b32 s50, s49, 2"); a("s_lshl_b32 s51, s52, 1"); a("s_add_u32 s50, s50, s51"); a("s_lshl_b32 s50, s50, 6"); a("s_lshl_b32 s51, s53, 5"); a("s_add_u32 s50, s50, s51")
        a("s_lshl_b32 s50, s50, 11"); a(f"s_add_u32 s50, s50, {Z2F}"); a(f"v_add_u32 v{VZ}, s50, v{V_L16}"); a(f"v_add_u32 v{VZ+1}, {64*2048}, v{VZ}")
        a(f"v_and_b32 v9, 15, v{V_LANE}"); a("v_lshlrev_b32 v9, 2, v9"); a(f"v_lshrrev_b32 v{t}, 4, v{V_LANE}"); a(f"v_and_b32 v{t}, 1, v{t}"); a(f"v_lshlrev_b32 v{t}, 7, v{t}"); a(f"v_add_u32 v9, v9, v{t}")
        a("s_lshl_b32 s59, s49, 8"); a(f"s_add_u32 s59, s59, {F_Z}")
        self.poll(59, 32, voff=9, drain=False)
        self.stamp("D@1")
        ND = self.o.get("nd", 12)
        ZR = R.alloc(8 * ND); WF = R.alloc(24)
        def ldz(k):
            out = []
            b, sp = k // 4, k % 4
            if sp == 0:
                def pre(): blk_idx(b, 60 + (b % 4)); a(f"s_lshl_b32 s{60 + (b % 4)}, s{60 + (b % 4)}, 12")
                out.append((pre, 12))
            for c in range(2):
                def f(c=c):
                    r = ZR + 8*(k % ND) + 4*c
                    vm.issue(f"buffer_load_dwordx4 {V(r,4)}, v{VZ+c}, {srd(S_WS)}, s{60 + (b % 4)} offen offset:{sp*1024} sc1", tag=("z", k))
                out.append((f, 8))
            return out
        def rdw(k):
            b, sp = k // 4, k % 4
            return [(f"ds_read_b128 {V(WF+(k%3)*8+tc*4,4)}, v{FA+sp} offset:{(b%NS)*8192 + tc*4096}", 4) for tc in range(2)]
        INIT = 4
        for k in range(INIT):
            for f, _ in ldz(k): f()
        nz = INIT
        wout = []
        vm.wait(("w", 0)); a("s_barrier")
        for k in range(2):
            for x, _ in rdw(k): a(x)
        nbw = NPRE
        for k in range(64):
            b, sp = k // 4, k % 4
            fill = []
            a(f"s_waitcnt lgkmcnt({2 if k + 1 < 64 else 0})")
            vm.wait(("z", k))
            if k + 2 < 64:
                if (k + 2) % 4 == 0:
                    nb = (k + 2) // 4
                    def rdy(nb=nb):
                        vm.wait(("w", nb)); a("s_barrier")
                    fill.append((rdy, 8))
                fill += rdw(k + 2)
            for _ in range(2):
                if nz < 64 and nz <= k + ND - 1:
                    fill += ldz(nz); nz += 1
            if wout and k % 8 == 5: fill.append(wout[0]); wout = wout[1:]
            if sp in (1, 3) and nbw < 16 and (nbw < NS or (sp == 3 and nbw - NS <= b - 1)):
                fill += dma(nbw); nbw += 1
            wb = WF + (k % 3) * 8; zb = ZR + 8*(k % ND)
            mf = []
            for c in range(2):
                for tc in range(2):
                    acc = A(32*c + 16*tc, 16)
                    mf.append(f"{MFMA} {acc}, {V(zb+4*c,4)}, {V(wb+4*tc,4)}, {'0' if k == 0 else acc}")
            self.sched(mf, fill)
        self.stamp("D@2")
        R.free(ZR, 8*ND); R.free(WF, 24)
        Z1 = R.alloc(16)
        a("s_lshl_b32 s50, s48, 1"); a("s_add_u32 s50, s50, s53"); a("s_mul_i32 s50, s50, 28"); a("s_lshl_b32 s51, s49, 2"); a("s_add_u32 s50, s50, s51"); a("s_lshl_b32 s51, s52, 1"); a("s_add_u32 s50, s50, s51")
        a("s_lshl_b32 s60, s50, 11"); a(f"s_add_u32 s50, s60, {Z1F}")
        for q in range(4):
            vm.issue(f"buffer_load_dwordx4 {V(Z1+4*q,4)}, v{V_L16}, {srd(S_WS)}, s50 offen offset:{q*1024} sc1", tag="z1")
        a("s_barrier")
        a(f"s_lshl_b32 s50, s{S_WAVE}, 13"); a(f"v_add_u32 v{t}, s50, v{V_L16}")
        a(f"s_xor_b32 s51, s{S_WAVE}, 2"); a("s_lshl_b32 s51, s51, 13"); a(f"v_add_u32 v{t+1}, s51, v{V_L16}")
        G = R.alloc(32); TM = R.alloc(32)
        La = a.label("L_x"); Lb = a.label("L_x")
        a("s_cmp_eq_u32 s53, 0"); a(f"s_cbranch_scc1 {La}")
        for c in range(2):
            for q in range(4): a(f"ds_write_b128 v{t}, {A(32*c+4*q,4)} offset:{c*4096+q*1024}")
        for c in range(2):
            for r in range(16): a(f"v_accvgpr_read_b32 v{G+16*c+r}, a{32*c+16+r}")
        a(f"s_branch {Lb}")
        a(f"{La}:")
        for c in range(2):
            for q in range(4): a(f"ds_write_b128 v{t}, {A(32*c+16+4*q,4)} offset:{c*4096+q*1024}")
        for c in range(2):
            for r in range(16): a(f"v_accvgpr_read_b32 v{G+16*c+r}, a{32*c+r}")
        a(f"{Lb}:")
        a("s_waitcnt lgkmcnt(0)"); a("s_barrier")
        for q in range(8): a(f"ds_read_b128 {V(TM+4*q,4)}, v{t+1} offset:{q*1024}")
        BP = R.alloc(2); ZF = R.alloc(32)
        vm.wait("z1")
        a(f"v_lshlrev_b32 v{BP}, 16, v{BI}")
        for d in range(16):
            a(f"v_lshlrev_b32 v{ZF+2*d}, 16, v{Z1+d}"); a(f"v_and_b32 v{ZF+2*d+1}, 0xffff0000, v{Z1+d}")
        for r in range(0, 32, 2): a(f"v_pk_add_f32 {V(G+r,2)}, {V(G+r,2)}, {V(BP,2)} op_sel_hi:[1,0]")
        a("s_waitcnt lgkmcnt(0)")
        for r in range(0, 32, 2): a(f"v_pk_add_f32 {V(G+r,2)}, {V(G+r,2)}, {V(TM+r,2)}")
        for r in range(0, 32, 2): a(f"v_pk_mul_f32 {V(G+r,2)}, {V(G+r,2)}, {V(ZF+r,2)}")
        for d in range(16): a(f"v_cvt_pk_bf16_f32 v{TM+d}, v{G+2*d}, v{G+2*d+1}")
        a(f"s_add_u32 s50, s60, {UFR}")
        for q in range(4):
            vm.issue(f"buffer_store_dwordx4 {V(TM+4*q,4)}, v{V_L16}, {srd(S_WS)}, s50 offen offset:{q*1024} sc1")
        a("s_lshl_b32 s55, s48, 7"); a("s_lshl_b32 s50, s49, 2"); a("s_add_u32 s55, s55, s50"); a(f"s_add_u32 s55, s55, {F_U}")
        self.set_flag(55)
        self.idle_prefetch(skip, 2)
        self.stamp("D@3")

    def build(self):
        self.prologue()
        for ph in "ABCDE":
            getattr(self, "phase_" + ph)()
            if ph == self.stop_after: break
        self.epilogue()
        body = pad_hazards(self.a.lines)
        hdr = open("cdna_kernels/" + NAME[:-7] + ".s.ref").read().split("; Override")[0]
        s = hdr + f"; @launch grid=(256,1,1) block=(256,1,1) lds={LDS_BYTES}\n"
        s += '.amdgcn_target "amdgcn-amd-amdhsa--gfx950"\n.text\n'
        s += f".set CODE_SLICE, ((L_code_end - {NAME} + 32*128 - 1) / (32*128)) * 128\n"
        s += f".set CODE_BYTES, L_code_end - {NAME} - 32\n"
        s += f".globl {NAME}\n.p2align 8\n.type {NAME},@function\n{NAME}:\n" + "\n".join(body) + "\nL_code_end:\n"
        s += f""".section .rodata,"a"
.p2align 6
.amdhsa_kernel {NAME}
  .amdhsa_next_free_vgpr 512
  .amdhsa_next_free_sgpr 102
  .amdhsa_accum_offset 256
  .amdhsa_group_segment_fixed_size 0
  .amdhsa_kernarg_size 88
  .amdhsa_user_sgpr_count 2
  .amdhsa_user_sgpr_kernarg_segment_ptr 1
  .amdhsa_system_sgpr_workgroup_id_x 1
.end_amdhsa_kernel
"""
        return s

if __name__ == "__main__":
    import json
    out = sys.argv[1]; stop = sys.argv[2] if len(sys.argv) > 2 else "E"
    stamps = sys.argv[3] if len(sys.argv) > 3 and sys.argv[3] != "0" else ""
    opts = json.loads(sys.argv[4]) if len(sys.argv) > 4 else {}
    g = Gen(stop, stamps, opts)
    open(out, "w").write(g.build())
    open(out + ".stamps", "w").write(" ".join(g.stamp_names))
```

```python
import sys, math, struct
from asmlib import Asm, pad_hazards

NAME = "sequential_preLN__sliding_block__mixer_gmlp__prompt_kernel"
WS_EPOCH = 0
F_KV = 0x1000; F_O = 0x2000; F_H = 0x3000; F_Z = 0x4000; F_U = 0x5000; F_Z1 = 0x6000
STATS = 0x10000
HST = 0x80000
STAT1 = 0xC0000
KVF = 0x100000; OFR = 0x500000; HFR = 0x700000; Z1F = 0x900000; Z2F = 0xD00000; UFR = 0x1100000
DBG = 0x1600000

S_X, S_WQKV, S_WO, S_WIN, S_WSP, S_BSP, S_WOUT, S_OUT, S_WS = 8, 12, 16, 20, 24, 28, 32, 36, 40
S_TAG, S_WAVE, S_XCD, S_SLOT = 44, 45, 46, 47
V_LANE, V_L16, V_L31, V_HH = 1, 2, 3, 4
V_DUMMY = 252
V_TOUCH = 251
LOG2E = 1.4426950408889634
MFMA = "v_mfma_f32_32x32x16_bf16"
LDS_BYTES = 163840

def f2u(x): return struct.unpack("<I", struct.pack("<f", x))[0]
def lit(x): return "0x%08x" % f2u(x)
def srd(b): return f"s[{b}:{b+3}]"
def V(b, n=1): return f"v{b}" if n == 1 else f"v[{b}:{b+n-1}]"
def A(b, n=1): return f"a{b}" if n == 1 else f"a[{b}:{b+n-1}]"

class Regs:
    def __init__(self, lo, hi): self.lo, self.hi = lo, hi; self.used = set()
    def alloc(self, n=1, align=None):
        if align is None: align = 4 if n >= 4 else (2 if n >= 2 else 1)
        b = (self.lo + align - 1) // align * align
        while b + n <= self.hi:
            if not any((b + k) in self.used for k in range(n)):
                for k in range(n): self.used.add(b + k)
                return b
            b += align
        raise RuntimeError(f"out of registers for {n}")
    def free(self, b, n=1):
        for k in range(n): self.used.discard(b + k)
    def reset(self): self.used = set()

class VM:
    def __init__(self, a): self.a = a; self.ops = []
    def issue(self, text, tag=None): self.a(text); self.ops.append(tag)
    def wait(self, tag):
        idx = [k for k, t in enumerate(self.ops) if t == tag]
        if not idx: return
        last = idx[-1]; n = len(self.ops) - 1 - last
        assert n <= 63, n
        self.a(f"s_waitcnt vmcnt({n})"); self.ops = self.ops[last + 1:]
    def wait_all(self): self.a("s_waitcnt vmcnt(0)"); self.ops = []

def interleave(a, main, fill):
    n = len(main); m = len(fill); k = 0
    for i, x in enumerate(main):
        a(x)
        tgt = (i + 1) * m // n
        while k < tgt: a(fill[k]); k += 1

class Gen:
    def __init__(self, stop_after="E", stamps="", opts=None):
        self.a = Asm(); self.vm = VM(self.a); self.stop_after = stop_after; self.stamps = stamps
        self.nstamp = 0; self.stamp_names = []; self.R = Regs(10, 251); self.o = opts or {}

    def stamp(self, tag):
        if not self.stamps: return
        sel = self.stamps.split(",")
        coarse = ("A@0", "A@3", "A@6", "B@1", "B@3", "C@1", "C@5", "D@1", "D@3", "E@1", "E@3")
        if not (tag in sel or tag[0] in sel or ("c" in sel and tag in coarse)): return
        self.stamp_names.append(tag)
        k = self.nstamp; self.nstamp += 1
        assert k < 15
        self.a(f"s_memtime s[{72+2*k}:{73+2*k}]")

    def prologue(self):
        a = self.a
        if self.stamps and self.o.get("dbgout"):
            a("s_memrealtime s[100:101]"); a("s_memtime s[72:73]"); self.nstamp = 1; self.stamp_names.append("start")
            a("s_waitcnt lgkmcnt(0)"); a("s_mov_b32 s3, s100")
        a("s_getpc_b64 s[4:5]")
        a("s_load_dwordx16 s[48:63], s[0:1], 0")
        a("s_load_dwordx4 s[64:67], s[0:1], 64")
        a("s_load_dwordx2 s[68:69], s[0:1], 80")
        a("s_cmp_ge_u32 s2, 256"); a("s_cbranch_scc1 L_end")
        a(f"s_lshr_b32 s{S_SLOT}, s2, 3")
        a(f"s_mul_i32 s6, s{S_SLOT}, CODE_SLICE")
        a("v_lshlrev_b32 v5, 4, v0")
        a("v_cmp_gt_u32 vcc, CODE_SLICE, v5")
        a("s_mov_b64 s[70:71], vcc")
        a("v_add_u32 v5, s6, v5")
        a("v_cmp_gt_u32 vcc, CODE_BYTES, v5")
        a("s_and_b64 vcc, vcc, s[70:71]")
        a("s_and_saveexec_b64 s[6:7], vcc")
        a(f"global_load_dwordx4 {V(V_DUMMY,4)}, v5, s[4:5]")
        a("s_mov_b64 exec, s[6:7]")
        self.vm.ops.append("code")
        a(f"v_and_b32 v{V_LANE}, 63, v0"); a("v_lshrrev_b32 v5, 6, v0")
        a(f"v_lshlrev_b32 v{V_L16}, 4, v{V_LANE}"); a(f"v_and_b32 v{V_L31}, 31, v{V_LANE}"); a(f"v_lshrrev_b32 v{V_HH}, 5, v{V_LANE}")
        a(f"v_readfirstlane_b32 s{S_WAVE}, v5")
        a(f"s_and_b32 s{S_XCD}, s2, 7")
        self.phase_A_pre()
        a("s_waitcnt lgkmcnt(0)")
        a(f"s_load_dword s{S_TAG}, s[68:69], {WS_EPOCH}")
        def mk(base, lo, size):
            a(f"s_mov_b32 s{base}, s{lo}"); a(f"s_and_b32 s{base+1}, s{lo+1}, 0xffff")
            a(f"s_mov_b32 s{base+2}, {size}"); a(f"s_mov_b32 s{base+3}, 0x20000")
        mk(S_X, 48, 2048*448*2); mk(S_WQKV, 50, 448*1344*2); mk(S_WS, 68, 0x10000000); mk(S_WO, 52, 448*448*2)
        mk(S_WIN, 56, 448*1792*2); mk(S_WSP, 58, 2048*2048*2); mk(S_BSP, 60, 2048*2)
        mk(S_WOUT, 62, 896*448*2); mk(S_OUT, 64, 2048*448*2)
        self.tag_pending = True

    def tag_ready(self):
        if self.tag_pending:
            self.a("s_waitcnt lgkmcnt(0)"); self.a(f"s_add_u32 s{S_TAG}, s{S_TAG}, 1"); self.tag_pending = False

    def epilogue(self):
        a = self.a
        a("s_cmp_lg_u32 s2, 0"); a("s_cbranch_scc1 L_noepoch")
        a(f"s_cmp_lg_u32 s{S_WAVE}, 0"); a("s_cbranch_scc1 L_noepoch")
        a(f"v_mov_b32 v5, s{S_TAG}"); a(f"v_mov_b32 v6, {WS_EPOCH}")
        a("s_mov_b64 exec, 1")
        a(f"buffer_store_dword v5, v6, {srd(S_WS)}, 0 offen sc1")
        a("s_mov_b64 exec, -1")
        a("L_noepoch:")
        if self.stamps:
            a("s_waitcnt lgkmcnt(0)")
            a(f"s_lshl_b32 s48, s2, 2"); a(f"s_add_u32 s48, s48, s{S_WAVE}"); a("s_lshl_b32 s48, s48, 6"); a(f"s_add_u32 s48, s48, {DBG}")
            a("v_mov_b32 v6, 0"); a("s_mov_b64 exec, 1")
            for k in range(self.nstamp):
                a(f"v_mov_b32 v5, s{72+2*k}")
                a(f"buffer_store_dword v5, v6, {srd(S_WS)}, s48 offen offset:{4*k}")
            a("s_mov_b64 exec, -1")
        if self.stamps and self.o.get("dbgout"):
            a("s_memrealtime s[6:7]")
            a("s_load_dwordx2 s[50:51], s[0:1], 72")
            a("s_waitcnt lgkmcnt(0)")
            a(f"s_cmp_lg_u32 s2, {self.o['dbgout']}"); a("s_cbranch_scc1 L_end")
            a(f"s_cmp_lg_u32 s{S_WAVE}, 0"); a("s_cbranch_scc1 L_end")
            a("s_mov_b32 s52, s50"); a("s_and_b32 s53, s51, 0xffff"); a("s_mov_b32 s54, 256"); a("s_mov_b32 s55, 0x20000")
            a("v_mov_b32 v6, 0"); a("s_mov_b64 exec, 1")
            for k in range(1, self.nstamp):
                a(f"s_sub_u32 s56, s{72+2*k}, s{72+2*(k-1)}"); a("v_mov_b32 v5, s56")
                a(f"buffer_store_dword v5, v6, s[52:55], 0 offen offset:{4*(k-1)}")
            a("s_sub_u32 s56, s6, s3"); a("v_mov_b32 v5, s56")
            a(f"buffer_store_dword v5, v6, s[52:55], 0 offen offset:60")
            a("s_mov_b64 exec, -1")
        a("L_end:"); a("s_endpgm")

    def set_flag(self, soff, tag=None):
        a = self.a
        if self.o.get("nodrain_experiment"): pass
        elif tag is None: self.vm.wait_all()
        else: self.vm.wait(tag)
        a("s_barrier")
        L = a.label("L_nf")
        a(f"s_cmp_lg_u32 s{S_WAVE}, 0"); a(f"s_cbranch_scc1 {L}")
        a(f"v_mov_b32 v5, s{S_TAG}"); a("v_mov_b32 v6, 0"); a("s_mov_b64 exec, 1")
        a(f"buffer_store_dword v5, v6, {srd(S_WS)}, s{soff} offen sc1")
        a("s_mov_b64 exec, -1"); a(f"{L}:")

    def poll(self, soff, nflags, voff=None, drain=True):
        a = self.a
        if voff is None:
            a(f"v_min_u32 v9, {nflags-1}, v{V_LANE}"); a("v_lshlrev_b32 v9, 2, v9"); voff = 9
        Lp = a.label("L_poll"); Ld = a.label("L_pd"); Lo = a.label("L_po")
        a(f"s_cmp_lg_u32 s{S_WAVE}, 0"); a(f"s_cbranch_scc1 {Lo}")
        ld = lambda r: a(f"buffer_load_dword v{r}, v{voff}, {srd(S_WS)}, s{soff} offen sc1")
        for r in (5, 6, 7):
            ld(r); a("s_sleep 1")
        ld(8)
        a("s_mov_b32 s70, 0"); a(f"{Lp}:")
        for r in (5, 6, 7, 8):
            a("s_waitcnt vmcnt(3)")
            a(f"v_cmp_ne_u32 vcc, s{S_TAG}, v{r}")
            a(f"s_cbranch_vccz {Ld}")
            ld(r)
        a("s_add_u32 s70, s70, 1"); a("s_cmp_lt_u32 s70, 20000"); a(f"s_cbranch_scc1 {Lp}")
        a(f"s_branch {Ld}")
        a(f"{Lo}:")
        if drain: a("s_waitcnt vmcnt(0)")
        a(f"{Ld}:")
        a("s_barrier")
        if drain: self.vm.ops = ["p", "p", "p"]

    def gate_first(self, bit):
        a = self.a
        Lp = a.label("L_gp"); Ld = a.label("L_gd")
        ld = lambda r: a(f"buffer_load_dword v{r}, v9, {srd(S_WS)}, s66 offen sc1")
        for r in (5, 6, 7):
            ld(r); a("s_sleep 1")
        ld(8)
        a("s_mov_b32 s70, 0"); a(f"{Lp}:")
        for r in (5, 6, 7, 8):
            a("s_waitcnt vmcnt(3)")
            a(f"v_cmp_eq_u32 s[64:65], s{S_TAG}, v{r}")
            a("s_nop 1")
            a(f"s_bitcmp1_b32 s64, {bit}"); a(f"s_cbranch_scc1 {Ld}")
            ld(r)
        a("s_add_u32 s70, s70, 1"); a("s_cmp_lt_u32 s70, 20000"); a(f"s_cbranch_scc1 {Lp}")
        a(f"{Ld}:")
        self.vm.ops += ["p", "p", "p"]

    def gate_refresh(self):
        self.vm.issue(f"buffer_load_dword v5, v9, {srd(S_WS)}, s66 offen sc1", tag="fl")
    def gate_update(self):
        self.vm.wait("fl")
        self.a(f"v_cmp_eq_u32 s[64:65], s{S_TAG}, v5"); self.a("s_nop 1")
    def gate_check(self, bit):
        a = self.a
        Lp = a.label("L_gs"); Ld = a.label("L_go")
        a(f"s_bitcmp1_b32 s64, {bit}"); a(f"s_cbranch_scc1 {Ld}")
        a("s_mov_b32 s70, 0"); a(f"{Lp}:")
        a(f"buffer_load_dword v5, v9, {srd(S_WS)}, s66 offen sc1"); a("s_waitcnt vmcnt(0)")
        a(f"v_cmp_eq_u32 s[64:65], s{S_TAG}, v5"); a("s_nop 1")
        a(f"s_bitcmp1_b32 s64, {bit}"); a(f"s_cbranch_scc1 {Ld}")
        a("s_add_u32 s70, s70, 1"); a("s_cmp_lt_u32 s70, 20000"); a(f"s_cbranch_scc1 {Lp}")
        a(f"{Ld}:")

    def half_op(self, v, t, op="v_add_f32"):
        a = self.a
        a(f"v_mov_b32 v{t}, v{v}"); a(f"v_permlane32_swap_b32 v{v}, v{t}"); a(f"{op} v{v}, v{v}, v{t}")

    def warm(self, srdb, nbytes, base_s=None):
        a, vm = self.a, self.vm
        per_wg = nbytes // 32; per_wave = per_wg // 4
        n = (per_wave + 1023) // 1024
        a(f"s_lshl_b32 s70, s{S_SLOT}, 2"); a(f"s_add_u32 s70, s70, s{S_WAVE}"); a(f"s_mul_i32 s70, s70, {per_wave}")
        if base_s is not None: a(f"s_add_u32 s70, s70, s{base_s}")
        for k in range(n):
            if k and k % 4 == 0: a("s_add_u32 s70, s70, 4096")
            vm.issue(f"buffer_load_dwordx4 {V(V_DUMMY,4)}, v{V_L16}, {srd(srdb)}, s70 offen offset:{(k%4)*1024}", tag="warm")

    def tr_base(self, dst, rowbytes, hhrows, t0, t1):
        a = self.a
        a(f"v_lshrrev_b32 v{t0}, 2, v{V_LANE}"); a(f"v_and_b32 v{t0}, 3, v{t0}")
        a(f"v_mul_u32_u24 v{t1}, {hhrows}, v{V_HH}"); a(f"v_add_u32 v{t0}, v{t0}, v{t1}"); a(f"v_mul_u32_u24 v{t0}, {rowbytes}, v{t0}")
        a(f"v_lshrrev_b32 v{t1}, 4, v{V_LANE}"); a(f"v_and_b32 v{t1}, 1, v{t1}"); a(f"v_lshlrev_b32 v{t1}, 5, v{t1}")
        a(f"v_add_u32 v{t0}, v{t0}, v{t1}")
        a(f"v_and_b32 v{t1}, 3, v{V_LANE}"); a(f"v_lshlrev_b32 v{t1}, 3, v{t1}")
        a(f"v_add_u32 v{dst}, v{t0}, v{t1}")

    def sched(self, mf, fill, lead=0):
        a = self.a
        tot = sum(c for _, c in fill); n = len(mf); k = 0; done = 0
        for i, x in enumerate(mf):
            self.emit_fill(x)
            tgt = tot * (i + 1) / n
            while k < len(fill) and (done + fill[k][1] / 2 <= tgt or i == n - 1):
                self.emit_fill(fill[k][0]); done += fill[k][1]; k += 1

    def emit_fill(self, x):
        if callable(x): x()
        else: self.a(x)

    def phase_A_pre(self):
        a, R = self.a, self.R
        R.reset()
        P = self.PA = {}
        P["VW0"] = VW0 = R.alloc(3, 1); P["VXE"] = VXE = R.alloc(); P["VXO"] = VXO = R.alloc(); P["t"] = t = R.alloc(4, 1); P["VSR"] = VSR = R.alloc()
        SI, SJ, STQ, SMM = 48, 49, 58, 62
        a(f"v_mul_u32_u24 v{t}, 896, v{V_HH}"); a(f"v_lshlrev_b32 v{t+1}, 4, v{V_L31}"); a(f"v_add_u32 v{t}, v{t}, v{t+1}")
        a(f"v_cmp_gt_u32 vcc, 28, v{V_L31}"); a(f"v_mov_b32 v{t+1}, 0x7ffffff0"); a(f"v_cndmask_b32 v{VSR}, v{t+1}, v{t}, vcc")
        a(f"v_lshrrev_b32 v{t}, 3, v{V_LANE}"); a(f"v_and_b32 v{t+1}, 7, v{V_LANE}"); a(f"v_lshrrev_b32 v{t+2}, 4, v{V_LANE}")
        a(f"v_xor_b32 v{t+3}, v{t+1}, v{t+2}"); a(f"v_lshlrev_b32 v{t+3}, 4, v{t+3}"); a(f"v_mul_u32_u24 v{t}, 896, v{t}"); a(f"v_add_u32 v{VXE}, v{t}, v{t+3}")
        a(f"v_add_u32 v{t+2}, 4, v{t+2}"); a(f"v_xor_b32 v{t+3}, v{t+1}, v{t+2}"); a(f"v_lshlrev_b32 v{t+3}, 4, v{t+3}"); a(f"v_add_u32 v{VXO}, v{t}, v{t+3}")
        a(f"v_lshrrev_b32 v{t}, 3, v{V_LANE}"); a(f"v_lshrrev_b32 v{t+1}, 4, v{V_LANE}"); a(f"v_lshrrev_b32 v{t+2}, 2, v{V_LANE}")
        a(f"v_xor_b32 v{t+1}, v{t+1}, v{t+2}"); a(f"v_and_b32 v{t+1}, 1, v{t+1}"); a(f"v_mul_u32_u24 v{t+1}, 896, v{t+1}")
        a(f"v_mul_u32_u24 v{t}, 2688, v{t}"); a(f"v_and_b32 v{t+3}, 3, v{V_LANE}"); a(f"v_lshlrev_b32 v{t+3}, 4, v{t+3}")
        a(f"v_add3_u32 v{VW0}, v{t}, v{t+1}, v{t+3}"); a(f"v_add_u32 v{VW0}, 896, v{VW0}")
        a(f"v_mul_u32_u24 v{t+2}, 2688, v{t+2}"); a(f"v_add_u32 v{VW0+1}, v{t+2}, v{t+3}")

    def phase_A(self):
        a, vm, R = self.a, self.vm, self.R
        a.c("================ phase A : LN1 + QKV + attention ================")
        P = self.PA; VW0, VXE, VXO, t, VSR = P["VW0"], P["VXE"], P["VXO"], P["t"], P["VSR"]
        SI, SJ, SXB, SWB, SLX, SLW, STQ = 48, 49, 52, 53, 54, 55, 58
        SMM = 62
        a(f"s_lshr_b32 s50, s{S_XCD}, 1"); a("s_lshl_b32 s50, s50, 2"); a(f"s_lshr_b32 s51, s{S_SLOT}, 3"); a(f"s_add_u32 s{SI}, s50, s51")
        a(f"s_and_b32 s50, s{S_XCD}, 1"); a("s_lshl_b32 s50, s50, 3"); a(f"s_and_b32 s71, s{S_SLOT}, 7"); a(f"s_add_u32 s{SJ}, s50, s71")
        a(f"s_lshl_b32 s{STQ}, s{SI}, 2"); a(f"s_add_u32 s{STQ}, s{STQ}, s{S_WAVE}"); a(f"s_mul_i32 s{SXB}, s{STQ}, {32*896}")
        self.stamp("A@0")
        LW = 0; LQ = 57344; LX = 86016; LPW = 151552; LKV = 102400
        SR = R.alloc(8)
        a(f"s_lshl_b32 s50, s{SI}, 7"); a(f"s_lshl_b32 s70, s{SJ}, 3"); a("s_add_u32 s50, s50, s70"); a(f"s_lshl_b32 s70, s{S_WAVE}, 1"); a("s_add_u32 s59, s50, s70")
        a("s_mul_i32 s50, s59, 896")
        vm.issue(f"buffer_load_dwordx4 {V(SR,4)}, v{VSR}, {srd(S_X)}, s50 offen", tag="sr")
        vm.issue(f"buffer_load_dwordx4 {V(SR+4,4)}, v{VSR}, {srd(S_X)}, s50 offen offset:448", tag="sr")
        a(f"s_lshl_b32 s51, s51, 1"); a(f"s_add_u32 s51, s51, s{SJ}"); a("s_mul_i32 s50, s51, 37"); a("s_lshr_b32 s50, s50, 8"); a("s_mul_i32 s50, s50, 7"); a("s_sub_u32 s51, s51, s50")
        if not self.o.get("rot_a", 1): a("s_mov_b32 s51, 0")
        a(f"s_lshl_b32 s{SMM}, s51, 7")
        a(f"s_lshl_b32 s{SLX}, s{S_WAVE}, 14"); a(f"s_add_u32 s{SLX}, s{SLX}, {LX}")
        a(f"s_mul_i32 s{SWB}, s{SJ}, 56"); a(f"s_mul_i32 s50, s{S_WAVE}, {16*2688}"); a(f"s_add_u32 s{SWB}, s{SWB}, s50")
        a(f"s_lshl_b32 s{SLW}, s{S_WAVE}, 11")
        def dma_list(m):
            out = []
            def pre():
                if m > 0:
                    a(f"s_add_u32 s{SMM+m}, s{SMM+m-1}, 128"); a(f"s_cmp_ge_u32 s{SMM+m}, 896"); a("s_cselect_b32 s71, 896, 0"); a(f"s_sub_u32 s{SMM+m}, s{SMM+m}, s71")
                a(f"s_add_u32 s57, s{SXB}, s{SMM+m}"); a(f"s_mul_i32 s61, s{SMM+m}, 1344"); a(f"s_add_u32 s61, s61, s{SWB}")
            out.append((pre, 16))
            for q in range(4):
                def f(q=q):
                    a(f"s_add_u32 m0, s{SLX}, {(m%4)*4096 + q*1024}"); a(f"s_add_u32 s56, s57, {q*7168}")
                    vm.issue(f"buffer_load_dwordx4 v{VXE if q%2==0 else VXO}, {srd(S_X)}, s56 offen lds", tag=("c", m))
                out.append((f, 16))
            for p in range(2):
                def f(p=p):
                    a(f"s_add_u32 m0, s{SLW}, {LW + m*8192 + p*1024}"); a(f"s_add_u32 s56, s61, {p*8*2688}")
                    vm.issue(f"buffer_load_dwordx4 v{VW0}, {srd(S_WQKV)}, s56 offen lds", tag=("c", m))
                out.append((f, 16))
            return out
        def dma_q(m):
            def f():
                a(f"s_mul_i32 s61, s{SMM+m}, 1344"); a(f"s_add_u32 s61, s61, s{SWB}")
                a(f"s_lshr_b32 s56, s{SLW}, 1"); a(f"s_add_u32 m0, s56, {LQ + m*4096}"); a("s_nop 0")
                vm.issue(f"buffer_load_dwordx4 v{VW0+1}, {srd(S_WQKV)}, s61 offen lds", tag="q")
            return [(f, 24)]
        for m in range(2):
            for f, _ in dma_list(m): f()
        if self.o.get("tlb", 1): self.tlb_warm()
        self.stamp("A@1")
        ONES = R.alloc(4); S0 = R.alloc(); Q0 = R.alloc(); T0 = R.alloc(); T1 = R.alloc()
        for k in range(4): a(f"v_mov_b32 v{ONES+k}, 0x3f803f80")
        a(f"v_mov_b32 v{S0}, 0"); a(f"v_mov_b32 v{Q0}, 0")
        VXA = R.alloc(4, 1)
        a(f"v_lshrrev_b32 v{t}, 1, v{V_L31}"); a(f"v_and_b32 v{t}, 7, v{t}"); a(f"v_xor_b32 v{t}, v{t}, v{V_HH}"); a(f"v_lshlrev_b32 v{t}, 4, v{t}")
        a(f"v_lshlrev_b32 v{VXA}, 7, v{V_L31}"); a(f"v_add_u32 v{VXA}, v{VXA}, v{t}"); a(f"v_add_u32 v{VXA}, s{SLX}, v{VXA}")
        for s in range(1, 4): a(f"v_xor_b32 v{VXA+s}, {s*32}, v{VXA}")
        VWK = R.alloc(); VWV = R.alloc(); VWQ = R.alloc()
        self.tr_base(VWK, 128, 8, t, t+1)
        a(f"v_lshrrev_b32 v{t}, 3, v{V_LANE}"); a(f"v_and_b32 v{t}, 1, v{t}"); a(f"v_lshlrev_b32 v{t}, 6, v{t}")
        a(f"v_xor_b32 v{t+1}, 64, v{t}"); a(f"v_add_u32 v{VWV}, v{VWK}, v{t+1}"); a(f"v_add_u32 v{VWK}, v{VWK}, v{t}")
        self.tr_base(VWQ, 64, 8, t, t+1)
        a(f"v_add_u32 v{VWQ}, {LQ}, v{VWQ}")
        AK = R.alloc(16); AV = R.alloc(16); CK = R.alloc(16); CV = R.alloc(16)
        vm.wait("sr")
        for d in range(8):
            a(f"v_dot2_f32_bf16 v{S0}, v{SR+d}, v{ONES}, v{S0}"); a(f"v_dot2_f32_bf16 v{Q0}, v{SR+d}, v{SR+d}, v{Q0}")
        for rr in (8, 4, 2, 1):
            for v in (S0, Q0): a(f"v_add_f32_dpp v{v}, v{v}, v{v} row_ror:{rr} row_mask:0xf bank_mask:0xf")
        a(f"v_mov_b32 v{T0}, v{S0}"); a(f"v_mov_b32 v{T1}, v{Q0}")
        a(f"v_permlane16_swap_b32 v{S0}, v{T0}"); a(f"v_permlane16_swap_b32 v{Q0}, v{T1}")
        a(f"v_add_f32 v{S0}, v{S0}, v{T0}"); a(f"v_add_f32 v{Q0}, v{Q0}, v{T1}")
        a(f"v_mul_f32 v{S0}, {lit(1/448)}, v{S0}"); a(f"v_mul_f32 v{Q0}, {lit(1/448)}, v{Q0}")
        a(f"v_fma_f32 v{Q0}, -v{S0}, v{S0}, v{Q0}"); a(f"v_max_f32 v{Q0}, 0, v{Q0}")
        a(f"v_add_f32 v{Q0}, {lit(1e-5)}, v{Q0}"); a(f"v_rsq_f32 v{Q0}, v{Q0}")
        self.tag_ready()
        a(f"v_mov_b32 v{SR}, v{S0}"); a(f"v_mov_b32 v{SR+2}, s{S_TAG}"); a(f"v_mov_b32 v{SR+3}, s{S_TAG}"); a(f"v_mov_b32 v{SR+1}, v{Q0}")
        a(f"v_lshlrev_b32 v{T0}, 4, v{V_HH}"); a(f"s_lshl_b32 s50, s59, 4"); a(f"s_add_u32 s50, s50, {STAT1}")
        a("s_mov_b32 exec_lo, 1"); a("s_mov_b32 exec_hi, 1")
        vm.issue(f"buffer_store_dwordx4 {V(SR,4)}, v{T0}, {srd(S_WS)}, s50 offen sc1", tag="st1")
        a("s_mov_b64 exec, -1")
        NB = 2
        WF = R.alloc(8 * NB)
        def rd_x(m): return [(f"ds_read_b128 {A(16*m+4*s,4)}, v{VXA+s} offset:{(m%4)*4096}", 4) for s in range(4)]
        def rd_w(s):
            buf = s % NB; out = []
            for g, base in enumerate((VWK, VWV)):
                for e in range(2):
                    r = WF + buf*8 + g*4 + e*2
                    out.append((f"ds_read_b64_tr_b16 v[{r}:{r+1}], v{base} offset:{LW + s*2048 + e*512}", 4))
            return out
        def chunk_ready(m):
            vm.wait(("c", m)); a("s_barrier")
        SG = R.alloc(4); RK = R.alloc(16); MK = R.alloc(16); MR = R.alloc()
        chunk_ready(0)
        self.stamp("g0")
        for x, _ in rd_x(0) + rd_w(0): a(x)
        pend = []
        for s in range(28):
            m, sp = s // 4, s % 4
            fill = []
            if sp == 0 and m + 2 < 7: pend = dma_list(m + 2)
            if sp == 0 and m in (5, 6): pend = sum([dma_q(mq) for mq in (range(4) if m == 5 else range(4, 7))], [])
            a("s_waitcnt lgkmcnt(0)")
            if s + 1 < 28:
                if sp == 3:
                    fill.append((lambda m=m: chunk_ready(m + 1), 8)); fill += rd_x(m + 1)
                fill += rd_w(s + 1)
            take = 2 if sp < 3 else len(pend)
            fill += pend[:take]; pend = pend[take:]
            if s == 20:
                def sg():
                    a(f"v_lshlrev_b32 v{T0}, 4, v{V_L31}"); a(f"s_lshl_b32 s50, s{STQ}, 9"); a(f"s_add_u32 s60, s50, {STAT1}")
                    vm.issue(f"buffer_load_dwordx4 {V(SG,4)}, v{T0}, {srd(S_WS)}, s60 offen sc1", tag="sg")
                fill.append((sg, 16))
            x = A(16*m + 4*sp, 4); wb = WF + (s % NB) * 8
            c = lambda r: '0' if s == 0 else V(r, 16)
            mf = [f"{MFMA} {V(AK,16)}, {V(wb,4)}, {x}, {c(AK)}", f"{MFMA} {V(AV,16)}, {x}, {V(wb+4,4)}, {c(AV)}",
                  f"{MFMA} {V(CK,16)}, {V(wb,4)}, {V(ONES,4)}, {c(CK)}", f"{MFMA} {V(CV,16)}, {V(ONES,4)}, {V(wb+4,4)}, {c(CV)}"]
            self.sched(mf, fill)
        self.stamp("A@2")
        Lp = a.label("L_sg"); Ld = a.label("L_sgd")
        vm.wait("sg")
        a("s_mov_b32 s70, 0"); a(f"{Lp}:")
        a(f"v_cmp_ne_u32 vcc, s{S_TAG}, v{SG+2}"); a(f"s_cbranch_vccz {Ld}")
        a(f"v_lshlrev_b32 v{T0}, 4, v{V_L31}")
        a(f"buffer_load_dwordx4 {V(SG,4)}, v{T0}, {srd(S_WS)}, s60 offen sc1"); a("s_waitcnt vmcnt(0)")
        a("s_add_u32 s70, s70, 1"); a("s_cmp_lt_u32 s70, 20000"); a(f"s_cbranch_scc1 {Lp}")
        a(f"{Ld}:")
        MEAN, RSTD = SG, SG + 1
        a(f"v_mul_f32 v{MR}, v{MEAN}, v{RSTD}")
        a(f"v_lshlrev_b32 v{T1}, 2, v{V_L31}"); a(f"s_lshl_b32 s57, s{S_WAVE}, 8"); a(f"s_add_u32 s57, s57, {LPW}"); a(f"v_add_u32 v{T0}, s57, v{T1}")
        a(f"ds_write_b32 v{T0}, v{RSTD}"); a(f"ds_write_b32 v{T0}, v{MR} offset:128")
        a(f"v_lshlrev_b32 v{T0}, 4, v{V_HH}"); a(f"v_add_u32 v{T0}, s57, v{T0}")
        a("s_waitcnt lgkmcnt(0)")
        for gg in range(4):
            a(f"ds_read_b128 {V(RK+4*gg,4)}, v{T0} offset:{gg*32}"); a(f"ds_read_b128 {V(MK+4*gg,4)}, v{T0} offset:{128+gg*32}")
        KF = R.alloc(8); VF = R.alloc(8); MASKH = R.alloc(); MASKD = R.alloc(); ONED = R.alloc()
        a(f"v_cmp_eq_u32 vcc, 0, v{V_HH}"); a(f"v_cndmask_b32 v{MASKH}, 0, -1, vcc")
        a(f"v_cmp_gt_u32 vcc, 28, v{V_L31}"); a(f"v_cndmask_b32 v{MASKD}, 0, -1, vcc")
        a(f"v_cmp_eq_u32 vcc, 28, v{V_L31}"); a(f"v_cndmask_b32 v{ONED}, 0, v{ONES}, vcc")
        for r in range(0, 16, 2):
            a(f"v_pk_fma_f32 {V(AK+r,2)}, {V(MEAN,2)}, {V(CK+r,2)}, {V(AK+r,2)} op_sel_hi:[0,1,1] neg_lo:[1,0,0] neg_hi:[1,0,0]")
        for r in range(0, 16, 2):
            a(f"v_pk_mul_f32 {V(AK+r,2)}, {V(AK+r,2)}, {V(MEAN,2)} op_sel:[0,1] op_sel_hi:[1,1]")
        for d in range(8): a(f"v_cvt_pk_bf16_f32 v{KF+d}, v{AK+2*d}, v{AK+2*d+1}")
        for d in (6, 7): a(f"v_and_b32 v{KF+d}, v{KF+d}, v{MASKH}")
        a(f"s_lshl_b32 s56, s{SJ}, 6"); a(f"s_add_u32 s56, s56, s{STQ}"); a("s_lshl_b32 s56, s56, 12"); a(f"s_add_u32 s56, s56, {KVF}")
        for part, r in enumerate((KF, KF+4)):
            vm.issue(f"buffer_store_dwordx4 {V(r,4)}, v{V_L16}, {srd(S_WS)}, s56 offen offset:{part*1024} sc1")
        a("s_waitcnt lgkmcnt(0)")
        for r in range(0, 16, 2):
            a(f"v_pk_mul_f32 {V(MK+r,2)}, {V(MK+r,2)}, {V(CV+r,2)}")
            a(f"v_pk_fma_f32 {V(AV+r,2)}, {V(AV+r,2)}, {V(RK+r,2)}, {V(MK+r,2)} neg_lo:[0,0,1] neg_hi:[0,0,1]")
        for d in range(8): a(f"v_cvt_pk_bf16_f32 v{VF+d}, v{AV+2*d}, v{AV+2*d+1}")
        for d in range(8): a(f"v_and_or_b32 v{VF+d}, v{VF+d}, v{MASKD}, v{ONED}")
        for part, r in enumerate((VF, VF+4)):
            vm.issue(f"buffer_store_dwordx4 {V(r,4)}, v{V_L16}, {srd(S_WS)}, s56 offen offset:{2048+part*1024} sc1")
        vm.wait("q")
        a("s_barrier")
        a(f"s_lshl_b32 s50, s{S_WAVE}, 12"); a(f"s_add_u32 s50, s50, {LKV + 8*4096}"); a(f"v_add_u32 v{T0}, s50, v{V_L16}")
        for part, r in enumerate((KF, KF+4, VF, VF+4)):
            a(f"ds_write_b128 v{T0}, {V(r,4)} offset:{part*1024}")
        for b, n in ((CK,16),(CV,16),(RK,16),(MK,16),(AK,16),(AV,16),(WF,8*NB)): R.free(b, n)
        AQ = R.alloc(16); CQ = R.alloc(16); QW = R.alloc(16)
        def rd_q(s):
            return [(f"ds_read_b64_tr_b16 v[{QW+(s%4)*4+e*2}:{QW+(s%4)*4+e*2+1}], v{VWQ} offset:{s*1024 + e*256}", 4) for e in range(2)]
        for s in range(2):
            for x, _ in rd_q(s): a(x)
        a(f"s_lshl_b32 s59, s{SJ}, 7"); a(f"s_lshl_b32 s56, s{SI}, 2"); a("s_add_u32 s59, s59, s56"); a(f"s_add_u32 s59, s59, {F_KV}")
        R.free(KF, 8); R.free(VF, 8)
        for s in range(28):
            fill = rd_q(s + 2) if s + 2 < 28 else []
            a(f"s_waitcnt lgkmcnt({2 if s + 1 < 28 else 0})")
            c = lambda r: '0' if s == 0 else V(r, 16)
            q = V(QW + (s % 4)*4, 4)
            self.sched([f"{MFMA} {V(AQ,16)}, {q}, {A(4*s,4)}, {c(AQ)}", f"{MFMA} {V(CQ,16)}, {q}, {V(ONES,4)}, {c(CQ)}"], fill)
            if s == self.o.get("kvflag_at", 12):
                self.set_flag(59)
                self.stamp("A@3")
        RQ = R.alloc(2); QF = R.alloc(8)
        qscale = (28 ** -0.5) * LOG2E
        a(f"v_mul_f32 v{RQ}, {lit(qscale)}, v{RSTD}")
        CD = R.alloc(16); CF = R.alloc(16); CM = R.alloc(16); BS = R.alloc(); NBG = R.alloc()
        a(f"v_lshlrev_b32 v{BS}, 2, v{V_HH}"); a(f"v_sub_u32 v{BS}, v{V_L31}, v{BS}"); a(f"v_mov_b32 v{NBG}, {lit(-1e30)}")
        for r in range(16):
            c = (r & 3) + 8 * (r >> 2)
            a(f"v_cmp_le_i32 vcc, {c}, v{BS}")
            a(f"v_cndmask_b32 v{CD+r}, v{NBG}, 0, vcc"); a(f"v_cndmask_b32 v{CF+r}, 0, v{NBG}, vcc")
        for r in range(0, 16, 2):
            a(f"v_pk_fma_f32 {V(AQ+r,2)}, {V(MEAN,2)}, {V(CQ+r,2)}, {V(AQ+r,2)} op_sel_hi:[0,1,1] neg_lo:[1,0,0] neg_hi:[1,0,0]")
        for r in range(0, 16, 2):
            a(f"v_pk_mul_f32 {V(AQ+r,2)}, {V(AQ+r,2)}, {V(RQ,2)} op_sel_hi:[1,0]")
        for d in range(8): a(f"v_cvt_pk_bf16_f32 v{QF+d}, v{AQ+2*d}, v{AQ+2*d+1}")
        for d in (6, 7): a(f"v_and_b32 v{QF+d}, v{QF+d}, v{MASKH}")
        R.free(AQ, 16); R.free(QW, 16); R.free(CQ, 16)
        a(f"s_lshl_b32 s59, s{SJ}, 7"); a(f"s_add_u32 s59, s59, {F_KV}")
        a(f"s_sub_i32 s56, s{SI}, 1"); a("s_max_i32 s56, s56, 0"); a(f"s_sub_i32 s57, s{SI}, 2"); a("s_max_i32 s57, s57, 0")
        a("s_lshl_b32 s56, s56, 2"); a("s_lshl_b32 s57, s57, 2")
        a(f"v_mov_b32 v9, s56"); a(f"v_mov_b32 v{T0}, s57"); a(f"v_cmp_eq_u32 vcc, 0, v{V_HH}"); a(f"v_cndmask_b32 v9, v{T0}, v9, vcc")
        self.poll(59, 2, voff=9)
        self.stamp("A@4")
        a(f"s_lshl_b32 s59, s{SJ}, 18"); a(f"s_add_u32 s59, s59, {KVF}")
        for tt in range(2):
            a(f"s_lshl_b32 s56, s{SI}, 2"); a(f"s_lshl_b32 s57, s{S_WAVE}, 1"); a("s_add_u32 s56, s56, s57"); a(f"s_add_i32 s56, s56, {tt-8}"); a("s_max_i32 s56, s56, 0")
            a("s_lshl_b32 s56, s56, 12"); a("s_add_u32 s56, s56, s59")
            a(f"s_lshl_b32 s57, s{S_WAVE}, 13"); a(f"s_add_u32 s57, s57, {LKV + tt*4096}")
            for part in range(4):
                a(f"s_add_u32 m0, s57, {part*1024}"); a(f"s_add_u32 s50, s56, {part*1024}")
                vm.issue(f"buffer_load_dwordx4 v{V_L16}, {srd(S_WS)}, s50 offen sc1 lds", tag="kv")
        KA = R.alloc()
        a(f"s_lshl_b32 s50, s{S_WAVE}, 12"); a(f"s_add_u32 s50, s50, {LKV}"); a(f"v_add_u32 v{KA}, s50, v{V_L16}")
        a(f"s_sub_i32 s60, 8, s{STQ}"); a("s_max_i32 s60, s60, 0")
        SA = R.alloc(16); SB = R.alloc(16); O = R.alloc(16); PF = R.alloc(16); KR = R.alloc(16); VR = R.alloc(16); MX = R.alloc(2)
        a(f"v_mov_b32 v{MX}, {lit(-1e30)}"); a(f"v_mov_b32 v{MX+1}, {lit(-1e30)}")
        vm.wait("kv"); a("s_barrier")
        self.stamp("A@5")
        rk = lambda u: [(f"ds_read_b128 {V(KR+8*(u%2)+4*h,4)}, v{KA} offset:{u*4096+h*1024}", 4) for h in range(2)]
        rv = lambda u: [(f"ds_read_b128 {V(VR+8*(u%2)+4*h,4)}, v{KA} offset:{u*4096+2048+h*1024}", 4) for h in range(2)]
        def smf(u, c):
            S = SA if u % 2 == 0 else SB; k = KR + 8*(u % 2)
            return [f"{MFMA} {V(S,16)}, {V(k,4)}, {V(QF,4)}, {c}", f"{MFMA} {V(S,16)}, {V(k+4,4)}, {V(QF+4,4)}, {V(S,16)}"]
        def pvm(u):
            P = PF + 8*(u % 2); vr = VR + 8*(u % 2)
            return [f"{MFMA} {V(O,16)}, {V(vr,4)}, {V(P,4)}, {'0' if u == 0 else V(O,16)}", f"{MFMA} {V(O,16)}, {V(vr+4,4)}, {V(P+4,4)}, {V(O,16)}"]
        warm = (self.touch_list(S_WO, 448*448*2) + self.touch_list(S_WIN, 448*1792*2)) if self.o.get("warm", 1) else []
        CB = R.alloc(16)
        for r in range(16): a(f"v_mov_b32 v{CB+r}, {lit(-1e30)}")
        def smf_first(u, c):
            S = SA if u % 2 == 0 else SB; k = KR + 8*(u % 2)
            def f():
                if u == 8:
                    a(f"{MFMA} {V(S,16)}, {V(k,4)}, {V(QF,4)}, {c}"); return
                L1 = a.label("L_m"); L2 = a.label("L_m")
                a(f"s_cmp_gt_u32 s60, {u}"); a(f"s_cbranch_scc1 {L1}")
                a(f"{MFMA} {V(S,16)}, {V(k,4)}, {V(QF,4)}, {c}"); a(f"s_branch {L2}")
                a(f"{L1}:"); a(f"{MFMA} {V(S,16)}, {V(k,4)}, {V(QF,4)}, {V(CB,16)}"); a(f"{L2}:")
            return f
        def smf2(u, c):
            return [smf_first(u, c), smf(u, c)[1]]
        cop1 = lambda u: V(CF,16) if u == 0 else (V(CD,16) if u == 8 else "0")
        for x, _ in rk(0) + rk(1): a(x)
        a("s_waitcnt lgkmcnt(2)")
        for x in smf2(0, cop1(0)): self.emit_fill(x)
        for u in range(9):
            S = SA if u % 2 == 0 else SB
            mx = [(f"v_max3_f32 v{MX+(r//2)%2}, v{S+r}, v{S+r+1}, v{MX+(r//2)%2}", 4) for r in range(0, 16, 2)]
            if u + 1 < 9:
                a("s_waitcnt lgkmcnt(0)")
                tw_ = warm[:1] if u % 3 == 0 else []; warm = warm[len(tw_):]
                self.sched(smf2(u + 1, cop1(u + 1)), (rk(u + 2) if u + 2 < 9 else []) + tw_ + mx)
            else:
                for x, _ in mx: a(x)
        self.stamp("p1")
        self.attn_mid(MX, T0, CM, CD, CF)
        self.stamp("p2")
        cop2 = lambda u: V(CF,16) if u == 0 else (V(CD,16) if u == 8 else V(CM,16))
        for x, _ in rk(0) + rk(1): a(x)
        a("s_waitcnt lgkmcnt(2)")
        for x in smf2(0, cop2(0)): self.emit_fill(x)
        nw = 1
        for u in range(10):
            mf = []; fill = []
            a("s_waitcnt lgkmcnt(0)")
            if u + 1 < 9: mf += smf2(u + 1, cop2(u + 1))
            if u >= 1: mf += pvm(u - 1)
            if u < 9:
                S = SA if u % 2 == 0 else SB; P = PF + 8*(u % 2)
                fill += rv(u)
                if u + 2 < 9: fill += rk(u + 2)
                ex = []
                for d in range(8):
                    ex += [(f"v_exp_f32 v{S+2*d}, v{S+2*d}", 8), (f"v_exp_f32 v{S+2*d+1}, v{S+2*d+1}", 8)]
                    if d >= 1: ex.append((f"v_cvt_pk_bf16_f32 v{P+d-1}, v{S+2*d-2}, v{S+2*d-1}", 4))
                ex.append((f"v_cvt_pk_bf16_f32 v{P+7}, v{S+14}, v{S+15}", 4))
                ws_ = warm[:nw]; warm = warm[nw:]
                step = max(1, len(ex) // (len(ws_) + 1))
                for n, it in enumerate(ws_): ex.insert((n + 1) * step + n, it)
                fill += ex
            self.sched(mf, fill)
        for f, _ in warm: self.emit_fill(f)
        self.stamp("p3")
        a(f"v_mov_b32 v{T0}, v{O+12}"); a(f"v_mov_b32 v{MX}, v{O+12}")
        a(f"v_permlane32_swap_b32 v{T0}, v{MX}")
        a(f"v_rcp_f32 v{MX}, v{MX}")
        for r in range(0, 16, 2): a(f"v_pk_mul_f32 {V(O+r,2)}, {V(O+r,2)}, {V(MX,2)} op_sel_hi:[1,0]")
        for d in range(8): a(f"v_cvt_pk_bf16_f32 v{PF+d}, v{O+2*d}, v{O+2*d+1}")
        for d in (6, 7): a(f"v_and_b32 v{PF+d}, v{PF+d}, v{MASKH}")
        a(f"s_lshl_b32 s56, s{STQ}, 4"); a(f"s_add_u32 s56, s56, s{SJ}"); a("s_lshl_b32 s56, s56, 11"); a(f"s_add_u32 s56, s56, {OFR}")
        for h in range(2):
            vm.issue(f"buffer_store_dwordx4 {V(PF+4*h,4)}, v{V_L16}, {srd(S_WS)}, s56 offen offset:{h*1024} sc1")
        a(f"s_lshl_b32 s59, s{SI}, 7"); a(f"s_lshl_b32 s56, s{SJ}, 2"); a("s_add_u32 s59, s59, s56"); a(f"s_add_u32 s59, s59, {F_O}")
        self.set_flag(59)
        self.stamp("A@6")

    def tlb_warm(self):
        a, vm = self.a, self.vm
        a(f"v_lshlrev_b32 v{V_TOUCH}, 21, v{V_LANE}")
        a("s_mov_b64 exec, 0xfff")
        vm.issue(f"buffer_load_dword v{V_DUMMY}, v{V_TOUCH}, {srd(S_WS)}, 0 offen", tag="tlb")
        a("s_mov_b64 exec, 0xf")
        vm.issue(f"buffer_load_dword v{V_DUMMY}, v{V_TOUCH}, {srd(S_WSP)}, 0 offen", tag="tlb")
        a("s_mov_b64 exec, 1")
        for sb in (S_WO, S_WIN, S_WOUT, S_BSP, S_OUT):
            vm.issue(f"buffer_load_dword v{V_DUMMY}, v{V_TOUCH}, {srd(sb)}, 0 offen", tag="tlb")
        a("s_mov_b64 exec, -1")

    def warm_list(self, srdb, nbytes, sreg=69):
        a, vm = self.a, self.vm
        per_wave = nbytes // 128; n = (per_wave + 1023) // 1024; out = []
        for k in range(n):
            def f(k=k):
                if k == 0:
                    a(f"s_lshl_b32 s{sreg}, s{S_SLOT}, 2"); a(f"s_add_u32 s{sreg}, s{sreg}, s{S_WAVE}"); a(f"s_mul_i32 s{sreg}, s{sreg}, {per_wave}")
                elif k % 4 == 0: a(f"s_add_u32 s{sreg}, s{sreg}, 4096")
                vm.issue(f"buffer_load_dwordx4 {V(V_DUMMY,4)}, v{V_L16}, {srd(srdb)}, s{sreg} offen offset:{(k%4)*1024}", tag="warm")
            out.append((f, 8))
        return out

    def attn_mid(self, MX, T0, CM, CD, CF):
        a = self.a
        a(f"v_max_f32 v{MX}, v{MX}, v{MX+1}")
        self.half_op(MX, T0, "v_max_f32")
        for r in range(16): a(f"v_sub_f32 v{CM+r}, 0, v{MX}")
        for r in range(0, 16, 2):
            a(f"v_pk_add_f32 {V(CD+r,2)}, {V(CD+r,2)}, {V(CM,2)}"); a(f"v_pk_add_f32 {V(CF+r,2)}, {V(CF+r,2)}, {V(CM,2)}")

    def touch_list(self, srdb, nbytes, sreg=69, base=None):
        a, vm = self.a, self.vm
        per_wave = (nbytes // 128 + 63) // 64 * 64; n = (per_wave + 4095) // 4096; out = []
        for k in range(n):
            def f(k=k):
                if k == 0:
                    a(f"s_lshl_b32 s{sreg}, s{S_SLOT}, 2"); a(f"s_add_u32 s{sreg}, s{sreg}, s{S_WAVE}"); a(f"s_mul_i32 s{sreg}, s{sreg}, {per_wave}")
                    if base is not None: a(f"s_add_u32 s{sreg}, s{sreg}, s{base}")
                    a(f"v_lshlrev_b32 v{V_TOUCH}, 6, v{V_LANE}")
                else: a(f"s_add_u32 s{sreg}, s{sreg}, 4096")
                vm.issue(f"buffer_load_dword v{V_DUMMY}, v{V_TOUCH}, {srd(srdb)}, s{sreg} offen", tag="warm")
            out.append((f, 12))
        return out

    def idle_prefetch(self, skip, part):
        a = self.a
        Lo = a.label("L_ip")
        a(f"s_branch {Lo}")
        a(f"{skip}:")
        idn = self.o.get("idle_n", [6, 10])
        n = idn[part] if part < 2 else 13
        first = 0 if part != 1 else idn[0]
        if n:
            if part < 2: a(f"s_lshl_b32 s50, s{S_XCD}, 20")
            else: a("s_mov_b32 s50, 0")
            a(f"s_sub_u32 s51, s{S_SLOT}, 28"); a("s_lshl_b32 s51, s51, 2"); a(f"s_add_u32 s51, s51, s{S_WAVE}"); a("s_lshl_b32 s51, s51, 12"); a("s_add_u32 s50, s50, s51")
            a(f"s_add_u32 s50, s50, {first*16*4096}")
            a(f"v_lshlrev_b32 v{V_TOUCH}, 6, v{V_LANE}")
            Ll = a.label("L_il")
            a(f"s_mov_b32 s51, {n}")
            a(f"{Ll}:")
            a(f"buffer_load_dword v{V_DUMMY}, v{V_TOUCH}, {srd(S_WSP if part < 2 else S_WOUT)}, s50 offen")
            a(f"s_add_u32 s50, s50, {16*4096}"); a("s_sub_u32 s51, s51, 1"); a("s_cmp_lg_u32 s51, 0"); a(f"s_cbranch_scc1 {Ll}")
            a("s_waitcnt vmcnt(0)")
        a(f"{Lo}:")

    def dma_by_all(self, items, tagf):
        a, vm = self.a, self.vm
        assert len(items) % 4 == 0
        Lnp = a.label("L_np")
        for wv in range(4):
            Lw = a.label("L_w")
            if wv < 3:
                a(f"s_cmp_lg_u32 s{S_WAVE}, {wv}"); a(f"s_cbranch_scc1 {Lw}")
            state = {}
            for n, it in enumerate(items):
                if n % 4 == wv: it(state)
            if wv < 3:
                a(f"s_branch {Lnp}")
                a(f"{Lw}:")
        a(f"{Lnp}:")
        vm.ops += [tagf(n) for n in range(len(items)) if n % 4 == 0]

    def dma_by_123(self, items, tagf):
        a, vm = self.a, self.vm
        Lnp = a.label("L_np")
        a(f"s_cmp_eq_u32 s{S_WAVE}, 0"); a(f"s_cbranch_scc1 {Lnp}")
        for wv in (1, 2, 3):
            Lw = a.label("L_w")
            if wv < 3:
                a(f"s_cmp_lg_u32 s{S_WAVE}, {wv}"); a(f"s_cbranch_scc1 {Lw}")
            state = {}
            for n, it in enumerate(items):
                if n % 3 == wv - 1: it(state)
            if wv < 3:
                a(f"s_branch {Lnp}")
                a(f"{Lw}:")
        a(f"{Lnp}:")
        mod = [tagf(n) for n in range(len(items)) if n % 3 == 0]
        mod.pop(); vm.ops += mod

    def d_map(self):
        a = self.a
        a(f"s_mul_i32 s50, s{S_SLOT}, 37"); a("s_lshr_b32 s50, s50, 8")
        a("s_mul_i32 s51, s50, 7"); a(f"s_sub_u32 s94, s{S_SLOT}, s51")
        a(f"s_lshl_b32 s95, s{S_XCD}, 2"); a("s_add_u32 s95, s95, s50")
        a(f"s_mul_i32 s96, s50, {self.o.get('rotm', 0)}"); a("s_and_b32 s51, s94, 3"); a(f"s_mul_i32 s51, s51, {self.o.get('rotf', 0)}"); a("s_add_u32 s96, s96, s51")
        a("s_lshl_b32 s97, s95, 18")

    def d_lanes(self, VE, VO, t):
        a = self.a
        a(f"v_lshrrev_b32 v{t}, 3, v{V_LANE}"); a(f"v_and_b32 v{t+1}, 7, v{V_LANE}"); a(f"v_lshrrev_b32 v{t+2}, 4, v{V_LANE}")
        a(f"v_xor_b32 v{t+3}, v{t+1}, v{t+2}"); a(f"v_lshlrev_b32 v{t+3}, 4, v{t+3}"); a(f"v_lshlrev_b32 v{t}, 12, v{t}"); a(f"v_add_u32 v{VE}, v{t}, v{t+3}")
        a(f"v_add_u32 v{t+2}, 4, v{t+2}"); a(f"v_xor_b32 v{t+3}, v{t+1}, v{t+2}"); a(f"v_lshlrev_b32 v{t+3}, 4, v{t+3}"); a(f"v_add_u32 v{VO}, v{t}, v{t+3}")

    @staticmethod
    def d_slot(kh, b):
        b %= 8
        if kh == 1: return 81920 + b*8192
        return b*8192 if b < 7 else 147456

    def d_early_items(self, VE, VO, NS=8):
        a, vm = self.a, self.vm
        out = []
        blocks = [(b, kh) for b in range(NS) for kh in range(2)]
        for (b, kh) in blocks:
            for h in range(2):
                def f(b=b, kh=kh, h=h):
                    if h == 0:
                        a(f"s_add_u32 s98, s96, {b}"); a("s_and_b32 s98, s98, 15"); a("s_lshl_b32 s98, s98, 7"); a("s_add_u32 s98, s98, s97")
                        a(f"s_lshl_b32 s99, s{S_WAVE}, 16"); a("s_add_u32 s98, s98, s99")
                    a(f"s_lshl_b32 s99, s{S_WAVE}, 11"); a(f"s_add_u32 m0, s99, {self.d_slot(kh, b) + h*1024}")
                    a(f"s_add_u32 s99, s98, {kh*2048 + h*8*4096}")
                    vm.issue(f"buffer_load_dwordx4 v{VE if h == 0 else VO}, {srd(S_WSP)}, s99 offen lds", tag=("w", b))
                out.append((f, 28))
        return out, blocks

    def stage_list(self, srdb, VW, sg, sl, pairs, tag, tmp=98):
        a, vm = self.a, self.vm
        out = []
        for (lc, gc) in pairs:
            def f(lc=lc, gc=gc):
                a(f"s_add_u32 m0, s{sl}, {lc}"); a(f"s_add_u32 s{tmp}, s{sg}, {gc}")
                vm.issue(f"buffer_load_dwordx4 v{VW}, {srd(srdb)}, s{tmp} offen lds", tag=tag)
            out.append((f, 12))
        return out
    def pairs_small(self, ph, lds0=0):
        NB = 8 if ph == "B" else 14; rpb = 28 if ph == "B" else 32
        return [(lds0 + (kh*NB + b)*4096, (kh*NB + b)*rpb*896) for b in range(NB) for kh in range(2)]
    def pairs_win(self, img, lds0):
        return [(lds0 + k2*4096, k2*32*3584 + (1792 if img == 0 else 0)) for k2 in range(14)]
    def stage_setup(self, sct, rowbytes, sg, sl):
        a = self.a
        a(f"s_lshl_b32 s{sg}, s{sct}, 7"); a(f"s_mul_i32 s{sl}, s{S_WAVE}, {8*rowbytes}"); a(f"s_add_u32 s{sg}, s{sg}, s{sl}"); a(f"s_lshl_b32 s{sl}, s{S_WAVE}, 10")
    def ct7(self, dst):
        a = self.a
        a(f"s_mul_i32 s50, s{S_SLOT}, 37"); a("s_lshr_b32 s50, s50, 8"); a("s_mul_i32 s50, s50, 7"); a(f"s_sub_u32 s{dst}, s{S_SLOT}, s50")

    def map_BE(self, skip):
        a = self.a
        a(f"s_cmp_ge_u32 s{S_SLOT}, 28"); a(f"s_cbranch_scc1 {skip}")
        a(f"s_mul_i32 s50, s{S_SLOT}, 37"); a("s_lshr_b32 s50, s50, 8")
        a("s_mul_i32 s51, s50, 7"); a(f"s_sub_u32 s49, s{S_SLOT}, s51")
        a(f"s_lshl_b32 s48, s{S_XCD}, 2"); a("s_add_u32 s48, s48, s50")
        a(f"s_and_b32 s52, s{S_WAVE}, 1"); a("s_lshl_b32 s50, s48, 1"); a("s_add_u32 s52, s52, s50"); a(f"s_lshr_b32 s53, s{S_WAVE}, 1")

    def w128_lane(self, dst, rowbytes, t):
        a = self.a
        a(f"v_lshrrev_b32 v{t}, 3, v{V_LANE}"); a(f"v_mul_u32_u24 v{t}, {rowbytes}, v{t}")
        a(f"v_lshrrev_b32 v{t+1}, 4, v{V_LANE}"); a(f"v_and_b32 v{t+1}, 1, v{t+1}"); a(f"v_lshlrev_b32 v{t+1}, 2, v{t+1}")
        a(f"v_and_b32 v{t+2}, 7, v{V_LANE}"); a(f"v_xor_b32 v{t+2}, v{t+2}, v{t+1}"); a(f"v_lshlrev_b32 v{t+2}, 4, v{t+2}")
        a(f"v_add_u32 v{dst}, v{t}, v{t+2}")

    def w128_bases(self, B0, t, wave_bytes_reg=None, const=0):
        a = self.a
        a(f"v_lshrrev_b32 v{t}, 2, v{V_LANE}"); a(f"v_and_b32 v{t}, 3, v{t}")
        a(f"v_lshlrev_b32 v{t+1}, 2, v{V_HH}"); a(f"v_add_u32 v{t+1}, v{t+1}, v{t}"); a(f"v_lshlrev_b32 v{t+1}, 7, v{t+1}")
        a(f"v_lshrrev_b32 v{t+2}, 4, v{V_LANE}"); a(f"v_and_b32 v{t+2}, 1, v{t+2}"); a(f"v_lshlrev_b32 v{t+2}, 5, v{t+2}")
        a(f"v_add_u32 v{t+1}, v{t+1}, v{t+2}")
        a(f"v_and_b32 v{t+2}, 3, v{V_LANE}"); a(f"v_lshlrev_b32 v{t+2}, 3, v{t+2}"); a(f"v_add_u32 v{t+1}, v{t+1}, v{t+2}")
        a(f"v_lshrrev_b32 v{t}, 1, v{t}"); a(f"v_lshlrev_b32 v{t}, 6, v{t}")
        if wave_bytes_reg is not None: a(f"v_add_u32 v{t+1}, s{wave_bytes_reg}, v{t+1}")
        if const: a(f"v_add_u32 v{t+1}, {const}, v{t+1}")
        a(f"v_add_u32 v{B0}, v{t+1}, v{t}")
        a(f"v_xor_b32 v{t}, 64, v{t}"); a(f"v_add_u32 v{B0+1}, v{t+1}, v{t}")

    def small_phase(self, ph):
        a, vm, R = self.a, self.vm, self.R
        R.reset()
        isB = ph == "B"
        NB = 8 if isB else 14
        rows_per_blk = 28 if isB else 32
        SW = S_WO if isB else S_WOUT
        ACTB = OFR if isB else UFR; nact = 16 if isB else 28
        skip = f"L_skip{ph}"
        self.map_BE(skip)
        self.stamp(f"{ph}@0")
        t = R.alloc(4, 1); VW = R.alloc()
        self.w128_lane(VW, 896, t)
        a(f"s_{'mov_b32 s54, s49' if isB else 'lshl_b32 s54, s49, 1'}" if self.o.get("rot_" + ph.lower(), 0) else "s_mov_b32 s54, 0")
        a("s_lshl_b32 s55, s49, 7")
        a(f"s_lshl_b32 s58, s52, {4 if isB else 0}") if isB else a("s_mul_i32 s58, s52, 28")
        a(f"s_mul_i32 s50, s53, {NB}"); a("s_add_u32 s58, s58, s50"); a("s_lshl_b32 s58, s58, 11"); a(f"s_add_u32 s58, s58, {ACTB}")
        if isB:
            self.stage_setup(49, 896, 101, 100)
            for f, _ in self.stage_list(S_WO, VW, 101, 100, self.pairs_small("B"), "wo"): f()
            VWI = R.alloc(); self.w128_lane(VWI, 3584, t)
            a(f"s_cmp_ge_u32 s{S_SLOT}, 14"); a("s_cselect_b32 s50, 14, 0"); a(f"s_sub_u32 s99, s{S_SLOT}, s50")
            a("s_lshl_b32 s101, s99, 7")
            items = []
            for k2 in range(14):
                for q in range(4):
                    def it(st, k2=k2, q=q):
                        a(f"s_mov_b32 m0, {81920 + k2*4096 + q*1024}"); a(f"s_add_u32 s98, s101, {k2*32*3584 + 1792 + q*8*3584}")
                        a(f"buffer_load_dwordx4 v{VWI}, {srd(S_WIN)}, s98 offen lds")
                    items.append(it)
            self.dma_by_123(items, lambda n: "w2")
        XR = R.alloc(8)
        if isB:
            a(f"v_mul_u32_u24 v{t+3}, 896, v{V_L31}"); a(f"v_lshlrev_b32 v{t+2}, 3, v{V_HH}"); a(f"v_add_u32 v{t+3}, v{t+3}, v{t+2}")
            a(f"s_mul_i32 s54, s52, {32*896}"); a("s_lshl_b32 s50, s49, 7"); a("s_add_u32 s54, s54, s50"); a("s_lshl_b32 s50, s53, 6"); a("s_add_u32 s54, s54, s50")
            for g in range(4):
                vm.issue(f"buffer_load_dwordx2 {V(XR+2*g,2)}, v{t+3}, {srd(S_X)}, s54 offen offset:{g*16}", tag="xr")
        B0 = R.alloc(2, 1)
        a(f"s_mul_i32 s51, s53, {NB*4096}")
        self.w128_bases(B0, t, 51)
        if isB:
            a("s_lshr_b32 s55, s48, 1"); a("s_lshl_b32 s55, s55, 7"); a(f"s_add_u32 s55, s55, {F_O}"); self.poll(55, 16, drain=False)
        else:
            a("s_lshl_b32 s55, s48, 7"); a(f"s_add_u32 s55, s55, {F_U}"); self.poll(55, 7, drain=False)
        self.stamp(f"{ph}@1")
        ACT = R.alloc(8 * NB)
        a(f"s_{'mov_b32 s54, s49' if isB else 'lshl_b32 s54, s49, 1'}" if self.o.get("rot_" + ph.lower(), 0) else "s_mov_b32 s54, 0")
        def ld_act(k):
            b, st = k // 2, k % 2
            def f():
                if st == 0:
                    a(f"s_cmp_ge_u32 s54, {NB}"); a(f"s_cselect_b32 s50, {NB}, 0"); a("s_sub_u32 s54, s54, s50")
                    a("s_lshl_b32 s59, s54, 11"); a("s_add_u32 s59, s59, s58"); a("s_add_u32 s54, s54, 1")
                vm.issue(f"buffer_load_dwordx4 {V(ACT+8*b+4*st,4)}, v{V_L16}, {srd(S_WS)}, s59 offen offset:{st*1024} sc1", tag=("act", k))
            return [(f, 16 if st == 0 else 4)]
        PD = self.o.get("pd_small", 6)
        for k in range(PD):
            for f, _ in ld_act(k): f()
        def ld_res():
            a("s_lshl_b32 s50, s49, 1"); a("s_add_u32 s50, s50, s53"); a("s_mul_i32 s51, s52, 14"); a("s_add_u32 s50, s50, s51")
            a("s_lshl_b32 s55, s50, 11"); a(f"s_add_u32 s55, s55, {HFR}")
            for h in range(2):
                vm.issue(f"buffer_load_dwordx4 {V(XR+4*h,4)}, v{V_L16}, {srd(S_WS)}, s55 offen offset:{h*1024} sc1", tag="xr")
        vm.wait("wo" if isB else "wout"); a("s_barrier")
        ACC = R.alloc(32); WF = R.alloc(24)
        nk = 2 * NB
        def rd(k):
            out = []
            for c in range(2):
                for e in range(2):
                    r = WF + (k % 3)*8 + c*4 + e*2
                    out.append((f"ds_read_b64_tr_b16 v[{r}:{r+1}], v{B0+c} offset:{(k//2)*4096 + ((k%2)*16 + 8*e)*128}", 4))
            return out
        for k in range(2):
            for x, _ in rd(k): a(x)
        for k in range(nk):
            a(f"s_waitcnt lgkmcnt({4 if k + 1 < nk else 0})")
            vm.wait(("act", k))
            wb = WF + (k % 3) * 8
            mf = [f"{MFMA} {V(ACC+16*c,16)}, {V(wb+4*c,4)}, {V(ACT+4*k,4)}, {'0' if k == 0 else V(ACC+16*c,16)}" for c in range(2)]
            fill = (ld_act(k + PD) if k + PD < nk else []) + (rd(k + 2) if k + 2 < nk else [])
            if not isB and k == nk - PD: fill.append((ld_res, 32))
            self.sched(mf, fill)
        R.free(WF, 24); R.free(ACT, 8*NB)
        LEX = 65536 if isB else 114688
        a(f"s_lshl_b32 s50, s{S_WAVE}, 12"); a(f"s_add_u32 s50, s50, {LEX}"); a(f"v_add_u32 v{t}, s50, v{V_L16}")
        a(f"s_xor_b32 s51, s{S_WAVE}, 2"); a("s_lshl_b32 s51, s51, 12"); a(f"s_add_u32 s51, s51, {LEX}"); a(f"v_add_u32 v{t+1}, s51, v{V_L16}")
        La = a.label("L_x"); Lb = a.label("L_x")
        a(f"s_cmp_lt_u32 s{S_WAVE}, 2"); a(f"s_cbranch_scc1 {La}")
        for q in range(4): a(f"ds_write_b128 v{t}, {V(ACC+4*q,4)} offset:{q*1024}")
        a("s_nop 1")
        for r in range(0, 16, 2): a(f"v_pk_mul_f32 {V(ACC+r,2)}, {V(ACC+16+r,2)}, 1.0 op_sel_hi:[1,0]")
        a(f"s_branch {Lb}")
        a(f"{La}:")
        for q in range(4): a(f"ds_write_b128 v{t}, {V(ACC+16+4*q,4)} offset:{q*1024}")
        a(f"{Lb}:")
        a("s_waitcnt lgkmcnt(0)"); a("s_barrier")
        for q in range(4): a(f"ds_read_b128 {V(ACC+16+4*q,4)}, v{t+1} offset:{q*1024}")
        self.stamp(f"{ph}@2")
        T0 = R.alloc(); T1 = R.alloc(); PF = R.alloc(8); XF = R.alloc(16)
        vm.wait("xr")
        for d in range(8):
            a(f"v_lshlrev_b32 v{XF+2*d}, 16, v{XR+d}"); a(f"v_and_b32 v{XF+2*d+1}, 0xffff0000, v{XR+d}")
        for r in range(0, 16, 2): a(f"v_pk_add_f32 {V(ACC+r,2)}, {V(ACC+r,2)}, {V(XF+r,2)}")
        a("s_waitcnt lgkmcnt(0)")
        for r in range(0, 16, 2): a(f"v_pk_add_f32 {V(ACC+r,2)}, {V(ACC+r,2)}, {V(ACC+16+r,2)}")
        for d in range(8): a(f"v_cvt_pk_bf16_f32 v{PF+d}, v{ACC+2*d}, v{ACC+2*d+1}")
        if isB:
            a("s_lshl_b32 s50, s49, 1"); a("s_add_u32 s50, s50, s53"); a("s_mul_i32 s51, s52, 14"); a("s_add_u32 s50, s50, s51")
            a("s_lshl_b32 s55, s50, 11"); a(f"s_add_u32 s55, s55, {HFR}")
            for h in range(2):
                vm.issue(f"buffer_store_dwordx4 {V(PF+4*h,4)}, v{V_L16}, {srd(S_WS)}, s55 offen offset:{h*1024} sc1")
            PS = R.alloc(2); P2 = R.alloc(2)
            a(f"v_pk_add_f32 {V(PS,2)}, {V(ACC,2)}, {V(ACC+2,2)}"); a(f"v_pk_mul_f32 {V(P2,2)}, {V(ACC,2)}, {V(ACC,2)}")
            a(f"v_pk_fma_f32 {V(P2,2)}, {V(ACC+2,2)}, {V(ACC+2,2)}, {V(P2,2)}")
            for r in range(4, 16, 2):
                a(f"v_pk_add_f32 {V(PS,2)}, {V(PS,2)}, {V(ACC+r,2)}"); a(f"v_pk_fma_f32 {V(P2,2)}, {V(ACC+r,2)}, {V(ACC+r,2)}, {V(P2,2)}")
            a(f"v_add_f32 v{PS}, v{PS}, v{PS+1}"); a(f"v_add_f32 v{PS+1}, v{P2}, v{P2+1}")
            self.half_op(PS, T0); self.half_op(PS+1, T1)
            a(f"v_lshlrev_b32 v{T0}, 3, v{V_L31}")
            a("s_lshl_b32 s55, s50, 8"); a(f"s_add_u32 s55, s55, {HST}")
            vm.issue(f"buffer_store_dwordx2 {V(PS,2)}, v{T0}, {srd(S_WS)}, s55 offen sc1")
            a("s_lshr_b32 s55, s48, 1"); a("s_lshl_b32 s55, s55, 7"); a("s_and_b32 s50, s48, 1"); a("s_mul_i32 s50, s50, 7"); a("s_add_u32 s50, s50, s49")
            a("s_lshl_b32 s50, s50, 2"); a("s_add_u32 s55, s55, s50"); a(f"s_add_u32 s55, s55, {F_H}")
            self.set_flag(55)
        else:
            for p in range(2):
                a(f"v_permlane32_swap_b32 v{PF+4*p}, v{PF+4*p+2}"); a(f"v_permlane32_swap_b32 v{PF+4*p+1}, v{PF+4*p+3}")
            a(f"v_mul_u32_u24 v{T0}, 896, v{V_L31}"); a(f"v_lshlrev_b32 v{T1}, 4, v{V_HH}"); a(f"v_add_u32 v{T0}, v{T0}, v{T1}")
            a(f"s_mul_i32 s54, s52, {32*896}"); a("s_lshl_b32 s50, s49, 7"); a("s_add_u32 s54, s54, s50"); a("s_lshl_b32 s50, s53, 6"); a("s_add_u32 s54, s54, s50")
            for p in range(2):
                vm.issue(f"buffer_store_dwordx4 {V(PF+4*p,4)}, v{T0}, {srd(S_OUT)}, s54 offen offset:{p*32}")
        if isB: self.idle_prefetch(skip, 0)
        else: a(f"{skip}:")
        self.stamp(f"{ph}@3")

    def phase_B(self):
        self.a.c("================ phase B : h = x + o @ wo ================"); self.small_phase("B")
    def phase_E(self):
        self.a.c("================ phase E : out = h + u @ w_out ================"); self.small_phase("E")

    def phase_C(self):
        a, vm, R = self.a, self.vm, self.R
        R.reset()
        a.c("================ phase C : z = gelu(LN(h) @ w_in) ================")
        skip = "L_skipC"
        a(f"s_cmp_ge_u32 s{S_SLOT}, 28"); a(f"s_cbranch_scc1 {skip}")
        a(f"s_cmp_ge_u32 s{S_SLOT}, 14"); a("s_cselect_b32 s50, 1, 0")
        a("s_mul_i32 s51, s50, 14"); a(f"s_sub_u32 s49, s{S_SLOT}, s51")
        a(f"s_lshl_b32 s48, s{S_XCD}, 1"); a("s_add_u32 s48, s48, s50")
        a(f"s_lshl_b32 s52, s48, 2"); a(f"s_add_u32 s52, s52, s{S_WAVE}")
        self.stamp("C@0")
        IMG = (81920, 0)
        LCS = 57344; LTR = LCS + 512
        t = R.alloc(4, 1); VW = R.alloc()
        self.w128_lane(VW, 3584, t)
        self.stage_setup(49, 3584, 101, 100)
        for f, _ in self.stage_list(S_WIN, VW, 101, 100, self.pairs_win(1, IMG[1]), "w"): f()
        B2 = R.alloc(2, 1); B1 = R.alloc(2, 1)
        self.w128_bases(B2, t, None, IMG[0])
        for c in range(2): a(f"v_subrev_u32 v{B1+c}, {IMG[0] - IMG[1]}, v{B2+c}")
        ONES = R.alloc(4)
        for k in range(4): a(f"v_mov_b32 v{ONES+k}, 0x3f803f80")
        BC = R.alloc(); CSA = R.alloc(16)
        a(f"s_lshr_b32 s50, s{S_WAVE}, 1"); a(f"s_mul_i32 s50, s50, {IMG[0] - IMG[1]}")
        a(f"s_and_b32 s51, s{S_WAVE}, 1"); a("s_cmp_eq_u32 s51, 0")
        a(f"v_mov_b32 v{BC}, v{B2+1}"); a("s_cselect_b64 vcc, -1, 0"); a(f"v_cndmask_b32 v{BC}, v{BC}, v{B2}, vcc"); a(f"v_subrev_u32 v{BC}, s50, v{BC}")
        WC = R.alloc(16)
        self.stamp("Cv")
        vm.wait("w"); a("s_barrier")
        self.stamp("Cw")
        def rdc(k): return [(f"ds_read_b64_tr_b16 v[{WC+(k%4)*4+e*2}:{WC+(k%4)*4+e*2+1}], v{BC} offset:{k*2048 + e*1024}", 4) for e in range(2)]
        for k in range(3):
            for x, _ in rdc(k): a(x)
        for k in range(28):
            a(f"s_waitcnt lgkmcnt({min(4, 2*(27-k))})")
            self.sched([f"{MFMA} {V(CSA,16)}, {V(WC+(k%4)*4,4)}, {V(ONES,4)}, {'0' if k == 0 else V(CSA,16)}"], rdc(k + 3) if k + 3 < 28 else [])
        a(f"v_lshlrev_b32 v{t}, 4, v{V_HH}"); a(f"s_lshl_b32 s50, s{S_WAVE}, 7"); a(f"s_add_u32 s50, s50, {LCS}"); a(f"v_add_u32 v{t}, s50, v{t}")
        a("s_mov_b32 exec_lo, 1"); a("s_mov_b32 exec_hi, 1")
        for gg in range(4): a(f"ds_write_b128 v{t}, {V(CSA+4*gg,4)} offset:{gg*32}")
        a("s_mov_b64 exec, -1")
        a("s_waitcnt lgkmcnt(0)")
        self.stamp("Cc")
        R.free(CSA, 16); R.free(WC, 16)
        a(f"s_lshl_b32 s55, s48, 7"); a(f"s_add_u32 s55, s55, {F_H}")
        self.poll(55, 14, drain=False)
        self.stamp("C@1")
        T0 = R.alloc(); T1 = R.alloc()
        HS = R.alloc(14, 2)
        a("s_mul_i32 s55, s52, 14"); a("s_lshl_b32 s54, s55, 11"); a(f"s_add_u32 s54, s54, {HFR}")
        a("s_lshl_b32 s58, s49, 1" if self.o.get("rot_c", 0) else "s_mov_b32 s58, 0")
        def ld_h(k):
            def f():
                a("s_cmp_ge_u32 s58, 28"); a("s_cselect_b32 s50, 28, 0"); a("s_sub_u32 s58, s58, s50")
                a("s_lshl_b32 s56, s58, 10"); a("s_add_u32 s56, s56, s54")
                vm.issue(f"buffer_load_dwordx4 {A(4*k,4)}, v{V_L16}, {srd(S_WS)}, s56 offen sc1", tag=("act", k))
                a("s_add_u32 s58, s58, 1")
            return [(f, 24)]
        def ld_hs():
            a(f"v_mul_u32_u24 v{T0}, {7*256}, v{V_HH}"); a(f"v_lshlrev_b32 v{T1}, 3, v{V_L31}"); a(f"v_add_u32 v{T0}, v{T0}, v{T1}")
            a("s_lshl_b32 s55, s55, 8"); a(f"s_add_u32 s55, s55, {HST}")
            for q in range(7):
                vm.issue(f"buffer_load_dwordx2 {V(HS+2*q,2)}, v{T0}, {srd(S_WS)}, s55 offen offset:{q*256} sc1", tag="hs")
        PD = self.o.get("pd_c", 10)
        for k in range(PD):
            for f, _ in ld_h(k): f()
        self.stamp("Ci")
        Z = R.alloc(64)
        WG = R.alloc(24)
        def rd(k, B, kk):
            out = []
            for c in range(2):
                for e in range(2):
                    r = WG + (kk % 3)*8 + c*4 + e*2
                    out.append((f"ds_read_b64_tr_b16 v[{r}:{r+1}], v{B+c} offset:{k*2048 + e*1024}", 4))
            return out
        CSR = R.alloc(32); VT = R.alloc()
        a(f"v_lshlrev_b32 v{VT}, 4, v{V_HH}"); a(f"v_add_u32 v{VT}, {LCS}, v{VT}")
        for x, _ in rd(0, B2, 0) + rd(1, B2, 1): a(x)
        MEAN = R.alloc(2); RSTD = MEAN + 1
        K0 = R.alloc(2); S0 = R.alloc(2); Q0 = R.alloc(2); TT = R.alloc(8)
        k0 = -2.0 * LOG2E * math.sqrt(2 / math.pi); k1 = k0 * 0.044715
        pre = [(lambda: vm.wait("hs"), 4), (f"v_mov_b32 v{MEAN}, v{HS}", 4), (f"v_mov_b32 v{RSTD}, v{HS+1}", 4)]
        for q in range(1, 7): pre += [(f"v_add_f32 v{MEAN}, v{MEAN}, v{HS+2*q}", 4), (f"v_add_f32 v{RSTD}, v{RSTD}, v{HS+2*q+1}", 4)]
        pre += [(lambda: self.half_op(MEAN, T0), 16), (lambda: self.half_op(RSTD, T1), 16)]
        pre += [(f"v_mul_f32 v{MEAN}, {lit(1/448)}, v{MEAN}", 4), (f"v_mul_f32 v{RSTD}, {lit(1/448)}, v{RSTD}", 4), (f"v_fma_f32 v{RSTD}, -v{MEAN}, v{MEAN}, v{RSTD}", 4),
                (f"v_max_f32 v{RSTD}, 0, v{RSTD}", 4), (f"v_add_f32 v{RSTD}, {lit(1e-5)}, v{RSTD}", 4), (f"v_rsq_f32 v{RSTD}, v{RSTD}", 8),
                (f"s_mov_b32 s62, {lit(k1)}", 4), (f"s_mov_b32 s63, {lit(k1)}", 4), (f"v_mov_b32 v{K0}, {lit(k0)}", 4), (f"v_mov_b32 v{K0+1}, {lit(k0)}", 4)]
        for k in range(28):
            a(f"s_waitcnt lgkmcnt({4 if k + 1 < 28 else 0})")
            vm.wait(("act", k))
            if k in (0, 7, 14, 21): self.stamp(f"Ck{k}")
            wb = WG + (k % 3) * 8
            fill = (ld_h(k + PD) if k + PD < 28 else []) + (rd(k + 2, B2, k + 2) if k + 2 < 28 else rd(k + 2 - 28, B1, k + 2))
            if k == 28 - PD: fill.append((ld_hs, 48))
            if k == 26: fill += [(f"ds_read_b128 {V(CSR+16*c+4*gg,4)}, v{VT} offset:{c*128+gg*32}", 4) for c in range(2) for gg in range(4)]
            mf = [f"{MFMA} {V(Z+16*c,16)}, {V(wb+4*c,4)}, {A(4*k,4)}, {'0' if k == 0 else V(Z+16*c,16)}" for c in range(2)]
            self.sched(mf, fill)
        for f, _ in pre: self.emit_fill(f)
        a("s_barrier")
        self.stamp("C@2")
        self.d_map(); self.DVE = R.alloc(); self.DVO = R.alloc(); td = R.alloc(4, 1)
        self.d_lanes(self.DVE, self.DVO, td); R.free(td, 4)
        allit, self.d_early_blocks = self.d_early_items(self.DVE, self.DVO)
        now = []; later = []
        for n, (b, kh) in enumerate(self.d_early_blocks):
            (now if (kh == 1 or b == 7) else later).extend(allit[2*n:2*n+2])
        n_g = self.o.get("early_in_gelu", 0)
        if self.o.get("stage_after", 1):
            now = []; later = allit
        touch = now[:n_g]; now = now[n_g:]
        PF = R.alloc(16)
        def gelu_pk(zbase, pack, marks=None):
            nonlocal touch
            ins = []
            for r0 in range(0, 32, 8):
                zs = [zbase + r0 + 2*i for i in range(4)]; cs = [CSR + r0 + 2*i for i in range(4)]
                ins += [f"v_pk_fma_f32 {V(z,2)}, {V(MEAN,2)}, {V(c,2)}, {V(z,2)} op_sel_hi:[0,1,1] neg_lo:[1,0,0] neg_hi:[1,0,0]" for z, c in zip(zs, cs)]
                ins += [f"v_pk_mul_f32 {V(z,2)}, {V(z,2)}, {V(MEAN,2)} op_sel:[0,1] op_sel_hi:[1,1]" for z in zs]
                ins += [f"v_pk_mul_f32 {V(TT+2*i,2)}, {V(z,2)}, {V(z,2)}" for i, z in enumerate(zs)]
                ins += [f"v_pk_fma_f32 {V(TT+2*i,2)}, {V(TT+2*i,2)}, s[62:63], {V(K0,2)}" for i in range(4)]
                ins += [f"v_pk_mul_f32 {V(TT+2*i,2)}, {V(TT+2*i,2)}, {V(z,2)}" for i, z in enumerate(zs)]
                ins += [f"v_exp_f32 v{TT+i}, v{TT+i}" for i in range(8)]
                ins += [f"v_pk_add_f32 {V(TT+2*i,2)}, {V(TT+2*i,2)}, 1.0 op_sel_hi:[1,0]" for i in range(4)]
                ins += [f"v_rcp_f32 v{TT+i}, v{TT+i}" for i in range(8)]
                ins += [f"v_pk_mul_f32 {V(z,2)}, {V(z,2)}, {V(TT+2*i,2)}" for i, z in enumerate(zs)]
                if pack:
                    ins += [f"v_cvt_pk_bf16_f32 v{PF + r0//2 + i}, v{z}, v{z+1}" for i, z in enumerate(zs)]
                else:
                    for i, z in enumerate(zs):
                        if r0 == 0 and i == 0:
                            ins += [f"v_pk_mul_f32 {V(Q0,2)}, {V(z,2)}, {V(z,2)}", f"v_pk_mul_f32 {V(S0,2)}, {V(z,2)}, 1.0 op_sel_hi:[1,0]"]
                        else:
                            ins += [f"v_pk_fma_f32 {V(Q0,2)}, {V(z,2)}, {V(z,2)}, {V(Q0,2)}", f"v_pk_add_f32 {V(S0,2)}, {V(S0,2)}, {V(z,2)}"]
                if marks and r0 in marks: ins.append(marks[r0])
            gap = self.o.get("early_gap", 14)
            for n, x in enumerate(ins):
                self.emit_fill(x)
                if touch and n % gap == gap - 1:
                    self.emit_fill(touch[0][0]); touch = touch[1:]
        a("s_waitcnt lgkmcnt(0)") if False else None
        a("s_waitcnt lgkmcnt(8)")
        a("s_waitcnt lgkmcnt(0)")
        gelu_pk(Z, False)
        G = R.alloc(4)
        a(f"v_add_f32 v{G}, v{S0}, v{S0+1}"); a(f"v_add_f32 v{G+1}, v{Q0}, v{Q0+1}")
        self.half_op(G, T0); self.half_op(G+1, T1)
        a(f"v_mov_b32 v{G+2}, s{S_TAG}"); a(f"v_mov_b32 v{G+3}, s{S_TAG}")
        a("s_mul_i32 s55, s48, 14"); a("s_add_u32 s55, s55, s49"); a("s_lshl_b32 s55, s55, 11"); a(f"s_lshl_b32 s50, s{S_WAVE}, 9"); a("s_add_u32 s55, s55, s50")
        a(f"s_add_u32 s55, s55, {STATS}"); a(f"v_lshlrev_b32 v{T1}, 4, v{V_L31}")
        vm.issue(f"buffer_store_dwordx4 {V(G,4)}, v{T1}, {srd(S_WS)}, s55 offen sc1")
        self.stamp("C@3")
        GR = R.alloc(28)
        a(f"v_mul_u32_u24 v{T0}, {7*2048}, v{V_HH}"); a(f"v_add_u32 v{T1}, v{T1}, v{T0}")
        a("s_mul_i32 s55, s48, 14"); a("s_lshl_b32 s55, s55, 11"); a(f"s_lshl_b32 s50, s{S_WAVE}, 9"); a("s_add_u32 s55, s55, s50"); a(f"s_add_u32 s55, s55, {STATS}")
        def gr_loads():
            a("s_mov_b32 s54, s55")
            for q in range(7):
                if q and q % 2 == 0: a("s_add_u32 s54, s54, 4096")
                vm.issue(f"buffer_load_dwordx4 {V(GR+4*q,4)}, v{T1}, {srd(S_WS)}, s54 offen offset:{(q%2)*2048} sc1", tag="gr")
        WA = R.alloc(4, 1); RA = R.alloc(2, 1); U0 = R.alloc(); U1 = R.alloc(); U2 = R.alloc()
        adr = []
        adr += [f"s_lshl_b32 s68, s{S_WAVE}, 12", f"s_add_u32 s68, s68, {LTR}",
                f"v_lshrrev_b32 v{U0}, 1, v{V_L31}", f"v_and_b32 v{U0}, 7, v{U0}", f"v_xor_b32 v{U0}, v{U0}, v{V_HH}", f"v_lshlrev_b32 v{U0}, 3, v{U0}",
                f"v_lshlrev_b32 v{WA}, 6, v{V_L31}", f"v_add_u32 v{WA}, v{WA}, v{U0}", f"v_add_u32 v{WA}, s68, v{WA}"]
        adr += [f"v_xor_b32 v{WA+g}, {g<<4}, v{WA}" for g in range(1, 4)]
        adr += [f"v_lshrrev_b32 v{U0}, 2, v{V_LANE}", f"v_and_b32 v{U0}, 3, v{U0}", f"v_lshlrev_b32 v{U1}, 3, v{V_HH}", f"v_add_u32 v{U1}, v{U1}, v{U0}", f"v_lshlrev_b32 v{RA}, 6, v{U1}",
                f"v_lshrrev_b32 v{U0}, 1, v{U0}", f"v_lshlrev_b32 v{U1}, 2, v{V_HH}", f"v_add_u32 v{U0}, v{U0}, v{U1}",
                f"v_lshrrev_b32 v{U1}, 4, v{V_LANE}", f"v_and_b32 v{U1}, 1, v{U1}", f"v_lshlrev_b32 v{U1}, 2, v{U1}", f"v_and_b32 v{U2}, 3, v{V_LANE}", f"v_add_u32 v{U1}, v{U1}, v{U2}",
                f"v_xor_b32 v{U0}, v{U0}, v{U1}", f"v_lshlrev_b32 v{U0}, 3, v{U0}", f"v_add_u32 v{RA}, v{RA}, v{U0}", f"v_add_u32 v{RA}, s68, v{RA}", f"v_xor_b32 v{RA+1}, 16, v{RA}"]
        adr = [(x, 4) for x in adr]
        for k in range(28):
            kk = k + 28
            a(f"s_waitcnt lgkmcnt({4 if (k + 1 < 28 and k > 0) else 0})")
            wb = WG + (kk % 3) * 8
            fill = rd(k + 2, B1, kk + 2) if k + 2 < 28 else []
            if k == self.o.get("gr_at", 12): fill.append((gr_loads, 40))
            if k == 24: fill += [(f"ds_read_b128 {V(CSR+16*c+4*gg,4)}, v{VT} offset:{256+c*128+gg*32}", 4) for c in range(2) for gg in range(4)]
            fill += adr[:2]; adr = adr[2:]
            if k == 0: touch = touch + now
            if touch and k >= self.o.get("early_k0", 2): fill.append(touch[0]); touch = touch[1:]
            mf = [f"{MFMA} {V(Z+32+16*c,16)}, {V(wb+4*c,4)}, {A(4*k,4)}, {'0' if k == 0 else V(Z+32+16*c,16)}" for c in range(2)]
            self.sched(mf, fill)
        for f, _ in adr: self.emit_fill(f)
        for f, _ in touch: self.emit_fill(f)
        touch = []
        R.free(WG, 24); R.free(HS, 14)
        self.stamp("C@4")
        Lp = a.label("L_sp"); Ld = a.label("L_sd")
        vm.wait("gr")
        a("s_mov_b32 s70, 0"); a(f"{Lp}:")
        a(f"v_xor_b32 v{T0}, s{S_TAG}, v{GR+2}")
        for q in range(1, 7):
            a(f"v_xor_b32 v{G}, s{S_TAG}, v{GR+4*q+2}"); a(f"v_or_b32 v{T0}, v{T0}, v{G}")
        a(f"v_cmp_ne_u32 vcc, 0, v{T0}"); a(f"s_cbranch_vccz {Ld}")
        a("s_mov_b32 s54, s55")
        for q in range(7):
            if q and q % 2 == 0: a("s_add_u32 s54, s54, 4096")
            a(f"buffer_load_dwordx4 {V(GR+4*q,4)}, v{T1}, {srd(S_WS)}, s54 offen offset:{(q%2)*2048} sc1")
        a("s_waitcnt vmcnt(0)")
        a("s_add_u32 s70, s70, 1"); a("s_cmp_lt_u32 s70, 20000"); a(f"s_cbranch_scc1 {Lp}")
        a(f"{Ld}:")
        self.stamp("C@s")
        for q in range(1, 7): a(f"v_pk_add_f32 {V(GR,2)}, {V(GR,2)}, {V(GR+4*q,2)}")
        self.half_op(GR, T0); self.half_op(GR+1, G)
        M3, R3 = GR, GR+1
        a(f"v_mul_f32 v{M3}, {lit(1/896)}, v{M3}"); a(f"v_mul_f32 v{R3}, {lit(1/896)}, v{R3}")
        a(f"v_fma_f32 v{R3}, -v{M3}, v{M3}, v{R3}"); a(f"v_max_f32 v{R3}, 0, v{R3}")
        a(f"v_add_f32 v{R3}, {lit(1e-5)}, v{R3}"); a(f"v_rsq_f32 v{R3}, v{R3}")
        a("s_nop 0")
        a(f"v_mul_f32 v{M3}, v{M3}, v{R3}")
        PZ = R.alloc(16)
        for c in range(2):
            for r in range(0, 16, 2): a(f"v_pk_fma_f32 {V(Z+16*c+r,2)}, {V(Z+16*c+r,2)}, {V(M3,2)}, {V(M3,2)} op_sel:[0,1,0] op_sel_hi:[1,1,0] neg_lo:[0,0,1] neg_hi:[0,0,1]")
            for d in range(8): a(f"v_cvt_pk_bf16_f32 v{PZ+8*c+d}, v{Z+16*c+2*d}, v{Z+16*c+2*d+1}")
            for g in range(4): a(f"ds_write_b64 v{WA+g}, {V(PZ+8*c+2*g,2)} offset:{c*2048}")
        a("s_waitcnt lgkmcnt(0)")
        for c in range(2):
            for st in range(2):
                for e in range(2):
                    r = PZ + 8*c + 4*st + 2*e
                    a(f"ds_read_b64_tr_b16 v[{r}:{r+1}], v{RA+e} offset:{c*2048 + st*1024 + e*256}")
        for c in range(2):
            a("s_lshl_b32 s55, s49, 1"); a(f"s_add_u32 s55, s55, {c}"); a("s_lshl_b32 s55, s55, 6"); a("s_add_u32 s55, s55, s52"); a("s_lshl_b32 s55, s55, 11"); a(f"s_add_u32 s55, s55, {Z2F}")
            a(f"s_waitcnt lgkmcnt({4 if c == 0 else 0})")
            for st in range(2):
                vm.issue(f"buffer_store_dwordx4 {V(PZ+8*c+4*st,4)}, v{V_L16}, {srd(S_WS)}, s55 offen offset:{st*1024} sc1", tag="z2st")
        a("s_barrier")
        touch = later
        a("s_lshl_b32 s55, s49, 7"); a("s_lshl_b32 s50, s48, 2"); a("s_add_u32 s55, s55, s50"); a(f"s_add_u32 s55, s55, {F_Z}")
        def flag_now():
            self.set_flag(55, tag="z2st"); self.stamp("C@5")
        gelu_pk(Z + 32, True, {self.o.get("zflag_at", 8): flag_now})
        a("s_mul_i32 s56, s52, 28"); a("s_lshl_b32 s50, s49, 1"); a("s_add_u32 s56, s56, s50"); a("s_lshl_b32 s56, s56, 11"); a(f"s_add_u32 s56, s56, {Z1F}")
        for q in range(4):
            vm.issue(f"buffer_store_dwordx4 {V(PF+4*q,4)}, v{V_L16}, {srd(S_WS)}, s56 offen offset:{q*1024} sc1", tag="z1st")
        for f, _ in touch: self.emit_fill(f)
        self.idle_prefetch(skip, 1)
        self.stamp("C@6")

    def phase_D(self):
        a, vm, R = self.a, self.vm, self.R
        R.reset()
        a.c("================ phase D : g = w_sp @ z2n + b ; u = z1*g ================")
        skip = "L_skipD"
        a(f"s_cmp_ge_u32 s{S_SLOT}, 28"); a(f"s_cbranch_scc1 {skip}")
        self.d_map()
        a("s_mov_b32 s49, s94"); a("s_mov_b32 s48, s95"); a("s_mov_b32 s54, s96")
        self.stamp("D@0")
        NS = 8
        a(f"s_lshr_b32 s53, s{S_WAVE}, 1"); a(f"s_and_b32 s52, s{S_WAVE}, 1")
        t = R.alloc(4, 1); VE = R.alloc(); VO = R.alloc()
        self.d_lanes(VE, VO, t)
        a("s_lshl_b32 s55, s48, 18"); a("s_lshl_b32 s50, s53, 11"); a("s_add_u32 s55, s55, s50"); a("s_lshl_b32 s50, s52, 17"); a("s_add_u32 s55, s55, s50")
        a("s_mul_i32 s57, s53, 81920"); a("s_lshl_b32 s50, s52, 12"); a("s_add_u32 s57, s57, s50")
        a("s_mov_b32 s67, 147456"); a("s_cmp_eq_u32 s53, 0"); a(f"s_cselect_b32 s67, s67, {81920 + 7*8192}"); a("s_add_u32 s67, s67, s50")
        def blk_idx(b, dst):
            a(f"s_add_u32 s{dst}, s54, {b}"); a(f"s_and_b32 s{dst}, s{dst}, 15")
        def dma(b):
            out = []
            def pre(): blk_idx(b, 58); a("s_lshl_b32 s58, s58, 7"); a("s_add_u32 s58, s58, s55")
            out.append((pre, 16))
            for q in range(4):
                def f(q=q):
                    if b % NS < 7: a(f"s_add_u32 m0, s57, {(b%NS)*8192 + q*1024}")
                    else: a(f"s_add_u32 m0, s67, {q*1024}")
                    a(f"s_add_u32 s56, s58, {q*8*4096}")
                    vm.issue(f"buffer_load_dwordx4 v{VE if q%2==0 else VO}, {srd(S_WSP)}, s56 offen lds", tag=("w", b))
                out.append((f, 16))
            return out
        early = set(self.d_early_blocks) if self.o.get("early_d", 1) else set()
        NPRE = NS if early else self.o.get("npre", 4)
        a("s_lshl_b32 s61, s48, 18")
        items = []; tags = []
        for b in range(NPRE):
            for kh_ in range(2):
                if (b, kh_) in early: continue
                for q in range(8):
                    def it(st, b=b, kh_=kh_, q=q):
                        if st.get("b") != b:
                            blk_idx(b, 58); a("s_lshl_b32 s58, s58, 7"); a("s_add_u32 s58, s58, s61"); st["b"] = b
                        a(f"s_mov_b32 m0, {self.d_slot(kh_, b) + q*1024}"); a(f"s_add_u32 s56, s58, {kh_*2048 + q*8*4096}")
                        a(f"buffer_load_dwordx4 v{VE if q%2==0 else VO}, {srd(S_WSP)}, s56 offen lds")
                    items.append(it); tags.append(("w", b))
        if items: self.dma_by_123(items, lambda n: tags[n])
        FA = R.alloc(4, 1)
        a(f"v_lshrrev_b32 v{t}, 1, v{V_L31}"); a(f"v_and_b32 v{t}, 7, v{t}"); a(f"v_xor_b32 v{t}, v{t}, v{V_HH}"); a(f"v_lshlrev_b32 v{t}, 4, v{t}")
        a(f"v_lshlrev_b32 v{FA}, 7, v{V_L31}"); a(f"v_add_u32 v{FA}, v{FA}, v{t}")
        FA7 = R.alloc(4, 1)
        a("s_lshl_b32 s50, s52, 12"); a("s_sub_u32 s51, s67, s50"); a(f"v_add_u32 v{FA7}, s51, v{FA}")
        a("s_sub_u32 s51, s57, s50"); a(f"v_add_u32 v{FA}, s51, v{FA}")
        for s in range(1, 4): a(f"v_xor_b32 v{FA+s}, {s*32}, v{FA}"); a(f"v_xor_b32 v{FA7+s}, {s*32}, v{FA7}")
        BI = R.alloc()
        a(f"v_lshlrev_b32 v{t}, 1, v{V_L31}"); a("s_lshl_b32 s50, s48, 7"); a("s_lshl_b32 s51, s53, 6"); a("s_add_u32 s50, s50, s51")
        vm.issue(f"buffer_load_ushort v{BI}, v{t}, {srd(S_BSP)}, s50 offen", tag="bi")
        VZ = R.alloc(2, 1)
        a("s_lshl_b32 s50, s49, 2"); a("s_lshl_b32 s51, s52, 1"); a("s_add_u32 s50, s50, s51"); a("s_lshl_b32 s50, s50, 6"); a("s_lshl_b32 s51, s53, 5"); a("s_add_u32 s50, s50, s51")
        a("s_lshl_b32 s50, s50, 11"); a(f"s_add_u32 s50, s50, {Z2F}"); a(f"v_add_u32 v{VZ}, s50, v{V_L16}"); a(f"v_add_u32 v{VZ+1}, {64*2048}, v{VZ}")
        a(f"v_and_b32 v9, 7, v{V_LANE}"); a("v_lshlrev_b32 v9, 2, v9")
        a("s_lshl_b32 s66, s49, 1"); a("s_add_u32 s66, s66, s52"); a("s_lshl_b32 s66, s66, 7"); a("s_lshl_b32 s50, s53, 5"); a("s_add_u32 s66, s66, s50"); a(f"s_add_u32 s66, s66, {F_Z}")
        if self.o.get("prog_d", 1):
            self.gate_first(0)
        else:
            a(f"v_and_b32 v9, 15, v{V_LANE}"); a("v_lshlrev_b32 v9, 2, v9"); a(f"v_lshrrev_b32 v{t}, 4, v{V_LANE}"); a(f"v_and_b32 v{t}, 1, v{t}"); a(f"v_lshlrev_b32 v{t}, 7, v{t}"); a(f"v_add_u32 v9, v9, v{t}")
            a("s_lshl_b32 s59, s49, 8"); a(f"s_add_u32 s59, s59, {F_Z}")
            self.poll(59, 32, voff=9, drain=False)
        self.stamp("D@1")
        ND = self.o.get("nd", 12)
        ZR = R.alloc(8 * ND); WF = R.alloc(24); Z1 = R.alloc(16)
        def ldz(k):
            out = []
            b, sp = k // 4, k % 4
            if self.o.get("prog_d", 1):
                if k % 8 == 0 and k > 0:
                    def chk(k=k):
                        self.gate_update(); self.gate_check(k // 8)
                    out.append((chk, 16))
                if k % 8 == 3 and k // 8 + 1 < 8: out.append((self.gate_refresh, 8))
            if sp == 0:
                def pre(): blk_idx(b, 60 + (b % 4)); a(f"s_lshl_b32 s{60 + (b % 4)}, s{60 + (b % 4)}, 12")
                out.append((pre, 12))
            for c in range(2):
                def f(c=c):
                    r = ZR + 8*(k % ND) + 4*c
                    vm.issue(f"buffer_load_dwordx4 {V(r,4)}, v{VZ+c}, {srd(S_WS)}, s{60 + (b % 4)} offen offset:{sp*1024} sc1", tag=("z", k))
                out.append((f, 8))
            return out
        def rdw(k):
            b, sp = k // 4, k % 4
            if b % NS == 7: return [(f"ds_read_b128 {V(WF+(k%3)*8+tc*4,4)}, v{FA7+sp} offset:{tc*4096}", 4) for tc in range(2)]
            return [(f"ds_read_b128 {V(WF+(k%3)*8+tc*4,4)}, v{FA+sp} offset:{(b%NS)*8192 + tc*4096}", 4) for tc in range(2)]
        INIT = 4
        for k in range(INIT):
            for f, _ in ldz(k): f()
        nz = INIT
        wout = []
        vm.wait(("w", 0)); a("s_barrier")
        def z1flag():
            Lz = a.label("L_z1f")
            a(f"s_cmp_lg_u32 s{S_WAVE}, 0"); a(f"s_cbranch_scc1 {Lz}")
            a(f"s_cmp_ge_u32 s{S_SLOT}, 14"); a("s_cselect_b32 s50, 1, 0"); a("s_mul_i32 s51, s50, 14"); a(f"s_sub_u32 s51, s{S_SLOT}, s51")
            a(f"s_lshl_b32 s68, s{S_XCD}, 1"); a("s_add_u32 s50, s50, s68"); a("s_lshl_b32 s50, s50, 2"); a("s_lshl_b32 s51, s51, 7"); a("s_add_u32 s50, s50, s51"); a(f"s_add_u32 s50, s50, {F_Z1}")
            a(f"v_mov_b32 v{t}, s{S_TAG}"); a(f"v_mov_b32 v{t+1}, 0"); a("s_mov_b64 exec, 1")
            a(f"buffer_store_dword v{t}, v{t+1}, {srd(S_WS)}, s50 offen sc1")
            a("s_mov_b64 exec, -1"); a(f"{Lz}:")
        for k in range(2):
            for x, _ in rdw(k): a(x)
        nbw = NPRE
        for k in range(64):
            b, sp = k // 4, k % 4
            fill = []
            a(f"s_waitcnt lgkmcnt({2 if k + 1 < 64 else 0})")
            vm.wait(("z", k))
            if k + 2 < 64:
                if (k + 2) % 4 == 0:
                    nb = (k + 2) // 4
                    def rdy(nb=nb):
                        if nb == 3: vm.wait("z1st")
                        vm.wait(("w", nb)); a("s_barrier")
                        if nb == 3: z1flag()
                    fill.append((rdy, 8))
                fill += rdw(k + 2)
            for _ in range(2):
                if nz < 64 and nz <= k + ND - 1:
                    fill += ldz(nz); nz += 1
            if k == 59:
                def z1loads():
                    self.gate_update(); self.gate_check(0)
                    a("s_lshl_b32 s50, s48, 1"); a("s_add_u32 s50, s50, s53"); a("s_mul_i32 s50, s50, 28"); a("s_lshl_b32 s51, s49, 2"); a("s_add_u32 s50, s50, s51"); a("s_lshl_b32 s51, s52, 1"); a("s_add_u32 s50, s50, s51")
                    a("s_lshl_b32 s69, s50, 11"); a(f"s_add_u32 s50, s69, {Z1F}")
                    for q in range(4):
                        vm.issue(f"buffer_load_dwordx4 {V(Z1+4*q,4)}, v{V_L16}, {srd(S_WS)}, s50 offen offset:{q*1024} sc1", tag="z1")
                fill.append((z1loads, 64))
            if k == 54:
                def z1gate():
                    a("s_lshr_b32 s50, s48, 1"); a("s_lshl_b32 s50, s50, 2"); a("s_lshl_b32 s66, s49, 1"); a("s_add_u32 s66, s66, s52"); a("s_lshl_b32 s66, s66, 7")
                    a("s_add_u32 s66, s66, s50"); a(f"s_add_u32 s66, s66, {F_Z1}"); a("v_mov_b32 v9, 0"); self.gate_refresh()
                fill.append((z1gate, 32))
            if sp in (1, 3) and nbw < 16 and (nbw < NS or (sp == 3 and nbw - NS <= b - 1)):
                fill += dma(nbw); nbw += 1
            wb = WF + (k % 3) * 8; zb = ZR + 8*(k % ND)
            mf = []
            for c in range(2):
                for tc in range(2):
                    acc = A(32*c + 16*tc, 16)
                    mf.append(f"{MFMA} {acc}, {V(zb+4*c,4)}, {V(wb+4*tc,4)}, {'0' if k == 0 else acc}")
            self.sched(mf, fill)
        self.stamp("D@2")
        R.free(ZR, 8*ND); R.free(WF, 24)
        a("s_barrier")
        a(f"s_lshl_b32 s50, s{S_WAVE}, 13"); a("s_add_u32 s50, s50, 131072"); a(f"v_add_u32 v{t}, s50, v{V_L16}")
        a(f"s_xor_b32 s51, s{S_WAVE}, 2"); a("s_lshl_b32 s51, s51, 13"); a("s_add_u32 s51, s51, 131072"); a(f"v_add_u32 v{t+1}, s51, v{V_L16}")
        VWO = R.alloc(); tw = R.alloc(4, 1)
        self.w128_lane(VWO, 896, tw); R.free(tw, 4)
        self.stage_setup(49, 896, 101, 100)
        wo_items = self.stage_list(S_WOUT, VWO, 101, 100, self.pairs_small("E"), "wout")
        def some(n):
            nonlocal wo_items
            for f, _ in wo_items[:n]: f()
            wo_items = wo_items[n:]
        G = R.alloc(32); TM = R.alloc(32)
        La = a.label("L_x"); Lb = a.label("L_x")
        a("s_cmp_eq_u32 s53, 0"); a(f"s_cbranch_scc1 {La}")
        for c in range(2):
            for q in range(4): a(f"ds_write_b128 v{t}, {A(32*c+4*q,4)} offset:{c*4096+q*1024}")
        for c in range(2):
            for r in range(16): a(f"v_accvgpr_read_b32 v{G+16*c+r}, a{32*c+16+r}")
        a(f"s_branch {Lb}")
        a(f"{La}:")
        for c in range(2):
            for q in range(4): a(f"ds_write_b128 v{t}, {A(32*c+16+4*q,4)} offset:{c*4096+q*1024}")
        for c in range(2):
            for r in range(16): a(f"v_accvgpr_read_b32 v{G+16*c+r}, a{32*c+r}")
        a(f"{Lb}:")
        a("s_waitcnt lgkmcnt(0)"); a("s_barrier")
        for q in range(8): a(f"ds_read_b128 {V(TM+4*q,4)}, v{t+1} offset:{q*1024}")
        BP = R.alloc(2); ZF = R.alloc(32)
        vm.wait("z1")
        a(f"v_lshlrev_b32 v{BP}, 16, v{BI}")
        for d in range(16):
            a(f"v_lshlrev_b32 v{ZF+2*d}, 16, v{Z1+d}"); a(f"v_and_b32 v{ZF+2*d+1}, 0xffff0000, v{Z1+d}")
        for r in range(0, 32, 2): a(f"v_pk_add_f32 {V(G+r,2)}, {V(G+r,2)}, {V(BP,2)} op_sel_hi:[1,0]")
        a("s_waitcnt lgkmcnt(0)")
        for r in range(0, 32, 2): a(f"v_pk_add_f32 {V(G+r,2)}, {V(G+r,2)}, {V(TM+r,2)}")
        for r in range(0, 32, 2): a(f"v_pk_mul_f32 {V(G+r,2)}, {V(G+r,2)}, {V(ZF+r,2)}")
        for d in range(16): a(f"v_cvt_pk_bf16_f32 v{TM+d}, v{G+2*d}, v{G+2*d+1}")
        a(f"s_add_u32 s50, s69, {UFR}")
        for q in range(4):
            vm.issue(f"buffer_store_dwordx4 {V(TM+4*q,4)}, v{V_L16}, {srd(S_WS)}, s50 offen offset:{q*1024} sc1")
        a("s_lshl_b32 s55, s48, 7"); a("s_lshl_b32 s50, s49, 2"); a("s_add_u32 s55, s55, s50"); a(f"s_add_u32 s55, s55, {F_U}")
        self.set_flag(55)
        some(len(wo_items))
        self.idle_prefetch(skip, 2)
        self.stamp("D@3")

    def build(self):
        self.prologue()
        for ph in "ABCDE":
            getattr(self, "phase_" + ph)()
            if ph == self.stop_after: break
        self.epilogue()
        body = pad_hazards(self.a.lines)
        hdr = open("cdna_kernels/" + NAME[:-7] + ".s.ref").read().split("; Override")[0]
        s = hdr + f"; @launch grid=(256,1,1) block=(256,1,1) lds={LDS_BYTES}\n"
        s += '.amdgcn_target "amdgcn-amd-amdhsa--gfx950"\n.text\n'
        s += f".set CODE_SLICE, ((L_code_end - {NAME} + 32*128 - 1) / (32*128)) * 128\n"
        s += f".set CODE_BYTES, L_code_end - {NAME} - 32\n"
        s += f".globl {NAME}\n.p2align 8\n.type {NAME},@function\n{NAME}:\n" + "\n".join(body) + "\nL_code_end:\n"
        s += f""".section .rodata,"a"
.p2align 6
.amdhsa_kernel {NAME}
  .amdhsa_next_free_vgpr 512
  .amdhsa_next_free_sgpr 102
  .amdhsa_accum_offset 256
  .amdhsa_group_segment_fixed_size 0
  .amdhsa_kernarg_size 88
  .amdhsa_user_sgpr_count 2
  .amdhsa_user_sgpr_kernarg_segment_ptr 1
  .amdhsa_system_sgpr_workgroup_id_x 1
.end_amdhsa_kernel
"""
        return s

if __name__ == "__main__":
    import json
    out = sys.argv[1]; stop = sys.argv[2] if len(sys.argv) > 2 else "E"
    stamps = sys.argv[3] if len(sys.argv) > 3 and sys.argv[3] != "0" else ""
    opts = json.loads(sys.argv[4]) if len(sys.argv) > 4 else {}
    g = Gen(stop, stamps, opts)
    open(out, "w").write(g.build())
    open(out + ".stamps", "w").write(" ".join(g.stamp_names))
```

```python
import sys, math, struct
from asmlib import Asm, pad_hazards

NAME = "sequential_preLN__sliding_block__mixer_gmlp__prompt_kernel"
WS_EPOCH = 0
F_KV = 0x1000; F_O = 0x2000; F_H = 0x3000; F_Z = 0x4000; F_U = 0x5000; F_Z1 = 0x6000
STATS = 0x10000
HST = 0x80000
STAT1 = 0xC0000
KVF = 0x100000; OFR = 0x500000; HFR = 0x700000; Z1F = 0x900000; Z2F = 0xD00000; UFR = 0x1100000
DBG = 0x1600000

S_X, S_WQKV, S_WO, S_WIN, S_WSP, S_BSP, S_WOUT, S_OUT, S_WS = 8, 12, 16, 20, 24, 28, 32, 36, 40
S_TAG, S_WAVE, S_XCD, S_SLOT = 44, 45, 46, 47
V_LANE, V_L16, V_L31, V_HH = 1, 2, 3, 4
V_DUMMY = 252
V_TOUCH = 251
LOG2E = 1.4426950408889634
MFMA = "v_mfma_f32_32x32x16_bf16"
LDS_BYTES = 163840

def f2u(x): return struct.unpack("<I", struct.pack("<f", x))[0]
def lit(x): return "0x%08x" % f2u(x)
def srd(b): return f"s[{b}:{b+3}]"
def V(b, n=1): return f"v{b}" if n == 1 else f"v[{b}:{b+n-1}]"
def A(b, n=1): return f"a{b}" if n == 1 else f"a[{b}:{b+n-1}]"

class Regs:
    def __init__(self, lo, hi): self.lo, self.hi = lo, hi; self.used = set()
    def alloc(self, n=1, align=None):
        if align is None: align = 4 if n >= 4 else (2 if n >= 2 else 1)
        b = (self.lo + align - 1) // align * align
        while b + n <= self.hi:
            if not any((b + k) in self.used for k in range(n)):
                for k in range(n): self.used.add(b + k)
                return b
            b += align
        raise RuntimeError(f"out of registers for {n}")
    def free(self, b, n=1):
        for k in range(n): self.used.discard(b + k)
    def reset(self): self.used = set()

class VM:
    def __init__(self, a): self.a = a; self.ops = []
    def issue(self, text, tag=None): self.a(text); self.ops.append(tag)
    def wait(self, tag):
        idx = [k for k, t in enumerate(self.ops) if t == tag]
        if not idx: return
        last = idx[-1]; n = len(self.ops) - 1 - last
        assert n <= 63, n
        self.a(f"s_waitcnt vmcnt({n})"); self.ops = self.ops[last + 1:]
    def wait_all(self): self.a("s_waitcnt vmcnt(0)"); self.ops = []

def interleave(a, main, fill):
    n = len(main); m = len(fill); k = 0
    for i, x in enumerate(main):
        a(x)
        tgt = (i + 1) * m // n
        while k < tgt: a(fill[k]); k += 1

class Gen:
    def __init__(self, stop_after="E", stamps="", opts=None):
        self.a = Asm(); self.vm = VM(self.a); self.stop_after = stop_after; self.stamps = stamps
        self.nstamp = 0; self.stamp_names = []; self.R = Regs(10, 251); self.o = opts or {}

    def stamp(self, tag):
        if not self.stamps: return
        sel = self.stamps.split(",")
        coarse = ("A@0", "A@3", "A@6", "B@1", "B@3", "C@1", "C@5", "D@1", "D@3", "E@1", "E@3")
        if not (tag in sel or tag[0] in sel or ("c" in sel and tag in coarse)): return
        self.stamp_names.append(tag)
        k = self.nstamp; self.nstamp += 1
        assert k < 15
        self.a(f"s_memtime s[{72+2*k}:{73+2*k}]")

    def prologue(self):
        a = self.a
        if self.stamps and self.o.get("dbgout"):
            a("s_memrealtime s[100:101]"); a("s_memtime s[72:73]"); self.nstamp = 1; self.stamp_names.append("start")
            a("s_waitcnt lgkmcnt(0)"); a("s_mov_b32 s3, s100")
        a("s_getpc_b64 s[4:5]")
        a("s_load_dwordx16 s[48:63], s[0:1], 0")
        a("s_load_dwordx4 s[64:67], s[0:1], 64")
        a("s_load_dwordx2 s[68:69], s[0:1], 80")
        a("s_cmp_ge_u32 s2, 256"); a("s_cbranch_scc1 L_end")
        a(f"s_lshr_b32 s{S_SLOT}, s2, 3")
        a(f"s_mul_i32 s6, s{S_SLOT}, CODE_SLICE")
        a("v_lshlrev_b32 v5, 4, v0")
        a("v_cmp_gt_u32 vcc, CODE_SLICE, v5")
        a("s_mov_b64 s[70:71], vcc")
        a("v_add_u32 v5, s6, v5")
        a("v_cmp_gt_u32 vcc, CODE_BYTES, v5")
        a("s_and_b64 vcc, vcc, s[70:71]")
        a("s_and_saveexec_b64 s[6:7], vcc")
        a(f"global_load_dwordx4 {V(V_DUMMY,4)}, v5, s[4:5]")
        a("s_mov_b64 exec, s[6:7]")
        self.vm.ops.append("code")
        a(f"v_and_b32 v{V_LANE}, 63, v0"); a("v_lshrrev_b32 v5, 6, v0")
        a(f"v_lshlrev_b32 v{V_L16}, 4, v{V_LANE}"); a(f"v_and_b32 v{V_L31}, 31, v{V_LANE}"); a(f"v_lshrrev_b32 v{V_HH}, 5, v{V_LANE}")
        a(f"v_readfirstlane_b32 s{S_WAVE}, v5")
        a(f"s_and_b32 s{S_XCD}, s2, 7")
        self.phase_A_pre()
        a("s_waitcnt lgkmcnt(0)")
        a(f"s_load_dword s{S_TAG}, s[68:69], {WS_EPOCH}")
        def mk(base, lo, size):
            a(f"s_mov_b32 s{base}, s{lo}"); a(f"s_and_b32 s{base+1}, s{lo+1}, 0xffff")
            a(f"s_mov_b32 s{base+2}, {size}"); a(f"s_mov_b32 s{base+3}, 0x20000")
        mk(S_X, 48, 2048*448*2); mk(S_WQKV, 50, 448*1344*2); mk(S_WS, 68, 0x10000000); mk(S_WO, 52, 448*448*2)
        mk(S_WIN, 56, 448*1792*2); mk(S_WSP, 58, 2048*2048*2); mk(S_BSP, 60, 2048*2)
        mk(S_WOUT, 62, 896*448*2); mk(S_OUT, 64, 2048*448*2)
        self.tag_pending = True

    def tag_ready(self):
        if self.tag_pending:
            self.a("s_waitcnt lgkmcnt(0)"); self.a(f"s_add_u32 s{S_TAG}, s{S_TAG}, 1"); self.tag_pending = False

    def epilogue(self):
        a = self.a
        a("s_cmp_lg_u32 s2, 0"); a("s_cbranch_scc1 L_noepoch")
        a(f"s_cmp_lg_u32 s{S_WAVE}, 0"); a("s_cbranch_scc1 L_noepoch")
        a(f"v_mov_b32 v5, s{S_TAG}"); a(f"v_mov_b32 v6, {WS_EPOCH}")
        a("s_mov_b64 exec, 1")
        a(f"buffer_store_dword v5, v6, {srd(S_WS)}, 0 offen sc1")
        a("s_mov_b64 exec, -1")
        a("L_noepoch:")
        if self.stamps:
            a("s_waitcnt lgkmcnt(0)")
            a(f"s_lshl_b32 s48, s2, 2"); a(f"s_add_u32 s48, s48, s{S_WAVE}"); a("s_lshl_b32 s48, s48, 6"); a(f"s_add_u32 s48, s48, {DBG}")
            a("v_mov_b32 v6, 0"); a("s_mov_b64 exec, 1")
            for k in range(self.nstamp):
                a(f"v_mov_b32 v5, s{72+2*k}")
                a(f"buffer_store_dword v5, v6, {srd(S_WS)}, s48 offen offset:{4*k}")
            a("s_mov_b64 exec, -1")
        if self.stamps and self.o.get("dbgout"):
            a("s_memrealtime s[6:7]")
            a("s_load_dwordx2 s[50:51], s[0:1], 72")
            a("s_waitcnt lgkmcnt(0)")
            a(f"s_cmp_lg_u32 s2, {self.o['dbgout']}"); a("s_cbranch_scc1 L_end")
            a(f"s_cmp_lg_u32 s{S_WAVE}, 0"); a("s_cbranch_scc1 L_end")
            a("s_mov_b32 s52, s50"); a("s_and_b32 s53, s51, 0xffff"); a("s_mov_b32 s54, 256"); a("s_mov_b32 s55, 0x20000")
            a("v_mov_b32 v6, 0"); a("s_mov_b64 exec, 1")
            for k in range(1, self.nstamp):
                a(f"s_sub_u32 s56, s{72+2*k}, s{72+2*(k-1)}"); a("v_mov_b32 v5, s56")
                a(f"buffer_store_dword v5, v6, s[52:55], 0 offen offset:{4*(k-1)}")
            a("s_sub_u32 s56, s6, s3"); a("v_mov_b32 v5, s56")
            a(f"buffer_store_dword v5, v6, s[52:55], 0 offen offset:60")
            a("s_mov_b64 exec, -1")
        a("L_end:"); a("s_endpgm")

    def set_flag(self, soff, tag=None):
        a = self.a
        if self.o.get("nodrain_experiment"): pass
        elif tag is None: self.vm.wait_all()
        else: self.vm.wait(tag)
        a("s_barrier")
        L = a.label("L_nf")
        a(f"s_cmp_lg_u32 s{S_WAVE}, 0"); a(f"s_cbranch_scc1 {L}")
        a(f"v_mov_b32 v5, s{S_TAG}"); a("v_mov_b32 v6, 0"); a("s_mov_b64 exec, 1")
        a(f"buffer_store_dword v5, v6, {srd(S_WS)}, s{soff} offen sc1")
        a("s_mov_b64 exec, -1"); a(f"{L}:")

    def poll(self, soff, nflags, voff=None, drain=True):
        a = self.a
        if voff is None:
            a(f"v_min_u32 v9, {nflags-1}, v{V_LANE}"); a("v_lshlrev_b32 v9, 2, v9"); voff = 9
        Lp = a.label("L_poll"); Ld = a.label("L_pd"); Lo = a.label("L_po")
        a(f"s_cmp_lg_u32 s{S_WAVE}, 0"); a(f"s_cbranch_scc1 {Lo}")
        ld = lambda r: a(f"buffer_load_dword v{r}, v{voff}, {srd(S_WS)}, s{soff} offen sc1")
        for r in (5, 6, 7):
            ld(r); a("s_sleep 1")
        ld(8)
        a("s_mov_b32 s70, 0"); a(f"{Lp}:")
        for r in (5, 6, 7, 8):
            a("s_waitcnt vmcnt(3)")
            a(f"v_cmp_ne_u32 vcc, s{S_TAG}, v{r}")
            a(f"s_cbranch_vccz {Ld}")
            ld(r)
        a("s_add_u32 s70, s70, 1"); a("s_cmp_lt_u32 s70, 20000"); a(f"s_cbranch_scc1 {Lp}")
        a(f"s_branch {Ld}")
        a(f"{Lo}:")
        if drain: a("s_waitcnt vmcnt(0)")
        a(f"{Ld}:")
        a("s_barrier")
        if drain: self.vm.ops = ["p", "p", "p"]

    def gate_first(self, bit):
        a = self.a
        Lp = a.label("L_gp"); Ld = a.label("L_gd")
        ld = lambda r: a(f"buffer_load_dword v{r}, v9, {srd(S_WS)}, s66 offen sc1")
        for r in (5, 6, 7):
            ld(r); a("s_sleep 1")
        ld(8)
        a("s_mov_b32 s70, 0"); a(f"{Lp}:")
        for r in (5, 6, 7, 8):
            a("s_waitcnt vmcnt(3)")
            a(f"v_cmp_eq_u32 s[64:65], s{S_TAG}, v{r}")
            a("s_nop 1")
            a(f"s_bitcmp1_b32 s64, {bit}"); a(f"s_cbranch_scc1 {Ld}")
            ld(r)
        a("s_add_u32 s70, s70, 1"); a("s_cmp_lt_u32 s70, 20000"); a(f"s_cbranch_scc1 {Lp}")
        a(f"{Ld}:")
        self.vm.ops += ["p", "p", "p"]

    def gate_refresh(self):
        self.vm.issue(f"buffer_load_dword v5, v9, {srd(S_WS)}, s66 offen sc1", tag="fl")
    def gate_update(self):
        self.vm.wait("fl")
        self.a(f"v_cmp_eq_u32 s[64:65], s{S_TAG}, v5"); self.a("s_nop 1")
    def gate_check(self, bit):
        a = self.a
        Lp = a.label("L_gs"); Ld = a.label("L_go")
        a(f"s_bitcmp1_b32 s64, {bit}"); a(f"s_cbranch_scc1 {Ld}")
        a("s_mov_b32 s70, 0"); a(f"{Lp}:")
        a(f"buffer_load_dword v5, v9, {srd(S_WS)}, s66 offen sc1"); a("s_waitcnt vmcnt(0)")
        a(f"v_cmp_eq_u32 s[64:65], s{S_TAG}, v5"); a("s_nop 1")
        a(f"s_bitcmp1_b32 s64, {bit}"); a(f"s_cbranch_scc1 {Ld}")
        a("s_add_u32 s70, s70, 1"); a("s_cmp_lt_u32 s70, 20000"); a(f"s_cbranch_scc1 {Lp}")
        a(f"{Ld}:")

    def half_op(self, v, t, op="v_add_f32"):
        a = self.a
        a(f"v_mov_b32 v{t}, v{v}"); a(f"v_permlane32_swap_b32 v{v}, v{t}"); a(f"{op} v{v}, v{v}, v{t}")

    def warm(self, srdb, nbytes, base_s=None):
        a, vm = self.a, self.vm
        per_wg = nbytes // 32; per_wave = per_wg // 4
        n = (per_wave + 1023) // 1024
        a(f"s_lshl_b32 s70, s{S_SLOT}, 2"); a(f"s_add_u32 s70, s70, s{S_WAVE}"); a(f"s_mul_i32 s70, s70, {per_wave}")
        if base_s is not None: a(f"s_add_u32 s70, s70, s{base_s}")
        for k in range(n):
            if k and k % 4 == 0: a("s_add_u32 s70, s70, 4096")
            vm.issue(f"buffer_load_dwordx4 {V(V_DUMMY,4)}, v{V_L16}, {srd(srdb)}, s70 offen offset:{(k%4)*1024}", tag="warm")

    def tr_base(self, dst, rowbytes, hhrows, t0, t1):
        a = self.a
        a(f"v_lshrrev_b32 v{t0}, 2, v{V_LANE}"); a(f"v_and_b32 v{t0}, 3, v{t0}")
        a(f"v_mul_u32_u24 v{t1}, {hhrows}, v{V_HH}"); a(f"v_add_u32 v{t0}, v{t0}, v{t1}"); a(f"v_mul_u32_u24 v{t0}, {rowbytes}, v{t0}")
        a(f"v_lshrrev_b32 v{t1}, 4, v{V_LANE}"); a(f"v_and_b32 v{t1}, 1, v{t1}"); a(f"v_lshlrev_b32 v{t1}, 5, v{t1}")
        a(f"v_add_u32 v{t0}, v{t0}, v{t1}")
        a(f"v_and_b32 v{t1}, 3, v{V_LANE}"); a(f"v_lshlrev_b32 v{t1}, 3, v{t1}")
        a(f"v_add_u32 v{dst}, v{t0}, v{t1}")

    def sched(self, mf, fill, lead=0):
        a = self.a
        tot = sum(c for _, c in fill); n = len(mf); k = 0; done = 0
        for i, x in enumerate(mf):
            self.emit_fill(x)
            tgt = tot * (i + 1) / n
            while k < len(fill) and (done + fill[k][1] / 2 <= tgt or i == n - 1):
                self.emit_fill(fill[k][0]); done += fill[k][1]; k += 1

    def emit_fill(self, x):
        if callable(x): x()
        else: self.a(x)

    def phase_A_pre(self):
        a, R = self.a, self.R
        R.reset()
        P = self.PA = {}
        P["VW0"] = VW0 = R.alloc(3, 1); P["VXE"] = VXE = R.alloc(); P["VXO"] = VXO = R.alloc(); P["t"] = t = R.alloc(4, 1); P["VSR"] = VSR = R.alloc()
        SI, SJ, STQ, SMM = 48, 49, 58, 62
        a(f"v_mul_u32_u24 v{t}, 896, v{V_HH}"); a(f"v_lshlrev_b32 v{t+1}, 4, v{V_L31}"); a(f"v_add_u32 v{t}, v{t}, v{t+1}")
        a(f"v_cmp_gt_u32 vcc, 28, v{V_L31}"); a(f"v_mov_b32 v{t+1}, 0x7ffffff0"); a(f"v_cndmask_b32 v{VSR}, v{t+1}, v{t}, vcc")
        a(f"v_lshrrev_b32 v{t}, 3, v{V_LANE}"); a(f"v_and_b32 v{t+1}, 7, v{V_LANE}"); a(f"v_lshrrev_b32 v{t+2}, 4, v{V_LANE}")
        a(f"v_xor_b32 v{t+3}, v{t+1}, v{t+2}"); a(f"v_lshlrev_b32 v{t+3}, 4, v{t+3}"); a(f"v_mul_u32_u24 v{t}, 896, v{t}"); a(f"v_add_u32 v{VXE}, v{t}, v{t+3}")
        a(f"v_add_u32 v{t+2}, 4, v{t+2}"); a(f"v_xor_b32 v{t+3}, v{t+1}, v{t+2}"); a(f"v_lshlrev_b32 v{t+3}, 4, v{t+3}"); a(f"v_add_u32 v{VXO}, v{t}, v{t+3}")
        a(f"v_lshrrev_b32 v{t}, 3, v{V_LANE}"); a(f"v_lshrrev_b32 v{t+1}, 4, v{V_LANE}"); a(f"v_lshrrev_b32 v{t+2}, 2, v{V_LANE}")
        a(f"v_xor_b32 v{t+1}, v{t+1}, v{t+2}"); a(f"v_and_b32 v{t+1}, 1, v{t+1}"); a(f"v_mul_u32_u24 v{t+1}, 896, v{t+1}")
        a(f"v_mul_u32_u24 v{t}, 2688, v{t}"); a(f"v_and_b32 v{t+3}, 3, v{V_LANE}"); a(f"v_lshlrev_b32 v{t+3}, 4, v{t+3}")
        a(f"v_add3_u32 v{VW0}, v{t}, v{t+1}, v{t+3}"); a(f"v_add_u32 v{VW0}, 896, v{VW0}")
        a(f"v_mul_u32_u24 v{t+2}, 2688, v{t+2}"); a(f"v_add_u32 v{VW0+1}, v{t+2}, v{t+3}")

    def phase_A(self):
        a, vm, R = self.a, self.vm, self.R
        a.c("================ phase A : LN1 + QKV + attention ================")
        P = self.PA; VW0, VXE, VXO, t, VSR = P["VW0"], P["VXE"], P["VXO"], P["t"], P["VSR"]
        SI, SJ, SXB, SWB, SLX, SLW, STQ = 48, 49, 52, 53, 54, 55, 58
        SMM = 62
        a(f"s_lshr_b32 s50, s{S_XCD}, 1"); a("s_lshl_b32 s50, s50, 2"); a(f"s_lshr_b32 s51, s{S_SLOT}, 3"); a(f"s_add_u32 s{SI}, s50, s51")
        a(f"s_and_b32 s50, s{S_XCD}, 1"); a("s_lshl_b32 s50, s50, 3"); a(f"s_and_b32 s71, s{S_SLOT}, 7"); a(f"s_add_u32 s{SJ}, s50, s71")
        a(f"s_lshl_b32 s{STQ}, s{SI}, 2"); a(f"s_add_u32 s{STQ}, s{STQ}, s{S_WAVE}"); a(f"s_mul_i32 s{SXB}, s{STQ}, {32*896}")
        self.stamp("A@0")
        LW = 0; LQ = 57344; LX = 86016; LPW = 151552; LKV = 102400
        SR = R.alloc(8)
        a(f"s_lshl_b32 s50, s{SI}, 7"); a(f"s_lshl_b32 s70, s{SJ}, 3"); a("s_add_u32 s50, s50, s70"); a(f"s_lshl_b32 s70, s{S_WAVE}, 1"); a("s_add_u32 s59, s50, s70")
        a("s_mul_i32 s50, s59, 896")
        vm.issue(f"buffer_load_dwordx4 {V(SR,4)}, v{VSR}, {srd(S_X)}, s50 offen", tag="sr")
        vm.issue(f"buffer_load_dwordx4 {V(SR+4,4)}, v{VSR}, {srd(S_X)}, s50 offen offset:448", tag="sr")
        a(f"s_lshl_b32 s51, s51, 1"); a(f"s_add_u32 s51, s51, s{SJ}"); a("s_mul_i32 s50, s51, 37"); a("s_lshr_b32 s50, s50, 8"); a("s_mul_i32 s50, s50, 7"); a("s_sub_u32 s51, s51, s50")
        if not self.o.get("rot_a", 1): a("s_mov_b32 s51, 0")
        a(f"s_lshl_b32 s{SMM}, s51, 7")
        a(f"s_lshl_b32 s{SLX}, s{S_WAVE}, 14"); a(f"s_add_u32 s{SLX}, s{SLX}, {LX}")
        a(f"s_mul_i32 s{SWB}, s{SJ}, 56"); a(f"s_mul_i32 s50, s{S_WAVE}, {16*2688}"); a(f"s_add_u32 s{SWB}, s{SWB}, s50")
        a(f"s_lshl_b32 s{SLW}, s{S_WAVE}, 11")
        def dma_list(m):
            out = []
            def pre():
                if m > 0:
                    a(f"s_add_u32 s{SMM+m}, s{SMM+m-1}, 128"); a(f"s_cmp_ge_u32 s{SMM+m}, 896"); a("s_cselect_b32 s71, 896, 0"); a(f"s_sub_u32 s{SMM+m}, s{SMM+m}, s71")
                a(f"s_add_u32 s57, s{SXB}, s{SMM+m}"); a(f"s_mul_i32 s61, s{SMM+m}, 1344"); a(f"s_add_u32 s61, s61, s{SWB}")
            out.append((pre, 16))
            for q in range(4):
                def f(q=q):
                    a(f"s_add_u32 m0, s{SLX}, {(m%4)*4096 + q*1024}"); a(f"s_add_u32 s56, s57, {q*7168}")
                    vm.issue(f"buffer_load_dwordx4 v{VXE if q%2==0 else VXO}, {srd(S_X)}, s56 offen lds", tag=("c", m))
                out.append((f, 16))
            for p in range(2):
                def f(p=p):
                    a(f"s_add_u32 m0, s{SLW}, {LW + m*8192 + p*1024}"); a(f"s_add_u32 s56, s61, {p*8*2688}")
                    vm.issue(f"buffer_load_dwordx4 v{VW0}, {srd(S_WQKV)}, s56 offen lds", tag=("c", m))
                out.append((f, 16))
            return out
        def dma_q(m):
            def f():
                a(f"s_mul_i32 s61, s{SMM+m}, 1344"); a(f"s_add_u32 s61, s61, s{SWB}")
                a(f"s_lshr_b32 s56, s{SLW}, 1"); a(f"s_add_u32 m0, s56, {LQ + m*4096}"); a("s_nop 0")
                vm.issue(f"buffer_load_dwordx4 v{VW0+1}, {srd(S_WQKV)}, s61 offen lds", tag="q")
            return [(f, 24)]
        for m in range(2):
            for f, _ in dma_list(m): f()
        if self.o.get("tlb", 1): self.tlb_warm()
        self.stamp("A@1")
        ONES = R.alloc(4); S0 = R.alloc(); Q0 = R.alloc(); T0 = R.alloc(); T1 = R.alloc()
        for k in range(4): a(f"v_mov_b32 v{ONES+k}, 0x3f803f80")
        a(f"v_mov_b32 v{S0}, 0"); a(f"v_mov_b32 v{Q0}, 0")
        VXA = R.alloc(4, 1)
        a(f"v_lshrrev_b32 v{t}, 1, v{V_L31}"); a(f"v_and_b32 v{t}, 7, v{t}"); a(f"v_xor_b32 v{t}, v{t}, v{V_HH}"); a(f"v_lshlrev_b32 v{t}, 4, v{t}")
        a(f"v_lshlrev_b32 v{VXA}, 7, v{V_L31}"); a(f"v_add_u32 v{VXA}, v{VXA}, v{t}"); a(f"v_add_u32 v{VXA}, s{SLX}, v{VXA}")
        for s in range(1, 4): a(f"v_xor_b32 v{VXA+s}, {s*32}, v{VXA}")
        VWK = R.alloc(); VWV = R.alloc(); VWQ = R.alloc()
        self.tr_base(VWK, 128, 8, t, t+1)
        a(f"v_lshrrev_b32 v{t}, 3, v{V_LANE}"); a(f"v_and_b32 v{t}, 1, v{t}"); a(f"v_lshlrev_b32 v{t}, 6, v{t}")
        a(f"v_xor_b32 v{t+1}, 64, v{t}"); a(f"v_add_u32 v{VWV}, v{VWK}, v{t+1}"); a(f"v_add_u32 v{VWK}, v{VWK}, v{t}")
        self.tr_base(VWQ, 64, 8, t, t+1)
        a(f"v_add_u32 v{VWQ}, {LQ}, v{VWQ}")
        AK = R.alloc(16); AV = R.alloc(16); CK = R.alloc(16); CV = R.alloc(16)
        vm.wait("sr")
        for d in range(8):
            a(f"v_dot2_f32_bf16 v{S0}, v{SR+d}, v{ONES}, v{S0}"); a(f"v_dot2_f32_bf16 v{Q0}, v{SR+d}, v{SR+d}, v{Q0}")
        for rr in (8, 4, 2, 1):
            for v in (S0, Q0): a(f"v_add_f32_dpp v{v}, v{v}, v{v} row_ror:{rr} row_mask:0xf bank_mask:0xf")
        a(f"v_mov_b32 v{T0}, v{S0}"); a(f"v_mov_b32 v{T1}, v{Q0}")
        a(f"v_permlane16_swap_b32 v{S0}, v{T0}"); a(f"v_permlane16_swap_b32 v{Q0}, v{T1}")
        a(f"v_add_f32 v{S0}, v{S0}, v{T0}"); a(f"v_add_f32 v{Q0}, v{Q0}, v{T1}")
        a(f"v_mul_f32 v{S0}, {lit(1/448)}, v{S0}"); a(f"v_mul_f32 v{Q0}, {lit(1/448)}, v{Q0}")
        a(f"v_fma_f32 v{Q0}, -v{S0}, v{S0}, v{Q0}"); a(f"v_max_f32 v{Q0}, 0, v{Q0}")
        a(f"v_add_f32 v{Q0}, {lit(1e-5)}, v{Q0}"); a(f"v_rsq_f32 v{Q0}, v{Q0}")
        self.tag_ready()
        a(f"v_mov_b32 v{SR}, v{S0}"); a(f"v_mov_b32 v{SR+2}, s{S_TAG}"); a(f"v_mov_b32 v{SR+3}, s{S_TAG}"); a(f"v_mov_b32 v{SR+1}, v{Q0}")
        a(f"v_lshlrev_b32 v{T0}, 4, v{V_HH}"); a(f"s_lshl_b32 s50, s59, 4"); a(f"s_add_u32 s50, s50, {STAT1}")
        a("s_mov_b32 exec_lo, 1"); a("s_mov_b32 exec_hi, 1")
        vm.issue(f"buffer_store_dwordx4 {V(SR,4)}, v{T0}, {srd(S_WS)}, s50 offen sc1", tag="st1")
        a("s_mov_b64 exec, -1")
        NB = 2
        WF = R.alloc(8 * NB)
        def rd_x(m): return [(f"ds_read_b128 {A(16*m+4*s,4)}, v{VXA+s} offset:{(m%4)*4096}", 4) for s in range(4)]
        def rd_w(s):
            buf = s % NB; out = []
            for g, base in enumerate((VWK, VWV)):
                for e in range(2):
                    r = WF + buf*8 + g*4 + e*2
                    out.append((f"ds_read_b64_tr_b16 v[{r}:{r+1}], v{base} offset:{LW + s*2048 + e*512}", 4))
            return out
        def chunk_ready(m):
            vm.wait(("c", m)); a("s_barrier")
        SG = R.alloc(4); RK = R.alloc(16); MK = R.alloc(16); MR = R.alloc()
        chunk_ready(0)
        self.stamp("g0")
        for x, _ in rd_x(0) + rd_w(0): a(x)
        pend = []
        for s in range(28):
            m, sp = s // 4, s % 4
            fill = []
            if sp == 0 and m + 2 < 7: pend = dma_list(m + 2)
            if sp == 0 and m in (5, 6): pend = sum([dma_q(mq) for mq in (range(4) if m == 5 else range(4, 7))], [])
            a("s_waitcnt lgkmcnt(0)")
            if s + 1 < 28:
                if sp == 3:
                    fill.append((lambda m=m: chunk_ready(m + 1), 8)); fill += rd_x(m + 1)
                fill += rd_w(s + 1)
            take = 2 if sp < 3 else len(pend)
            fill += pend[:take]; pend = pend[take:]
            if s == 20:
                def sg():
                    a(f"v_lshlrev_b32 v{T0}, 4, v{V_L31}"); a(f"s_lshl_b32 s50, s{STQ}, 9"); a(f"s_add_u32 s60, s50, {STAT1}")
                    vm.issue(f"buffer_load_dwordx4 {V(SG,4)}, v{T0}, {srd(S_WS)}, s60 offen sc1", tag="sg")
                fill.append((sg, 16))
            x = A(16*m + 4*sp, 4); wb = WF + (s % NB) * 8
            c = lambda r: '0' if s == 0 else V(r, 16)
            mf = [f"{MFMA} {V(AK,16)}, {V(wb,4)}, {x}, {c(AK)}", f"{MFMA} {V(AV,16)}, {x}, {V(wb+4,4)}, {c(AV)}",
                  f"{MFMA} {V(CK,16)}, {V(wb,4)}, {V(ONES,4)}, {c(CK)}", f"{MFMA} {V(CV,16)}, {V(ONES,4)}, {V(wb+4,4)}, {c(CV)}"]
            self.sched(mf, fill)
        self.stamp("A@2")
        Lp = a.label("L_sg"); Ld = a.label("L_sgd")
        vm.wait("sg")
        a("s_mov_b32 s70, 0"); a(f"{Lp}:")
        a(f"v_cmp_ne_u32 vcc, s{S_TAG}, v{SG+2}"); a(f"s_cbranch_vccz {Ld}")
        a(f"v_lshlrev_b32 v{T0}, 4, v{V_L31}")
        a(f"buffer_load_dwordx4 {V(SG,4)}, v{T0}, {srd(S_WS)}, s60 offen sc1"); a("s_waitcnt vmcnt(0)")
        a("s_add_u32 s70, s70, 1"); a("s_cmp_lt_u32 s70, 20000"); a(f"s_cbranch_scc1 {Lp}")
        a(f"{Ld}:")
        MEAN, RSTD = SG, SG + 1
        a(f"v_mul_f32 v{MR}, v{MEAN}, v{RSTD}")
        a(f"v_lshlrev_b32 v{T1}, 2, v{V_L31}"); a(f"s_lshl_b32 s57, s{S_WAVE}, 8"); a(f"s_add_u32 s57, s57, {LPW}"); a(f"v_add_u32 v{T0}, s57, v{T1}")
        a(f"ds_write_b32 v{T0}, v{RSTD}"); a(f"ds_write_b32 v{T0}, v{MR} offset:128")
        a(f"v_lshlrev_b32 v{T0}, 4, v{V_HH}"); a(f"v_add_u32 v{T0}, s57, v{T0}")
        a("s_waitcnt lgkmcnt(0)")
        for gg in range(4):
            a(f"ds_read_b128 {V(RK+4*gg,4)}, v{T0} offset:{gg*32}"); a(f"ds_read_b128 {V(MK+4*gg,4)}, v{T0} offset:{128+gg*32}")
        KF = R.alloc(8); VF = R.alloc(8); MASKH = R.alloc(); MASKD = R.alloc(); ONED = R.alloc()
        a(f"v_cmp_eq_u32 vcc, 0, v{V_HH}"); a(f"v_cndmask_b32 v{MASKH}, 0, -1, vcc")
        a(f"v_cmp_gt_u32 vcc, 28, v{V_L31}"); a(f"v_cndmask_b32 v{MASKD}, 0, -1, vcc")
        a(f"v_cmp_eq_u32 vcc, 28, v{V_L31}"); a(f"v_cndmask_b32 v{ONED}, 0, v{ONES}, vcc")
        for r in range(0, 16, 2):
            a(f"v_pk_fma_f32 {V(AK+r,2)}, {V(MEAN,2)}, {V(CK+r,2)}, {V(AK+r,2)} op_sel_hi:[0,1,1] neg_lo:[1,0,0] neg_hi:[1,0,0]")
        for r in range(0, 16, 2):
            a(f"v_pk_mul_f32 {V(AK+r,2)}, {V(AK+r,2)}, {V(MEAN,2)} op_sel:[0,1] op_sel_hi:[1,1]")
        for d in range(8): a(f"v_cvt_pk_bf16_f32 v{KF+d}, v{AK+2*d}, v{AK+2*d+1}")
        for d in (6, 7): a(f"v_and_b32 v{KF+d}, v{KF+d}, v{MASKH}")
        a(f"s_lshl_b32 s56, s{SJ}, 6"); a(f"s_add_u32 s56, s56, s{STQ}"); a("s_lshl_b32 s56, s56, 12"); a(f"s_add_u32 s56, s56, {KVF}")
        for part, r in enumerate((KF, KF+4)):
            vm.issue(f"buffer_store_dwordx4 {V(r,4)}, v{V_L16}, {srd(S_WS)}, s56 offen offset:{part*1024} sc1")
        a("s_waitcnt lgkmcnt(0)")
        for r in range(0, 16, 2):
            a(f"v_pk_mul_f32 {V(MK+r,2)}, {V(MK+r,2)}, {V(CV+r,2)}")
            a(f"v_pk_fma_f32 {V(AV+r,2)}, {V(AV+r,2)}, {V(RK+r,2)}, {V(MK+r,2)} neg_lo:[0,0,1] neg_hi:[0,0,1]")
        for d in range(8): a(f"v_cvt_pk_bf16_f32 v{VF+d}, v{AV+2*d}, v{AV+2*d+1}")
        for d in range(8): a(f"v_and_or_b32 v{VF+d}, v{VF+d}, v{MASKD}, v{ONED}")
        for part, r in enumerate((VF, VF+4)):
            vm.issue(f"buffer_store_dwordx4 {V(r,4)}, v{V_L16}, {srd(S_WS)}, s56 offen offset:{2048+part*1024} sc1")
        vm.wait("q")
        a("s_barrier")
        a(f"s_lshl_b32 s50, s{S_WAVE}, 12"); a(f"s_add_u32 s50, s50, {LKV + 8*4096}"); a(f"v_add_u32 v{T0}, s50, v{V_L16}")
        for part, r in enumerate((KF, KF+4, VF, VF+4)):
            a(f"ds_write_b128 v{T0}, {V(r,4)} offset:{part*1024}")
        for b, n in ((CK,16),(CV,16),(RK,16),(MK,16),(AK,16),(AV,16),(WF,8*NB)): R.free(b, n)
        AQ = R.alloc(16); CQ = R.alloc(16); QW = R.alloc(16)
        def rd_q(s):
            return [(f"ds_read_b64_tr_b16 v[{QW+(s%4)*4+e*2}:{QW+(s%4)*4+e*2+1}], v{VWQ} offset:{s*1024 + e*256}", 4) for e in range(2)]
        for s in range(2):
            for x, _ in rd_q(s): a(x)
        a(f"s_lshl_b32 s59, s{SJ}, 7"); a(f"s_lshl_b32 s56, s{SI}, 2"); a("s_add_u32 s59, s59, s56"); a(f"s_add_u32 s59, s59, {F_KV}")
        R.free(KF, 8); R.free(VF, 8)
        warm = []
        if self.o.get("warm", 1):
            warm = self.touch_list(S_WO, 448*448*2) + self.touch_list(S_WIN, 448*1792*2)
            if self.o.get("warm_wsp", 0):
                a(f"s_lshl_b32 s71, s{S_XCD}, 20")
                warm += self.touch_list(S_WSP, 1 << 20, base=71)
        qpos = self.o.get("q_touch", [16, 22])
        for s in range(28):
            fill = rd_q(s + 2) if s + 2 < 28 else []
            if s in qpos and warm: fill.append(warm[0]); warm = warm[1:]
            self.warm_rest = warm
            a(f"s_waitcnt lgkmcnt({2 if s + 1 < 28 else 0})")
            c = lambda r: '0' if s == 0 else V(r, 16)
            q = V(QW + (s % 4)*4, 4)
            self.sched([f"{MFMA} {V(AQ,16)}, {q}, {A(4*s,4)}, {c(AQ)}", f"{MFMA} {V(CQ,16)}, {q}, {V(ONES,4)}, {c(CQ)}"], fill)
            if s == self.o.get("kvflag_at", 12):
                self.set_flag(59)
                self.stamp("A@3")
        RQ = R.alloc(2); QF = R.alloc(8)
        qscale = (28 ** -0.5) * LOG2E
        a(f"v_mul_f32 v{RQ}, {lit(qscale)}, v{RSTD}")
        CD = R.alloc(16); CF = R.alloc(16); CM = R.alloc(16); BS = R.alloc(); NBG = R.alloc()
        a(f"v_lshlrev_b32 v{BS}, 2, v{V_HH}"); a(f"v_sub_u32 v{BS}, v{V_L31}, v{BS}"); a(f"v_mov_b32 v{NBG}, {lit(-1e30)}")
        for r in range(16):
            c = (r & 3) + 8 * (r >> 2)
            a(f"v_cmp_le_i32 vcc, {c}, v{BS}")
            a(f"v_cndmask_b32 v{CD+r}, v{NBG}, 0, vcc"); a(f"v_cndmask_b32 v{CF+r}, 0, v{NBG}, vcc")
        for r in range(0, 16, 2):
            a(f"v_pk_fma_f32 {V(AQ+r,2)}, {V(MEAN,2)}, {V(CQ+r,2)}, {V(AQ+r,2)} op_sel_hi:[0,1,1] neg_lo:[1,0,0] neg_hi:[1,0,0]")
        for r in range(0, 16, 2):
            a(f"v_pk_mul_f32 {V(AQ+r,2)}, {V(AQ+r,2)}, {V(RQ,2)} op_sel_hi:[1,0]")
        for d in range(8): a(f"v_cvt_pk_bf16_f32 v{QF+d}, v{AQ+2*d}, v{AQ+2*d+1}")
        for d in (6, 7): a(f"v_and_b32 v{QF+d}, v{QF+d}, v{MASKH}")
        R.free(AQ, 16); R.free(QW, 16); R.free(CQ, 16)
        a(f"s_lshl_b32 s59, s{SJ}, 7"); a(f"s_add_u32 s59, s59, {F_KV}")
        a(f"s_sub_i32 s56, s{SI}, 1"); a("s_max_i32 s56, s56, 0"); a(f"s_sub_i32 s57, s{SI}, 2"); a("s_max_i32 s57, s57, 0")
        a("s_lshl_b32 s56, s56, 2"); a("s_lshl_b32 s57, s57, 2")
        a(f"v_mov_b32 v9, s56"); a(f"v_mov_b32 v{T0}, s57"); a(f"v_cmp_eq_u32 vcc, 0, v{V_HH}"); a(f"v_cndmask_b32 v9, v{T0}, v9, vcc")
        self.poll(59, 2, voff=9)
        self.stamp("A@4")
        a(f"s_lshl_b32 s59, s{SJ}, 18"); a(f"s_add_u32 s59, s59, {KVF}")
        for tt in range(2):
            a(f"s_lshl_b32 s56, s{SI}, 2"); a(f"s_lshl_b32 s57, s{S_WAVE}, 1"); a("s_add_u32 s56, s56, s57"); a(f"s_add_i32 s56, s56, {tt-8}"); a("s_max_i32 s56, s56, 0")
            a("s_lshl_b32 s56, s56, 12"); a("s_add_u32 s56, s56, s59")
            a(f"s_lshl_b32 s57, s{S_WAVE}, 13"); a(f"s_add_u32 s57, s57, {LKV + tt*4096}")
            for part in range(4):
                a(f"s_add_u32 m0, s57, {part*1024}"); a(f"s_add_u32 s50, s56, {part*1024}")
                vm.issue(f"buffer_load_dwordx4 v{V_L16}, {srd(S_WS)}, s50 offen sc1 lds", tag="kv")
        KA = R.alloc()
        a(f"s_lshl_b32 s50, s{S_WAVE}, 12"); a(f"s_add_u32 s50, s50, {LKV}"); a(f"v_add_u32 v{KA}, s50, v{V_L16}")
        a(f"s_sub_i32 s60, 8, s{STQ}"); a("s_max_i32 s60, s60, 0")
        SA = R.alloc(16); SB = R.alloc(16); O = R.alloc(16); PF = R.alloc(16); KR = R.alloc(16); VR = R.alloc(16); MX = R.alloc(2)
        a(f"v_mov_b32 v{MX}, {lit(-1e30)}"); a(f"v_mov_b32 v{MX+1}, {lit(-1e30)}")
        vm.wait("kv"); a("s_barrier")
        self.stamp("A@5")
        rk = lambda u: [(f"ds_read_b128 {V(KR+8*(u%2)+4*h,4)}, v{KA} offset:{u*4096+h*1024}", 4) for h in range(2)]
        rv = lambda u: [(f"ds_read_b128 {V(VR+8*(u%2)+4*h,4)}, v{KA} offset:{u*4096+2048+h*1024}", 4) for h in range(2)]
        def smf(u, c):
            S = SA if u % 2 == 0 else SB; k = KR + 8*(u % 2)
            return [f"{MFMA} {V(S,16)}, {V(k,4)}, {V(QF,4)}, {c}", f"{MFMA} {V(S,16)}, {V(k+4,4)}, {V(QF+4,4)}, {V(S,16)}"]
        def pvm(u):
            P = PF + 8*(u % 2); vr = VR + 8*(u % 2)
            return [f"{MFMA} {V(O,16)}, {V(vr,4)}, {V(P,4)}, {'0' if u == 0 else V(O,16)}", f"{MFMA} {V(O,16)}, {V(vr+4,4)}, {V(P+4,4)}, {V(O,16)}"]
        warm = self.warm_rest
        CB = R.alloc(16)
        for r in range(16): a(f"v_mov_b32 v{CB+r}, {lit(-1e30)}")
        def smf_first(u, c):
            S = SA if u % 2 == 0 else SB; k = KR + 8*(u % 2)
            def f():
                if u == 8:
                    a(f"{MFMA} {V(S,16)}, {V(k,4)}, {V(QF,4)}, {c}"); return
                L1 = a.label("L_m"); L2 = a.label("L_m")
                a(f"s_cmp_gt_u32 s60, {u}"); a(f"s_cbranch_scc1 {L1}")
                a(f"{MFMA} {V(S,16)}, {V(k,4)}, {V(QF,4)}, {c}"); a(f"s_branch {L2}")
                a(f"{L1}:"); a(f"{MFMA} {V(S,16)}, {V(k,4)}, {V(QF,4)}, {V(CB,16)}"); a(f"{L2}:")
            return f
        def smf2(u, c):
            return [smf_first(u, c), smf(u, c)[1]]
        def attention(branchy, warm):
            sm = smf2 if branchy else smf
            cop1 = lambda u: V(CF,16) if u == 0 else (V(CD,16) if u == 8 else "0")
            for x, _ in rk(0) + rk(1): a(x)
            a("s_waitcnt lgkmcnt(2)")
            for x in sm(0, cop1(0)): self.emit_fill(x)
            for u in range(9):
                S = SA if u % 2 == 0 else SB
                mx = [(f"v_max3_f32 v{MX+(r//2)%2}, v{S+r}, v{S+r+1}, v{MX+(r//2)%2}", 4) for r in range(0, 16, 2)]
                if u + 1 < 9:
                    a("s_waitcnt lgkmcnt(0)")
                    tw_ = warm[:1] if u % 4 == 0 else []; warm = warm[len(tw_):]
                    self.sched(sm(u + 1, cop1(u + 1)), (rk(u + 2) if u + 2 < 9 else []) + tw_ + mx)
                else:
                    for x, _ in mx: a(x)
            self.stamp("p1") if not branchy else None
            self.attn_mid(MX, T0, CM, CD, CF)
            self.stamp("p2") if not branchy else None
            cop2 = lambda u: V(CF,16) if u == 0 else (V(CD,16) if u == 8 else V(CM,16))
            for x, _ in rk(0) + rk(1): a(x)
            a("s_waitcnt lgkmcnt(2)")
            for x in sm(0, cop2(0)): self.emit_fill(x)
            nw = 1
            for u in range(10):
                mf = []; fill = []
                a("s_waitcnt lgkmcnt(0)")
                if u + 1 < 9: mf += sm(u + 1, cop2(u + 1))
                if u >= 1: mf += pvm(u - 1)
                if u < 9:
                    S = SA if u % 2 == 0 else SB; P = PF + 8*(u % 2)
                    fill += rv(u)
                    if u + 2 < 9: fill += rk(u + 2)
                    ex = []
                    for d in range(8):
                        ex += [(f"v_exp_f32 v{S+2*d}, v{S+2*d}", 8), (f"v_exp_f32 v{S+2*d+1}, v{S+2*d+1}", 8)]
                        if d >= 1: ex.append((f"v_cvt_pk_bf16_f32 v{P+d-1}, v{S+2*d-2}, v{S+2*d-1}", 4))
                    ex.append((f"v_cvt_pk_bf16_f32 v{P+7}, v{S+14}, v{S+15}", 4))
                    ws_ = warm[:nw] if u % 2 == 0 else []; warm = warm[len(ws_):]
                    step = max(1, len(ex) // (len(ws_) + 1))
                    for n, it in enumerate(ws_): ex.insert((n + 1) * step + n, it)
                    fill += ex
                self.sched(mf, fill)
            for f, _ in warm: self.emit_fill(f)
        Lbr = a.label("L_abr"); Ljn = a.label("L_ajn")
        a("s_cmp_gt_u32 s60, 0"); a(f"s_cbranch_scc1 {Lbr}")
        saved_ops = list(vm.ops)
        attention(False, list(warm))
        a(f"s_branch {Ljn}")
        fast_ops = list(vm.ops); vm.ops = saved_ops
        a(f"{Lbr}:")
        attention(True, list(warm))
        assert len(vm.ops) == len(fast_ops)
        a(f"{Ljn}:")
        warm = []
        for f, _ in warm: self.emit_fill(f)
        self.stamp("p3")
        a(f"v_mov_b32 v{T0}, v{O+12}"); a(f"v_mov_b32 v{MX}, v{O+12}")
        a(f"v_permlane32_swap_b32 v{T0}, v{MX}")
        a(f"v_rcp_f32 v{MX}, v{MX}")
        for r in range(0, 16, 2): a(f"v_pk_mul_f32 {V(O+r,2)}, {V(O+r,2)}, {V(MX,2)} op_sel_hi:[1,0]")
        for d in range(8): a(f"v_cvt_pk_bf16_f32 v{PF+d}, v{O+2*d}, v{O+2*d+1}")
        for d in (6, 7): a(f"v_and_b32 v{PF+d}, v{PF+d}, v{MASKH}")
        a(f"s_lshl_b32 s56, s{STQ}, 4"); a(f"s_add_u32 s56, s56, s{SJ}"); a("s_lshl_b32 s56, s56, 11"); a(f"s_add_u32 s56, s56, {OFR}")
        for h in range(2):
            vm.issue(f"buffer_store_dwordx4 {V(PF+4*h,4)}, v{V_L16}, {srd(S_WS)}, s56 offen offset:{h*1024} sc1")
        a(f"s_lshl_b32 s59, s{SI}, 7"); a(f"s_lshl_b32 s56, s{SJ}, 2"); a("s_add_u32 s59, s59, s56"); a(f"s_add_u32 s59, s59, {F_O}")
        self.set_flag(59)
        self.stamp("A@6")

    def tlb_warm(self):
        a, vm = self.a, self.vm
        a(f"v_lshlrev_b32 v{V_TOUCH}, 21, v{V_LANE}")
        a("s_mov_b64 exec, 0xfff")
        vm.issue(f"buffer_load_dword v{V_DUMMY}, v{V_TOUCH}, {srd(S_WS)}, 0 offen", tag="tlb")
        a("s_mov_b64 exec, 0xf")
        vm.issue(f"buffer_load_dword v{V_DUMMY}, v{V_TOUCH}, {srd(S_WSP)}, 0 offen", tag="tlb")
        a("s_mov_b64 exec, 1")
        for sb in (S_WO, S_WIN, S_WOUT, S_BSP, S_OUT):
            vm.issue(f"buffer_load_dword v{V_DUMMY}, v{V_TOUCH}, {srd(sb)}, 0 offen", tag="tlb")
        a("s_mov_b64 exec, -1")

    def warm_list(self, srdb, nbytes, sreg=69):
        a, vm = self.a, self.vm
        per_wave = nbytes // 128; n = (per_wave + 1023) // 1024; out = []
        for k in range(n):
            def f(k=k):
                if k == 0:
                    a(f"s_lshl_b32 s{sreg}, s{S_SLOT}, 2"); a(f"s_add_u32 s{sreg}, s{sreg}, s{S_WAVE}"); a(f"s_mul_i32 s{sreg}, s{sreg}, {per_wave}")
                elif k % 4 == 0: a(f"s_add_u32 s{sreg}, s{sreg}, 4096")
                vm.issue(f"buffer_load_dwordx4 {V(V_DUMMY,4)}, v{V_L16}, {srd(srdb)}, s{sreg} offen offset:{(k%4)*1024}", tag="warm")
            out.append((f, 8))
        return out

    def attn_mid(self, MX, T0, CM, CD, CF):
        a = self.a
        a(f"v_max_f32 v{MX}, v{MX}, v{MX+1}")
        self.half_op(MX, T0, "v_max_f32")
        for r in range(16): a(f"v_sub_f32 v{CM+r}, 0, v{MX}")
        for r in range(0, 16, 2):
            a(f"v_pk_add_f32 {V(CD+r,2)}, {V(CD+r,2)}, {V(CM,2)}"); a(f"v_pk_add_f32 {V(CF+r,2)}, {V(CF+r,2)}, {V(CM,2)}")

    def touch_list(self, srdb, nbytes, sreg=69, base=None):
        a, vm = self.a, self.vm
        per_wave = (nbytes // 128 + 63) // 64 * 64; n = (per_wave + 4095) // 4096; out = []
        for k in range(n):
            def f(k=k):
                if k == 0:
                    a(f"s_lshl_b32 s{sreg}, s{S_SLOT}, 2"); a(f"s_add_u32 s{sreg}, s{sreg}, s{S_WAVE}"); a(f"s_mul_i32 s{sreg}, s{sreg}, {per_wave}")
                    if base is not None: a(f"s_add_u32 s{sreg}, s{sreg}, s{base}")
                    a(f"v_lshlrev_b32 v{V_TOUCH}, 6, v{V_LANE}")
                else: a(f"s_add_u32 s{sreg}, s{sreg}, 4096")
                vm.issue(f"buffer_load_dword v{V_DUMMY}, v{V_TOUCH}, {srd(srdb)}, s{sreg} offen", tag="warm")
            out.append((f, 12))
        return out

    def idle_prefetch(self, skip, part):
        a = self.a
        Lo = a.label("L_ip")
        a(f"s_branch {Lo}")
        a(f"{skip}:")
        idn = self.o.get("idle_n", [6, 10])
        n = idn[part] if part < 2 else 13
        first = 0 if part != 1 else idn[0]
        if n:
            if part < 2: a(f"s_lshl_b32 s50, s{S_XCD}, 20")
            else: a("s_mov_b32 s50, 0")
            a(f"s_sub_u32 s51, s{S_SLOT}, 28"); a("s_lshl_b32 s51, s51, 2"); a(f"s_add_u32 s51, s51, s{S_WAVE}"); a("s_lshl_b32 s51, s51, 12"); a("s_add_u32 s50, s50, s51")
            a(f"s_add_u32 s50, s50, {first*16*4096}")
            a(f"v_lshlrev_b32 v{V_TOUCH}, 6, v{V_LANE}")
            Ll = a.label("L_il")
            a(f"s_mov_b32 s51, {n}")
            a(f"{Ll}:")
            a(f"buffer_load_dword v{V_DUMMY}, v{V_TOUCH}, {srd(S_WSP if part < 2 else S_WOUT)}, s50 offen")
            a(f"s_add_u32 s50, s50, {16*4096}"); a("s_sub_u32 s51, s51, 1"); a("s_cmp_lg_u32 s51, 0"); a(f"s_cbranch_scc1 {Ll}")
            a("s_waitcnt vmcnt(0)")
        a(f"{Lo}:")

    def dma_by_all(self, items, tagf):
        a, vm = self.a, self.vm
        assert len(items) % 4 == 0
        Lnp = a.label("L_np")
        for wv in range(4):
            Lw = a.label("L_w")
            if wv < 3:
                a(f"s_cmp_lg_u32 s{S_WAVE}, {wv}"); a(f"s_cbranch_scc1 {Lw}")
            state = {}
            for n, it in enumerate(items):
                if n % 4 == wv: it(state)
            if wv < 3:
                a(f"s_branch {Lnp}")
                a(f"{Lw}:")
        a(f"{Lnp}:")
        vm.ops += [tagf(n) for n in range(len(items)) if n % 4 == 0]

    def dma_by_123(self, items, tagf):
        a, vm = self.a, self.vm
        Lnp = a.label("L_np")
        a(f"s_cmp_eq_u32 s{S_WAVE}, 0"); a(f"s_cbranch_scc1 {Lnp}")
        for wv in (1, 2, 3):
            Lw = a.label("L_w")
            if wv < 3:
                a(f"s_cmp_lg_u32 s{S_WAVE}, {wv}"); a(f"s_cbranch_scc1 {Lw}")
            state = {}
            for n, it in enumerate(items):
                if n % 3 == wv - 1: it(state)
            if wv < 3:
                a(f"s_branch {Lnp}")
                a(f"{Lw}:")
        a(f"{Lnp}:")
        mod = [tagf(n) for n in range(len(items)) if n % 3 == 0]
        mod.pop(); vm.ops += mod

    def d_map(self):
        a = self.a
        a(f"s_mul_i32 s50, s{S_SLOT}, 37"); a("s_lshr_b32 s50, s50, 8")
        a("s_mul_i32 s51, s50, 7"); a(f"s_sub_u32 s94, s{S_SLOT}, s51")
        a(f"s_lshl_b32 s95, s{S_XCD}, 2"); a("s_add_u32 s95, s95, s50")
        a(f"s_mul_i32 s96, s50, {self.o.get('rotm', 0)}"); a("s_and_b32 s51, s94, 3"); a(f"s_mul_i32 s51, s51, {self.o.get('rotf', 0)}"); a("s_add_u32 s96, s96, s51")
        a("s_lshl_b32 s97, s95, 18")

    def d_lanes(self, VE, VO, t):
        a = self.a
        a(f"v_lshrrev_b32 v{t}, 3, v{V_LANE}"); a(f"v_and_b32 v{t+1}, 7, v{V_LANE}"); a(f"v_lshrrev_b32 v{t+2}, 4, v{V_LANE}")
        a(f"v_xor_b32 v{t+3}, v{t+1}, v{t+2}"); a(f"v_lshlrev_b32 v{t+3}, 4, v{t+3}"); a(f"v_lshlrev_b32 v{t}, 12, v{t}"); a(f"v_add_u32 v{VE}, v{t}, v{t+3}")
        a(f"v_add_u32 v{t+2}, 4, v{t+2}"); a(f"v_xor_b32 v{t+3}, v{t+1}, v{t+2}"); a(f"v_lshlrev_b32 v{t+3}, 4, v{t+3}"); a(f"v_add_u32 v{VO}, v{t}, v{t+3}")

    @staticmethod
    def d_slot(kh, b):
        b %= 8
        if kh == 1: return 81920 + b*8192
        return b*8192 if b < 7 else 147456

    def d_early_items(self, VE, VO, NS=8):
        a, vm = self.a, self.vm
        out = []
        blocks = [(b, kh) for b in range(NS) for kh in range(2)]
        for (b, kh) in blocks:
            for h in range(2):
                def f(b=b, kh=kh, h=h):
                    if h == 0:
                        a(f"s_add_u32 s98, s96, {b}"); a("s_and_b32 s98, s98, 15"); a("s_lshl_b32 s98, s98, 7"); a("s_add_u32 s98, s98, s97")
                        a(f"s_lshl_b32 s99, s{S_WAVE}, 16"); a("s_add_u32 s98, s98, s99")
                    a(f"s_lshl_b32 s99, s{S_WAVE}, 11"); a(f"s_add_u32 m0, s99, {self.d_slot(kh, b) + h*1024}")
                    a(f"s_add_u32 s99, s98, {kh*2048 + h*8*4096}")
                    vm.issue(f"buffer_load_dwordx4 v{VE if h == 0 else VO}, {srd(S_WSP)}, s99 offen lds", tag=("w", b))
                out.append((f, 28))
        return out, blocks

    def stage_list(self, srdb, VW, sg, sl, pairs, tag, tmp=98):
        a, vm = self.a, self.vm
        out = []
        for (lc, gc) in pairs:
            def f(lc=lc, gc=gc):
                a(f"s_add_u32 m0, s{sl}, {lc}"); a(f"s_add_u32 s{tmp}, s{sg}, {gc}")
                vm.issue(f"buffer_load_dwordx4 v{VW}, {srd(srdb)}, s{tmp} offen lds", tag=tag)
            out.append((f, 12))
        return out
    def pairs_small(self, ph, lds0=0):
        NB = 8 if ph == "B" else 14; rpb = 28 if ph == "B" else 32
        return [(lds0 + (kh*NB + b)*4096, (kh*NB + b)*rpb*896) for b in range(NB) for kh in range(2)]
    def pairs_win(self, img, lds0):
        return [(lds0 + k2*4096, k2*32*3584 + (1792 if img == 0 else 0)) for k2 in range(14)]
    def stage_setup(self, sct, rowbytes, sg, sl):
        a = self.a
        a(f"s_lshl_b32 s{sg}, s{sct}, 7"); a(f"s_mul_i32 s{sl}, s{S_WAVE}, {8*rowbytes}"); a(f"s_add_u32 s{sg}, s{sg}, s{sl}"); a(f"s_lshl_b32 s{sl}, s{S_WAVE}, 10")
    def ct7(self, dst):
        a = self.a
        a(f"s_mul_i32 s50, s{S_SLOT}, 37"); a("s_lshr_b32 s50, s50, 8"); a("s_mul_i32 s50, s50, 7"); a(f"s_sub_u32 s{dst}, s{S_SLOT}, s50")

    def map_BE(self, skip):
        a = self.a
        a(f"s_cmp_ge_u32 s{S_SLOT}, 28"); a(f"s_cbranch_scc1 {skip}")
        a(f"s_mul_i32 s50, s{S_SLOT}, 37"); a("s_lshr_b32 s50, s50, 8")
        a("s_mul_i32 s51, s50, 7"); a(f"s_sub_u32 s49, s{S_SLOT}, s51")
        a(f"s_lshl_b32 s48, s{S_XCD}, 2"); a("s_add_u32 s48, s48, s50")
        a(f"s_and_b32 s52, s{S_WAVE}, 1"); a("s_lshl_b32 s50, s48, 1"); a("s_add_u32 s52, s52, s50"); a(f"s_lshr_b32 s53, s{S_WAVE}, 1")

    def w128_lane(self, dst, rowbytes, t):
        a = self.a
        a(f"v_lshrrev_b32 v{t}, 3, v{V_LANE}"); a(f"v_mul_u32_u24 v{t}, {rowbytes}, v{t}")
        a(f"v_lshrrev_b32 v{t+1}, 4, v{V_LANE}"); a(f"v_and_b32 v{t+1}, 1, v{t+1}"); a(f"v_lshlrev_b32 v{t+1}, 2, v{t+1}")
        a(f"v_and_b32 v{t+2}, 7, v{V_LANE}"); a(f"v_xor_b32 v{t+2}, v{t+2}, v{t+1}"); a(f"v_lshlrev_b32 v{t+2}, 4, v{t+2}")
        a(f"v_add_u32 v{dst}, v{t}, v{t+2}")

    def w128_bases(self, B0, t, wave_bytes_reg=None, const=0):
        a = self.a
        a(f"v_lshrrev_b32 v{t}, 2, v{V_LANE}"); a(f"v_and_b32 v{t}, 3, v{t}")
        a(f"v_lshlrev_b32 v{t+1}, 2, v{V_HH}"); a(f"v_add_u32 v{t+1}, v{t+1}, v{t}"); a(f"v_lshlrev_b32 v{t+1}, 7, v{t+1}")
        a(f"v_lshrrev_b32 v{t+2}, 4, v{V_LANE}"); a(f"v_and_b32 v{t+2}, 1, v{t+2}"); a(f"v_lshlrev_b32 v{t+2}, 5, v{t+2}")
        a(f"v_add_u32 v{t+1}, v{t+1}, v{t+2}")
        a(f"v_and_b32 v{t+2}, 3, v{V_LANE}"); a(f"v_lshlrev_b32 v{t+2}, 3, v{t+2}"); a(f"v_add_u32 v{t+1}, v{t+1}, v{t+2}")
        a(f"v_lshrrev_b32 v{t}, 1, v{t}"); a(f"v_lshlrev_b32 v{t}, 6, v{t}")
        if wave_bytes_reg is not None: a(f"v_add_u32 v{t+1}, s{wave_bytes_reg}, v{t+1}")
        if const: a(f"v_add_u32 v{t+1}, {const}, v{t+1}")
        a(f"v_add_u32 v{B0}, v{t+1}, v{t}")
        a(f"v_xor_b32 v{t}, 64, v{t}"); a(f"v_add_u32 v{B0+1}, v{t+1}, v{t}")

    def small_phase(self, ph):
        a, vm, R = self.a, self.vm, self.R
        R.reset()
        isB = ph == "B"
        NB = 8 if isB else 14
        rows_per_blk = 28 if isB else 32
        SW = S_WO if isB else S_WOUT
        ACTB = OFR if isB else UFR; nact = 16 if isB else 28
        skip = f"L_skip{ph}"
        self.map_BE(skip)
        self.stamp(f"{ph}@0")
        t = R.alloc(4, 1); VW = R.alloc()
        self.w128_lane(VW, 896, t)
        a(f"s_{'mov_b32 s54, s49' if isB else 'lshl_b32 s54, s49, 1'}" if self.o.get("rot_" + ph.lower(), 0) else "s_mov_b32 s54, 0")
        a("s_lshl_b32 s55, s49, 7")
        a(f"s_lshl_b32 s58, s52, {4 if isB else 0}") if isB else a("s_mul_i32 s58, s52, 28")
        a(f"s_mul_i32 s50, s53, {NB}"); a("s_add_u32 s58, s58, s50"); a("s_lshl_b32 s58, s58, 11"); a(f"s_add_u32 s58, s58, {ACTB}")
        if isB:
            self.stage_setup(49, 896, 101, 100)
            for f, _ in self.stage_list(S_WO, VW, 101, 100, self.pairs_small("B"), "wo"): f()
            VWI = R.alloc(); self.w128_lane(VWI, 3584, t)
            a(f"s_cmp_ge_u32 s{S_SLOT}, 14"); a("s_cselect_b32 s50, 14, 0"); a(f"s_sub_u32 s99, s{S_SLOT}, s50")
            a("s_lshl_b32 s101, s99, 7")
            items = []
            for k2 in range(14):
                for q in range(4):
                    def it(st, k2=k2, q=q):
                        a(f"s_mov_b32 m0, {81920 + k2*4096 + q*1024}"); a(f"s_add_u32 s98, s101, {k2*32*3584 + 1792 + q*8*3584}")
                        a(f"buffer_load_dwordx4 v{VWI}, {srd(S_WIN)}, s98 offen lds")
                    items.append(it)
            self.dma_by_123(items, lambda n: "w2")
        XR = R.alloc(8)
        if isB:
            a(f"v_mul_u32_u24 v{t+3}, 896, v{V_L31}"); a(f"v_lshlrev_b32 v{t+2}, 3, v{V_HH}"); a(f"v_add_u32 v{t+3}, v{t+3}, v{t+2}")
            a(f"s_mul_i32 s54, s52, {32*896}"); a("s_lshl_b32 s50, s49, 7"); a("s_add_u32 s54, s54, s50"); a("s_lshl_b32 s50, s53, 6"); a("s_add_u32 s54, s54, s50")
            for g in range(4):
                vm.issue(f"buffer_load_dwordx2 {V(XR+2*g,2)}, v{t+3}, {srd(S_X)}, s54 offen offset:{g*16}", tag="xr")
        B0 = R.alloc(2, 1)
        a(f"s_mul_i32 s51, s53, {NB*4096}")
        self.w128_bases(B0, t, 51)
        if isB:
            a("s_lshr_b32 s55, s48, 1"); a("s_lshl_b32 s55, s55, 7"); a(f"s_add_u32 s55, s55, {F_O}"); self.poll(55, 16, drain=False)
        else:
            a("s_lshl_b32 s55, s48, 7"); a(f"s_add_u32 s55, s55, {F_U}"); self.poll(55, 7, drain=False)
        self.stamp(f"{ph}@1")
        ACT = R.alloc(8 * NB)
        a(f"s_{'mov_b32 s54, s49' if isB else 'lshl_b32 s54, s49, 1'}" if self.o.get("rot_" + ph.lower(), 0) else "s_mov_b32 s54, 0")
        def ld_act(k):
            b, st = k // 2, k % 2
            def f():
                if st == 0:
                    a(f"s_cmp_ge_u32 s54, {NB}"); a(f"s_cselect_b32 s50, {NB}, 0"); a("s_sub_u32 s54, s54, s50")
                    a("s_lshl_b32 s59, s54, 11"); a("s_add_u32 s59, s59, s58"); a("s_add_u32 s54, s54, 1")
                vm.issue(f"buffer_load_dwordx4 {V(ACT+8*b+4*st,4)}, v{V_L16}, {srd(S_WS)}, s59 offen offset:{st*1024} sc1", tag=("act", k))
            return [(f, 16 if st == 0 else 4)]
        PD = self.o.get("pd_small", 6)
        for k in range(PD):
            for f, _ in ld_act(k): f()
        def ld_res():
            a("s_lshl_b32 s50, s49, 1"); a("s_add_u32 s50, s50, s53"); a("s_mul_i32 s51, s52, 14"); a("s_add_u32 s50, s50, s51")
            a("s_lshl_b32 s55, s50, 11"); a(f"s_add_u32 s55, s55, {HFR}")
            for h in range(2):
                vm.issue(f"buffer_load_dwordx4 {V(XR+4*h,4)}, v{V_L16}, {srd(S_WS)}, s55 offen offset:{h*1024} sc1", tag="xr")
        vm.wait("wo" if isB else "wout"); a("s_barrier")
        ACC = R.alloc(32); WF = R.alloc(24)
        nk = 2 * NB
        def rd(k):
            out = []
            for c in range(2):
                for e in range(2):
                    r = WF + (k % 3)*8 + c*4 + e*2
                    out.append((f"ds_read_b64_tr_b16 v[{r}:{r+1}], v{B0+c} offset:{(k//2)*4096 + ((k%2)*16 + 8*e)*128}", 4))
            return out
        for k in range(2):
            for x, _ in rd(k): a(x)
        for k in range(nk):
            a(f"s_waitcnt lgkmcnt({4 if k + 1 < nk else 0})")
            vm.wait(("act", k))
            wb = WF + (k % 3) * 8
            mf = [f"{MFMA} {V(ACC+16*c,16)}, {V(wb+4*c,4)}, {V(ACT+4*k,4)}, {'0' if k == 0 else V(ACC+16*c,16)}" for c in range(2)]
            fill = (ld_act(k + PD) if k + PD < nk else []) + (rd(k + 2) if k + 2 < nk else [])
            if not isB and k == nk - PD: fill.append((ld_res, 32))
            self.sched(mf, fill)
        R.free(WF, 24); R.free(ACT, 8*NB)
        img1 = []
        if isB and self.o.get("img1_in_b", 1):
            a("s_barrier")
            self.stage_setup(99, 3584, 101, 100)
            img1 = self.stage_list(S_WIN, VWI, 101, 100, self.pairs_win(1, 0), "w")
            for f, _ in img1[:4]: f()
            img1 = img1[4:]
        LEX = 65536 if isB else 114688
        a(f"s_lshl_b32 s50, s{S_WAVE}, 12"); a(f"s_add_u32 s50, s50, {LEX}"); a(f"v_add_u32 v{t}, s50, v{V_L16}")
        a(f"s_xor_b32 s51, s{S_WAVE}, 2"); a("s_lshl_b32 s51, s51, 12"); a(f"s_add_u32 s51, s51, {LEX}"); a(f"v_add_u32 v{t+1}, s51, v{V_L16}")
        La = a.label("L_x"); Lb = a.label("L_x")
        a(f"s_cmp_lt_u32 s{S_WAVE}, 2"); a(f"s_cbranch_scc1 {La}")
        for q in range(4): a(f"ds_write_b128 v{t}, {V(ACC+4*q,4)} offset:{q*1024}")
        a("s_nop 1")
        for r in range(0, 16, 2): a(f"v_pk_mul_f32 {V(ACC+r,2)}, {V(ACC+16+r,2)}, 1.0 op_sel_hi:[1,0]")
        a(f"s_branch {Lb}")
        a(f"{La}:")
        for q in range(4): a(f"ds_write_b128 v{t}, {V(ACC+16+4*q,4)} offset:{q*1024}")
        a(f"{Lb}:")
        a("s_waitcnt lgkmcnt(0)"); a("s_barrier")
        for q in range(4): a(f"ds_read_b128 {V(ACC+16+4*q,4)}, v{t+1} offset:{q*1024}")
        self.stamp(f"{ph}@2")
        T0 = R.alloc(); T1 = R.alloc(); PF = R.alloc(8); XF = R.alloc(16)
        vm.wait("xr")
        for d in range(8):
            a(f"v_lshlrev_b32 v{XF+2*d}, 16, v{XR+d}"); a(f"v_and_b32 v{XF+2*d+1}, 0xffff0000, v{XR+d}")
        for r in range(0, 16, 2): a(f"v_pk_add_f32 {V(ACC+r,2)}, {V(ACC+r,2)}, {V(XF+r,2)}")
        a("s_waitcnt lgkmcnt(0)")
        for r in range(0, 16, 2): a(f"v_pk_add_f32 {V(ACC+r,2)}, {V(ACC+r,2)}, {V(ACC+16+r,2)}")
        for d in range(8): a(f"v_cvt_pk_bf16_f32 v{PF+d}, v{ACC+2*d}, v{ACC+2*d+1}")
        if isB:
            for f, _ in img1[:3]: f()
            img1 = img1[3:]
            a("s_lshl_b32 s50, s49, 1"); a("s_add_u32 s50, s50, s53"); a("s_mul_i32 s51, s52, 14"); a("s_add_u32 s50, s50, s51")
            a("s_lshl_b32 s55, s50, 11"); a(f"s_add_u32 s55, s55, {HFR}")
            for h in range(2):
                vm.issue(f"buffer_store_dwordx4 {V(PF+4*h,4)}, v{V_L16}, {srd(S_WS)}, s55 offen offset:{h*1024} sc1")
            PS = R.alloc(2); P2 = R.alloc(2)
            a(f"v_pk_add_f32 {V(PS,2)}, {V(ACC,2)}, {V(ACC+2,2)}"); a(f"v_pk_mul_f32 {V(P2,2)}, {V(ACC,2)}, {V(ACC,2)}")
            a(f"v_pk_fma_f32 {V(P2,2)}, {V(ACC+2,2)}, {V(ACC+2,2)}, {V(P2,2)}")
            for r in range(4, 16, 2):
                a(f"v_pk_add_f32 {V(PS,2)}, {V(PS,2)}, {V(ACC+r,2)}"); a(f"v_pk_fma_f32 {V(P2,2)}, {V(ACC+r,2)}, {V(ACC+r,2)}, {V(P2,2)}")
            a(f"v_add_f32 v{PS}, v{PS}, v{PS+1}"); a(f"v_add_f32 v{PS+1}, v{P2}, v{P2+1}")
            self.half_op(PS, T0); self.half_op(PS+1, T1)
            a(f"v_lshlrev_b32 v{T0}, 3, v{V_L31}")
            a("s_lshl_b32 s55, s50, 8"); a(f"s_add_u32 s55, s55, {HST}")
            vm.issue(f"buffer_store_dwordx2 {V(PS,2)}, v{T0}, {srd(S_WS)}, s55 offen sc1", tag="hst")
            a("s_lshr_b32 s55, s48, 1"); a("s_lshl_b32 s55, s55, 7"); a("s_and_b32 s50, s48, 1"); a("s_mul_i32 s50, s50, 7"); a("s_add_u32 s50, s50, s49")
            a("s_lshl_b32 s50, s50, 2"); a("s_add_u32 s55, s55, s50"); a(f"s_add_u32 s55, s55, {F_H}")
            for f, _ in img1: f()
            self.set_flag(55, tag="hst")
        else:
            for p in range(2):
                a(f"v_permlane32_swap_b32 v{PF+4*p}, v{PF+4*p+2}"); a(f"v_permlane32_swap_b32 v{PF+4*p+1}, v{PF+4*p+3}")
            a(f"v_mul_u32_u24 v{T0}, 896, v{V_L31}"); a(f"v_lshlrev_b32 v{T1}, 4, v{V_HH}"); a(f"v_add_u32 v{T0}, v{T0}, v{T1}")
            a(f"s_mul_i32 s54, s52, {32*896}"); a("s_lshl_b32 s50, s49, 7"); a("s_add_u32 s54, s54, s50"); a("s_lshl_b32 s50, s53, 6"); a("s_add_u32 s54, s54, s50")
            for p in range(2):
                vm.issue(f"buffer_store_dwordx4 {V(PF+4*p,4)}, v{T0}, {srd(S_OUT)}, s54 offen offset:{p*32}")
        if isB: self.idle_prefetch(skip, 0)
        else: a(f"{skip}:")
        self.stamp(f"{ph}@3")

    def phase_B(self):
        self.a.c("================ phase B : h = x + o @ wo ================"); self.small_phase("B")
    def phase_E(self):
        self.a.c("================ phase E : out = h + u @ w_out ================"); self.small_phase("E")

    def phase_C(self):
        a, vm, R = self.a, self.vm, self.R
        R.reset()
        a.c("================ phase C : z = gelu(LN(h) @ w_in) ================")
        skip = "L_skipC"
        a(f"s_cmp_ge_u32 s{S_SLOT}, 28"); a(f"s_cbranch_scc1 {skip}")
        a(f"s_cmp_ge_u32 s{S_SLOT}, 14"); a("s_cselect_b32 s50, 1, 0")
        a("s_mul_i32 s51, s50, 14"); a(f"s_sub_u32 s49, s{S_SLOT}, s51")
        a(f"s_lshl_b32 s48, s{S_XCD}, 1"); a("s_add_u32 s48, s48, s50")
        a(f"s_lshl_b32 s52, s48, 2"); a(f"s_add_u32 s52, s52, s{S_WAVE}")
        self.stamp("C@0")
        IMG = (81920, 0)
        LCS = 57344; LTR = LCS + 512
        t = R.alloc(4, 1); VW = R.alloc()
        self.w128_lane(VW, 3584, t)
        if not self.o.get("img1_in_b", 1):
            self.stage_setup(49, 3584, 101, 100)
            for f, _ in self.stage_list(S_WIN, VW, 101, 100, self.pairs_win(1, IMG[1]), "w"): f()
        B2 = R.alloc(2, 1); B1 = R.alloc(2, 1)
        self.w128_bases(B2, t, None, IMG[0])
        for c in range(2): a(f"v_subrev_u32 v{B1+c}, {IMG[0] - IMG[1]}, v{B2+c}")
        ONES = R.alloc(4)
        for k in range(4): a(f"v_mov_b32 v{ONES+k}, 0x3f803f80")
        BC = R.alloc(); CSA = R.alloc(16)
        a(f"s_lshr_b32 s50, s{S_WAVE}, 1"); a(f"s_mul_i32 s50, s50, {IMG[0] - IMG[1]}")
        a(f"s_and_b32 s51, s{S_WAVE}, 1"); a("s_cmp_eq_u32 s51, 0")
        a(f"v_mov_b32 v{BC}, v{B2+1}"); a("s_cselect_b64 vcc, -1, 0"); a(f"v_cndmask_b32 v{BC}, v{BC}, v{B2}, vcc"); a(f"v_subrev_u32 v{BC}, s50, v{BC}")
        WC = R.alloc(16)
        self.stamp("Cv")
        vm.wait("w"); a("s_barrier")
        self.stamp("Cw")
        def rdc(k): return [(f"ds_read_b64_tr_b16 v[{WC+(k%4)*4+e*2}:{WC+(k%4)*4+e*2+1}], v{BC} offset:{k*2048 + e*1024}", 4) for e in range(2)]
        for k in range(3):
            for x, _ in rdc(k): a(x)
        for k in range(28):
            a(f"s_waitcnt lgkmcnt({min(4, 2*(27-k))})")
            self.sched([f"{MFMA} {V(CSA,16)}, {V(WC+(k%4)*4,4)}, {V(ONES,4)}, {'0' if k == 0 else V(CSA,16)}"], rdc(k + 3) if k + 3 < 28 else [])
        a(f"v_lshlrev_b32 v{t}, 4, v{V_HH}"); a(f"s_lshl_b32 s50, s{S_WAVE}, 7"); a(f"s_add_u32 s50, s50, {LCS}"); a(f"v_add_u32 v{t}, s50, v{t}")
        a("s_mov_b32 exec_lo, 1"); a("s_mov_b32 exec_hi, 1")
        for gg in range(4): a(f"ds_write_b128 v{t}, {V(CSA+4*gg,4)} offset:{gg*32}")
        a("s_mov_b64 exec, -1")
        a("s_waitcnt lgkmcnt(0)")
        self.stamp("Cc")
        R.free(CSA, 16); R.free(WC, 16)
        a(f"s_lshl_b32 s55, s48, 7"); a(f"s_add_u32 s55, s55, {F_H}")
        self.poll(55, 14, drain=False)
        self.stamp("C@1")
        T0 = R.alloc(); T1 = R.alloc()
        HS = R.alloc(14, 2)
        a("s_mul_i32 s55, s52, 14"); a("s_lshl_b32 s54, s55, 11"); a(f"s_add_u32 s54, s54, {HFR}")
        a("s_lshl_b32 s58, s49, 1" if self.o.get("rot_c", 0) else "s_mov_b32 s58, 0")
        def ld_h(k):
            def f():
                a("s_cmp_ge_u32 s58, 28"); a("s_cselect_b32 s50, 28, 0"); a("s_sub_u32 s58, s58, s50")
                a("s_lshl_b32 s56, s58, 10"); a("s_add_u32 s56, s56, s54")
                vm.issue(f"buffer_load_dwordx4 {A(4*k,4)}, v{V_L16}, {srd(S_WS)}, s56 offen sc1", tag=("act", k))
                a("s_add_u32 s58, s58, 1")
            return [(f, 24)]
        def ld_hs():
            a(f"v_mul_u32_u24 v{T0}, {7*256}, v{V_HH}"); a(f"v_lshlrev_b32 v{T1}, 3, v{V_L31}"); a(f"v_add_u32 v{T0}, v{T0}, v{T1}")
            a("s_lshl_b32 s55, s55, 8"); a(f"s_add_u32 s55, s55, {HST}")
            for q in range(7):
                vm.issue(f"buffer_load_dwordx2 {V(HS+2*q,2)}, v{T0}, {srd(S_WS)}, s55 offen offset:{q*256} sc1", tag="hs")
        PD = self.o.get("pd_c", 10)
        for k in range(PD):
            for f, _ in ld_h(k): f()
        self.stamp("Ci")
        Z = R.alloc(64)
        WG = R.alloc(24)
        def rd(k, B, kk):
            out = []
            for c in range(2):
                for e in range(2):
                    r = WG + (kk % 3)*8 + c*4 + e*2
                    out.append((f"ds_read_b64_tr_b16 v[{r}:{r+1}], v{B+c} offset:{k*2048 + e*1024}", 4))
            return out
        CSR = R.alloc(32); VT = R.alloc()
        a(f"v_lshlrev_b32 v{VT}, 4, v{V_HH}"); a(f"v_add_u32 v{VT}, {LCS}, v{VT}")
        for x, _ in rd(0, B2, 0) + rd(1, B2, 1): a(x)
        MEAN = R.alloc(2); RSTD = MEAN + 1
        K0 = R.alloc(2); S0 = R.alloc(2); Q0 = R.alloc(2); TT = R.alloc(8)
        k0 = -2.0 * LOG2E * math.sqrt(2 / math.pi); k1 = k0 * 0.044715
        pre = [(lambda: vm.wait("hs"), 4), (f"v_mov_b32 v{MEAN}, v{HS}", 4), (f"v_mov_b32 v{RSTD}, v{HS+1}", 4)]
        for q in range(1, 7): pre += [(f"v_add_f32 v{MEAN}, v{MEAN}, v{HS+2*q}", 4), (f"v_add_f32 v{RSTD}, v{RSTD}, v{HS+2*q+1}", 4)]
        pre += [(lambda: self.half_op(MEAN, T0), 16), (lambda: self.half_op(RSTD, T1), 16)]
        pre += [(f"v_mul_f32 v{MEAN}, {lit(1/448)}, v{MEAN}", 4), (f"v_mul_f32 v{RSTD}, {lit(1/448)}, v{RSTD}", 4), (f"v_fma_f32 v{RSTD}, -v{MEAN}, v{MEAN}, v{RSTD}", 4),
                (f"v_max_f32 v{RSTD}, 0, v{RSTD}", 4), (f"v_add_f32 v{RSTD}, {lit(1e-5)}, v{RSTD}", 4), (f"v_rsq_f32 v{RSTD}, v{RSTD}", 8),
                (f"s_mov_b32 s62, {lit(k1)}", 4), (f"s_mov_b32 s63, {lit(k1)}", 4), (f"v_mov_b32 v{K0}, {lit(k0)}", 4), (f"v_mov_b32 v{K0+1}, {lit(k0)}", 4)]
        for k in range(28):
            a(f"s_waitcnt lgkmcnt({4 if k + 1 < 28 else 0})")
            vm.wait(("act", k))
            if k in (0, 7, 14, 21): self.stamp(f"Ck{k}")
            wb = WG + (k % 3) * 8
            fill = (ld_h(k + PD) if k + PD < 28 else []) + (rd(k + 2, B2, k + 2) if k + 2 < 28 else rd(k + 2 - 28, B1, k + 2))
            if k == 28 - PD: fill.append((ld_hs, 48))
            if k == 26: fill += [(f"ds_read_b128 {V(CSR+16*c+4*gg,4)}, v{VT} offset:{c*128+gg*32}", 4) for c in range(2) for gg in range(4)]
            mf = [f"{MFMA} {V(Z+16*c,16)}, {V(wb+4*c,4)}, {A(4*k,4)}, {'0' if k == 0 else V(Z+16*c,16)}" for c in range(2)]
            self.sched(mf, fill)
        for f, _ in pre: self.emit_fill(f)
        a("s_barrier")
        self.stamp("C@2")
        self.d_map(); self.DVE = R.alloc(); self.DVO = R.alloc(); td = R.alloc(4, 1)
        self.d_lanes(self.DVE, self.DVO, td); R.free(td, 4)
        allit, self.d_early_blocks = self.d_early_items(self.DVE, self.DVO)
        now = []; later = []
        for n, (b, kh) in enumerate(self.d_early_blocks):
            (now if (kh == 1 or b == 7) else later).extend(allit[2*n:2*n+2])
        n_g = self.o.get("early_in_gelu", 0)
        if self.o.get("stage_after", 1):
            now = []; later = allit
        touch = now[:n_g]; now = now[n_g:]
        PF = R.alloc(16)
        def gelu_pk(zbase, pack, marks=None):
            nonlocal touch
            ins = []
            for r0 in range(0, 32, 8):
                zs = [zbase + r0 + 2*i for i in range(4)]; cs = [CSR + r0 + 2*i for i in range(4)]
                ins += [f"v_pk_fma_f32 {V(z,2)}, {V(MEAN,2)}, {V(c,2)}, {V(z,2)} op_sel_hi:[0,1,1] neg_lo:[1,0,0] neg_hi:[1,0,0]" for z, c in zip(zs, cs)]
                ins += [f"v_pk_mul_f32 {V(z,2)}, {V(z,2)}, {V(MEAN,2)} op_sel:[0,1] op_sel_hi:[1,1]" for z in zs]
                ins += [f"v_pk_mul_f32 {V(TT+2*i,2)}, {V(z,2)}, {V(z,2)}" for i, z in enumerate(zs)]
                ins += [f"v_pk_fma_f32 {V(TT+2*i,2)}, {V(TT+2*i,2)}, s[62:63], {V(K0,2)}" for i in range(4)]
                ins += [f"v_pk_mul_f32 {V(TT+2*i,2)}, {V(TT+2*i,2)}, {V(z,2)}" for i, z in enumerate(zs)]
                ins += [f"v_exp_f32 v{TT+i}, v{TT+i}" for i in range(8)]
                ins += [f"v_pk_add_f32 {V(TT+2*i,2)}, {V(TT+2*i,2)}, 1.0 op_sel_hi:[1,0]" for i in range(4)]
                ins += [f"v_rcp_f32 v{TT+i}, v{TT+i}" for i in range(8)]
                ins += [f"v_pk_mul_f32 {V(z,2)}, {V(z,2)}, {V(TT+2*i,2)}" for i, z in enumerate(zs)]
                if pack:
                    ins += [f"v_cvt_pk_bf16_f32 v{PF + r0//2 + i}, v{z}, v{z+1}" for i, z in enumerate(zs)]
                else:
                    for i, z in enumerate(zs):
                        if r0 == 0 and i == 0:
                            ins += [f"v_pk_mul_f32 {V(Q0,2)}, {V(z,2)}, {V(z,2)}", f"v_pk_mul_f32 {V(S0,2)}, {V(z,2)}, 1.0 op_sel_hi:[1,0]"]
                        else:
                            ins += [f"v_pk_fma_f32 {V(Q0,2)}, {V(z,2)}, {V(z,2)}, {V(Q0,2)}", f"v_pk_add_f32 {V(S0,2)}, {V(S0,2)}, {V(z,2)}"]
                if marks and r0 in marks: ins.append(marks[r0])
            gap = self.o.get("early_gap", 14)
            for n, x in enumerate(ins):
                self.emit_fill(x)
                if touch and n % gap == gap - 1:
                    self.emit_fill(touch[0][0]); touch = touch[1:]
        a("s_waitcnt lgkmcnt(0)") if False else None
        a("s_waitcnt lgkmcnt(8)")
        a("s_waitcnt lgkmcnt(0)")
        gelu_pk(Z, False)
        G = R.alloc(4)
        a(f"v_add_f32 v{G}, v{S0}, v{S0+1}"); a(f"v_add_f32 v{G+1}, v{Q0}, v{Q0+1}")
        self.half_op(G, T0); self.half_op(G+1, T1)
        a(f"v_mov_b32 v{G+2}, s{S_TAG}"); a(f"v_mov_b32 v{G+3}, s{S_TAG}")
        a("s_mul_i32 s55, s48, 14"); a("s_add_u32 s55, s55, s49"); a("s_lshl_b32 s55, s55, 11"); a(f"s_lshl_b32 s50, s{S_WAVE}, 9"); a("s_add_u32 s55, s55, s50")
        a(f"s_add_u32 s55, s55, {STATS}"); a(f"v_lshlrev_b32 v{T1}, 4, v{V_L31}")
        vm.issue(f"buffer_store_dwordx4 {V(G,4)}, v{T1}, {srd(S_WS)}, s55 offen sc1")
        self.stamp("C@3")
        GR = R.alloc(28)
        a(f"v_mul_u32_u24 v{T0}, {7*2048}, v{V_HH}"); a(f"v_add_u32 v{T1}, v{T1}, v{T0}")
        a("s_mul_i32 s55, s48, 14"); a("s_lshl_b32 s55, s55, 11"); a(f"s_lshl_b32 s50, s{S_WAVE}, 9"); a("s_add_u32 s55, s55, s50"); a(f"s_add_u32 s55, s55, {STATS}")
        def gr_loads():
            a("s_mov_b32 s54, s55")
            for q in range(7):
                if q and q % 2 == 0: a("s_add_u32 s54, s54, 4096")
                vm.issue(f"buffer_load_dwordx4 {V(GR+4*q,4)}, v{T1}, {srd(S_WS)}, s54 offen offset:{(q%2)*2048} sc1", tag="gr")
        WA = R.alloc(4, 1); RA = R.alloc(2, 1); U0 = R.alloc(); U1 = R.alloc(); U2 = R.alloc()
        adr = []
        adr += [f"s_lshl_b32 s68, s{S_WAVE}, 12", f"s_add_u32 s68, s68, {LTR}",
                f"v_lshrrev_b32 v{U0}, 1, v{V_L31}", f"v_and_b32 v{U0}, 7, v{U0}", f"v_xor_b32 v{U0}, v{U0}, v{V_HH}", f"v_lshlrev_b32 v{U0}, 3, v{U0}",
                f"v_lshlrev_b32 v{WA}, 6, v{V_L31}", f"v_add_u32 v{WA}, v{WA}, v{U0}", f"v_add_u32 v{WA}, s68, v{WA}"]
        adr += [f"v_xor_b32 v{WA+g}, {g<<4}, v{WA}" for g in range(1, 4)]
        adr += [f"v_lshrrev_b32 v{U0}, 2, v{V_LANE}", f"v_and_b32 v{U0}, 3, v{U0}", f"v_lshlrev_b32 v{U1}, 3, v{V_HH}", f"v_add_u32 v{U1}, v{U1}, v{U0}", f"v_lshlrev_b32 v{RA}, 6, v{U1}",
                f"v_lshrrev_b32 v{U0}, 1, v{U0}", f"v_lshlrev_b32 v{U1}, 2, v{V_HH}", f"v_add_u32 v{U0}, v{U0}, v{U1}",
                f"v_lshrrev_b32 v{U1}, 4, v{V_LANE}", f"v_and_b32 v{U1}, 1, v{U1}", f"v_lshlrev_b32 v{U1}, 2, v{U1}", f"v_and_b32 v{U2}, 3, v{V_LANE}", f"v_add_u32 v{U1}, v{U1}, v{U2}",
                f"v_xor_b32 v{U0}, v{U0}, v{U1}", f"v_lshlrev_b32 v{U0}, 3, v{U0}", f"v_add_u32 v{RA}, v{RA}, v{U0}", f"v_add_u32 v{RA}, s68, v{RA}", f"v_xor_b32 v{RA+1}, 16, v{RA}"]
        adr = [(x, 4) for x in adr]
        KSPLIT = self.o.get("z1_split", 20)
        def z1_steps(k0_, k1_):
          nonlocal touch, adr
          for k in range(k0_, k1_):
            kk = k + 28
            a(f"s_waitcnt lgkmcnt({4 if (k + 1 < 28 and k > 0 and k != KSPLIT) else 0})")
            wb = WG + (kk % 3) * 8
            fill = rd(k + 2, B1, kk + 2) if k + 2 < 28 else []
            if k == min(self.o.get("gr_at", 12), KSPLIT - 6): fill.append((gr_loads, 40))
            if k == 24: fill += [(f"ds_read_b128 {V(CSR+16*c+4*gg,4)}, v{VT} offset:{256+c*128+gg*32}", 4) for c in range(2) for gg in range(4)]
            fill += adr[:3]; adr = adr[3:]
            if k == 0: touch = touch + now
            if touch and k >= self.o.get("early_k0", 2) and k < KSPLIT: fill.append(touch[0]); touch = touch[1:]
            mf = [f"{MFMA} {V(Z+32+16*c,16)}, {V(wb+4*c,4)}, {A(4*k,4)}, {'0' if k == 0 else V(Z+32+16*c,16)}" for c in range(2)]
            self.sched(mf, fill)
        z1_steps(0, KSPLIT)
        for f, _ in adr: self.emit_fill(f)
        for f, _ in touch: self.emit_fill(f)
        touch = []
        R.free(HS, 14)
        self.stamp("C@4")
        Lp = a.label("L_sp"); Ld = a.label("L_sd")
        vm.wait("gr")
        a("s_mov_b32 s70, 0"); a(f"{Lp}:")
        a(f"v_xor_b32 v{T0}, s{S_TAG}, v{GR+2}")
        for q in range(1, 7):
            a(f"v_xor_b32 v{G}, s{S_TAG}, v{GR+4*q+2}"); a(f"v_or_b32 v{T0}, v{T0}, v{G}")
        a(f"v_cmp_ne_u32 vcc, 0, v{T0}"); a(f"s_cbranch_vccz {Ld}")
        a("s_mov_b32 s54, s55")
        for q in range(7):
            if q and q % 2 == 0: a("s_add_u32 s54, s54, 4096")
            a(f"buffer_load_dwordx4 {V(GR+4*q,4)}, v{T1}, {srd(S_WS)}, s54 offen offset:{(q%2)*2048} sc1")
        a("s_waitcnt vmcnt(0)")
        a("s_add_u32 s70, s70, 1"); a("s_cmp_lt_u32 s70, 20000"); a(f"s_cbranch_scc1 {Lp}")
        a(f"{Ld}:")
        self.stamp("C@s")
        for q in range(1, 7): a(f"v_pk_add_f32 {V(GR,2)}, {V(GR,2)}, {V(GR+4*q,2)}")
        self.half_op(GR, T0); self.half_op(GR+1, G)
        M3, R3 = GR, GR+1
        a(f"v_mul_f32 v{M3}, {lit(1/896)}, v{M3}"); a(f"v_mul_f32 v{R3}, {lit(1/896)}, v{R3}")
        a(f"v_fma_f32 v{R3}, -v{M3}, v{M3}, v{R3}"); a(f"v_max_f32 v{R3}, 0, v{R3}")
        a(f"v_add_f32 v{R3}, {lit(1e-5)}, v{R3}"); a(f"v_rsq_f32 v{R3}, v{R3}")
        a("s_nop 0")
        a(f"v_mul_f32 v{M3}, v{M3}, v{R3}")
        PZ = GR + 4
        for c in range(2):
            for r in range(0, 16, 2): a(f"v_pk_fma_f32 {V(Z+16*c+r,2)}, {V(Z+16*c+r,2)}, {V(M3,2)}, {V(M3,2)} op_sel:[0,1,0] op_sel_hi:[1,1,0] neg_lo:[0,0,1] neg_hi:[0,0,1]")
            for d in range(8): a(f"v_cvt_pk_bf16_f32 v{PZ+8*c+d}, v{Z+16*c+2*d}, v{Z+16*c+2*d+1}")
            for g in range(4): a(f"ds_write_b64 v{WA+g}, {V(PZ+8*c+2*g,2)} offset:{c*2048}")
        a("s_waitcnt lgkmcnt(0)")
        for c in range(2):
            for st in range(2):
                for e in range(2):
                    r = PZ + 8*c + 4*st + 2*e
                    a(f"ds_read_b64_tr_b16 v[{r}:{r+1}], v{RA+e} offset:{c*2048 + st*1024 + e*256}")
        for c in range(2):
            a("s_lshl_b32 s55, s49, 1"); a(f"s_add_u32 s55, s55, {c}"); a("s_lshl_b32 s55, s55, 6"); a("s_add_u32 s55, s55, s52"); a("s_lshl_b32 s55, s55, 11"); a(f"s_add_u32 s55, s55, {Z2F}")
            a(f"s_waitcnt lgkmcnt({4 if c == 0 else 0})")
            for st in range(2):
                vm.issue(f"buffer_store_dwordx4 {V(PZ+8*c+4*st,4)}, v{V_L16}, {srd(S_WS)}, s55 offen offset:{st*1024} sc1", tag="z2st")
        z1_steps(KSPLIT, 28)
        R.free(WG, 24)
        a("s_waitcnt lgkmcnt(0)")
        a("s_barrier")
        touch = later
        a("s_lshl_b32 s55, s49, 7"); a("s_lshl_b32 s50, s48, 2"); a("s_add_u32 s55, s55, s50"); a(f"s_add_u32 s55, s55, {F_Z}")
        def flag_now():
            self.set_flag(55, tag="z2st"); self.stamp("C@5")
        gelu_pk(Z + 32, True, {self.o.get("zflag_at", 0): flag_now})
        a("s_mul_i32 s56, s52, 28"); a("s_lshl_b32 s50, s49, 1"); a("s_add_u32 s56, s56, s50"); a("s_lshl_b32 s56, s56, 11"); a(f"s_add_u32 s56, s56, {Z1F}")
        for q in range(4):
            vm.issue(f"buffer_store_dwordx4 {V(PF+4*q,4)}, v{V_L16}, {srd(S_WS)}, s56 offen offset:{q*1024} sc1", tag="z1st")
        for f, _ in touch: self.emit_fill(f)
        self.idle_prefetch(skip, 1)
        self.stamp("C@6")

    def phase_D(self):
        a, vm, R = self.a, self.vm, self.R
        R.reset()
        a.c("================ phase D : g = w_sp @ z2n + b ; u = z1*g ================")
        skip = "L_skipD"
        a(f"s_cmp_ge_u32 s{S_SLOT}, 28"); a(f"s_cbranch_scc1 {skip}")
        self.d_map()
        a("s_mov_b32 s49, s94"); a("s_mov_b32 s48, s95"); a("s_mov_b32 s54, s96")
        self.stamp("D@0")
        NS = 8
        a(f"s_lshr_b32 s53, s{S_WAVE}, 1"); a(f"s_and_b32 s52, s{S_WAVE}, 1")
        t = R.alloc(4, 1); VE = R.alloc(); VO = R.alloc()
        self.d_lanes(VE, VO, t)
        a("s_lshl_b32 s55, s48, 18"); a("s_lshl_b32 s50, s53, 11"); a("s_add_u32 s55, s55, s50"); a("s_lshl_b32 s50, s52, 17"); a("s_add_u32 s55, s55, s50")
        a("s_mul_i32 s57, s53, 81920"); a("s_lshl_b32 s50, s52, 12"); a("s_add_u32 s57, s57, s50")
        a("s_mov_b32 s67, 147456"); a("s_cmp_eq_u32 s53, 0"); a(f"s_cselect_b32 s67, s67, {81920 + 7*8192}"); a("s_add_u32 s67, s67, s50")
        def blk_idx(b, dst):
            a(f"s_add_u32 s{dst}, s54, {b}"); a(f"s_and_b32 s{dst}, s{dst}, 15")
        def dma(b):
            out = []
            def pre(): blk_idx(b, 58); a("s_lshl_b32 s58, s58, 7"); a("s_add_u32 s58, s58, s55")
            out.append((pre, 16))
            for q in range(4):
                def f(q=q):
                    if b % NS < 7: a(f"s_add_u32 m0, s57, {(b%NS)*8192 + q*1024}")
                    else: a(f"s_add_u32 m0, s67, {q*1024}")
                    a(f"s_add_u32 s56, s58, {q*8*4096}")
                    vm.issue(f"buffer_load_dwordx4 v{VE if q%2==0 else VO}, {srd(S_WSP)}, s56 offen lds", tag=("w", b))
                out.append((f, 16))
            return out
        early = set(self.d_early_blocks) if self.o.get("early_d", 1) else set()
        NPRE = NS if early else self.o.get("npre", 4)
        a("s_lshl_b32 s61, s48, 18")
        items = []; tags = []
        for b in range(NPRE):
            for kh_ in range(2):
                if (b, kh_) in early: continue
                for q in range(8):
                    def it(st, b=b, kh_=kh_, q=q):
                        if st.get("b") != b:
                            blk_idx(b, 58); a("s_lshl_b32 s58, s58, 7"); a("s_add_u32 s58, s58, s61"); st["b"] = b
                        a(f"s_mov_b32 m0, {self.d_slot(kh_, b) + q*1024}"); a(f"s_add_u32 s56, s58, {kh_*2048 + q*8*4096}")
                        a(f"buffer_load_dwordx4 v{VE if q%2==0 else VO}, {srd(S_WSP)}, s56 offen lds")
                    items.append(it); tags.append(("w", b))
        if items: self.dma_by_123(items, lambda n: tags[n])
        FA = R.alloc(4, 1)
        a(f"v_lshrrev_b32 v{t}, 1, v{V_L31}"); a(f"v_and_b32 v{t}, 7, v{t}"); a(f"v_xor_b32 v{t}, v{t}, v{V_HH}"); a(f"v_lshlrev_b32 v{t}, 4, v{t}")
        a(f"v_lshlrev_b32 v{FA}, 7, v{V_L31}"); a(f"v_add_u32 v{FA}, v{FA}, v{t}")
        FA7 = R.alloc(4, 1)
        a("s_lshl_b32 s50, s52, 12"); a("s_sub_u32 s51, s67, s50"); a(f"v_add_u32 v{FA7}, s51, v{FA}")
        a("s_sub_u32 s51, s57, s50"); a(f"v_add_u32 v{FA}, s51, v{FA}")
        for s in range(1, 4): a(f"v_xor_b32 v{FA+s}, {s*32}, v{FA}"); a(f"v_xor_b32 v{FA7+s}, {s*32}, v{FA7}")
        BI = R.alloc()
        a(f"v_lshlrev_b32 v{t}, 1, v{V_L31}"); a("s_lshl_b32 s50, s48, 7"); a("s_lshl_b32 s51, s53, 6"); a("s_add_u32 s50, s50, s51")
        vm.issue(f"buffer_load_ushort v{BI}, v{t}, {srd(S_BSP)}, s50 offen", tag="bi")
        VZ = R.alloc(2, 1)
        a("s_lshl_b32 s50, s49, 2"); a("s_lshl_b32 s51, s52, 1"); a("s_add_u32 s50, s50, s51"); a("s_lshl_b32 s50, s50, 6"); a("s_lshl_b32 s51, s53, 5"); a("s_add_u32 s50, s50, s51")
        a("s_lshl_b32 s50, s50, 11"); a(f"s_add_u32 s50, s50, {Z2F}"); a(f"v_add_u32 v{VZ}, s50, v{V_L16}"); a(f"v_add_u32 v{VZ+1}, {64*2048}, v{VZ}")
        a(f"v_and_b32 v9, 7, v{V_LANE}"); a("v_lshlrev_b32 v9, 2, v9")
        a("s_lshl_b32 s66, s49, 1"); a("s_add_u32 s66, s66, s52"); a("s_lshl_b32 s66, s66, 7"); a("s_lshl_b32 s50, s53, 5"); a("s_add_u32 s66, s66, s50"); a(f"s_add_u32 s66, s66, {F_Z}")
        if self.o.get("prog_d", 1):
            self.gate_first(0)
        else:
            a(f"v_and_b32 v9, 15, v{V_LANE}"); a("v_lshlrev_b32 v9, 2, v9"); a(f"v_lshrrev_b32 v{t}, 4, v{V_LANE}"); a(f"v_and_b32 v{t}, 1, v{t}"); a(f"v_lshlrev_b32 v{t}, 7, v{t}"); a(f"v_add_u32 v9, v9, v{t}")
            a("s_lshl_b32 s59, s49, 8"); a(f"s_add_u32 s59, s59, {F_Z}")
            self.poll(59, 32, voff=9, drain=False)
        self.stamp("D@1")
        ND = self.o.get("nd", 12)
        ZR = R.alloc(8 * ND); WF = R.alloc(24); Z1 = R.alloc(16); VWO = R.alloc(); tw = R.alloc(4, 1)
        def ldz(k):
            out = []
            b, sp = k // 4, k % 4
            if self.o.get("prog_d", 1):
                if k % 8 == 0 and k > 0:
                    def chk(k=k):
                        self.gate_update(); self.gate_check(k // 8)
                    out.append((chk, 16))
                if k % 8 == 3 and k // 8 + 1 < 8: out.append((self.gate_refresh, 8))
            if sp == 0:
                def pre():
                    blk_idx(b, 60 + (b % 4)); a(f"s_lshl_b32 s{60 + (b % 4)}, s{60 + (b % 4)}, 12")
                    if self.o.get("d_fake"): a(f"s_and_b32 s{60 + (b % 4)}, s{60 + (b % 4)}, {self.o['d_fake']}")
                out.append((pre, 12))
            for c in range(2):
                def f(c=c):
                    r = ZR + 8*(k % ND) + 4*c
                    vm.issue(f"buffer_load_dwordx4 {V(r,4)}, v{VZ+c}, {srd(S_WS)}, s{60 + (b % 4)} offen offset:{sp*1024} sc1", tag=("z", k))
                out.append((f, 8))
            return out
        def rdw(k):
            b, sp = k // 4, k % 4
            if b % NS == 7: return [(f"ds_read_b128 {V(WF+(k%3)*8+tc*4,4)}, v{FA7+sp} offset:{tc*4096}", 4) for tc in range(2)]
            return [(f"ds_read_b128 {V(WF+(k%3)*8+tc*4,4)}, v{FA+sp} offset:{(b%NS)*8192 + tc*4096}", 4) for tc in range(2)]
        INIT = 4
        for k in range(INIT):
            for f, _ in ldz(k): f()
        nz = INIT
        wout = []
        vm.wait(("w", 0)); a("s_barrier")
        def z1flag():
            Lz = a.label("L_z1f")
            a(f"s_cmp_lg_u32 s{S_WAVE}, 0"); a(f"s_cbranch_scc1 {Lz}")
            a(f"s_cmp_ge_u32 s{S_SLOT}, 14"); a("s_cselect_b32 s50, 1, 0"); a("s_mul_i32 s51, s50, 14"); a(f"s_sub_u32 s51, s{S_SLOT}, s51")
            a(f"s_lshl_b32 s68, s{S_XCD}, 1"); a("s_add_u32 s50, s50, s68"); a("s_lshl_b32 s50, s50, 2"); a("s_lshl_b32 s51, s51, 7"); a("s_add_u32 s50, s50, s51"); a(f"s_add_u32 s50, s50, {F_Z1}")
            a(f"v_mov_b32 v{t}, s{S_TAG}"); a(f"v_mov_b32 v{t+1}, 0"); a("s_mov_b64 exec, 1")
            a(f"buffer_store_dword v{t}, v{t+1}, {srd(S_WS)}, s50 offen sc1")
            a("s_mov_b64 exec, -1"); a(f"{Lz}:")
        for k in range(2):
            for x, _ in rdw(k): a(x)
        nbw = NPRE
        for k in range(64):
            b, sp = k // 4, k % 4
            fill = []
            a(f"s_waitcnt lgkmcnt({2 if k + 1 < 64 else 0})")
            vm.wait(("z", k))
            if k + 2 < 64:
                if (k + 2) % 4 == 0:
                    nb = (k + 2) // 4
                    def rdy(nb=nb):
                        if nb == 3: vm.wait("z1st")
                        vm.wait(("w", nb)); a("s_barrier")
                        if nb == 3: z1flag()
                    fill.append((rdy, 8))
                fill += rdw(k + 2)
            for _ in range(2):
                if nz < 64 and nz <= k + ND - 1:
                    fill += ldz(nz); nz += 1
            if k == 59:
                def z1loads():
                    self.gate_update(); self.gate_check(0)
                    a("s_lshl_b32 s50, s48, 1"); a("s_add_u32 s50, s50, s53"); a("s_mul_i32 s50, s50, 28"); a("s_lshl_b32 s51, s49, 2"); a("s_add_u32 s50, s50, s51"); a("s_lshl_b32 s51, s52, 1"); a("s_add_u32 s50, s50, s51")
                    a("s_lshl_b32 s69, s50, 11"); a(f"s_add_u32 s50, s69, {Z1F}")
                    for q in range(4):
                        vm.issue(f"buffer_load_dwordx4 {V(Z1+4*q,4)}, v{V_L16}, {srd(S_WS)}, s50 offen offset:{q*1024} sc1", tag="z1")
                fill.append((z1loads, 64))
            if k == 50:
                def wosetup():
                    self.w128_lane(VWO, 896, tw); self.stage_setup(49, 896, 101, 100)
                fill.append((wosetup, 60))
            if k == 54:
                def z1gate():
                    a("s_lshr_b32 s50, s48, 1"); a("s_lshl_b32 s50, s50, 2"); a("s_lshl_b32 s66, s49, 1"); a("s_add_u32 s66, s66, s52"); a("s_lshl_b32 s66, s66, 7")
                    a("s_add_u32 s66, s66, s50"); a(f"s_add_u32 s66, s66, {F_Z1}"); a("v_mov_b32 v9, 0"); self.gate_refresh()
                fill.append((z1gate, 32))
            if sp in (1, 3) and nbw < 16 and (nbw < NS or (sp == 3 and nbw - NS <= b - 1)) and not self.o.get("d_now"):
                fill += dma(nbw); nbw += 1
            wb = WF + (k % 3) * 8; zb = ZR + 8*(k % ND)
            mf = []
            for c in range(2):
                for tc in range(2):
                    acc = A(32*c + 16*tc, 16)
                    mf.append(f"{MFMA} {acc}, {V(zb+4*c,4)}, {V(wb+4*tc,4)}, {'0' if k == 0 else acc}")
            self.sched(mf, fill)
        self.stamp("D@2")
        R.free(ZR, 8*ND); R.free(WF, 24)
        a("s_barrier")
        wo_items = self.stage_list(S_WOUT, VWO, 101, 100, self.pairs_small("E"), "wout")
        cnt = [0]
        gap = self.o.get("tail_gap", 12)
        def e(x):
            nonlocal wo_items
            a(x); cnt[0] += 1
            if cnt[0] % gap == 0 and wo_items:
                wo_items[0][0](); wo_items = wo_items[1:]
        a(f"s_lshl_b32 s50, s{S_WAVE}, 13"); a("s_add_u32 s50, s50, 131072"); a(f"v_add_u32 v{t}, s50, v{V_L16}")
        a(f"s_xor_b32 s51, s{S_WAVE}, 2"); a("s_lshl_b32 s51, s51, 13"); a("s_add_u32 s51, s51, 131072"); a(f"v_add_u32 v{t+1}, s51, v{V_L16}")
        G = R.alloc(32); TM = R.alloc(32)
        La = a.label("L_x"); Lb = a.label("L_x")
        a("s_cmp_eq_u32 s53, 0"); a(f"s_cbranch_scc1 {La}")
        for c in range(2):
            for q in range(4): a(f"ds_write_b128 v{t}, {A(32*c+4*q,4)} offset:{c*4096+q*1024}")
        for c in range(2):
            for r in range(16): a(f"v_accvgpr_read_b32 v{G+16*c+r}, a{32*c+16+r}")
        a(f"s_branch {Lb}")
        a(f"{La}:")
        for c in range(2):
            for q in range(4): a(f"ds_write_b128 v{t}, {A(32*c+16+4*q,4)} offset:{c*4096+q*1024}")
        for c in range(2):
            for r in range(16): a(f"v_accvgpr_read_b32 v{G+16*c+r}, a{32*c+r}")
        a(f"{Lb}:")
        for _ in range(3):
            wo_items[0][0](); wo_items = wo_items[1:]
        BP = R.alloc(2); ZF = R.alloc(32)
        vm.wait("z1")
        a(f"v_lshlrev_b32 v{BP}, 16, v{BI}")
        for d in range(16):
            e(f"v_lshlrev_b32 v{ZF+2*d}, 16, v{Z1+d}"); e(f"v_and_b32 v{ZF+2*d+1}, 0xffff0000, v{Z1+d}")
        for r in range(0, 32, 2): e(f"v_pk_add_f32 {V(G+r,2)}, {V(G+r,2)}, {V(BP,2)} op_sel_hi:[1,0]")
        a("s_waitcnt lgkmcnt(0)"); a("s_barrier")
        for q in range(8): e(f"ds_read_b128 {V(TM+4*q,4)}, v{t+1} offset:{q*1024}")
        a(f"s_add_u32 s50, s69, {UFR}")
        for c in range(2):
            a(f"s_waitcnt lgkmcnt({4 if c == 0 else 0})")
            for r in range(16*c, 16*c+16, 2): e(f"v_pk_add_f32 {V(G+r,2)}, {V(G+r,2)}, {V(TM+r,2)}")
            for r in range(16*c, 16*c+16, 2): e(f"v_pk_mul_f32 {V(G+r,2)}, {V(G+r,2)}, {V(ZF+r,2)}")
            for d in range(8*c, 8*c+8): a(f"v_cvt_pk_bf16_f32 v{Z1+d}, v{G+2*d}, v{G+2*d+1}")
            for q in range(2*c, 2*c+2):
                vm.issue(f"buffer_store_dwordx4 {V(Z1+4*q,4)}, v{V_L16}, {srd(S_WS)}, s50 offen offset:{q*1024} sc1", tag="ust")
        a("s_lshl_b32 s55, s48, 7"); a("s_lshl_b32 s50, s49, 2"); a("s_add_u32 s55, s55, s50"); a(f"s_add_u32 s55, s55, {F_U}")
        npost = self.o.get("tail_post", 8)
        for f, _ in wo_items[:npost]: f()
        wo_items = wo_items[npost:]
        self.set_flag(55, tag="ust")
        for f, _ in wo_items: f()
        self.idle_prefetch(skip, 2)
        self.stamp("D@3")

    def build(self):
        self.prologue()
        for ph in "ABCDE":
            getattr(self, "phase_" + ph)()
            if ph == self.stop_after: break
        self.epilogue()
        body = pad_hazards(self.a.lines)
        hdr = open("cdna_kernels/" + NAME[:-7] + ".s.ref").read().split("; Override")[0]
        s = hdr + f"; @launch grid=(256,1,1) block=(256,1,1) lds={LDS_BYTES}\n"
        s += '.amdgcn_target "amdgcn-amd-amdhsa--gfx950"\n.text\n'
        s += f".set CODE_SLICE, ((L_code_end - {NAME} + 32*128 - 1) / (32*128)) * 128\n"
        s += f".set CODE_BYTES, L_code_end - {NAME} - 32\n"
        s += f".globl {NAME}\n.p2align 8\n.type {NAME},@function\n{NAME}:\n" + "\n".join(body) + "\nL_code_end:\n"
        s += f""".section .rodata,"a"
.p2align 6
.amdhsa_kernel {NAME}
  .amdhsa_next_free_vgpr 512
  .amdhsa_next_free_sgpr 102
  .amdhsa_accum_offset 256
  .amdhsa_group_segment_fixed_size 0
  .amdhsa_kernarg_size 88
  .amdhsa_user_sgpr_count 2
  .amdhsa_user_sgpr_kernarg_segment_ptr 1
  .amdhsa_system_sgpr_workgroup_id_x 1
.end_amdhsa_kernel
"""
        return s

if __name__ == "__main__":
    import json
    out = sys.argv[1]; stop = sys.argv[2] if len(sys.argv) > 2 else "E"
    stamps = sys.argv[3] if len(sys.argv) > 3 and sys.argv[3] != "0" else ""
    opts = json.loads(sys.argv[4]) if len(sys.argv) > 4 else {}
    g = Gen(stop, stamps, opts)
    open(out, "w").write(g.build())
    open(out + ".stamps", "w").write(" ".join(g.stamp_names))
```

```python
import sys, math, struct
from asmlib import Asm, pad_hazards

NAME = "sequential_preLN__sliding_block__mixer_gmlp__prompt_kernel"
WS_EPOCH = 0
F_KV = 0x1000; F_O = 0x2000; F_H = 0x3000; F_Z = 0x4000; F_U = 0x5000; F_Z1 = 0x6000
STATS = 0x10000
HST = 0x80000
STAT1 = 0xC0000
KVF = 0x100000; OFR = 0x500000; HFR = 0x700000; Z1F = 0x900000; Z2F = 0xD00000; UFR = 0x1100000
DBG = 0x1600000

S_X, S_WQKV, S_WO, S_WIN, S_WSP, S_BSP, S_WOUT, S_OUT, S_WS = 8, 12, 16, 20, 24, 28, 32, 36, 40
S_TAG, S_WAVE, S_XCD, S_SLOT = 44, 45, 46, 47
V_LANE, V_L16, V_L31, V_HH = 1, 2, 3, 4
V_DUMMY = 252
V_TOUCH = 251
LOG2E = 1.4426950408889634
MFMA = "v_mfma_f32_32x32x16_bf16"
LDS_BYTES = 163840

def f2u(x): return struct.unpack("<I", struct.pack("<f", x))[0]
def lit(x): return "0x%08x" % f2u(x)
def srd(b): return f"s[{b}:{b+3}]"
def V(b, n=1): return f"v{b}" if n == 1 else f"v[{b}:{b+n-1}]"
def A(b, n=1): return f"a{b}" if n == 1 else f"a[{b}:{b+n-1}]"

class Regs:
    def __init__(self, lo, hi): self.lo, self.hi = lo, hi; self.used = set()
    def alloc(self, n=1, align=None):
        if align is None: align = 4 if n >= 4 else (2 if n >= 2 else 1)
        b = (self.lo + align - 1) // align * align
        while b + n <= self.hi:
            if not any((b + k) in self.used for k in range(n)):
                for k in range(n): self.used.add(b + k)
                return b
            b += align
        raise RuntimeError(f"out of registers for {n}")
    def free(self, b, n=1):
        for k in range(n): self.used.discard(b + k)
    def reset(self): self.used = set()

class VM:
    def __init__(self, a): self.a = a; self.ops = []
    def issue(self, text, tag=None): self.a(text); self.ops.append(tag)
    def wait(self, tag):
        idx = [k for k, t in enumerate(self.ops) if t == tag]
        if not idx: return
        last = idx[-1]; n = len(self.ops) - 1 - last
        assert n <= 63, n
        self.a(f"s_waitcnt vmcnt({n})"); self.ops = self.ops[last + 1:]
    def wait_all(self): self.a("s_waitcnt vmcnt(0)"); self.ops = []

def interleave(a, main, fill):
    n = len(main); m = len(fill); k = 0
    for i, x in enumerate(main):
        a(x)
        tgt = (i + 1) * m // n
        while k < tgt: a(fill[k]); k += 1

class Gen:
    def __init__(self, stop_after="E", stamps="", opts=None):
        self.a = Asm(); self.vm = VM(self.a); self.stop_after = stop_after; self.stamps = stamps
        self.nstamp = 0; self.stamp_names = []; self.R = Regs(10, 251); self.o = opts or {}

    def stamp(self, tag):
        if not self.stamps: return
        sel = self.stamps.split(",")
        coarse = ("A@0", "A@3", "A@6", "B@1", "B@3", "C@1", "C@5", "D@1", "D@3", "E@1", "E@3")
        if not (tag in sel or tag[0] in sel or ("c" in sel and tag in coarse)): return
        self.stamp_names.append(tag)
        k = self.nstamp; self.nstamp += 1
        assert k < 15
        self.a(f"s_memtime s[{72+2*k}:{73+2*k}]")

    def prologue(self):
        a = self.a
        if self.stamps and self.o.get("dbgout"):
            a("s_memrealtime s[100:101]"); a("s_memtime s[72:73]"); self.nstamp = 1; self.stamp_names.append("start")
            a("s_waitcnt lgkmcnt(0)"); a("s_mov_b32 s3, s100")
        a("s_getpc_b64 s[4:5]")
        a("s_load_dwordx16 s[48:63], s[0:1], 0")
        a("s_load_dwordx4 s[64:67], s[0:1], 64")
        a("s_load_dwordx2 s[68:69], s[0:1], 80")
        a("s_cmp_ge_u32 s2, 256"); a("s_cbranch_scc1 L_end")
        a(f"s_lshr_b32 s{S_SLOT}, s2, 3")
        a(f"s_mul_i32 s6, s{S_SLOT}, CODE_SLICE")
        a("v_lshlrev_b32 v5, 4, v0")
        a("v_cmp_gt_u32 vcc, CODE_SLICE, v5")
        a("s_mov_b64 s[70:71], vcc")
        a("v_add_u32 v5, s6, v5")
        a("v_cmp_gt_u32 vcc, CODE_BYTES, v5")
        a("s_and_b64 vcc, vcc, s[70:71]")
        a("s_and_saveexec_b64 s[6:7], vcc")
        a(f"global_load_dwordx4 {V(V_DUMMY,4)}, v5, s[4:5]")
        a("s_mov_b64 exec, s[6:7]")
        self.vm.ops.append("code")
        a(f"v_and_b32 v{V_LANE}, 63, v0"); a("v_lshrrev_b32 v5, 6, v0")
        a(f"v_lshlrev_b32 v{V_L16}, 4, v{V_LANE}"); a(f"v_and_b32 v{V_L31}, 31, v{V_LANE}"); a(f"v_lshrrev_b32 v{V_HH}, 5, v{V_LANE}")
        a(f"v_readfirstlane_b32 s{S_WAVE}, v5")
        a(f"s_and_b32 s{S_XCD}, s2, 7")
        self.phase_A_pre()
        a("s_waitcnt lgkmcnt(0)")
        a(f"s_load_dword s{S_TAG}, s[68:69], {WS_EPOCH}")
        def mk(base, lo, size):
            a(f"s_mov_b32 s{base}, s{lo}"); a(f"s_and_b32 s{base+1}, s{lo+1}, 0xffff")
            a(f"s_mov_b32 s{base+2}, {size}"); a(f"s_mov_b32 s{base+3}, 0x20000")
        mk(S_X, 48, 2048*448*2); mk(S_WQKV, 50, 448*1344*2); mk(S_WS, 68, 0x10000000); mk(S_WO, 52, 448*448*2)
        mk(S_WIN, 56, 448*1792*2); mk(S_WSP, 58, 2048*2048*2); mk(S_BSP, 60, 2048*2)
        mk(S_WOUT, 62, 896*448*2); mk(S_OUT, 64, 2048*448*2)
        self.tag_pending = True

    def tag_ready(self):
        if self.tag_pending:
            self.a("s_waitcnt lgkmcnt(0)"); self.a(f"s_add_u32 s{S_TAG}, s{S_TAG}, 1"); self.tag_pending = False

    def epilogue(self):
        a = self.a
        a("s_cmp_lg_u32 s2, 0"); a("s_cbranch_scc1 L_noepoch")
        a(f"s_cmp_lg_u32 s{S_WAVE}, 0"); a("s_cbranch_scc1 L_noepoch")
        a(f"v_mov_b32 v5, s{S_TAG}"); a(f"v_mov_b32 v6, {WS_EPOCH}")
        a("s_mov_b64 exec, 1")
        a(f"buffer_store_dword v5, v6, {srd(S_WS)}, 0 offen sc1")
        a("s_mov_b64 exec, -1")
        a("L_noepoch:")
        if self.stamps:
            a("s_waitcnt lgkmcnt(0)")
            a(f"s_lshl_b32 s48, s2, 2"); a(f"s_add_u32 s48, s48, s{S_WAVE}"); a("s_lshl_b32 s48, s48, 6"); a(f"s_add_u32 s48, s48, {DBG}")
            a("v_mov_b32 v6, 0"); a("s_mov_b64 exec, 1")
            for k in range(self.nstamp):
                a(f"v_mov_b32 v5, s{72+2*k}")
                a(f"buffer_store_dword v5, v6, {srd(S_WS)}, s48 offen offset:{4*k}")
            a("s_mov_b64 exec, -1")
        if self.stamps and self.o.get("dbgout"):
            a("s_memrealtime s[6:7]")
            a("s_load_dwordx2 s[50:51], s[0:1], 72")
            a("s_waitcnt lgkmcnt(0)")
            a(f"s_cmp_lg_u32 s2, {self.o['dbgout']}"); a("s_cbranch_scc1 L_end")
            a(f"s_cmp_lg_u32 s{S_WAVE}, 0"); a("s_cbranch_scc1 L_end")
            a("s_mov_b32 s52, s50"); a("s_and_b32 s53, s51, 0xffff"); a("s_mov_b32 s54, 256"); a("s_mov_b32 s55, 0x20000")
            a("v_mov_b32 v6, 0"); a("s_mov_b64 exec, 1")
            for k in range(1, self.nstamp):
                a(f"s_sub_u32 s56, s{72+2*k}, s{72+2*(k-1)}"); a("v_mov_b32 v5, s56")
                a(f"buffer_store_dword v5, v6, s[52:55], 0 offen offset:{4*(k-1)}")
            a("s_sub_u32 s56, s6, s3"); a("v_mov_b32 v5, s56")
            a(f"buffer_store_dword v5, v6, s[52:55], 0 offen offset:60")
            a("s_mov_b64 exec, -1")
        a("L_end:"); a("s_endpgm")

    def set_flag(self, soff, tag=None):
        a = self.a
        if self.o.get("nodrain_experiment"): pass
        elif tag is None: self.vm.wait_all()
        else: self.vm.wait(tag)
        a("s_barrier")
        L = a.label("L_nf")
        a(f"s_cmp_lg_u32 s{S_WAVE}, 0"); a(f"s_cbranch_scc1 {L}")
        a(f"v_mov_b32 v5, s{S_TAG}"); a("v_mov_b32 v6, 0"); a("s_mov_b64 exec, 1")
        a(f"buffer_store_dword v5, v6, {srd(S_WS)}, s{soff} offen sc1")
        a("s_mov_b64 exec, -1"); a(f"{L}:")

    def poll(self, soff, nflags, voff=None, drain=True):
        a = self.a
        if voff is None:
            a(f"v_min_u32 v9, {nflags-1}, v{V_LANE}"); a("v_lshlrev_b32 v9, 2, v9"); voff = 9
        Lp = a.label("L_poll"); Ld = a.label("L_pd"); Lo = a.label("L_po")
        a(f"s_cmp_lg_u32 s{S_WAVE}, 0"); a(f"s_cbranch_scc1 {Lo}")
        ld = lambda r: a(f"buffer_load_dword v{r}, v{voff}, {srd(S_WS)}, s{soff} offen sc1")
        for r in (5, 6, 7):
            ld(r); a("s_sleep 1")
        ld(8)
        a("s_mov_b32 s70, 0"); a(f"{Lp}:")
        for r in (5, 6, 7, 8):
            a("s_waitcnt vmcnt(3)")
            a(f"v_cmp_ne_u32 vcc, s{S_TAG}, v{r}")
            a(f"s_cbranch_vccz {Ld}")
            ld(r)
        a("s_add_u32 s70, s70, 1"); a("s_cmp_lt_u32 s70, 20000"); a(f"s_cbranch_scc1 {Lp}")
        a(f"s_branch {Ld}")
        a(f"{Lo}:")
        if drain: a("s_waitcnt vmcnt(0)")
        a(f"{Ld}:")
        a("s_barrier")
        if drain: self.vm.ops = ["p", "p", "p"]

    def gate_first(self, bit):
        a = self.a
        Lp = a.label("L_gp"); Ld = a.label("L_gd")
        ld = lambda r: a(f"buffer_load_dword v{r}, v9, {srd(S_WS)}, s66 offen sc1")
        for r in (5, 6, 7):
            ld(r); a("s_sleep 1")
        ld(8)
        a("s_mov_b32 s70, 0"); a(f"{Lp}:")
        for r in (5, 6, 7, 8):
            a("s_waitcnt vmcnt(3)")
            a(f"v_cmp_eq_u32 s[64:65], s{S_TAG}, v{r}")
            a("s_nop 1")
            a(f"s_bitcmp1_b32 s64, {bit}"); a(f"s_cbranch_scc1 {Ld}")
            ld(r)
        a("s_add_u32 s70, s70, 1"); a("s_cmp_lt_u32 s70, 20000"); a(f"s_cbranch_scc1 {Lp}")
        a(f"{Ld}:")
        self.vm.ops += ["p", "p", "p"]

    def gate_refresh(self):
        self.vm.issue(f"buffer_load_dword v5, v9, {srd(S_WS)}, s66 offen sc1", tag="fl")
    def gate_update(self):
        self.vm.wait("fl")
        self.a(f"v_cmp_eq_u32 s[64:65], s{S_TAG}, v5"); self.a("s_nop 1")
    def gate_check(self, bit):
        a = self.a
        Lp = a.label("L_gs"); Ld = a.label("L_go")
        a(f"s_bitcmp1_b32 s64, {bit}"); a(f"s_cbranch_scc1 {Ld}")
        a("s_mov_b32 s70, 0"); a(f"{Lp}:")
        a(f"buffer_load_dword v5, v9, {srd(S_WS)}, s66 offen sc1"); a("s_waitcnt vmcnt(0)")
        a(f"v_cmp_eq_u32 s[64:65], s{S_TAG}, v5"); a("s_nop 1")
        a(f"s_bitcmp1_b32 s64, {bit}"); a(f"s_cbranch_scc1 {Ld}")
        a("s_add_u32 s70, s70, 1"); a("s_cmp_lt_u32 s70, 20000"); a(f"s_cbranch_scc1 {Lp}")
        a(f"{Ld}:")

    def half_op(self, v, t, op="v_add_f32"):
        a = self.a
        a(f"v_mov_b32 v{t}, v{v}"); a(f"v_permlane32_swap_b32 v{v}, v{t}"); a(f"{op} v{v}, v{v}, v{t}")

    def warm(self, srdb, nbytes, base_s=None):
        a, vm = self.a, self.vm
        per_wg = nbytes // 32; per_wave = per_wg // 4
        n = (per_wave + 1023) // 1024
        a(f"s_lshl_b32 s70, s{S_SLOT}, 2"); a(f"s_add_u32 s70, s70, s{S_WAVE}"); a(f"s_mul_i32 s70, s70, {per_wave}")
        if base_s is not None: a(f"s_add_u32 s70, s70, s{base_s}")
        for k in range(n):
            if k and k % 4 == 0: a("s_add_u32 s70, s70, 4096")
            vm.issue(f"buffer_load_dwordx4 {V(V_DUMMY,4)}, v{V_L16}, {srd(srdb)}, s70 offen offset:{(k%4)*1024}", tag="warm")

    def tr_base(self, dst, rowbytes, hhrows, t0, t1):
        a = self.a
        a(f"v_lshrrev_b32 v{t0}, 2, v{V_LANE}"); a(f"v_and_b32 v{t0}, 3, v{t0}")
        a(f"v_mul_u32_u24 v{t1}, {hhrows}, v{V_HH}"); a(f"v_add_u32 v{t0}, v{t0}, v{t1}"); a(f"v_mul_u32_u24 v{t0}, {rowbytes}, v{t0}")
        a(f"v_lshrrev_b32 v{t1}, 4, v{V_LANE}"); a(f"v_and_b32 v{t1}, 1, v{t1}"); a(f"v_lshlrev_b32 v{t1}, 5, v{t1}")
        a(f"v_add_u32 v{t0}, v{t0}, v{t1}")
        a(f"v_and_b32 v{t1}, 3, v{V_LANE}"); a(f"v_lshlrev_b32 v{t1}, 3, v{t1}")
        a(f"v_add_u32 v{dst}, v{t0}, v{t1}")

    def sched(self, mf, fill, lead=0):
        a = self.a
        tot = sum(c for _, c in fill); n = len(mf); k = 0; done = 0
        for i, x in enumerate(mf):
            self.emit_fill(x)
            tgt = tot * (i + 1) / n
            while k < len(fill) and (done + fill[k][1] / 2 <= tgt or i == n - 1):
                self.emit_fill(fill[k][0]); done += fill[k][1]; k += 1

    def emit_fill(self, x):
        if callable(x): x()
        else: self.a(x)

    def phase_A_pre(self):
        a, R = self.a, self.R
        R.reset()
        P = self.PA = {}
        P["VW0"] = VW0 = R.alloc(3, 1); P["VXE"] = VXE = R.alloc(); P["VXO"] = VXO = R.alloc(); P["t"] = t = R.alloc(4, 1); P["VSR"] = VSR = R.alloc()
        SI, SJ, STQ, SMM = 48, 49, 58, 62
        a(f"v_mul_u32_u24 v{t}, 896, v{V_HH}"); a(f"v_lshlrev_b32 v{t+1}, 4, v{V_L31}"); a(f"v_add_u32 v{t}, v{t}, v{t+1}")
        a(f"v_cmp_gt_u32 vcc, 28, v{V_L31}"); a(f"v_mov_b32 v{t+1}, 0x7ffffff0"); a(f"v_cndmask_b32 v{VSR}, v{t+1}, v{t}, vcc")
        a(f"v_lshrrev_b32 v{t}, 3, v{V_LANE}"); a(f"v_and_b32 v{t+1}, 7, v{V_LANE}"); a(f"v_lshrrev_b32 v{t+2}, 4, v{V_LANE}")
        a(f"v_xor_b32 v{t+3}, v{t+1}, v{t+2}"); a(f"v_lshlrev_b32 v{t+3}, 4, v{t+3}"); a(f"v_mul_u32_u24 v{t}, 896, v{t}"); a(f"v_add_u32 v{VXE}, v{t}, v{t+3}")
        a(f"v_add_u32 v{t+2}, 4, v{t+2}"); a(f"v_xor_b32 v{t+3}, v{t+1}, v{t+2}"); a(f"v_lshlrev_b32 v{t+3}, 4, v{t+3}"); a(f"v_add_u32 v{VXO}, v{t}, v{t+3}")
        a(f"v_lshrrev_b32 v{t}, 3, v{V_LANE}"); a(f"v_lshrrev_b32 v{t+1}, 4, v{V_LANE}"); a(f"v_lshrrev_b32 v{t+2}, 2, v{V_LANE}")
        a(f"v_xor_b32 v{t+1}, v{t+1}, v{t+2}"); a(f"v_and_b32 v{t+1}, 1, v{t+1}"); a(f"v_mul_u32_u24 v{t+1}, 896, v{t+1}")
        a(f"v_mul_u32_u24 v{t}, 2688, v{t}"); a(f"v_and_b32 v{t+3}, 3, v{V_LANE}"); a(f"v_lshlrev_b32 v{t+3}, 4, v{t+3}")
        a(f"v_add3_u32 v{VW0}, v{t}, v{t+1}, v{t+3}"); a(f"v_add_u32 v{VW0}, 896, v{VW0}")
        a(f"v_mul_u32_u24 v{t+2}, 2688, v{t+2}"); a(f"v_add_u32 v{VW0+1}, v{t+2}, v{t+3}")

    def phase_A(self):
        a, vm, R = self.a, self.vm, self.R
        a.c("================ phase A : LN1 + QKV + attention ================")
        P = self.PA; VW0, VXE, VXO, t, VSR = P["VW0"], P["VXE"], P["VXO"], P["t"], P["VSR"]
        SI, SJ, SXB, SWB, SLX, SLW, STQ = 48, 49, 52, 53, 54, 55, 58
        SMM = 62
        a(f"s_lshr_b32 s50, s{S_XCD}, 1"); a("s_lshl_b32 s50, s50, 2"); a(f"s_lshr_b32 s51, s{S_SLOT}, 3"); a(f"s_add_u32 s{SI}, s50, s51")
        a(f"s_and_b32 s50, s{S_XCD}, 1"); a("s_lshl_b32 s50, s50, 3"); a(f"s_and_b32 s71, s{S_SLOT}, 7"); a(f"s_add_u32 s{SJ}, s50, s71")
        a(f"s_lshl_b32 s{STQ}, s{SI}, 2"); a(f"s_add_u32 s{STQ}, s{STQ}, s{S_WAVE}"); a(f"s_mul_i32 s{SXB}, s{STQ}, {32*896}")
        self.stamp("A@0")
        LW = 0; LQ = 57344; LX = 86016; LPW = 151552; LKV = 102400
        SR = R.alloc(8)
        a(f"s_lshl_b32 s50, s{SI}, 7"); a(f"s_lshl_b32 s70, s{SJ}, 3"); a("s_add_u32 s50, s50, s70"); a(f"s_lshl_b32 s70, s{S_WAVE}, 1"); a("s_add_u32 s59, s50, s70")
        a("s_mul_i32 s50, s59, 896")
        vm.issue(f"buffer_load_dwordx4 {V(SR,4)}, v{VSR}, {srd(S_X)}, s50 offen", tag="sr")
        vm.issue(f"buffer_load_dwordx4 {V(SR+4,4)}, v{VSR}, {srd(S_X)}, s50 offen offset:448", tag="sr")
        a(f"s_lshl_b32 s51, s51, 1"); a(f"s_add_u32 s51, s51, s{SJ}"); a("s_mul_i32 s50, s51, 37"); a("s_lshr_b32 s50, s50, 8"); a("s_mul_i32 s50, s50, 7"); a("s_sub_u32 s51, s51, s50")
        if not self.o.get("rot_a", 1): a("s_mov_b32 s51, 0")
        a(f"s_lshl_b32 s{SMM}, s51, 7")
        a(f"s_lshl_b32 s{SLX}, s{S_WAVE}, 14"); a(f"s_add_u32 s{SLX}, s{SLX}, {LX}")
        a(f"s_mul_i32 s{SWB}, s{SJ}, 56"); a(f"s_mul_i32 s50, s{S_WAVE}, {16*2688}"); a(f"s_add_u32 s{SWB}, s{SWB}, s50")
        a(f"s_lshl_b32 s{SLW}, s{S_WAVE}, 11")
        def dma_list(m):
            out = []
            def pre():
                if m > 0:
                    a(f"s_add_u32 s{SMM+m}, s{SMM+m-1}, 128"); a(f"s_cmp_ge_u32 s{SMM+m}, 896"); a("s_cselect_b32 s71, 896, 0"); a(f"s_sub_u32 s{SMM+m}, s{SMM+m}, s71")
                a(f"s_add_u32 s57, s{SXB}, s{SMM+m}"); a(f"s_mul_i32 s61, s{SMM+m}, 1344"); a(f"s_add_u32 s61, s61, s{SWB}")
            out.append((pre, 16))
            for q in range(4):
                def f(q=q):
                    a(f"s_add_u32 m0, s{SLX}, {(m%4)*4096 + q*1024}"); a(f"s_add_u32 s56, s57, {q*7168}")
                    vm.issue(f"buffer_load_dwordx4 v{VXE if q%2==0 else VXO}, {srd(S_X)}, s56 offen lds", tag=("c", m))
                out.append((f, 16))
            for p in range(2):
                def f(p=p):
                    a(f"s_add_u32 m0, s{SLW}, {LW + m*8192 + p*1024}"); a(f"s_add_u32 s56, s61, {p*8*2688}")
                    vm.issue(f"buffer_load_dwordx4 v{VW0}, {srd(S_WQKV)}, s56 offen lds", tag=("c", m))
                out.append((f, 16))
            return out
        def dma_q(m):
            def f():
                a(f"s_mul_i32 s61, s{SMM+m}, 1344"); a(f"s_add_u32 s61, s61, s{SWB}")
                a(f"s_lshr_b32 s56, s{SLW}, 1"); a(f"s_add_u32 m0, s56, {LQ + m*4096}"); a("s_nop 0")
                vm.issue(f"buffer_load_dwordx4 v{VW0+1}, {srd(S_WQKV)}, s61 offen lds", tag="q")
            return [(f, 24)]
        for m in range(2):
            for f, _ in dma_list(m): f()
        if self.o.get("tlb", 0): self.tlb_warm()
        self.stamp("A@1")
        ONES = R.alloc(4); S0 = R.alloc(); Q0 = R.alloc(); T0 = R.alloc(); T1 = R.alloc()
        for k in range(4): a(f"v_mov_b32 v{ONES+k}, 0x3f803f80")
        a(f"v_mov_b32 v{S0}, 0"); a(f"v_mov_b32 v{Q0}, 0")
        VXA = R.alloc(4, 1)
        a(f"v_lshrrev_b32 v{t}, 1, v{V_L31}"); a(f"v_and_b32 v{t}, 7, v{t}"); a(f"v_xor_b32 v{t}, v{t}, v{V_HH}"); a(f"v_lshlrev_b32 v{t}, 4, v{t}")
        a(f"v_lshlrev_b32 v{VXA}, 7, v{V_L31}"); a(f"v_add_u32 v{VXA}, v{VXA}, v{t}"); a(f"v_add_u32 v{VXA}, s{SLX}, v{VXA}")
        for s in range(1, 4): a(f"v_xor_b32 v{VXA+s}, {s*32}, v{VXA}")
        VWK = R.alloc(); VWV = R.alloc(); VWQ = R.alloc()
        self.tr_base(VWK, 128, 8, t, t+1)
        a(f"v_lshrrev_b32 v{t}, 3, v{V_LANE}"); a(f"v_and_b32 v{t}, 1, v{t}"); a(f"v_lshlrev_b32 v{t}, 6, v{t}")
        a(f"v_xor_b32 v{t+1}, 64, v{t}"); a(f"v_add_u32 v{VWV}, v{VWK}, v{t+1}"); a(f"v_add_u32 v{VWK}, v{VWK}, v{t}")
        self.tr_base(VWQ, 64, 8, t, t+1)
        a(f"v_add_u32 v{VWQ}, {LQ}, v{VWQ}")
        AK = R.alloc(16); AV = R.alloc(16); CK = R.alloc(16); CV = R.alloc(16)
        vm.wait("sr")
        for d in range(8):
            a(f"v_dot2_f32_bf16 v{S0}, v{SR+d}, v{ONES}, v{S0}"); a(f"v_dot2_f32_bf16 v{Q0}, v{SR+d}, v{SR+d}, v{Q0}")
        for rr in (8, 4, 2, 1):
            for v in (S0, Q0): a(f"v_add_f32_dpp v{v}, v{v}, v{v} row_ror:{rr} row_mask:0xf bank_mask:0xf")
        a(f"v_mov_b32 v{T0}, v{S0}"); a(f"v_mov_b32 v{T1}, v{Q0}")
        a(f"v_permlane16_swap_b32 v{S0}, v{T0}"); a(f"v_permlane16_swap_b32 v{Q0}, v{T1}")
        a(f"v_add_f32 v{S0}, v{S0}, v{T0}"); a(f"v_add_f32 v{Q0}, v{Q0}, v{T1}")
        a(f"v_mul_f32 v{S0}, {lit(1/448)}, v{S0}"); a(f"v_mul_f32 v{Q0}, {lit(1/448)}, v{Q0}")
        a(f"v_fma_f32 v{Q0}, -v{S0}, v{S0}, v{Q0}"); a(f"v_max_f32 v{Q0}, 0, v{Q0}")
        a(f"v_add_f32 v{Q0}, {lit(1e-5)}, v{Q0}"); a(f"v_rsq_f32 v{Q0}, v{Q0}")
        self.tag_ready()
        a(f"v_mov_b32 v{SR}, v{S0}"); a(f"v_mov_b32 v{SR+2}, s{S_TAG}"); a(f"v_mov_b32 v{SR+3}, s{S_TAG}"); a(f"v_mov_b32 v{SR+1}, v{Q0}")
        a(f"v_lshlrev_b32 v{T0}, 4, v{V_HH}"); a(f"s_lshl_b32 s50, s59, 4"); a(f"s_add_u32 s50, s50, {STAT1}")
        a("s_mov_b32 exec_lo, 1"); a("s_mov_b32 exec_hi, 1")
        vm.issue(f"buffer_store_dwordx4 {V(SR,4)}, v{T0}, {srd(S_WS)}, s50 offen sc1", tag="st1")
        a("s_mov_b64 exec, -1")
        NB = 2
        WF = R.alloc(8 * NB)
        def rd_x(m): return [(f"ds_read_b128 {A(16*m+4*s,4)}, v{VXA+s} offset:{(m%4)*4096}", 4) for s in range(4)]
        def rd_w(s):
            buf = s % NB; out = []
            for g, base in enumerate((VWK, VWV)):
                for e in range(2):
                    r = WF + buf*8 + g*4 + e*2
                    out.append((f"ds_read_b64_tr_b16 v[{r}:{r+1}], v{base} offset:{LW + s*2048 + e*512}", 4))
            return out
        def chunk_ready(m):
            vm.wait(("c", m)); a("s_barrier")
        SG = R.alloc(4); RK = R.alloc(16); MK = R.alloc(16); MR = R.alloc()
        chunk_ready(0)
        self.stamp("g0")
        for x, _ in rd_x(0) + rd_w(0): a(x)
        pend = []
        for s in range(28):
            m, sp = s // 4, s % 4
            fill = []
            if sp == 0 and m + 2 < 7: pend = dma_list(m + 2)
            if sp == 0 and m in (5, 6): pend = sum([dma_q(mq) for mq in (range(4) if m == 5 else range(4, 7))], [])
            a("s_waitcnt lgkmcnt(0)")
            if s + 1 < 28:
                if sp == 3:
                    fill.append((lambda m=m: chunk_ready(m + 1), 8)); fill += rd_x(m + 1)
                fill += rd_w(s + 1)
            take = 2 if sp < 3 else len(pend)
            fill += pend[:take]; pend = pend[take:]
            if s == 20:
                def sg():
                    a(f"v_lshlrev_b32 v{T0}, 4, v{V_L31}"); a(f"s_lshl_b32 s50, s{STQ}, 9"); a(f"s_add_u32 s60, s50, {STAT1}")
                    vm.issue(f"buffer_load_dwordx4 {V(SG,4)}, v{T0}, {srd(S_WS)}, s60 offen sc1", tag="sg")
                fill.append((sg, 16))
            x = A(16*m + 4*sp, 4); wb = WF + (s % NB) * 8
            c = lambda r: '0' if s == 0 else V(r, 16)
            mf = [f"{MFMA} {V(AK,16)}, {V(wb,4)}, {x}, {c(AK)}", f"{MFMA} {V(AV,16)}, {x}, {V(wb+4,4)}, {c(AV)}",
                  f"{MFMA} {V(CK,16)}, {V(wb,4)}, {V(ONES,4)}, {c(CK)}", f"{MFMA} {V(CV,16)}, {V(ONES,4)}, {V(wb+4,4)}, {c(CV)}"]
            self.sched(mf, fill)
        self.stamp("A@2")
        Lp = a.label("L_sg"); Ld = a.label("L_sgd")
        vm.wait("sg")
        a("s_mov_b32 s70, 0"); a(f"{Lp}:")
        a(f"v_cmp_ne_u32 vcc, s{S_TAG}, v{SG+2}"); a(f"s_cbranch_vccz {Ld}")
        a(f"v_lshlrev_b32 v{T0}, 4, v{V_L31}")
        a(f"buffer_load_dwordx4 {V(SG,4)}, v{T0}, {srd(S_WS)}, s60 offen sc1"); a("s_waitcnt vmcnt(0)")
        a("s_add_u32 s70, s70, 1"); a("s_cmp_lt_u32 s70, 20000"); a(f"s_cbranch_scc1 {Lp}")
        a(f"{Ld}:")
        MEAN, RSTD = SG, SG + 1
        a(f"v_mul_f32 v{MR}, v{MEAN}, v{RSTD}")
        a(f"v_lshlrev_b32 v{T1}, 2, v{V_L31}"); a(f"s_lshl_b32 s57, s{S_WAVE}, 8"); a(f"s_add_u32 s57, s57, {LPW}"); a(f"v_add_u32 v{T0}, s57, v{T1}")
        a(f"ds_write_b32 v{T0}, v{RSTD}"); a(f"ds_write_b32 v{T0}, v{MR} offset:128")
        a(f"v_lshlrev_b32 v{T0}, 4, v{V_HH}"); a(f"v_add_u32 v{T0}, s57, v{T0}")
        a("s_waitcnt lgkmcnt(0)")
        for gg in range(4):
            a(f"ds_read_b128 {V(RK+4*gg,4)}, v{T0} offset:{gg*32}"); a(f"ds_read_b128 {V(MK+4*gg,4)}, v{T0} offset:{128+gg*32}")
        KF = R.alloc(8); VF = R.alloc(8); MASKH = R.alloc(); MASKD = R.alloc(); ONED = R.alloc()
        a(f"v_cmp_eq_u32 vcc, 0, v{V_HH}"); a(f"v_cndmask_b32 v{MASKH}, 0, -1, vcc")
        a(f"v_cmp_gt_u32 vcc, 28, v{V_L31}"); a(f"v_cndmask_b32 v{MASKD}, 0, -1, vcc")
        a(f"v_cmp_eq_u32 vcc, 28, v{V_L31}"); a(f"v_cndmask_b32 v{ONED}, 0, v{ONES}, vcc")
        for r in range(0, 16, 2):
            a(f"v_pk_fma_f32 {V(AK+r,2)}, {V(MEAN,2)}, {V(CK+r,2)}, {V(AK+r,2)} op_sel_hi:[0,1,1] neg_lo:[1,0,0] neg_hi:[1,0,0]")
        for r in range(0, 16, 2):
            a(f"v_pk_mul_f32 {V(AK+r,2)}, {V(AK+r,2)}, {V(MEAN,2)} op_sel:[0,1] op_sel_hi:[1,1]")
        for d in range(8): a(f"v_cvt_pk_bf16_f32 v{KF+d}, v{AK+2*d}, v{AK+2*d+1}")
        for d in (6, 7): a(f"v_and_b32 v{KF+d}, v{KF+d}, v{MASKH}")
        a(f"s_lshl_b32 s56, s{SJ}, 6"); a(f"s_add_u32 s56, s56, s{STQ}"); a("s_lshl_b32 s56, s56, 12"); a(f"s_add_u32 s56, s56, {KVF}")
        for part, r in enumerate((KF, KF+4)):
            vm.issue(f"buffer_store_dwordx4 {V(r,4)}, v{V_L16}, {srd(S_WS)}, s56 offen offset:{part*1024} sc1")
        a("s_waitcnt lgkmcnt(0)")
        for r in range(0, 16, 2):
            a(f"v_pk_mul_f32 {V(MK+r,2)}, {V(MK+r,2)}, {V(CV+r,2)}")
            a(f"v_pk_fma_f32 {V(AV+r,2)}, {V(AV+r,2)}, {V(RK+r,2)}, {V(MK+r,2)} neg_lo:[0,0,1] neg_hi:[0,0,1]")
        for d in range(8): a(f"v_cvt_pk_bf16_f32 v{VF+d}, v{AV+2*d}, v{AV+2*d+1}")
        for d in range(8): a(f"v_and_or_b32 v{VF+d}, v{VF+d}, v{MASKD}, v{ONED}")
        for part, r in enumerate((VF, VF+4)):
            vm.issue(f"buffer_store_dwordx4 {V(r,4)}, v{V_L16}, {srd(S_WS)}, s56 offen offset:{2048+part*1024} sc1")
        vm.wait("q")
        a("s_barrier")
        a(f"s_lshl_b32 s50, s{S_WAVE}, 12"); a(f"s_add_u32 s50, s50, {LKV + 8*4096}"); a(f"v_add_u32 v{T0}, s50, v{V_L16}")
        for part, r in enumerate((KF, KF+4, VF, VF+4)):
            a(f"ds_write_b128 v{T0}, {V(r,4)} offset:{part*1024}")
        for b, n in ((CK,16),(CV,16),(RK,16),(MK,16),(AK,16),(AV,16),(WF,8*NB)): R.free(b, n)
        AQ = R.alloc(16); CQ = R.alloc(16); QW = R.alloc(16)
        def rd_q(s):
            return [(f"ds_read_b64_tr_b16 v[{QW+(s%4)*4+e*2}:{QW+(s%4)*4+e*2+1}], v{VWQ} offset:{s*1024 + e*256}", 4) for e in range(2)]
        for s in range(2):
            for x, _ in rd_q(s): a(x)
        a(f"s_lshl_b32 s59, s{SJ}, 7"); a(f"s_lshl_b32 s56, s{SI}, 2"); a("s_add_u32 s59, s59, s56"); a(f"s_add_u32 s59, s59, {F_KV}")
        R.free(KF, 8); R.free(VF, 8)
        warm = []
        if self.o.get("warm", 1):
            warm = self.touch_list(S_WO, 448*448*2) + self.touch_list(S_WIN, 448*1792*2)
            if self.o.get("warm_wsp", 0):
                a(f"s_lshl_b32 s71, s{S_XCD}, 20")
                warm += self.touch_list(S_WSP, 1 << 20, base=71)
        qpos = self.o.get("q_touch", [20])
        for s in range(28):
            fill = rd_q(s + 2) if s + 2 < 28 else []
            if s in qpos and warm: fill.append(warm[0]); warm = warm[1:]
            self.warm_rest = warm
            a(f"s_waitcnt lgkmcnt({2 if s + 1 < 28 else 0})")
            c = lambda r: '0' if s == 0 else V(r, 16)
            q = V(QW + (s % 4)*4, 4)
            self.sched([f"{MFMA} {V(AQ,16)}, {q}, {A(4*s,4)}, {c(AQ)}", f"{MFMA} {V(CQ,16)}, {q}, {V(ONES,4)}, {c(CQ)}"], fill)
            if s == self.o.get("kvflag_at", 12):
                self.set_flag(59)
                self.stamp("A@3")
        RQ = R.alloc(2); QF = R.alloc(8)
        qscale = (28 ** -0.5) * LOG2E
        a(f"v_mul_f32 v{RQ}, {lit(qscale)}, v{RSTD}")
        CD = R.alloc(16); CF = R.alloc(16); CM = R.alloc(16); BS = R.alloc(); NBG = R.alloc()
        a(f"v_lshlrev_b32 v{BS}, 2, v{V_HH}"); a(f"v_sub_u32 v{BS}, v{V_L31}, v{BS}"); a(f"v_mov_b32 v{NBG}, {lit(-1e30)}")
        for r in range(16):
            c = (r & 3) + 8 * (r >> 2)
            a(f"v_cmp_le_i32 vcc, {c}, v{BS}")
            a(f"v_cndmask_b32 v{CD+r}, v{NBG}, 0, vcc"); a(f"v_cndmask_b32 v{CF+r}, 0, v{NBG}, vcc")
        for r in range(0, 16, 2):
            a(f"v_pk_fma_f32 {V(AQ+r,2)}, {V(MEAN,2)}, {V(CQ+r,2)}, {V(AQ+r,2)} op_sel_hi:[0,1,1] neg_lo:[1,0,0] neg_hi:[1,0,0]")
        for r in range(0, 16, 2):
            a(f"v_pk_mul_f32 {V(AQ+r,2)}, {V(AQ+r,2)}, {V(RQ,2)} op_sel_hi:[1,0]")
        for d in range(8): a(f"v_cvt_pk_bf16_f32 v{QF+d}, v{AQ+2*d}, v{AQ+2*d+1}")
        for d in (6, 7): a(f"v_and_b32 v{QF+d}, v{QF+d}, v{MASKH}")
        R.free(AQ, 16); R.free(QW, 16); R.free(CQ, 16)
        a(f"s_lshl_b32 s59, s{SJ}, 7"); a(f"s_add_u32 s59, s59, {F_KV}")
        a(f"s_sub_i32 s56, s{SI}, 1"); a("s_max_i32 s56, s56, 0"); a(f"s_sub_i32 s57, s{SI}, 2"); a("s_max_i32 s57, s57, 0")
        a("s_lshl_b32 s56, s56, 2"); a("s_lshl_b32 s57, s57, 2")
        a(f"v_mov_b32 v9, s56"); a(f"v_mov_b32 v{T0}, s57"); a(f"v_cmp_eq_u32 vcc, 0, v{V_HH}"); a(f"v_cndmask_b32 v9, v{T0}, v9, vcc")
        self.poll(59, 2, voff=9)
        self.stamp("A@4")
        a(f"s_lshl_b32 s59, s{SJ}, 18"); a(f"s_add_u32 s59, s59, {KVF}")
        for tt in range(2):
            a(f"s_lshl_b32 s56, s{SI}, 2"); a(f"s_lshl_b32 s57, s{S_WAVE}, 1"); a("s_add_u32 s56, s56, s57"); a(f"s_add_i32 s56, s56, {tt-8}"); a("s_max_i32 s56, s56, 0")
            a("s_lshl_b32 s56, s56, 12"); a("s_add_u32 s56, s56, s59")
            a(f"s_lshl_b32 s57, s{S_WAVE}, 13"); a(f"s_add_u32 s57, s57, {LKV + tt*4096}")
            for part in range(4):
                a(f"s_add_u32 m0, s57, {part*1024}"); a(f"s_add_u32 s50, s56, {part*1024}")
                vm.issue(f"buffer_load_dwordx4 v{V_L16}, {srd(S_WS)}, s50 offen sc1 lds", tag="kv")
        KA = R.alloc()
        a(f"s_lshl_b32 s50, s{S_WAVE}, 12"); a(f"s_add_u32 s50, s50, {LKV}"); a(f"v_add_u32 v{KA}, s50, v{V_L16}")
        a(f"s_sub_i32 s60, 8, s{STQ}"); a("s_max_i32 s60, s60, 0")
        SA = R.alloc(16); SB = R.alloc(16); O = R.alloc(16); PF = R.alloc(16); KR = R.alloc(16); VR = R.alloc(16); MX = R.alloc(2)
        a(f"v_mov_b32 v{MX}, {lit(-1e30)}"); a(f"v_mov_b32 v{MX+1}, {lit(-1e30)}")
        vm.wait("kv"); a("s_barrier")
        self.stamp("A@5")
        rk = lambda u: [(f"ds_read_b128 {V(KR+8*(u%2)+4*h,4)}, v{KA} offset:{u*4096+h*1024}", 4) for h in range(2)]
        rv = lambda u: [(f"ds_read_b128 {V(VR+8*(u%2)+4*h,4)}, v{KA} offset:{u*4096+2048+h*1024}", 4) for h in range(2)]
        def smf(u, c):
            S = SA if u % 2 == 0 else SB; k = KR + 8*(u % 2)
            return [f"{MFMA} {V(S,16)}, {V(k,4)}, {V(QF,4)}, {c}", f"{MFMA} {V(S,16)}, {V(k+4,4)}, {V(QF+4,4)}, {V(S,16)}"]
        def pvm(u):
            P = PF + 8*(u % 2); vr = VR + 8*(u % 2)
            return [f"{MFMA} {V(O,16)}, {V(vr,4)}, {V(P,4)}, {'0' if u == 0 else V(O,16)}", f"{MFMA} {V(O,16)}, {V(vr+4,4)}, {V(P+4,4)}, {V(O,16)}"]
        warm = self.warm_rest
        CB = R.alloc(16)
        for r in range(16): a(f"v_mov_b32 v{CB+r}, {lit(-1e30)}")
        def smf_first(u, c):
            S = SA if u % 2 == 0 else SB; k = KR + 8*(u % 2)
            def f():
                if u == 8:
                    a(f"{MFMA} {V(S,16)}, {V(k,4)}, {V(QF,4)}, {c}"); return
                L1 = a.label("L_m"); L2 = a.label("L_m")
                a(f"s_cmp_gt_u32 s60, {u}"); a(f"s_cbranch_scc1 {L1}")
                a(f"{MFMA} {V(S,16)}, {V(k,4)}, {V(QF,4)}, {c}"); a(f"s_branch {L2}")
                a(f"{L1}:"); a(f"{MFMA} {V(S,16)}, {V(k,4)}, {V(QF,4)}, {V(CB,16)}"); a(f"{L2}:")
            return f
        def smf2(u, c):
            return [smf_first(u, c), smf(u, c)[1]]
        def attention(branchy, warm):
            sm = smf2 if branchy else smf
            cop1 = lambda u: V(CF,16) if u == 0 else (V(CD,16) if u == 8 else "0")
            for x, _ in rk(0) + rk(1): a(x)
            a("s_waitcnt lgkmcnt(2)")
            for x in sm(0, cop1(0)): self.emit_fill(x)
            for u in range(9):
                S = SA if u % 2 == 0 else SB
                mx = [(f"v_max3_f32 v{MX+(r//2)%2}, v{S+r}, v{S+r+1}, v{MX+(r//2)%2}", 4) for r in range(0, 16, 2)]
                if u + 1 < 9:
                    a("s_waitcnt lgkmcnt(0)")
                    tw_ = warm[:1] if u % 4 == 0 else []; warm = warm[len(tw_):]
                    self.sched(sm(u + 1, cop1(u + 1)), (rk(u + 2) if u + 2 < 9 else []) + tw_ + mx)
                else:
                    for x, _ in mx: a(x)
            self.stamp("p1") if not branchy else None
            self.attn_mid(MX, T0, CM, CD, CF)
            self.stamp("p2") if not branchy else None
            cop2 = lambda u: V(CF,16) if u == 0 else (V(CD,16) if u == 8 else V(CM,16))
            for x, _ in rk(0) + rk(1): a(x)
            a("s_waitcnt lgkmcnt(2)")
            for x in sm(0, cop2(0)): self.emit_fill(x)
            nw = 1
            for u in range(10):
                mf = []; fill = []
                a("s_waitcnt lgkmcnt(0)")
                if u + 1 < 9: mf += sm(u + 1, cop2(u + 1))
                if u >= 1: mf += pvm(u - 1)
                if u < 9:
                    S = SA if u % 2 == 0 else SB; P = PF + 8*(u % 2)
                    fill += rv(u)
                    if u + 2 < 9: fill += rk(u + 2)
                    ex = []
                    for d in range(8):
                        ex += [(f"v_exp_f32 v{S+2*d}, v{S+2*d}", 8), (f"v_exp_f32 v{S+2*d+1}, v{S+2*d+1}", 8)]
                        if d >= 1: ex.append((f"v_cvt_pk_bf16_f32 v{P+d-1}, v{S+2*d-2}, v{S+2*d-1}", 4))
                    ex.append((f"v_cvt_pk_bf16_f32 v{P+7}, v{S+14}, v{S+15}", 4))
                    ws_ = warm[:nw] if u % 2 == 0 else []; warm = warm[len(ws_):]
                    step = max(1, len(ex) // (len(ws_) + 1))
                    for n, it in enumerate(ws_): ex.insert((n + 1) * step + n, it)
                    fill += ex
                self.sched(mf, fill)
            for f, _ in warm: self.emit_fill(f)
        Lbr = a.label("L_abr"); Ljn = a.label("L_ajn")
        a("s_cmp_gt_u32 s60, 0"); a(f"s_cbranch_scc1 {Lbr}")
        saved_ops = list(vm.ops)
        attention(False, list(warm))
        a(f"s_branch {Ljn}")
        fast_ops = list(vm.ops); vm.ops = saved_ops
        a(f"{Lbr}:")
        attention(True, list(warm))
        assert len(vm.ops) == len(fast_ops)
        a(f"{Ljn}:")
        warm = []
        for f, _ in warm: self.emit_fill(f)
        self.stamp("p3")
        a(f"v_mov_b32 v{T0}, v{O+12}"); a(f"v_mov_b32 v{MX}, v{O+12}")
        a(f"v_permlane32_swap_b32 v{T0}, v{MX}")
        a(f"v_rcp_f32 v{MX}, v{MX}")
        for r in range(0, 16, 2): a(f"v_pk_mul_f32 {V(O+r,2)}, {V(O+r,2)}, {V(MX,2)} op_sel_hi:[1,0]")
        for d in range(8): a(f"v_cvt_pk_bf16_f32 v{PF+d}, v{O+2*d}, v{O+2*d+1}")
        for d in (6, 7): a(f"v_and_b32 v{PF+d}, v{PF+d}, v{MASKH}")
        a(f"s_lshl_b32 s56, s{STQ}, 4"); a(f"s_add_u32 s56, s56, s{SJ}"); a("s_lshl_b32 s56, s56, 11"); a(f"s_add_u32 s56, s56, {OFR}")
        for h in range(2):
            vm.issue(f"buffer_store_dwordx4 {V(PF+4*h,4)}, v{V_L16}, {srd(S_WS)}, s56 offen offset:{h*1024} sc1")
        a(f"s_lshl_b32 s59, s{SI}, 7"); a(f"s_lshl_b32 s56, s{SJ}, 2"); a("s_add_u32 s59, s59, s56"); a(f"s_add_u32 s59, s59, {F_O}")
        self.set_flag(59)
        self.stamp("A@6")

    def tlb_warm(self):
        a, vm = self.a, self.vm
        a(f"v_lshlrev_b32 v{V_TOUCH}, 21, v{V_LANE}")
        a("s_mov_b64 exec, 0xfff")
        vm.issue(f"buffer_load_dword v{V_DUMMY}, v{V_TOUCH}, {srd(S_WS)}, 0 offen", tag="tlb")
        a("s_mov_b64 exec, 0xf")
        vm.issue(f"buffer_load_dword v{V_DUMMY}, v{V_TOUCH}, {srd(S_WSP)}, 0 offen", tag="tlb")
        a("s_mov_b64 exec, 1")
        for sb in (S_WO, S_WIN, S_WOUT, S_BSP, S_OUT):
            vm.issue(f"buffer_load_dword v{V_DUMMY}, v{V_TOUCH}, {srd(sb)}, 0 offen", tag="tlb")
        a("s_mov_b64 exec, -1")

    def warm_list(self, srdb, nbytes, sreg=69):
        a, vm = self.a, self.vm
        per_wave = nbytes // 128; n = (per_wave + 1023) // 1024; out = []
        for k in range(n):
            def f(k=k):
                if k == 0:
                    a(f"s_lshl_b32 s{sreg}, s{S_SLOT}, 2"); a(f"s_add_u32 s{sreg}, s{sreg}, s{S_WAVE}"); a(f"s_mul_i32 s{sreg}, s{sreg}, {per_wave}")
                elif k % 4 == 0: a(f"s_add_u32 s{sreg}, s{sreg}, 4096")
                vm.issue(f"buffer_load_dwordx4 {V(V_DUMMY,4)}, v{V_L16}, {srd(srdb)}, s{sreg} offen offset:{(k%4)*1024}", tag="warm")
            out.append((f, 8))
        return out

    def attn_mid(self, MX, T0, CM, CD, CF):
        a = self.a
        a(f"v_max_f32 v{MX}, v{MX}, v{MX+1}")
        self.half_op(MX, T0, "v_max_f32")
        for r in range(16): a(f"v_sub_f32 v{CM+r}, 0, v{MX}")
        for r in range(0, 16, 2):
            a(f"v_pk_add_f32 {V(CD+r,2)}, {V(CD+r,2)}, {V(CM,2)}"); a(f"v_pk_add_f32 {V(CF+r,2)}, {V(CF+r,2)}, {V(CM,2)}")

    def touch_list(self, srdb, nbytes, sreg=69, base=None):
        a, vm = self.a, self.vm
        per_wave = (nbytes // 128 + 63) // 64 * 64; n = (per_wave + 4095) // 4096; out = []
        for k in range(n):
            def f(k=k):
                if k == 0:
                    a(f"s_lshl_b32 s{sreg}, s{S_SLOT}, 2"); a(f"s_add_u32 s{sreg}, s{sreg}, s{S_WAVE}"); a(f"s_mul_i32 s{sreg}, s{sreg}, {per_wave}")
                    if base is not None: a(f"s_add_u32 s{sreg}, s{sreg}, s{base}")
                    a(f"v_lshlrev_b32 v{V_TOUCH}, 6, v{V_LANE}")
                else: a(f"s_add_u32 s{sreg}, s{sreg}, 4096")
                vm.issue(f"buffer_load_dword v{V_DUMMY}, v{V_TOUCH}, {srd(srdb)}, s{sreg} offen", tag="warm")
            out.append((f, 12))
        return out

    def idle_prefetch(self, skip, part):
        a = self.a
        Lo = a.label("L_ip")
        a(f"s_branch {Lo}")
        a(f"{skip}:")
        idn = self.o.get("idle_n", [6, 10])
        n = idn[part] if part < 2 else 13
        first = 0 if part != 1 else idn[0]
        if n:
            if part < 2: a(f"s_lshl_b32 s50, s{S_XCD}, 20")
            else: a("s_mov_b32 s50, 0")
            a(f"s_sub_u32 s51, s{S_SLOT}, 28"); a("s_lshl_b32 s51, s51, 2"); a(f"s_add_u32 s51, s51, s{S_WAVE}"); a("s_lshl_b32 s51, s51, 12"); a("s_add_u32 s50, s50, s51")
            a(f"s_add_u32 s50, s50, {first*16*4096}")
            a(f"v_lshlrev_b32 v{V_TOUCH}, 6, v{V_LANE}")
            Ll = a.label("L_il")
            a(f"s_mov_b32 s51, {n}")
            a(f"{Ll}:")
            a(f"buffer_load_dword v{V_DUMMY}, v{V_TOUCH}, {srd(S_WSP if part < 2 else S_WOUT)}, s50 offen")
            a(f"s_add_u32 s50, s50, {16*4096}"); a("s_sub_u32 s51, s51, 1"); a("s_cmp_lg_u32 s51, 0"); a(f"s_cbranch_scc1 {Ll}")
            a("s_waitcnt vmcnt(0)")
        a(f"{Lo}:")

    def dma_by_all(self, items, tagf):
        a, vm = self.a, self.vm
        assert len(items) % 4 == 0
        Lnp = a.label("L_np")
        for wv in range(4):
            Lw = a.label("L_w")
            if wv < 3:
                a(f"s_cmp_lg_u32 s{S_WAVE}, {wv}"); a(f"s_cbranch_scc1 {Lw}")
            state = {}
            for n, it in enumerate(items):
                if n % 4 == wv: it(state)
            if wv < 3:
                a(f"s_branch {Lnp}")
                a(f"{Lw}:")
        a(f"{Lnp}:")
        vm.ops += [tagf(n) for n in range(len(items)) if n % 4 == 0]

    def dma_by_123(self, items, tagf):
        a, vm = self.a, self.vm
        Lnp = a.label("L_np")
        a(f"s_cmp_eq_u32 s{S_WAVE}, 0"); a(f"s_cbranch_scc1 {Lnp}")
        for wv in (1, 2, 3):
            Lw = a.label("L_w")
            if wv < 3:
                a(f"s_cmp_lg_u32 s{S_WAVE}, {wv}"); a(f"s_cbranch_scc1 {Lw}")
            state = {}
            for n, it in enumerate(items):
                if n % 3 == wv - 1: it(state)
            if wv < 3:
                a(f"s_branch {Lnp}")
                a(f"{Lw}:")
        a(f"{Lnp}:")
        mod = [tagf(n) for n in range(len(items)) if n % 3 == 0]
        mod.pop(); vm.ops += mod

    def d_map(self):
        a = self.a
        a(f"s_mul_i32 s50, s{S_SLOT}, 37"); a("s_lshr_b32 s50, s50, 8")
        a("s_mul_i32 s51, s50, 7"); a(f"s_sub_u32 s94, s{S_SLOT}, s51")
        a(f"s_lshl_b32 s95, s{S_XCD}, 2"); a("s_add_u32 s95, s95, s50")
        a(f"s_mul_i32 s96, s50, {self.o.get('rotm', 0)}"); a("s_and_b32 s51, s94, 3"); a(f"s_mul_i32 s51, s51, {self.o.get('rotf', 0)}"); a("s_add_u32 s96, s96, s51")
        a("s_lshl_b32 s97, s95, 18")

    def d_lanes(self, VE, VO, t):
        a = self.a
        a(f"v_lshrrev_b32 v{t}, 3, v{V_LANE}"); a(f"v_and_b32 v{t+1}, 7, v{V_LANE}"); a(f"v_lshrrev_b32 v{t+2}, 4, v{V_LANE}")
        a(f"v_xor_b32 v{t+3}, v{t+1}, v{t+2}"); a(f"v_lshlrev_b32 v{t+3}, 4, v{t+3}"); a(f"v_lshlrev_b32 v{t}, 12, v{t}"); a(f"v_add_u32 v{VE}, v{t}, v{t+3}")
        a(f"v_add_u32 v{t+2}, 4, v{t+2}"); a(f"v_xor_b32 v{t+3}, v{t+1}, v{t+2}"); a(f"v_lshlrev_b32 v{t+3}, 4, v{t+3}"); a(f"v_add_u32 v{VO}, v{t}, v{t+3}")

    @staticmethod
    def d_slot(kh, b):
        b %= 8
        if kh == 1: return 81920 + b*8192
        return b*8192 if b < 7 else 147456

    def d_early_items(self, VE, VO, NS=8):
        a, vm = self.a, self.vm
        out = []
        blocks = [(b, kh) for b in range(NS) for kh in range(2)]
        for (b, kh) in blocks:
            for h in range(2):
                def f(b=b, kh=kh, h=h):
                    if h == 0:
                        a(f"s_add_u32 s98, s96, {b}"); a("s_and_b32 s98, s98, 15"); a("s_lshl_b32 s98, s98, 7"); a("s_add_u32 s98, s98, s97")
                        a(f"s_lshl_b32 s99, s{S_WAVE}, 16"); a("s_add_u32 s98, s98, s99")
                    a(f"s_lshl_b32 s99, s{S_WAVE}, 11"); a(f"s_add_u32 m0, s99, {self.d_slot(kh, b) + h*1024}")
                    a(f"s_add_u32 s99, s98, {kh*2048 + h*8*4096}")
                    vm.issue(f"buffer_load_dwordx4 v{VE if h == 0 else VO}, {srd(S_WSP)}, s99 offen lds", tag=("w", b))
                out.append((f, 28))
        return out, blocks

    def stage_list(self, srdb, VW, sg, sl, pairs, tag, tmp=98):
        a, vm = self.a, self.vm
        out = []
        for (lc, gc) in pairs:
            def f(lc=lc, gc=gc):
                a(f"s_add_u32 m0, s{sl}, {lc}"); a(f"s_add_u32 s{tmp}, s{sg}, {gc}")
                vm.issue(f"buffer_load_dwordx4 v{VW}, {srd(srdb)}, s{tmp} offen lds", tag=tag)
            out.append((f, 12))
        return out
    def pairs_small(self, ph, lds0=0):
        NB = 8 if ph == "B" else 14; rpb = 28 if ph == "B" else 32
        return [(lds0 + (kh*NB + b)*4096, (kh*NB + b)*rpb*896) for b in range(NB) for kh in range(2)]
    def pairs_win(self, img, lds0):
        return [(lds0 + k2*4096, k2*32*3584 + (1792 if img == 0 else 0)) for k2 in range(14)]
    def stage_setup(self, sct, rowbytes, sg, sl):
        a = self.a
        a(f"s_lshl_b32 s{sg}, s{sct}, 7"); a(f"s_mul_i32 s{sl}, s{S_WAVE}, {8*rowbytes}"); a(f"s_add_u32 s{sg}, s{sg}, s{sl}"); a(f"s_lshl_b32 s{sl}, s{S_WAVE}, 10")
    def ct7(self, dst):
        a = self.a
        a(f"s_mul_i32 s50, s{S_SLOT}, 37"); a("s_lshr_b32 s50, s50, 8"); a("s_mul_i32 s50, s50, 7"); a(f"s_sub_u32 s{dst}, s{S_SLOT}, s50")

    def map_BE(self, skip):
        a = self.a
        a(f"s_cmp_ge_u32 s{S_SLOT}, 28"); a(f"s_cbranch_scc1 {skip}")
        a(f"s_mul_i32 s50, s{S_SLOT}, 37"); a("s_lshr_b32 s50, s50, 8")
        a("s_mul_i32 s51, s50, 7"); a(f"s_sub_u32 s49, s{S_SLOT}, s51")
        a(f"s_lshl_b32 s48, s{S_XCD}, 2"); a("s_add_u32 s48, s48, s50")
        a(f"s_and_b32 s52, s{S_WAVE}, 1"); a("s_lshl_b32 s50, s48, 1"); a("s_add_u32 s52, s52, s50"); a(f"s_lshr_b32 s53, s{S_WAVE}, 1")

    def w128_lane(self, dst, rowbytes, t):
        a = self.a
        a(f"v_lshrrev_b32 v{t}, 3, v{V_LANE}"); a(f"v_mul_u32_u24 v{t}, {rowbytes}, v{t}")
        a(f"v_lshrrev_b32 v{t+1}, 4, v{V_LANE}"); a(f"v_and_b32 v{t+1}, 1, v{t+1}"); a(f"v_lshlrev_b32 v{t+1}, 2, v{t+1}")
        a(f"v_and_b32 v{t+2}, 7, v{V_LANE}"); a(f"v_xor_b32 v{t+2}, v{t+2}, v{t+1}"); a(f"v_lshlrev_b32 v{t+2}, 4, v{t+2}")
        a(f"v_add_u32 v{dst}, v{t}, v{t+2}")

    def w128_bases(self, B0, t, wave_bytes_reg=None, const=0):
        a = self.a
        a(f"v_lshrrev_b32 v{t}, 2, v{V_LANE}"); a(f"v_and_b32 v{t}, 3, v{t}")
        a(f"v_lshlrev_b32 v{t+1}, 2, v{V_HH}"); a(f"v_add_u32 v{t+1}, v{t+1}, v{t}"); a(f"v_lshlrev_b32 v{t+1}, 7, v{t+1}")
        a(f"v_lshrrev_b32 v{t+2}, 4, v{V_LANE}"); a(f"v_and_b32 v{t+2}, 1, v{t+2}"); a(f"v_lshlrev_b32 v{t+2}, 5, v{t+2}")
        a(f"v_add_u32 v{t+1}, v{t+1}, v{t+2}")
        a(f"v_and_b32 v{t+2}, 3, v{V_LANE}"); a(f"v_lshlrev_b32 v{t+2}, 3, v{t+2}"); a(f"v_add_u32 v{t+1}, v{t+1}, v{t+2}")
        a(f"v_lshrrev_b32 v{t}, 1, v{t}"); a(f"v_lshlrev_b32 v{t}, 6, v{t}")
        if wave_bytes_reg is not None: a(f"v_add_u32 v{t+1}, s{wave_bytes_reg}, v{t+1}")
        if const: a(f"v_add_u32 v{t+1}, {const}, v{t+1}")
        a(f"v_add_u32 v{B0}, v{t+1}, v{t}")
        a(f"v_xor_b32 v{t}, 64, v{t}"); a(f"v_add_u32 v{B0+1}, v{t+1}, v{t}")

    def small_phase(self, ph):
        a, vm, R = self.a, self.vm, self.R
        R.reset()
        isB = ph == "B"
        NB = 8 if isB else 14
        rows_per_blk = 28 if isB else 32
        SW = S_WO if isB else S_WOUT
        ACTB = OFR if isB else UFR; nact = 16 if isB else 28
        skip = f"L_skip{ph}"
        self.map_BE(skip)
        self.stamp(f"{ph}@0")
        t = R.alloc(4, 1); VW = R.alloc()
        self.w128_lane(VW, 896, t)
        a(f"s_{'mov_b32 s54, s49' if isB else 'lshl_b32 s54, s49, 1'}" if self.o.get("rot_" + ph.lower(), 0) else "s_mov_b32 s54, 0")
        a("s_lshl_b32 s55, s49, 7")
        a(f"s_lshl_b32 s58, s52, {4 if isB else 0}") if isB else a("s_mul_i32 s58, s52, 28")
        a(f"s_mul_i32 s50, s53, {NB}"); a("s_add_u32 s58, s58, s50"); a("s_lshl_b32 s58, s58, 11"); a(f"s_add_u32 s58, s58, {ACTB}")
        if isB:
            self.stage_setup(49, 896, 101, 100)
            for f, _ in self.stage_list(S_WO, VW, 101, 100, self.pairs_small("B"), "wo"): f()
            VWI = R.alloc(); self.w128_lane(VWI, 3584, t)
            a(f"s_cmp_ge_u32 s{S_SLOT}, 14"); a("s_cselect_b32 s50, 14, 0"); a(f"s_sub_u32 s99, s{S_SLOT}, s50")
            a("s_lshl_b32 s101, s99, 7")
            items = []
            for k2 in range(14):
                for q in range(4):
                    def it(st, k2=k2, q=q):
                        a(f"s_mov_b32 m0, {81920 + k2*4096 + q*1024}"); a(f"s_add_u32 s98, s101, {k2*32*3584 + 1792 + q*8*3584}")
                        a(f"buffer_load_dwordx4 v{VWI}, {srd(S_WIN)}, s98 offen lds")
                    items.append(it)
            self.dma_by_123(items, lambda n: "w2")
        XR = R.alloc(8)
        if isB:
            a(f"v_mul_u32_u24 v{t+3}, 896, v{V_L31}"); a(f"v_lshlrev_b32 v{t+2}, 3, v{V_HH}"); a(f"v_add_u32 v{t+3}, v{t+3}, v{t+2}")
            a(f"s_mul_i32 s54, s52, {32*896}"); a("s_lshl_b32 s50, s49, 7"); a("s_add_u32 s54, s54, s50"); a("s_lshl_b32 s50, s53, 6"); a("s_add_u32 s54, s54, s50")
            for g in range(4):
                vm.issue(f"buffer_load_dwordx2 {V(XR+2*g,2)}, v{t+3}, {srd(S_X)}, s54 offen offset:{g*16}", tag="xr")
        B0 = R.alloc(2, 1)
        a(f"s_mul_i32 s51, s53, {NB*4096}")
        self.w128_bases(B0, t, 51)
        if isB:
            a("s_lshr_b32 s55, s48, 1"); a("s_lshl_b32 s55, s55, 7"); a(f"s_add_u32 s55, s55, {F_O}"); self.poll(55, 16, drain=False)
        else:
            a("s_lshl_b32 s55, s48, 7"); a(f"s_add_u32 s55, s55, {F_U}"); self.poll(55, 7, drain=False)
        self.stamp(f"{ph}@1")
        ACT = R.alloc(8 * NB)
        a(f"s_{'mov_b32 s54, s49' if isB else 'lshl_b32 s54, s49, 1'}" if self.o.get("rot_" + ph.lower(), 0) else "s_mov_b32 s54, 0")
        def ld_act(k):
            b, st = k // 2, k % 2
            def f():
                if st == 0:
                    a(f"s_cmp_ge_u32 s54, {NB}"); a(f"s_cselect_b32 s50, {NB}, 0"); a("s_sub_u32 s54, s54, s50")
                    a("s_lshl_b32 s59, s54, 11"); a("s_add_u32 s59, s59, s58"); a("s_add_u32 s54, s54, 1")
                vm.issue(f"buffer_load_dwordx4 {V(ACT+8*b+4*st,4)}, v{V_L16}, {srd(S_WS)}, s59 offen offset:{st*1024} sc1", tag=("act", k))
            return [(f, 16 if st == 0 else 4)]
        PD = self.o.get("pd_small", 6)
        for k in range(PD):
            for f, _ in ld_act(k): f()
        def ld_res():
            a("s_lshl_b32 s50, s49, 1"); a("s_add_u32 s50, s50, s53"); a("s_mul_i32 s51, s52, 14"); a("s_add_u32 s50, s50, s51")
            a("s_lshl_b32 s55, s50, 11"); a(f"s_add_u32 s55, s55, {HFR}")
            for h in range(2):
                vm.issue(f"buffer_load_dwordx4 {V(XR+4*h,4)}, v{V_L16}, {srd(S_WS)}, s55 offen offset:{h*1024} sc1", tag="xr")
        vm.wait("wo" if isB else "wout"); a("s_barrier")
        ACC = R.alloc(32); WF = R.alloc(24)
        nk = 2 * NB
        def rd(k):
            out = []
            for c in range(2):
                for e in range(2):
                    r = WF + (k % 3)*8 + c*4 + e*2
                    out.append((f"ds_read_b64_tr_b16 v[{r}:{r+1}], v{B0+c} offset:{(k//2)*4096 + ((k%2)*16 + 8*e)*128}", 4))
            return out
        for k in range(2):
            for x, _ in rd(k): a(x)
        for k in range(nk):
            a(f"s_waitcnt lgkmcnt({4 if k + 1 < nk else 0})")
            vm.wait(("act", k))
            wb = WF + (k % 3) * 8
            mf = [f"{MFMA} {V(ACC+16*c,16)}, {V(wb+4*c,4)}, {V(ACT+4*k,4)}, {'0' if k == 0 else V(ACC+16*c,16)}" for c in range(2)]
            fill = (ld_act(k + PD) if k + PD < nk else []) + (rd(k + 2) if k + 2 < nk else [])
            if not isB and k == nk - PD: fill.append((ld_res, 32))
            self.sched(mf, fill)
        R.free(WF, 24); R.free(ACT, 8*NB)
        img1 = []
        if isB and self.o.get("img1_in_b", 1):
            a("s_barrier")
            self.stage_setup(99, 3584, 101, 100)
            img1 = self.stage_list(S_WIN, VWI, 101, 100, self.pairs_win(1, 0), "w")
            for f, _ in img1[:4]: f()
            img1 = img1[4:]
        LEX = 65536 if isB else 114688
        a(f"s_lshl_b32 s50, s{S_WAVE}, 12"); a(f"s_add_u32 s50, s50, {LEX}"); a(f"v_add_u32 v{t}, s50, v{V_L16}")
        a(f"s_xor_b32 s51, s{S_WAVE}, 2"); a("s_lshl_b32 s51, s51, 12"); a(f"s_add_u32 s51, s51, {LEX}"); a(f"v_add_u32 v{t+1}, s51, v{V_L16}")
        La = a.label("L_x"); Lb = a.label("L_x")
        a(f"s_cmp_lt_u32 s{S_WAVE}, 2"); a(f"s_cbranch_scc1 {La}")
        for q in range(4): a(f"ds_write_b128 v{t}, {V(ACC+4*q,4)} offset:{q*1024}")
        a("s_nop 1")
        for r in range(0, 16, 2): a(f"v_pk_mul_f32 {V(ACC+r,2)}, {V(ACC+16+r,2)}, 1.0 op_sel_hi:[1,0]")
        a(f"s_branch {Lb}")
        a(f"{La}:")
        for q in range(4): a(f"ds_write_b128 v{t}, {V(ACC+16+4*q,4)} offset:{q*1024}")
        a(f"{Lb}:")
        a("s_waitcnt lgkmcnt(0)"); a("s_barrier")
        for q in range(4): a(f"ds_read_b128 {V(ACC+16+4*q,4)}, v{t+1} offset:{q*1024}")
        self.stamp(f"{ph}@2")
        T0 = R.alloc(); T1 = R.alloc(); PF = R.alloc(8); XF = R.alloc(16)
        vm.wait("xr")
        for d in range(8):
            a(f"v_lshlrev_b32 v{XF+2*d}, 16, v{XR+d}"); a(f"v_and_b32 v{XF+2*d+1}, 0xffff0000, v{XR+d}")
        for r in range(0, 16, 2): a(f"v_pk_add_f32 {V(ACC+r,2)}, {V(ACC+r,2)}, {V(XF+r,2)}")
        a("s_waitcnt lgkmcnt(0)")
        for r in range(0, 16, 2): a(f"v_pk_add_f32 {V(ACC+r,2)}, {V(ACC+r,2)}, {V(ACC+16+r,2)}")
        for d in range(8): a(f"v_cvt_pk_bf16_f32 v{PF+d}, v{ACC+2*d}, v{ACC+2*d+1}")
        if isB:
            for f, _ in img1[:3]: f()
            img1 = img1[3:]
            a("s_lshl_b32 s50, s49, 1"); a("s_add_u32 s50, s50, s53"); a("s_mul_i32 s51, s52, 14"); a("s_add_u32 s50, s50, s51")
            a("s_lshl_b32 s55, s50, 11"); a(f"s_add_u32 s55, s55, {HFR}")
            for h in range(2):
                vm.issue(f"buffer_store_dwordx4 {V(PF+4*h,4)}, v{V_L16}, {srd(S_WS)}, s55 offen offset:{h*1024} sc1")
            PS = R.alloc(2); P2 = R.alloc(2)
            a(f"v_pk_add_f32 {V(PS,2)}, {V(ACC,2)}, {V(ACC+2,2)}"); a(f"v_pk_mul_f32 {V(P2,2)}, {V(ACC,2)}, {V(ACC,2)}")
            a(f"v_pk_fma_f32 {V(P2,2)}, {V(ACC+2,2)}, {V(ACC+2,2)}, {V(P2,2)}")
            for r in range(4, 16, 2):
                a(f"v_pk_add_f32 {V(PS,2)}, {V(PS,2)}, {V(ACC+r,2)}"); a(f"v_pk_fma_f32 {V(P2,2)}, {V(ACC+r,2)}, {V(ACC+r,2)}, {V(P2,2)}")
            a(f"v_add_f32 v{PS}, v{PS}, v{PS+1}"); a(f"v_add_f32 v{PS+1}, v{P2}, v{P2+1}")
            self.half_op(PS, T0); self.half_op(PS+1, T1)
            a(f"v_lshlrev_b32 v{T0}, 3, v{V_L31}")
            a("s_lshl_b32 s55, s50, 8"); a(f"s_add_u32 s55, s55, {HST}")
            vm.issue(f"buffer_store_dwordx2 {V(PS,2)}, v{T0}, {srd(S_WS)}, s55 offen sc1", tag="hst")
            a("s_lshr_b32 s55, s48, 1"); a("s_lshl_b32 s55, s55, 7"); a("s_and_b32 s50, s48, 1"); a("s_mul_i32 s50, s50, 7"); a("s_add_u32 s50, s50, s49")
            a("s_lshl_b32 s50, s50, 2"); a("s_add_u32 s55, s55, s50"); a(f"s_add_u32 s55, s55, {F_H}")
            for f, _ in img1: f()
            self.set_flag(55, tag="hst")
        else:
            for p in range(2):
                a(f"v_permlane32_swap_b32 v{PF+4*p}, v{PF+4*p+2}"); a(f"v_permlane32_swap_b32 v{PF+4*p+1}, v{PF+4*p+3}")
            a(f"v_mul_u32_u24 v{T0}, 896, v{V_L31}"); a(f"v_lshlrev_b32 v{T1}, 4, v{V_HH}"); a(f"v_add_u32 v{T0}, v{T0}, v{T1}")
            a(f"s_mul_i32 s54, s52, {32*896}"); a("s_lshl_b32 s50, s49, 7"); a("s_add_u32 s54, s54, s50"); a("s_lshl_b32 s50, s53, 6"); a("s_add_u32 s54, s54, s50")
            for p in range(2):
                vm.issue(f"buffer_store_dwordx4 {V(PF+4*p,4)}, v{T0}, {srd(S_OUT)}, s54 offen offset:{p*32}{self.o.get('out_flags', '')}")
        if isB: self.idle_prefetch(skip, 0)
        else: a(f"{skip}:")
        self.stamp(f"{ph}@3")

    def phase_B(self):
        self.a.c("================ phase B : h = x + o @ wo ================"); self.small_phase("B")
    def phase_E(self):
        self.a.c("================ phase E : out = h + u @ w_out ================"); self.small_phase("E")

    def phase_C(self):
        a, vm, R = self.a, self.vm, self.R
        R.reset()
        a.c("================ phase C : z = gelu(LN(h) @ w_in) ================")
        skip = "L_skipC"
        a(f"s_cmp_ge_u32 s{S_SLOT}, 28"); a(f"s_cbranch_scc1 {skip}")
        a(f"s_cmp_ge_u32 s{S_SLOT}, 14"); a("s_cselect_b32 s50, 1, 0")
        a("s_mul_i32 s51, s50, 14"); a(f"s_sub_u32 s49, s{S_SLOT}, s51")
        a(f"s_lshl_b32 s48, s{S_XCD}, 1"); a("s_add_u32 s48, s48, s50")
        a(f"s_lshl_b32 s52, s48, 2"); a(f"s_add_u32 s52, s52, s{S_WAVE}")
        self.stamp("C@0")
        IMG = (81920, 0)
        LCS = 57344; LTR = LCS + 512
        t = R.alloc(4, 1); VW = R.alloc()
        self.w128_lane(VW, 3584, t)
        if not self.o.get("img1_in_b", 1):
            self.stage_setup(49, 3584, 101, 100)
            for f, _ in self.stage_list(S_WIN, VW, 101, 100, self.pairs_win(1, IMG[1]), "w"): f()
        B2 = R.alloc(2, 1); B1 = R.alloc(2, 1)
        self.w128_bases(B2, t, None, IMG[0])
        for c in range(2): a(f"v_subrev_u32 v{B1+c}, {IMG[0] - IMG[1]}, v{B2+c}")
        ONES = R.alloc(4)
        for k in range(4): a(f"v_mov_b32 v{ONES+k}, 0x3f803f80")
        BC = R.alloc(); CSA = R.alloc(16)
        a(f"s_lshr_b32 s50, s{S_WAVE}, 1"); a(f"s_mul_i32 s50, s50, {IMG[0] - IMG[1]}")
        a(f"s_and_b32 s51, s{S_WAVE}, 1"); a("s_cmp_eq_u32 s51, 0")
        a(f"v_mov_b32 v{BC}, v{B2+1}"); a("s_cselect_b64 vcc, -1, 0"); a(f"v_cndmask_b32 v{BC}, v{BC}, v{B2}, vcc"); a(f"v_subrev_u32 v{BC}, s50, v{BC}")
        WC = R.alloc(16)
        self.stamp("Cv")
        vm.wait("w"); a("s_barrier")
        self.stamp("Cw")
        def rdc(k): return [(f"ds_read_b64_tr_b16 v[{WC+(k%4)*4+e*2}:{WC+(k%4)*4+e*2+1}], v{BC} offset:{k*2048 + e*1024}", 4) for e in range(2)]
        for k in range(3):
            for x, _ in rdc(k): a(x)
        for k in range(28):
            a(f"s_waitcnt lgkmcnt({min(4, 2*(27-k))})")
            self.sched([f"{MFMA} {V(CSA,16)}, {V(WC+(k%4)*4,4)}, {V(ONES,4)}, {'0' if k == 0 else V(CSA,16)}"], rdc(k + 3) if k + 3 < 28 else [])
        a(f"v_lshlrev_b32 v{t}, 4, v{V_HH}"); a(f"s_lshl_b32 s50, s{S_WAVE}, 7"); a(f"s_add_u32 s50, s50, {LCS}"); a(f"v_add_u32 v{t}, s50, v{t}")
        a("s_mov_b32 exec_lo, 1"); a("s_mov_b32 exec_hi, 1")
        for gg in range(4): a(f"ds_write_b128 v{t}, {V(CSA+4*gg,4)} offset:{gg*32}")
        a("s_mov_b64 exec, -1")
        a("s_waitcnt lgkmcnt(0)")
        self.stamp("Cc")
        R.free(CSA, 16); R.free(WC, 16)
        a(f"s_lshl_b32 s55, s48, 7"); a(f"s_add_u32 s55, s55, {F_H}")
        self.poll(55, 14, drain=False)
        self.stamp("C@1")
        T0 = R.alloc(); T1 = R.alloc()
        HS = R.alloc(14, 2)
        a("s_mul_i32 s55, s52, 14"); a("s_lshl_b32 s54, s55, 11"); a(f"s_add_u32 s54, s54, {HFR}")
        a("s_lshl_b32 s58, s49, 1" if self.o.get("rot_c", 0) else "s_mov_b32 s58, 0")
        def ld_h(k):
            def f():
                a("s_cmp_ge_u32 s58, 28"); a("s_cselect_b32 s50, 28, 0"); a("s_sub_u32 s58, s58, s50")
                a("s_lshl_b32 s56, s58, 10"); a("s_add_u32 s56, s56, s54")
                vm.issue(f"buffer_load_dwordx4 {A(4*k,4)}, v{V_L16}, {srd(S_WS)}, s56 offen sc1", tag=("act", k))
                a("s_add_u32 s58, s58, 1")
            return [(f, 24)]
        def ld_hs():
            a(f"v_mul_u32_u24 v{T0}, {7*256}, v{V_HH}"); a(f"v_lshlrev_b32 v{T1}, 3, v{V_L31}"); a(f"v_add_u32 v{T0}, v{T0}, v{T1}")
            a("s_lshl_b32 s55, s55, 8"); a(f"s_add_u32 s55, s55, {HST}")
            for q in range(7):
                vm.issue(f"buffer_load_dwordx2 {V(HS+2*q,2)}, v{T0}, {srd(S_WS)}, s55 offen offset:{q*256} sc1", tag="hs")
        PD = self.o.get("pd_c", 10)
        for k in range(PD):
            for f, _ in ld_h(k): f()
        self.stamp("Ci")
        Z = R.alloc(64)
        WG = R.alloc(24)
        def rd(k, B, kk):
            out = []
            for c in range(2):
                for e in range(2):
                    r = WG + (kk % 3)*8 + c*4 + e*2
                    out.append((f"ds_read_b64_tr_b16 v[{r}:{r+1}], v{B+c} offset:{k*2048 + e*1024}", 4))
            return out
        CSR = R.alloc(32); VT = R.alloc()
        a(f"v_lshlrev_b32 v{VT}, 4, v{V_HH}"); a(f"v_add_u32 v{VT}, {LCS}, v{VT}")
        for x, _ in rd(0, B2, 0) + rd(1, B2, 1): a(x)
        MEAN = R.alloc(2); RSTD = MEAN + 1
        K0 = R.alloc(2); S0 = R.alloc(2); Q0 = R.alloc(2); TT = R.alloc(8)
        k0 = -2.0 * LOG2E * math.sqrt(2 / math.pi); k1 = k0 * 0.044715
        pre = [(lambda: vm.wait("hs"), 4), (f"v_mov_b32 v{MEAN}, v{HS}", 4), (f"v_mov_b32 v{RSTD}, v{HS+1}", 4)]
        for q in range(1, 7): pre += [(f"v_add_f32 v{MEAN}, v{MEAN}, v{HS+2*q}", 4), (f"v_add_f32 v{RSTD}, v{RSTD}, v{HS+2*q+1}", 4)]
        pre += [(lambda: self.half_op(MEAN, T0), 16), (lambda: self.half_op(RSTD, T1), 16)]
        pre += [(f"v_mul_f32 v{MEAN}, {lit(1/448)}, v{MEAN}", 4), (f"v_mul_f32 v{RSTD}, {lit(1/448)}, v{RSTD}", 4), (f"v_fma_f32 v{RSTD}, -v{MEAN}, v{MEAN}, v{RSTD}", 4),
                (f"v_max_f32 v{RSTD}, 0, v{RSTD}", 4), (f"v_add_f32 v{RSTD}, {lit(1e-5)}, v{RSTD}", 4), (f"v_rsq_f32 v{RSTD}, v{RSTD}", 8),
                (f"s_mov_b32 s62, {lit(k1)}", 4), (f"s_mov_b32 s63, {lit(k1)}", 4), (f"v_mov_b32 v{K0}, {lit(k0)}", 4), (f"v_mov_b32 v{K0+1}, {lit(k0)}", 4)]
        for k in range(28):
            a(f"s_waitcnt lgkmcnt({4 if k + 1 < 28 else 0})")
            vm.wait(("act", k))
            if k in (0, 7, 14, 21): self.stamp(f"Ck{k}")
            wb = WG + (k % 3) * 8
            fill = (ld_h(k + PD) if k + PD < 28 else []) + (rd(k + 2, B2, k + 2) if k + 2 < 28 else rd(k + 2 - 28, B1, k + 2))
            if k == 28 - PD: fill.append((ld_hs, 48))
            if k == 26: fill += [(f"ds_read_b128 {V(CSR+16*c+4*gg,4)}, v{VT} offset:{c*128+gg*32}", 4) for c in range(2) for gg in range(4)]
            mf = [f"{MFMA} {V(Z+16*c,16)}, {V(wb+4*c,4)}, {A(4*k,4)}, {'0' if k == 0 else V(Z+16*c,16)}" for c in range(2)]
            self.sched(mf, fill)
        for f, _ in pre: self.emit_fill(f)
        a("s_barrier")
        self.stamp("C@2")
        self.d_map(); self.DVE = R.alloc(); self.DVO = R.alloc(); td = R.alloc(4, 1)
        self.d_lanes(self.DVE, self.DVO, td); R.free(td, 4)
        allit, self.d_early_blocks = self.d_early_items(self.DVE, self.DVO)
        now = []; later = []
        for n, (b, kh) in enumerate(self.d_early_blocks):
            (now if (kh == 1 or b == 7) else later).extend(allit[2*n:2*n+2])
        n_g = self.o.get("early_in_gelu", 0)
        if self.o.get("stage_after", 1):
            now = []; later = allit
        touch = now[:n_g]; now = now[n_g:]
        PF = R.alloc(16)
        def gelu_pk(zbase, pack, marks=None):
            nonlocal touch
            ins = []
            for r0 in range(0, 32, 8):
                zs = [zbase + r0 + 2*i for i in range(4)]; cs = [CSR + r0 + 2*i for i in range(4)]
                ins += [f"v_pk_fma_f32 {V(z,2)}, {V(MEAN,2)}, {V(c,2)}, {V(z,2)} op_sel_hi:[0,1,1] neg_lo:[1,0,0] neg_hi:[1,0,0]" for z, c in zip(zs, cs)]
                ins += [f"v_pk_mul_f32 {V(z,2)}, {V(z,2)}, {V(MEAN,2)} op_sel:[0,1] op_sel_hi:[1,1]" for z in zs]
                ins += [f"v_pk_mul_f32 {V(TT+2*i,2)}, {V(z,2)}, {V(z,2)}" for i, z in enumerate(zs)]
                ins += [f"v_pk_fma_f32 {V(TT+2*i,2)}, {V(TT+2*i,2)}, s[62:63], {V(K0,2)}" for i in range(4)]
                ins += [f"v_pk_mul_f32 {V(TT+2*i,2)}, {V(TT+2*i,2)}, {V(z,2)}" for i, z in enumerate(zs)]
                ins += [f"v_exp_f32 v{TT+i}, v{TT+i}" for i in range(8)]
                ins += [f"v_pk_add_f32 {V(TT+2*i,2)}, {V(TT+2*i,2)}, 1.0 op_sel_hi:[1,0]" for i in range(4)]
                ins += [f"v_rcp_f32 v{TT+i}, v{TT+i}" for i in range(8)]
                ins += [f"v_pk_mul_f32 {V(z,2)}, {V(z,2)}, {V(TT+2*i,2)}" for i, z in enumerate(zs)]
                if pack:
                    ins += [f"v_cvt_pk_bf16_f32 v{PF + r0//2 + i}, v{z}, v{z+1}" for i, z in enumerate(zs)]
                else:
                    for i, z in enumerate(zs):
                        if r0 == 0 and i == 0:
                            ins += [f"v_pk_mul_f32 {V(Q0,2)}, {V(z,2)}, {V(z,2)}", f"v_pk_mul_f32 {V(S0,2)}, {V(z,2)}, 1.0 op_sel_hi:[1,0]"]
                        else:
                            ins += [f"v_pk_fma_f32 {V(Q0,2)}, {V(z,2)}, {V(z,2)}, {V(Q0,2)}", f"v_pk_add_f32 {V(S0,2)}, {V(S0,2)}, {V(z,2)}"]
                if marks and r0 in marks: ins.append(marks[r0])
            gap = self.o.get("early_gap", 24)
            for n, x in enumerate(ins):
                self.emit_fill(x)
                if touch and n % gap == gap - 1:
                    self.emit_fill(touch[0][0]); touch = touch[1:]
        a("s_waitcnt lgkmcnt(0)") if False else None
        a("s_waitcnt lgkmcnt(8)")
        a("s_waitcnt lgkmcnt(0)")
        gelu_pk(Z, False)
        G = R.alloc(4)
        a(f"v_add_f32 v{G}, v{S0}, v{S0+1}"); a(f"v_add_f32 v{G+1}, v{Q0}, v{Q0+1}")
        self.half_op(G, T0); self.half_op(G+1, T1)
        a(f"v_mov_b32 v{G+2}, s{S_TAG}"); a(f"v_mov_b32 v{G+3}, s{S_TAG}")
        a("s_mul_i32 s55, s48, 14"); a("s_add_u32 s55, s55, s49"); a("s_lshl_b32 s55, s55, 11"); a(f"s_lshl_b32 s50, s{S_WAVE}, 9"); a("s_add_u32 s55, s55, s50")
        a(f"s_add_u32 s55, s55, {STATS}"); a(f"v_lshlrev_b32 v{T1}, 4, v{V_L31}")
        vm.issue(f"buffer_store_dwordx4 {V(G,4)}, v{T1}, {srd(S_WS)}, s55 offen sc1")
        self.stamp("C@3")
        GR = R.alloc(28)
        a(f"v_mul_u32_u24 v{T0}, {7*2048}, v{V_HH}"); a(f"v_add_u32 v{T1}, v{T1}, v{T0}")
        a("s_mul_i32 s55, s48, 14"); a("s_lshl_b32 s55, s55, 11"); a(f"s_lshl_b32 s50, s{S_WAVE}, 9"); a("s_add_u32 s55, s55, s50"); a(f"s_add_u32 s55, s55, {STATS}")
        def gr_loads():
            a("s_mov_b32 s54, s55")
            for q in range(7):
                if q and q % 2 == 0: a("s_add_u32 s54, s54, 4096")
                vm.issue(f"buffer_load_dwordx4 {V(GR+4*q,4)}, v{T1}, {srd(S_WS)}, s54 offen offset:{(q%2)*2048} sc1", tag="gr")
        WA = R.alloc(4, 1); RA = R.alloc(2, 1); U0 = R.alloc(); U1 = R.alloc(); U2 = R.alloc()
        adr = []
        adr += [f"s_lshl_b32 s68, s{S_WAVE}, 12", f"s_add_u32 s68, s68, {LTR}",
                f"v_lshrrev_b32 v{U0}, 1, v{V_L31}", f"v_and_b32 v{U0}, 7, v{U0}", f"v_xor_b32 v{U0}, v{U0}, v{V_HH}", f"v_lshlrev_b32 v{U0}, 3, v{U0}",
                f"v_lshlrev_b32 v{WA}, 6, v{V_L31}", f"v_add_u32 v{WA}, v{WA}, v{U0}", f"v_add_u32 v{WA}, s68, v{WA}"]
        adr += [f"v_xor_b32 v{WA+g}, {g<<4}, v{WA}" for g in range(1, 4)]
        adr += [f"v_lshrrev_b32 v{U0}, 2, v{V_LANE}", f"v_and_b32 v{U0}, 3, v{U0}", f"v_lshlrev_b32 v{U1}, 3, v{V_HH}", f"v_add_u32 v{U1}, v{U1}, v{U0}", f"v_lshlrev_b32 v{RA}, 6, v{U1}",
                f"v_lshrrev_b32 v{U0}, 1, v{U0}", f"v_lshlrev_b32 v{U1}, 2, v{V_HH}", f"v_add_u32 v{U0}, v{U0}, v{U1}",
                f"v_lshrrev_b32 v{U1}, 4, v{V_LANE}", f"v_and_b32 v{U1}, 1, v{U1}", f"v_lshlrev_b32 v{U1}, 2, v{U1}", f"v_and_b32 v{U2}, 3, v{V_LANE}", f"v_add_u32 v{U1}, v{U1}, v{U2}",
                f"v_xor_b32 v{U0}, v{U0}, v{U1}", f"v_lshlrev_b32 v{U0}, 3, v{U0}", f"v_add_u32 v{RA}, v{RA}, v{U0}", f"v_add_u32 v{RA}, s68, v{RA}", f"v_xor_b32 v{RA+1}, 16, v{RA}"]
        adr = [(x, 4) for x in adr]
        KSPLIT = self.o.get("z1_split", 20)
        def z1_steps(k0_, k1_):
          nonlocal touch, adr
          for k in range(k0_, k1_):
            kk = k + 28
            a(f"s_waitcnt lgkmcnt({4 if (k + 1 < 28 and k > 0 and k != KSPLIT) else 0})")
            wb = WG + (kk % 3) * 8
            fill = rd(k + 2, B1, kk + 2) if k + 2 < 28 else []
            if k == min(self.o.get("gr_at", 12), KSPLIT - 6): fill.append((gr_loads, 40))
            if k == 24: fill += [(f"ds_read_b128 {V(CSR+16*c+4*gg,4)}, v{VT} offset:{256+c*128+gg*32}", 4) for c in range(2) for gg in range(4)]
            fill += adr[:3]; adr = adr[3:]
            if k == 0: touch = touch + now
            if touch and k >= self.o.get("early_k0", 2) and k < KSPLIT: fill.append(touch[0]); touch = touch[1:]
            mf = [f"{MFMA} {V(Z+32+16*c,16)}, {V(wb+4*c,4)}, {A(4*k,4)}, {'0' if k == 0 else V(Z+32+16*c,16)}" for c in range(2)]
            self.sched(mf, fill)
        z1_steps(0, KSPLIT)
        for f, _ in adr: self.emit_fill(f)
        for f, _ in touch: self.emit_fill(f)
        touch = []
        R.free(HS, 14)
        self.stamp("C@4")
        Lp = a.label("L_sp"); Ld = a.label("L_sd")
        vm.wait("gr")
        a("s_mov_b32 s70, 0"); a(f"{Lp}:")
        a(f"v_xor_b32 v{T0}, s{S_TAG}, v{GR+2}")
        for q in range(1, 7):
            a(f"v_xor_b32 v{G}, s{S_TAG}, v{GR+4*q+2}"); a(f"v_or_b32 v{T0}, v{T0}, v{G}")
        a(f"v_cmp_ne_u32 vcc, 0, v{T0}"); a(f"s_cbranch_vccz {Ld}")
        a("s_mov_b32 s54, s55")
        for q in range(7):
            if q and q % 2 == 0: a("s_add_u32 s54, s54, 4096")
            a(f"buffer_load_dwordx4 {V(GR+4*q,4)}, v{T1}, {srd(S_WS)}, s54 offen offset:{(q%2)*2048} sc1")
        a("s_waitcnt vmcnt(0)")
        a("s_add_u32 s70, s70, 1"); a("s_cmp_lt_u32 s70, 20000"); a(f"s_cbranch_scc1 {Lp}")
        a(f"{Ld}:")
        self.stamp("C@s")
        for q in range(1, 7): a(f"v_pk_add_f32 {V(GR,2)}, {V(GR,2)}, {V(GR+4*q,2)}")
        self.half_op(GR, T0); self.half_op(GR+1, G)
        M3, R3 = GR, GR+1
        a(f"v_mul_f32 v{M3}, {lit(1/896)}, v{M3}"); a(f"v_mul_f32 v{R3}, {lit(1/896)}, v{R3}")
        a(f"v_fma_f32 v{R3}, -v{M3}, v{M3}, v{R3}"); a(f"v_max_f32 v{R3}, 0, v{R3}")
        a(f"v_add_f32 v{R3}, {lit(1e-5)}, v{R3}"); a(f"v_rsq_f32 v{R3}, v{R3}")
        a("s_nop 0")
        a(f"v_mul_f32 v{M3}, v{M3}, v{R3}")
        PZ = GR + 4
        for c in range(2):
            for r in range(0, 16, 2): a(f"v_pk_fma_f32 {V(Z+16*c+r,2)}, {V(Z+16*c+r,2)}, {V(M3,2)}, {V(M3,2)} op_sel:[0,1,0] op_sel_hi:[1,1,0] neg_lo:[0,0,1] neg_hi:[0,0,1]")
            for d in range(8): a(f"v_cvt_pk_bf16_f32 v{PZ+8*c+d}, v{Z+16*c+2*d}, v{Z+16*c+2*d+1}")
            for g in range(4): a(f"ds_write_b64 v{WA+g}, {V(PZ+8*c+2*g,2)} offset:{c*2048}")
        a("s_waitcnt lgkmcnt(0)")
        for c in range(2):
            for st in range(2):
                for e in range(2):
                    r = PZ + 8*c + 4*st + 2*e
                    a(f"ds_read_b64_tr_b16 v[{r}:{r+1}], v{RA+e} offset:{c*2048 + st*1024 + e*256}")
        for c in range(2):
            a("s_lshl_b32 s55, s49, 1"); a(f"s_add_u32 s55, s55, {c}"); a("s_lshl_b32 s55, s55, 6"); a("s_add_u32 s55, s55, s52"); a("s_lshl_b32 s55, s55, 11"); a(f"s_add_u32 s55, s55, {Z2F}")
            a(f"s_waitcnt lgkmcnt({4 if c == 0 else 0})")
            for st in range(2):
                vm.issue(f"buffer_store_dwordx4 {V(PZ+8*c+4*st,4)}, v{V_L16}, {srd(S_WS)}, s55 offen offset:{st*1024} sc1", tag="z2st")
        z1_steps(KSPLIT, 28)
        R.free(WG, 24)
        a("s_waitcnt lgkmcnt(0)")
        a("s_barrier")
        touch = later
        a("s_lshl_b32 s55, s49, 7"); a("s_lshl_b32 s50, s48, 2"); a("s_add_u32 s55, s55, s50"); a(f"s_add_u32 s55, s55, {F_Z}")
        def flag_now():
            self.set_flag(55, tag="z2st"); self.stamp("C@5")
        gelu_pk(Z + 32, True, {self.o.get("zflag_at", 0): flag_now})
        a("s_mul_i32 s56, s52, 28"); a("s_lshl_b32 s50, s49, 1"); a("s_add_u32 s56, s56, s50"); a("s_lshl_b32 s56, s56, 11"); a(f"s_add_u32 s56, s56, {Z1F}")
        for q in range(4):
            vm.issue(f"buffer_store_dwordx4 {V(PF+4*q,4)}, v{V_L16}, {srd(S_WS)}, s56 offen offset:{q*1024} sc1", tag="z1st")
        for f, _ in touch: self.emit_fill(f)
        self.idle_prefetch(skip, 1)
        self.stamp("C@6")

    def phase_D(self):
        a, vm, R = self.a, self.vm, self.R
        R.reset()
        a.c("================ phase D : g = w_sp @ z2n + b ; u = z1*g ================")
        skip = "L_skipD"
        a(f"s_cmp_ge_u32 s{S_SLOT}, 28"); a(f"s_cbranch_scc1 {skip}")
        self.d_map()
        a("s_mov_b32 s49, s94"); a("s_mov_b32 s48, s95"); a("s_mov_b32 s54, s96")
        self.stamp("D@0")
        NS = 8
        a(f"s_lshr_b32 s53, s{S_WAVE}, 1"); a(f"s_and_b32 s52, s{S_WAVE}, 1")
        t = R.alloc(4, 1); VE = R.alloc(); VO = R.alloc()
        self.d_lanes(VE, VO, t)
        a("s_lshl_b32 s55, s48, 18"); a("s_lshl_b32 s50, s53, 11"); a("s_add_u32 s55, s55, s50"); a("s_lshl_b32 s50, s52, 17"); a("s_add_u32 s55, s55, s50")
        a("s_mul_i32 s57, s53, 81920"); a("s_lshl_b32 s50, s52, 12"); a("s_add_u32 s57, s57, s50")
        a("s_mov_b32 s67, 147456"); a("s_cmp_eq_u32 s53, 0"); a(f"s_cselect_b32 s67, s67, {81920 + 7*8192}"); a("s_add_u32 s67, s67, s50")
        def blk_idx(b, dst):
            a(f"s_add_u32 s{dst}, s54, {b}"); a(f"s_and_b32 s{dst}, s{dst}, 15")
        def dma(b):
            out = []
            def pre(): blk_idx(b, 58); a("s_lshl_b32 s58, s58, 7"); a("s_add_u32 s58, s58, s55")
            out.append((pre, 16))
            for q in range(4):
                def f(q=q):
                    if b % NS < 7: a(f"s_add_u32 m0, s57, {(b%NS)*8192 + q*1024}")
                    else: a(f"s_add_u32 m0, s67, {q*1024}")
                    a(f"s_add_u32 s56, s58, {q*8*4096}")
                    vm.issue(f"buffer_load_dwordx4 v{VE if q%2==0 else VO}, {srd(S_WSP)}, s56 offen lds", tag=("w", b))
                out.append((f, 16))
            return out
        early = set(self.d_early_blocks) if self.o.get("early_d", 1) else set()
        NPRE = NS if early else self.o.get("npre", 4)
        a("s_lshl_b32 s61, s48, 18")
        items = []; tags = []
        for b in range(NPRE):
            for kh_ in range(2):
                if (b, kh_) in early: continue
                for q in range(8):
                    def it(st, b=b, kh_=kh_, q=q):
                        if st.get("b") != b:
                            blk_idx(b, 58); a("s_lshl_b32 s58, s58, 7"); a("s_add_u32 s58, s58, s61"); st["b"] = b
                        a(f"s_mov_b32 m0, {self.d_slot(kh_, b) + q*1024}"); a(f"s_add_u32 s56, s58, {kh_*2048 + q*8*4096}")
                        a(f"buffer_load_dwordx4 v{VE if q%2==0 else VO}, {srd(S_WSP)}, s56 offen lds")
                    items.append(it); tags.append(("w", b))
        if items: self.dma_by_123(items, lambda n: tags[n])
        FA = R.alloc(4, 1)
        a(f"v_lshrrev_b32 v{t}, 1, v{V_L31}"); a(f"v_and_b32 v{t}, 7, v{t}"); a(f"v_xor_b32 v{t}, v{t}, v{V_HH}"); a(f"v_lshlrev_b32 v{t}, 4, v{t}")
        a(f"v_lshlrev_b32 v{FA}, 7, v{V_L31}"); a(f"v_add_u32 v{FA}, v{FA}, v{t}")
        FA7 = R.alloc(4, 1)
        a("s_lshl_b32 s50, s52, 12"); a("s_sub_u32 s51, s67, s50"); a(f"v_add_u32 v{FA7}, s51, v{FA}")
        a("s_sub_u32 s51, s57, s50"); a(f"v_add_u32 v{FA}, s51, v{FA}")
        for s in range(1, 4): a(f"v_xor_b32 v{FA+s}, {s*32}, v{FA}"); a(f"v_xor_b32 v{FA7+s}, {s*32}, v{FA7}")
        BI = R.alloc()
        a(f"v_lshlrev_b32 v{t}, 1, v{V_L31}"); a("s_lshl_b32 s50, s48, 7"); a("s_lshl_b32 s51, s53, 6"); a("s_add_u32 s50, s50, s51")
        vm.issue(f"buffer_load_ushort v{BI}, v{t}, {srd(S_BSP)}, s50 offen", tag="bi")
        VZ = R.alloc(2, 1)
        a("s_lshl_b32 s50, s49, 2"); a("s_lshl_b32 s51, s52, 1"); a("s_add_u32 s50, s50, s51"); a("s_lshl_b32 s50, s50, 6"); a("s_lshl_b32 s51, s53, 5"); a("s_add_u32 s50, s50, s51")
        a("s_lshl_b32 s50, s50, 11"); a(f"s_add_u32 s50, s50, {Z2F}"); a(f"v_add_u32 v{VZ}, s50, v{V_L16}"); a(f"v_add_u32 v{VZ+1}, {64*2048}, v{VZ}")
        a(f"v_and_b32 v9, 7, v{V_LANE}"); a("v_lshlrev_b32 v9, 2, v9")
        a("s_lshl_b32 s66, s49, 1"); a("s_add_u32 s66, s66, s52"); a("s_lshl_b32 s66, s66, 7"); a("s_lshl_b32 s50, s53, 5"); a("s_add_u32 s66, s66, s50"); a(f"s_add_u32 s66, s66, {F_Z}")
        if self.o.get("prog_d", 1):
            self.gate_first(0)
        else:
            a(f"v_and_b32 v9, 15, v{V_LANE}"); a("v_lshlrev_b32 v9, 2, v9"); a(f"v_lshrrev_b32 v{t}, 4, v{V_LANE}"); a(f"v_and_b32 v{t}, 1, v{t}"); a(f"v_lshlrev_b32 v{t}, 7, v{t}"); a(f"v_add_u32 v9, v9, v{t}")
            a("s_lshl_b32 s59, s49, 8"); a(f"s_add_u32 s59, s59, {F_Z}")
            self.poll(59, 32, voff=9, drain=False)
        self.stamp("D@1")
        ND = self.o.get("nd", 12)
        ZR = R.alloc(8 * ND); WF = R.alloc(24); Z1 = R.alloc(16); VWO = R.alloc(); tw = R.alloc(4, 1)
        def ldz(k):
            out = []
            b, sp = k // 4, k % 4
            if self.o.get("prog_d", 1):
                if k % 8 == 0 and k > 0:
                    def chk(k=k):
                        self.gate_update(); self.gate_check(k // 8)
                    out.append((chk, 16))
                if k % 8 == 3 and k // 8 + 1 < 8: out.append((self.gate_refresh, 8))
            if sp == 0:
                def pre():
                    blk_idx(b, 60 + (b % 4)); a(f"s_lshl_b32 s{60 + (b % 4)}, s{60 + (b % 4)}, 12")
                    if self.o.get("d_fake"): a(f"s_and_b32 s{60 + (b % 4)}, s{60 + (b % 4)}, {self.o['d_fake']}")
                out.append((pre, 12))
            for c in range(2):
                def f(c=c):
                    r = ZR + 8*(k % ND) + 4*c
                    vm.issue(f"buffer_load_dwordx4 {V(r,4)}, v{VZ+c}, {srd(S_WS)}, s{60 + (b % 4)} offen offset:{sp*1024} sc1", tag=("z", k))
                out.append((f, 8))
            return out
        def rdw(k):
            b, sp = k // 4, k % 4
            if b % NS == 7: return [(f"ds_read_b128 {V(WF+(k%3)*8+tc*4,4)}, v{FA7+sp} offset:{tc*4096}", 4) for tc in range(2)]
            return [(f"ds_read_b128 {V(WF+(k%3)*8+tc*4,4)}, v{FA+sp} offset:{(b%NS)*8192 + tc*4096}", 4) for tc in range(2)]
        INIT = 4
        for k in range(INIT):
            for f, _ in ldz(k): f()
        nz = INIT
        wout = []
        vm.wait(("w", 0)); a("s_barrier")
        def z1flag():
            Lz = a.label("L_z1f")
            a(f"s_cmp_lg_u32 s{S_WAVE}, 0"); a(f"s_cbranch_scc1 {Lz}")
            a(f"s_cmp_ge_u32 s{S_SLOT}, 14"); a("s_cselect_b32 s50, 1, 0"); a("s_mul_i32 s51, s50, 14"); a(f"s_sub_u32 s51, s{S_SLOT}, s51")
            a(f"s_lshl_b32 s68, s{S_XCD}, 1"); a("s_add_u32 s50, s50, s68"); a("s_lshl_b32 s50, s50, 2"); a("s_lshl_b32 s51, s51, 7"); a("s_add_u32 s50, s50, s51"); a(f"s_add_u32 s50, s50, {F_Z1}")
            a(f"v_mov_b32 v{t}, s{S_TAG}"); a(f"v_mov_b32 v{t+1}, 0"); a("s_mov_b64 exec, 1")
            a(f"buffer_store_dword v{t}, v{t+1}, {srd(S_WS)}, s50 offen sc1")
            a("s_mov_b64 exec, -1"); a(f"{Lz}:")
        for k in range(2):
            for x, _ in rdw(k): a(x)
        nbw = NPRE
        for k in range(64):
            b, sp = k // 4, k % 4
            fill = []
            a(f"s_waitcnt lgkmcnt({2 if k + 1 < 64 else 0})")
            vm.wait(("z", k))
            if k + 2 < 64:
                if (k + 2) % 4 == 0:
                    nb = (k + 2) // 4
                    def rdy(nb=nb):
                        if nb == 3: vm.wait("z1st")
                        vm.wait(("w", nb)); a("s_barrier")
                        if nb == 3: z1flag()
                    fill.append((rdy, 8))
                fill += rdw(k + 2)
            for _ in range(2):
                if nz < 64 and nz <= k + ND - 1:
                    fill += ldz(nz); nz += 1
            if k == 59:
                def z1loads():
                    self.gate_update(); self.gate_check(0)
                    a("s_lshl_b32 s50, s48, 1"); a("s_add_u32 s50, s50, s53"); a("s_mul_i32 s50, s50, 28"); a("s_lshl_b32 s51, s49, 2"); a("s_add_u32 s50, s50, s51"); a("s_lshl_b32 s51, s52, 1"); a("s_add_u32 s50, s50, s51")
                    a("s_lshl_b32 s69, s50, 11"); a(f"s_add_u32 s50, s69, {Z1F}")
                    for q in range(4):
                        vm.issue(f"buffer_load_dwordx4 {V(Z1+4*q,4)}, v{V_L16}, {srd(S_WS)}, s50 offen offset:{q*1024} sc1", tag="z1")
                fill.append((z1loads, 64))
            if k == 50:
                def wosetup():
                    self.w128_lane(VWO, 896, tw); self.stage_setup(49, 896, 101, 100)
                fill.append((wosetup, 60))
            if k == 54:
                def z1gate():
                    a("s_lshr_b32 s50, s48, 1"); a("s_lshl_b32 s50, s50, 2"); a("s_lshl_b32 s66, s49, 1"); a("s_add_u32 s66, s66, s52"); a("s_lshl_b32 s66, s66, 7")
                    a("s_add_u32 s66, s66, s50"); a(f"s_add_u32 s66, s66, {F_Z1}"); a("v_mov_b32 v9, 0"); self.gate_refresh()
                fill.append((z1gate, 32))
            if sp in (1, 3) and nbw < 16 and (nbw < NS or (sp == 3 and nbw - NS <= b - 1)) and not self.o.get("d_now"):
                fill += dma(nbw); nbw += 1
            wb = WF + (k % 3) * 8; zb = ZR + 8*(k % ND)
            mf = []
            for c in range(2):
                for tc in range(2):
                    acc = A(32*c + 16*tc, 16)
                    mf.append(f"{MFMA} {acc}, {V(zb+4*c,4)}, {V(wb+4*tc,4)}, {'0' if k == 0 else acc}")
            self.sched(mf, fill)
        self.stamp("D@2")
        R.free(ZR, 8*ND); R.free(WF, 24)
        a("s_barrier")
        wo_items = self.stage_list(S_WOUT, VWO, 101, 100, self.pairs_small("E"), "wout")
        cnt = [0]
        gap = self.o.get("tail_gap", 12)
        def e(x):
            nonlocal wo_items
            a(x); cnt[0] += 1
            if cnt[0] % gap == 0 and wo_items:
                wo_items[0][0](); wo_items = wo_items[1:]
        a(f"s_lshl_b32 s50, s{S_WAVE}, 13"); a("s_add_u32 s50, s50, 131072"); a(f"v_add_u32 v{t}, s50, v{V_L16}")
        a(f"s_xor_b32 s51, s{S_WAVE}, 2"); a("s_lshl_b32 s51, s51, 13"); a("s_add_u32 s51, s51, 131072"); a(f"v_add_u32 v{t+1}, s51, v{V_L16}")
        G = R.alloc(32); TM = R.alloc(32)
        La = a.label("L_x"); Lb = a.label("L_x")
        a("s_cmp_eq_u32 s53, 0"); a(f"s_cbranch_scc1 {La}")
        for c in range(2):
            for q in range(4): a(f"ds_write_b128 v{t}, {A(32*c+4*q,4)} offset:{c*4096+q*1024}")
        for c in range(2):
            for r in range(16): a(f"v_accvgpr_read_b32 v{G+16*c+r}, a{32*c+16+r}")
        a(f"s_branch {Lb}")
        a(f"{La}:")
        for c in range(2):
            for q in range(4): a(f"ds_write_b128 v{t}, {A(32*c+16+4*q,4)} offset:{c*4096+q*1024}")
        for c in range(2):
            for r in range(16): a(f"v_accvgpr_read_b32 v{G+16*c+r}, a{32*c+r}")
        a(f"{Lb}:")
        for _ in range(3):
            wo_items[0][0](); wo_items = wo_items[1:]
        BP = R.alloc(2); ZF = R.alloc(32)
        vm.wait("z1")
        a(f"v_lshlrev_b32 v{BP}, 16, v{BI}")
        for d in range(16):
            e(f"v_lshlrev_b32 v{ZF+2*d}, 16, v{Z1+d}"); e(f"v_and_b32 v{ZF+2*d+1}, 0xffff0000, v{Z1+d}")
        for r in range(0, 32, 2): e(f"v_pk_add_f32 {V(G+r,2)}, {V(G+r,2)}, {V(BP,2)} op_sel_hi:[1,0]")
        a("s_waitcnt lgkmcnt(0)"); a("s_barrier")
        for q in range(8): e(f"ds_read_b128 {V(TM+4*q,4)}, v{t+1} offset:{q*1024}")
        a(f"s_add_u32 s50, s69, {UFR}")
        for c in range(2):
            a(f"s_waitcnt lgkmcnt({4 if c == 0 else 0})")
            for r in range(16*c, 16*c+16, 2): e(f"v_pk_add_f32 {V(G+r,2)}, {V(G+r,2)}, {V(TM+r,2)}")
            for r in range(16*c, 16*c+16, 2): e(f"v_pk_mul_f32 {V(G+r,2)}, {V(G+r,2)}, {V(ZF+r,2)}")
            for d in range(8*c, 8*c+8): a(f"v_cvt_pk_bf16_f32 v{Z1+d}, v{G+2*d}, v{G+2*d+1}")
            for q in range(2*c, 2*c+2):
                vm.issue(f"buffer_store_dwordx4 {V(Z1+4*q,4)}, v{V_L16}, {srd(S_WS)}, s50 offen offset:{q*1024} sc1", tag="ust")
        a("s_lshl_b32 s55, s48, 7"); a("s_lshl_b32 s50, s49, 2"); a("s_add_u32 s55, s55, s50"); a(f"s_add_u32 s55, s55, {F_U}")
        npost = self.o.get("tail_post", 8)
        for f, _ in wo_items[:npost]: f()
        wo_items = wo_items[npost:]
        self.set_flag(55, tag="ust")
        for f, _ in wo_items: f()
        self.idle_prefetch(skip, 2)
        self.stamp("D@3")

    def build(self):
        self.prologue()
        for ph in "ABCDE":
            getattr(self, "phase_" + ph)()
            if ph == self.stop_after: break
        self.epilogue()
        body = pad_hazards(self.a.lines)
        hdr = open("cdna_kernels/" + NAME[:-7] + ".s.ref").read().split("; Override")[0]
        s = hdr + f"; @launch grid=(256,1,1) block=(256,1,1) lds={LDS_BYTES}\n"
        s += '.amdgcn_target "amdgcn-amd-amdhsa--gfx950"\n.text\n'
        s += f".set CODE_SLICE, ((L_code_end - {NAME} + 32*128 - 1) / (32*128)) * 128\n"
        s += f".set CODE_BYTES, L_code_end - {NAME} - 32\n"
        s += f".globl {NAME}\n.p2align 8\n.type {NAME},@function\n{NAME}:\n" + "\n".join(body) + "\nL_code_end:\n"
        s += f""".section .rodata,"a"
.p2align 6
.amdhsa_kernel {NAME}
  .amdhsa_next_free_vgpr 512
  .amdhsa_next_free_sgpr 102
  .amdhsa_accum_offset 256
  .amdhsa_group_segment_fixed_size 0
  .amdhsa_kernarg_size 88
  .amdhsa_user_sgpr_count 2
  .amdhsa_user_sgpr_kernarg_segment_ptr 1
  .amdhsa_system_sgpr_workgroup_id_x 1
.end_amdhsa_kernel
"""
        return s

if __name__ == "__main__":
    import json
    out = sys.argv[1]; stop = sys.argv[2] if len(sys.argv) > 2 else "E"
    stamps = sys.argv[3] if len(sys.argv) > 3 and sys.argv[3] != "0" else ""
    opts = json.loads(sys.argv[4]) if len(sys.argv) > 4 else {}
    g = Gen(stop, stamps, opts)
    open(out, "w").write(g.build())
    open(out + ".stamps", "w").write(" ".join(g.stamp_names))
```

```python
import sys, math, struct
from asmlib import Asm, pad_hazards

NAME = "sequential_preLN__sliding_block__mixer_gmlp__prompt_kernel"
WS_EPOCH = 0
F_KV = 0x1000; F_O = 0x2000; F_H = 0x3000; F_Z = 0x4000; F_U = 0x5000; F_Z1 = 0x6000
STATS = 0x10000
HST = 0x80000
STAT1 = 0xC0000
KVF = 0x100000; OFR = 0x500000; HFR = 0x700000; Z1F = 0x900000; Z2F = 0xD00000; UFR = 0x1100000
DBG = 0x1600000

S_X, S_WQKV, S_WO, S_WIN, S_WSP, S_BSP, S_WOUT, S_OUT, S_WS = 8, 12, 16, 20, 24, 28, 32, 36, 40
S_TAG, S_WAVE, S_XCD, S_SLOT = 44, 45, 46, 47
V_LANE, V_L16, V_L31, V_HH = 1, 2, 3, 4
V_DUMMY = 252
V_TOUCH = 251
LOG2E = 1.4426950408889634
MFMA = "v_mfma_f32_32x32x16_bf16"
LDS_BYTES = 163840

def f2u(x): return struct.unpack("<I", struct.pack("<f", x))[0]
def lit(x): return "0x%08x" % f2u(x)
def srd(b): return f"s[{b}:{b+3}]"
def V(b, n=1): return f"v{b}" if n == 1 else f"v[{b}:{b+n-1}]"
def A(b, n=1): return f"a{b}" if n == 1 else f"a[{b}:{b+n-1}]"

class Regs:
    def __init__(self, lo, hi): self.lo, self.hi = lo, hi; self.used = set()
    def alloc(self, n=1, align=None):
        if align is None: align = 4 if n >= 4 else (2 if n >= 2 else 1)
        b = (self.lo + align - 1) // align * align
        while b + n <= self.hi:
            if not any((b + k) in self.used for k in range(n)):
                for k in range(n): self.used.add(b + k)
                return b
            b += align
        raise RuntimeError(f"out of registers for {n}")
    def free(self, b, n=1):
        for k in range(n): self.used.discard(b + k)
    def reset(self): self.used = set()

class VM:
    def __init__(self, a): self.a = a; self.ops = []
    def issue(self, text, tag=None): self.a(text); self.ops.append(tag)
    def wait(self, tag):
        idx = [k for k, t in enumerate(self.ops) if t == tag]
        if not idx: return
        last = idx[-1]; n = len(self.ops) - 1 - last
        assert n <= 63, n
        self.a(f"s_waitcnt vmcnt({n})"); self.ops = self.ops[last + 1:]
    def wait_all(self): self.a("s_waitcnt vmcnt(0)"); self.ops = []

def interleave(a, main, fill):
    n = len(main); m = len(fill); k = 0
    for i, x in enumerate(main):
        a(x)
        tgt = (i + 1) * m // n
        while k < tgt: a(fill[k]); k += 1

class Gen:
    def __init__(self, stop_after="E", stamps="", opts=None):
        self.a = Asm(); self.vm = VM(self.a); self.stop_after = stop_after; self.stamps = stamps
        self.nstamp = 0; self.stamp_names = []; self.R = Regs(10, 251); self.o = opts or {}

    def stamp(self, tag):
        if not self.stamps: return
        sel = self.stamps.split(",")
        coarse = ("A@0", "A@3", "A@6", "B@1", "B@3", "C@1", "C@5", "D@1", "D@3", "E@1", "E@3")
        if not (tag in sel or tag[0] in sel or ("c" in sel and tag in coarse)): return
        self.stamp_names.append(tag)
        k = self.nstamp; self.nstamp += 1
        assert k < 15
        self.a(f"s_memtime s[{72+2*k}:{73+2*k}]")

    def prologue(self):
        a = self.a
        if self.stamps and self.o.get("dbgout"):
            a("s_memrealtime s[100:101]"); a("s_memtime s[72:73]"); self.nstamp = 1; self.stamp_names.append("start")
            a("s_waitcnt lgkmcnt(0)"); a("s_mov_b32 s3, s100")
        a("s_getpc_b64 s[4:5]")
        a("s_load_dwordx16 s[48:63], s[0:1], 0")
        a("s_load_dwordx4 s[64:67], s[0:1], 64")
        a("s_load_dwordx2 s[68:69], s[0:1], 80")
        a("s_cmp_ge_u32 s2, 256"); a("s_cbranch_scc1 L_end")
        a(f"s_lshr_b32 s{S_SLOT}, s2, 3")
        a(f"s_mul_i32 s6, s{S_SLOT}, CODE_SLICE")
        a("v_lshlrev_b32 v5, 4, v0")
        a("v_cmp_gt_u32 vcc, CODE_SLICE, v5")
        a("s_mov_b64 s[70:71], vcc")
        a("v_add_u32 v5, s6, v5")
        a("v_cmp_gt_u32 vcc, CODE_BYTES, v5")
        a("s_and_b64 vcc, vcc, s[70:71]")
        a("s_and_saveexec_b64 s[6:7], vcc")
        if self.o.get("codepf", 1): a(f"global_load_dwordx4 {V(V_DUMMY,4)}, v5, s[4:5]")
        a("s_mov_b64 exec, s[6:7]")
        self.vm.ops.append("code")
        a(f"v_and_b32 v{V_LANE}, 63, v0"); a("v_lshrrev_b32 v5, 6, v0")
        a(f"v_lshlrev_b32 v{V_L16}, 4, v{V_LANE}"); a(f"v_and_b32 v{V_L31}, 31, v{V_LANE}"); a(f"v_lshrrev_b32 v{V_HH}, 5, v{V_LANE}")
        a(f"v_readfirstlane_b32 s{S_WAVE}, v5")
        a(f"s_and_b32 s{S_XCD}, s2, 7")
        self.phase_A_pre()
        a("s_waitcnt lgkmcnt(0)")
        a(f"s_load_dword s{S_TAG}, s[68:69], {WS_EPOCH}")
        def mk(base, lo, size):
            a(f"s_mov_b32 s{base}, s{lo}"); a(f"s_and_b32 s{base+1}, s{lo+1}, 0xffff")
            a(f"s_mov_b32 s{base+2}, {size}"); a(f"s_mov_b32 s{base+3}, 0x20000")
        mk(S_X, 48, 2048*448*2); mk(S_WQKV, 50, 448*1344*2); mk(S_WS, 68, 0x10000000); mk(S_WO, 52, 448*448*2)
        mk(S_WIN, 56, 448*1792*2); mk(S_WSP, 58, 2048*2048*2); mk(S_BSP, 60, 2048*2)
        mk(S_WOUT, 62, 896*448*2); mk(S_OUT, 64, 2048*448*2)
        self.tag_pending = True

    def tag_ready(self):
        if self.tag_pending:
            self.a("s_waitcnt lgkmcnt(0)"); self.a(f"s_add_u32 s{S_TAG}, s{S_TAG}, 1"); self.tag_pending = False

    def epilogue(self):
        a = self.a
        a("s_cmp_lg_u32 s2, 0"); a("s_cbranch_scc1 L_noepoch")
        a(f"s_cmp_lg_u32 s{S_WAVE}, 0"); a("s_cbranch_scc1 L_noepoch")
        a(f"v_mov_b32 v5, s{S_TAG}"); a(f"v_mov_b32 v6, {WS_EPOCH}")
        a("s_mov_b64 exec, 1")
        a(f"buffer_store_dword v5, v6, {srd(S_WS)}, 0 offen sc1")
        a("s_mov_b64 exec, -1")
        a("L_noepoch:")
        if self.stamps:
            a("s_waitcnt lgkmcnt(0)")
            a(f"s_lshl_b32 s48, s2, 2"); a(f"s_add_u32 s48, s48, s{S_WAVE}"); a("s_lshl_b32 s48, s48, 6"); a(f"s_add_u32 s48, s48, {DBG}")
            a("v_mov_b32 v6, 0"); a("s_mov_b64 exec, 1")
            for k in range(self.nstamp):
                a(f"v_mov_b32 v5, s{72+2*k}")
                a(f"buffer_store_dword v5, v6, {srd(S_WS)}, s48 offen offset:{4*k}")
            a("s_mov_b64 exec, -1")
        if self.stamps and self.o.get("dbgout"):
            a("s_memrealtime s[6:7]")
            a("s_load_dwordx2 s[50:51], s[0:1], 72")
            a("s_waitcnt lgkmcnt(0)")
            a(f"s_cmp_lg_u32 s2, {self.o['dbgout']}"); a("s_cbranch_scc1 L_end")
            a(f"s_cmp_lg_u32 s{S_WAVE}, 0"); a("s_cbranch_scc1 L_end")
            a("s_mov_b32 s52, s50"); a("s_and_b32 s53, s51, 0xffff"); a("s_mov_b32 s54, 256"); a("s_mov_b32 s55, 0x20000")
            a("v_mov_b32 v6, 0"); a("s_mov_b64 exec, 1")
            for k in range(1, self.nstamp):
                a(f"s_sub_u32 s56, s{72+2*k}, s{72+2*(k-1)}"); a("v_mov_b32 v5, s56")
                a(f"buffer_store_dword v5, v6, s[52:55], 0 offen offset:{4*(k-1)}")
            a("s_sub_u32 s56, s6, s3"); a("v_mov_b32 v5, s56")
            a(f"buffer_store_dword v5, v6, s[52:55], 0 offen offset:60")
            a("s_mov_b64 exec, -1")
        a("L_end:"); a("s_endpgm")

    def set_flag(self, soff, tag=None):
        a = self.a
        if self.o.get("nodrain_experiment"): pass
        elif tag is None: self.vm.wait_all()
        else: self.vm.wait(tag)
        a("s_barrier")
        L = a.label("L_nf")
        a(f"s_cmp_lg_u32 s{S_WAVE}, 0"); a(f"s_cbranch_scc1 {L}")
        a(f"v_mov_b32 v5, s{S_TAG}"); a("v_mov_b32 v6, 0"); a("s_mov_b64 exec, 1")
        a(f"buffer_store_dword v5, v6, {srd(S_WS)}, s{soff} offen sc1")
        a("s_mov_b64 exec, -1"); a(f"{L}:")

    def poll(self, soff, nflags, voff=None, drain=True):
        a = self.a
        if voff is None:
            a(f"v_min_u32 v9, {nflags-1}, v{V_LANE}"); a("v_lshlrev_b32 v9, 2, v9"); voff = 9
        Lp = a.label("L_poll"); Ld = a.label("L_pd"); Lo = a.label("L_po")
        a(f"s_cmp_lg_u32 s{S_WAVE}, 0"); a(f"s_cbranch_scc1 {Lo}")
        ld = lambda r: a(f"buffer_load_dword v{r}, v{voff}, {srd(S_WS)}, s{soff} offen sc1")
        for r in (5, 6, 7):
            ld(r); a("s_sleep 1")
        ld(8)
        a("s_mov_b32 s70, 0"); a(f"{Lp}:")
        for r in (5, 6, 7, 8):
            a("s_waitcnt vmcnt(3)")
            a(f"v_cmp_ne_u32 vcc, s{S_TAG}, v{r}")
            a(f"s_cbranch_vccz {Ld}")
            ld(r)
        a("s_add_u32 s70, s70, 1"); a("s_cmp_lt_u32 s70, 20000"); a(f"s_cbranch_scc1 {Lp}")
        a(f"s_branch {Ld}")
        a(f"{Lo}:")
        if drain: a("s_waitcnt vmcnt(0)")
        a(f"{Ld}:")
        a("s_barrier")
        if drain: self.vm.ops = ["p", "p", "p"]

    def gate_first(self, bit):
        a = self.a
        Lp = a.label("L_gp"); Ld = a.label("L_gd")
        ld = lambda r: a(f"buffer_load_dword v{r}, v9, {srd(S_WS)}, s66 offen sc1")
        for r in (5, 6, 7):
            ld(r); a("s_sleep 1")
        ld(8)
        a("s_mov_b32 s70, 0"); a(f"{Lp}:")
        for r in (5, 6, 7, 8):
            a("s_waitcnt vmcnt(3)")
            a(f"v_cmp_eq_u32 s[64:65], s{S_TAG}, v{r}")
            a("s_nop 1")
            a(f"s_bitcmp1_b32 s64, {bit}"); a(f"s_cbranch_scc1 {Ld}")
            ld(r)
        a("s_add_u32 s70, s70, 1"); a("s_cmp_lt_u32 s70, 20000"); a(f"s_cbranch_scc1 {Lp}")
        a(f"{Ld}:")
        self.vm.ops += ["p", "p", "p"]

    def gate_refresh(self):
        self.vm.issue(f"buffer_load_dword v5, v9, {srd(S_WS)}, s66 offen sc1", tag="fl")
    def gate_update(self):
        self.vm.wait("fl")
        self.a(f"v_cmp_eq_u32 s[64:65], s{S_TAG}, v5"); self.a("s_nop 1")
    def gate_check(self, bit):
        a = self.a
        Lp = a.label("L_gs"); Ld = a.label("L_go")
        a(f"s_bitcmp1_b32 s64, {bit}"); a(f"s_cbranch_scc1 {Ld}")
        a("s_mov_b32 s70, 0"); a(f"{Lp}:")
        a(f"buffer_load_dword v5, v9, {srd(S_WS)}, s66 offen sc1"); a("s_waitcnt vmcnt(0)")
        a(f"v_cmp_eq_u32 s[64:65], s{S_TAG}, v5"); a("s_nop 1")
        a(f"s_bitcmp1_b32 s64, {bit}"); a(f"s_cbranch_scc1 {Ld}")
        a("s_add_u32 s70, s70, 1"); a("s_cmp_lt_u32 s70, 20000"); a(f"s_cbranch_scc1 {Lp}")
        a(f"{Ld}:")

    def half_op(self, v, t, op="v_add_f32"):
        a = self.a
        a(f"v_mov_b32 v{t}, v{v}"); a(f"v_permlane32_swap_b32 v{v}, v{t}"); a(f"{op} v{v}, v{v}, v{t}")

    def warm(self, srdb, nbytes, base_s=None):
        a, vm = self.a, self.vm
        per_wg = nbytes // 32; per_wave = per_wg // 4
        n = (per_wave + 1023) // 1024
        a(f"s_lshl_b32 s70, s{S_SLOT}, 2"); a(f"s_add_u32 s70, s70, s{S_WAVE}"); a(f"s_mul_i32 s70, s70, {per_wave}")
        if base_s is not None: a(f"s_add_u32 s70, s70, s{base_s}")
        for k in range(n):
            if k and k % 4 == 0: a("s_add_u32 s70, s70, 4096")
            vm.issue(f"buffer_load_dwordx4 {V(V_DUMMY,4)}, v{V_L16}, {srd(srdb)}, s70 offen offset:{(k%4)*1024}", tag="warm")

    def tr_base(self, dst, rowbytes, hhrows, t0, t1):
        a = self.a
        a(f"v_lshrrev_b32 v{t0}, 2, v{V_LANE}"); a(f"v_and_b32 v{t0}, 3, v{t0}")
        a(f"v_mul_u32_u24 v{t1}, {hhrows}, v{V_HH}"); a(f"v_add_u32 v{t0}, v{t0}, v{t1}"); a(f"v_mul_u32_u24 v{t0}, {rowbytes}, v{t0}")
        a(f"v_lshrrev_b32 v{t1}, 4, v{V_LANE}"); a(f"v_and_b32 v{t1}, 1, v{t1}"); a(f"v_lshlrev_b32 v{t1}, 5, v{t1}")
        a(f"v_add_u32 v{t0}, v{t0}, v{t1}")
        a(f"v_and_b32 v{t1}, 3, v{V_LANE}"); a(f"v_lshlrev_b32 v{t1}, 3, v{t1}")
        a(f"v_add_u32 v{dst}, v{t0}, v{t1}")

    def sched(self, mf, fill, lead=0):
        a = self.a
        tot = sum(c for _, c in fill); n = len(mf); k = 0; done = 0
        for i, x in enumerate(mf):
            self.emit_fill(x)
            tgt = tot * (i + 1) / n
            while k < len(fill) and (done + fill[k][1] / 2 <= tgt or i == n - 1):
                self.emit_fill(fill[k][0]); done += fill[k][1]; k += 1

    def emit_fill(self, x):
        if callable(x): x()
        else: self.a(x)

    def phase_A_pre(self):
        a, R = self.a, self.R
        R.reset()
        P = self.PA = {}
        P["VW0"] = VW0 = R.alloc(3, 1); P["VXE"] = VXE = R.alloc(); P["VXO"] = VXO = R.alloc(); P["t"] = t = R.alloc(4, 1); P["VSR"] = VSR = R.alloc()
        SI, SJ, STQ, SMM = 48, 49, 58, 62
        a(f"v_mul_u32_u24 v{t}, 896, v{V_HH}"); a(f"v_lshlrev_b32 v{t+1}, 4, v{V_L31}"); a(f"v_add_u32 v{t}, v{t}, v{t+1}")
        a(f"v_cmp_gt_u32 vcc, 28, v{V_L31}"); a(f"v_mov_b32 v{t+1}, 0x7ffffff0"); a(f"v_cndmask_b32 v{VSR}, v{t+1}, v{t}, vcc")
        a(f"v_lshrrev_b32 v{t}, 3, v{V_LANE}"); a(f"v_and_b32 v{t+1}, 7, v{V_LANE}"); a(f"v_lshrrev_b32 v{t+2}, 4, v{V_LANE}")
        a(f"v_xor_b32 v{t+3}, v{t+1}, v{t+2}"); a(f"v_lshlrev_b32 v{t+3}, 4, v{t+3}"); a(f"v_mul_u32_u24 v{t}, 896, v{t}"); a(f"v_add_u32 v{VXE}, v{t}, v{t+3}")
        a(f"v_add_u32 v{t+2}, 4, v{t+2}"); a(f"v_xor_b32 v{t+3}, v{t+1}, v{t+2}"); a(f"v_lshlrev_b32 v{t+3}, 4, v{t+3}"); a(f"v_add_u32 v{VXO}, v{t}, v{t+3}")
        a(f"v_lshrrev_b32 v{t}, 3, v{V_LANE}"); a(f"v_lshrrev_b32 v{t+1}, 4, v{V_LANE}"); a(f"v_lshrrev_b32 v{t+2}, 2, v{V_LANE}")
        a(f"v_xor_b32 v{t+1}, v{t+1}, v{t+2}"); a(f"v_and_b32 v{t+1}, 1, v{t+1}"); a(f"v_mul_u32_u24 v{t+1}, 896, v{t+1}")
        a(f"v_mul_u32_u24 v{t}, 2688, v{t}"); a(f"v_and_b32 v{t+3}, 3, v{V_LANE}"); a(f"v_lshlrev_b32 v{t+3}, 4, v{t+3}")
        a(f"v_add3_u32 v{VW0}, v{t}, v{t+1}, v{t+3}"); a(f"v_add_u32 v{VW0}, 896, v{VW0}")
        a(f"v_mul_u32_u24 v{t+2}, 2688, v{t+2}"); a(f"v_add_u32 v{VW0+1}, v{t+2}, v{t+3}")

    def phase_A(self):
        a, vm, R = self.a, self.vm, self.R
        a.c("================ phase A : LN1 + QKV + attention ================")
        P = self.PA; VW0, VXE, VXO, t, VSR = P["VW0"], P["VXE"], P["VXO"], P["t"], P["VSR"]
        SI, SJ, SXB, SWB, SLX, SLW, STQ = 48, 49, 52, 53, 54, 55, 58
        SMM = 62
        a(f"s_lshr_b32 s50, s{S_XCD}, 1"); a("s_lshl_b32 s50, s50, 2"); a(f"s_lshr_b32 s51, s{S_SLOT}, 3"); a(f"s_add_u32 s{SI}, s50, s51")
        a(f"s_and_b32 s50, s{S_XCD}, 1"); a("s_lshl_b32 s50, s50, 3"); a(f"s_and_b32 s71, s{S_SLOT}, 7"); a(f"s_add_u32 s{SJ}, s50, s71")
        a(f"s_lshl_b32 s{STQ}, s{SI}, 2"); a(f"s_add_u32 s{STQ}, s{STQ}, s{S_WAVE}"); a(f"s_mul_i32 s{SXB}, s{STQ}, {32*896}")
        self.stamp("A@0")
        LW = 0; LQ = 57344; LX = 86016; LPW = 151552; LKV = 102400
        SR = R.alloc(8)
        a(f"s_lshl_b32 s50, s{SI}, 7"); a(f"s_lshl_b32 s70, s{SJ}, 3"); a("s_add_u32 s50, s50, s70"); a(f"s_lshl_b32 s70, s{S_WAVE}, 1"); a("s_add_u32 s59, s50, s70")
        a("s_mul_i32 s50, s59, 896")
        vm.issue(f"buffer_load_dwordx4 {V(SR,4)}, v{VSR}, {srd(S_X)}, s50 offen", tag="sr")
        vm.issue(f"buffer_load_dwordx4 {V(SR+4,4)}, v{VSR}, {srd(S_X)}, s50 offen offset:448", tag="sr")
        a(f"s_lshl_b32 s51, s51, 1"); a(f"s_add_u32 s51, s51, s{SJ}"); a("s_mul_i32 s50, s51, 37"); a("s_lshr_b32 s50, s50, 8"); a("s_mul_i32 s50, s50, 7"); a("s_sub_u32 s51, s51, s50")
        if not self.o.get("rot_a", 1): a("s_mov_b32 s51, 0")
        a(f"s_lshl_b32 s{SMM}, s51, 7")
        a(f"s_lshl_b32 s{SLX}, s{S_WAVE}, 14"); a(f"s_add_u32 s{SLX}, s{SLX}, {LX}")
        a(f"s_mul_i32 s{SWB}, s{SJ}, 56"); a(f"s_mul_i32 s50, s{S_WAVE}, {16*2688}"); a(f"s_add_u32 s{SWB}, s{SWB}, s50")
        a(f"s_lshl_b32 s{SLW}, s{S_WAVE}, 11")
        def dma_list(m):
            out = []
            def pre():
                if m > 0:
                    a(f"s_add_u32 s{SMM+m}, s{SMM+m-1}, 128"); a(f"s_cmp_ge_u32 s{SMM+m}, 896"); a("s_cselect_b32 s71, 896, 0"); a(f"s_sub_u32 s{SMM+m}, s{SMM+m}, s71")
                a(f"s_add_u32 s57, s{SXB}, s{SMM+m}"); a(f"s_mul_i32 s61, s{SMM+m}, 1344"); a(f"s_add_u32 s61, s61, s{SWB}")
            out.append((pre, 16))
            for q in range(4):
                def f(q=q):
                    a(f"s_add_u32 m0, s{SLX}, {(m%4)*4096 + q*1024}"); a(f"s_add_u32 s56, s57, {q*7168}")
                    vm.issue(f"buffer_load_dwordx4 v{VXE if q%2==0 else VXO}, {srd(S_X)}, s56 offen lds", tag=("c", m))
                out.append((f, 16))
            for p in range(2):
                def f(p=p):
                    a(f"s_add_u32 m0, s{SLW}, {LW + m*8192 + p*1024}"); a(f"s_add_u32 s56, s61, {p*8*2688}")
                    vm.issue(f"buffer_load_dwordx4 v{VW0}, {srd(S_WQKV)}, s56 offen lds", tag=("c", m))
                out.append((f, 16))
            return out
        def dma_q(m):
            def f():
                a(f"s_mul_i32 s61, s{SMM+m}, 1344"); a(f"s_add_u32 s61, s61, s{SWB}")
                a(f"s_lshr_b32 s56, s{SLW}, 1"); a(f"s_add_u32 m0, s56, {LQ + m*4096}"); a("s_nop 0")
                vm.issue(f"buffer_load_dwordx4 v{VW0+1}, {srd(S_WQKV)}, s61 offen lds", tag="q")
            return [(f, 24)]
        for m in range(2):
            for f, _ in dma_list(m): f()
        if self.o.get("tlb", 0): self.tlb_warm()
        KVS = self.o.get("kv_sentinel", 0)
        SN = R.alloc(4)
        def clear_kv():
            for k in range(4): a(f"v_mov_b32 v{SN+k}, -1")
            a(f"s_lshl_b32 s56, s{SJ}, 6"); a(f"s_add_u32 s56, s56, s{STQ}"); a("s_lshl_b32 s56, s56, 12"); a(f"s_add_u32 s56, s56, {KVF}")
            for part in range(4):
                vm.issue(f"buffer_store_dwordx4 {V(SN,4)}, v{V_L16}, {srd(S_WS)}, s56 offen offset:{part*1024} sc1", tag="clr")
        CLR_AT = self.o.get("clr_at", 8)
        CLR_FLAG = self.o.get("clr_flag", 5)
        self.stamp("A@1")
        ONES = R.alloc(4); S0 = R.alloc(); Q0 = R.alloc(); T0 = R.alloc(); T1 = R.alloc()
        for k in range(4): a(f"v_mov_b32 v{ONES+k}, 0x3f803f80")
        a(f"v_mov_b32 v{S0}, 0"); a(f"v_mov_b32 v{Q0}, 0")
        VXA = R.alloc(4, 1)
        a(f"v_lshrrev_b32 v{t}, 1, v{V_L31}"); a(f"v_and_b32 v{t}, 7, v{t}"); a(f"v_xor_b32 v{t}, v{t}, v{V_HH}"); a(f"v_lshlrev_b32 v{t}, 4, v{t}")
        a(f"v_lshlrev_b32 v{VXA}, 7, v{V_L31}"); a(f"v_add_u32 v{VXA}, v{VXA}, v{t}"); a(f"v_add_u32 v{VXA}, s{SLX}, v{VXA}")
        for s in range(1, 4): a(f"v_xor_b32 v{VXA+s}, {s*32}, v{VXA}")
        VWK = R.alloc(); VWV = R.alloc(); VWQ = R.alloc()
        self.tr_base(VWK, 128, 8, t, t+1)
        a(f"v_lshrrev_b32 v{t}, 3, v{V_LANE}"); a(f"v_and_b32 v{t}, 1, v{t}"); a(f"v_lshlrev_b32 v{t}, 6, v{t}")
        a(f"v_xor_b32 v{t+1}, 64, v{t}"); a(f"v_add_u32 v{VWV}, v{VWK}, v{t+1}"); a(f"v_add_u32 v{VWK}, v{VWK}, v{t}")
        self.tr_base(VWQ, 64, 8, t, t+1)
        a(f"v_add_u32 v{VWQ}, {LQ}, v{VWQ}")
        AK = R.alloc(16); AV = R.alloc(16); CK = R.alloc(16); CV = R.alloc(16)
        vm.wait("sr")
        for d in range(8):
            a(f"v_dot2_f32_bf16 v{S0}, v{SR+d}, v{ONES}, v{S0}"); a(f"v_dot2_f32_bf16 v{Q0}, v{SR+d}, v{SR+d}, v{Q0}")
        for rr in (8, 4, 2, 1):
            for v in (S0, Q0): a(f"v_add_f32_dpp v{v}, v{v}, v{v} row_ror:{rr} row_mask:0xf bank_mask:0xf")
        a(f"v_mov_b32 v{T0}, v{S0}"); a(f"v_mov_b32 v{T1}, v{Q0}")
        a(f"v_permlane16_swap_b32 v{S0}, v{T0}"); a(f"v_permlane16_swap_b32 v{Q0}, v{T1}")
        a(f"v_add_f32 v{S0}, v{S0}, v{T0}"); a(f"v_add_f32 v{Q0}, v{Q0}, v{T1}")
        a(f"v_mul_f32 v{S0}, {lit(1/448)}, v{S0}"); a(f"v_mul_f32 v{Q0}, {lit(1/448)}, v{Q0}")
        a(f"v_fma_f32 v{Q0}, -v{S0}, v{S0}, v{Q0}"); a(f"v_max_f32 v{Q0}, 0, v{Q0}")
        a(f"v_add_f32 v{Q0}, {lit(1e-5)}, v{Q0}"); a(f"v_rsq_f32 v{Q0}, v{Q0}")
        self.tag_ready()
        a(f"v_mov_b32 v{SR}, v{S0}"); a(f"v_mov_b32 v{SR+2}, s{S_TAG}"); a(f"v_mov_b32 v{SR+3}, s{S_TAG}"); a(f"v_mov_b32 v{SR+1}, v{Q0}")
        a(f"v_lshlrev_b32 v{T0}, 4, v{V_HH}"); a(f"s_lshl_b32 s50, s59, 4"); a(f"s_add_u32 s50, s50, {STAT1}")
        a("s_mov_b32 exec_lo, 1"); a("s_mov_b32 exec_hi, 1")
        vm.issue(f"buffer_store_dwordx4 {V(SR,4)}, v{T0}, {srd(S_WS)}, s50 offen sc1", tag="st1")
        a("s_mov_b64 exec, -1")
        NB = 2
        WF = R.alloc(8 * NB)
        def rd_x(m): return [(f"ds_read_b128 {A(16*m+4*s,4)}, v{VXA+s} offset:{(m%4)*4096}", 4) for s in range(4)]
        def rd_w(s):
            buf = s % NB; out = []
            for g, base in enumerate((VWK, VWV)):
                for e in range(2):
                    r = WF + buf*8 + g*4 + e*2
                    out.append((f"ds_read_b64_tr_b16 v[{r}:{r+1}], v{base} offset:{LW + s*2048 + e*512}", 4))
            return out
        def chunk_ready(m):
            if KVS and m == CLR_FLAG: vm.wait("clr")
            vm.wait(("c", m)); a("s_barrier")
            if KVS and m == CLR_FLAG:
                self.tag_ready()
                L = a.label("L_cf")
                a(f"s_cmp_lg_u32 s{S_WAVE}, 0"); a(f"s_cbranch_scc1 {L}")
                a(f"s_lshl_b32 s50, s{SJ}, 7"); a(f"s_lshl_b32 s70, s{SI}, 2"); a("s_add_u32 s50, s50, s70"); a(f"s_add_u32 s50, s50, {F_KV}")
                a(f"v_mov_b32 v5, s{S_TAG}"); a("v_mov_b32 v6, 0"); a("s_mov_b64 exec, 1")
                a(f"buffer_store_dword v5, v6, {srd(S_WS)}, s50 offen sc1")
                a("s_mov_b64 exec, -1"); a(f"{L}:")
        SG = R.alloc(4); RK = R.alloc(16); MK = R.alloc(16); MR = R.alloc()
        NF = R.alloc()
        chunk_ready(0)
        self.stamp("g0")
        for x, _ in rd_x(0) + rd_w(0): a(x)
        pend = []
        for s in range(28):
            m, sp = s // 4, s % 4
            fill = []
            if sp == 0 and m + 2 < 7: pend = dma_list(m + 2)
            if sp == 0 and m in (5, 6): pend = sum([dma_q(mq) for mq in (range(4) if m == 5 else range(4, 7))], [])
            a("s_waitcnt lgkmcnt(0)")
            if s + 1 < 28:
                if sp == 3:
                    fill.append((lambda m=m: chunk_ready(m + 1), 8)); fill += rd_x(m + 1)
                fill += rd_w(s + 1)
            take = 2 if sp < 3 else len(pend)
            fill += pend[:take]; pend = pend[take:]
            if s == CLR_AT and KVS: fill.append((clear_kv, 40))
            if s == 25 and KVS:
                def nf():
                    a(f"s_lshl_b32 s59, s{SJ}, 7"); a(f"s_add_u32 s59, s59, {F_KV}")
                    a(f"s_sub_i32 s56, s{SI}, 1"); a("s_max_i32 s56, s56, 0"); a(f"s_sub_i32 s50, s{SI}, 2"); a("s_max_i32 s50, s50, 0")
                    a("s_lshl_b32 s56, s56, 2"); a("s_lshl_b32 s50, s50, 2")
                    a(f"v_mov_b32 v9, s56"); a(f"v_mov_b32 v{T1}, s50"); a(f"v_cmp_eq_u32 vcc, 0, v{V_HH}"); a(f"v_cndmask_b32 v9, v{T1}, v9, vcc")
                    vm.issue(f"buffer_load_dword v{NF}, v9, {srd(S_WS)}, s59 offen sc1", tag="nf")
                fill.append((nf, 48))
            if s == 20:
                def sg():
                    a(f"v_lshlrev_b32 v{T0}, 4, v{V_L31}"); a(f"s_lshl_b32 s50, s{STQ}, 9"); a(f"s_add_u32 s60, s50, {STAT1}")
                    vm.issue(f"buffer_load_dwordx4 {V(SG,4)}, v{T0}, {srd(S_WS)}, s60 offen sc1", tag="sg")
                fill.append((sg, 16))
            x = A(16*m + 4*sp, 4); wb = WF + (s % NB) * 8
            c = lambda r: '0' if s == 0 else V(r, 16)
            mf = [f"{MFMA} {V(AK,16)}, {V(wb,4)}, {x}, {c(AK)}", f"{MFMA} {V(AV,16)}, {x}, {V(wb+4,4)}, {c(AV)}",
                  f"{MFMA} {V(CK,16)}, {V(wb,4)}, {V(ONES,4)}, {c(CK)}", f"{MFMA} {V(CV,16)}, {V(ONES,4)}, {V(wb+4,4)}, {c(CV)}"]
            self.sched(mf, fill)
        self.stamp("A@2")
        Lp = a.label("L_sg"); Ld = a.label("L_sgd")
        vm.wait("sg")
        a("s_mov_b32 s70, 0"); a(f"{Lp}:")
        a(f"v_cmp_ne_u32 vcc, s{S_TAG}, v{SG+2}"); a(f"s_cbranch_vccz {Ld}")
        a(f"v_lshlrev_b32 v{T0}, 4, v{V_L31}")
        a(f"buffer_load_dwordx4 {V(SG,4)}, v{T0}, {srd(S_WS)}, s60 offen sc1"); a("s_waitcnt vmcnt(0)")
        a("s_add_u32 s70, s70, 1"); a("s_cmp_lt_u32 s70, 20000"); a(f"s_cbranch_scc1 {Lp}")
        a(f"{Ld}:")
        MEAN, RSTD = SG, SG + 1
        a(f"v_mul_f32 v{MR}, v{MEAN}, v{RSTD}")
        a(f"v_lshlrev_b32 v{T1}, 2, v{V_L31}"); a(f"s_lshl_b32 s57, s{S_WAVE}, 8"); a(f"s_add_u32 s57, s57, {LPW}"); a(f"v_add_u32 v{T0}, s57, v{T1}")
        a(f"ds_write_b32 v{T0}, v{RSTD}"); a(f"ds_write_b32 v{T0}, v{MR} offset:128")
        a(f"v_lshlrev_b32 v{T0}, 4, v{V_HH}"); a(f"v_add_u32 v{T0}, s57, v{T0}")
        a("s_waitcnt lgkmcnt(0)")
        for gg in range(4):
            a(f"ds_read_b128 {V(RK+4*gg,4)}, v{T0} offset:{gg*32}"); a(f"ds_read_b128 {V(MK+4*gg,4)}, v{T0} offset:{128+gg*32}")
        KF = R.alloc(8); VF = R.alloc(8); MASKH = R.alloc(); MASKD = R.alloc(); ONED = R.alloc()
        a(f"v_cmp_eq_u32 vcc, 0, v{V_HH}"); a(f"v_cndmask_b32 v{MASKH}, 0, -1, vcc")
        a(f"v_cmp_gt_u32 vcc, 28, v{V_L31}"); a(f"v_cndmask_b32 v{MASKD}, 0, -1, vcc")
        a(f"v_cmp_eq_u32 vcc, 28, v{V_L31}"); a(f"v_cndmask_b32 v{ONED}, 0, v{ONES}, vcc")
        for r in range(0, 16, 2):
            a(f"v_pk_fma_f32 {V(AK+r,2)}, {V(MEAN,2)}, {V(CK+r,2)}, {V(AK+r,2)} op_sel_hi:[0,1,1] neg_lo:[1,0,0] neg_hi:[1,0,0]")
        for r in range(0, 16, 2):
            a(f"v_pk_mul_f32 {V(AK+r,2)}, {V(AK+r,2)}, {V(MEAN,2)} op_sel:[0,1] op_sel_hi:[1,1]")
        for d in range(8): a(f"v_cvt_pk_bf16_f32 v{KF+d}, v{AK+2*d}, v{AK+2*d+1}")
        for d in (6, 7): a(f"v_and_b32 v{KF+d}, v{KF+d}, v{MASKH}")
        a(f"s_lshl_b32 s56, s{SJ}, 6"); a(f"s_add_u32 s56, s56, s{STQ}"); a("s_lshl_b32 s56, s56, 12"); a(f"s_add_u32 s56, s56, {KVF}")
        for part, r in enumerate((KF, KF+4)):
            vm.issue(f"buffer_store_dwordx4 {V(r,4)}, v{V_L16}, {srd(S_WS)}, s56 offen offset:{part*1024} sc1")
        a("s_waitcnt lgkmcnt(0)")
        for r in range(0, 16, 2):
            a(f"v_pk_mul_f32 {V(MK+r,2)}, {V(MK+r,2)}, {V(CV+r,2)}")
            a(f"v_pk_fma_f32 {V(AV+r,2)}, {V(AV+r,2)}, {V(RK+r,2)}, {V(MK+r,2)} neg_lo:[0,0,1] neg_hi:[0,0,1]")
        for d in range(8): a(f"v_cvt_pk_bf16_f32 v{VF+d}, v{AV+2*d}, v{AV+2*d+1}")
        for d in range(8): a(f"v_and_or_b32 v{VF+d}, v{VF+d}, v{MASKD}, v{ONED}")
        for part, r in enumerate((VF, VF+4)):
            vm.issue(f"buffer_store_dwordx4 {V(r,4)}, v{V_L16}, {srd(S_WS)}, s56 offen offset:{2048+part*1024} sc1")
        vm.wait("q")
        a("s_barrier")
        a(f"s_lshl_b32 s50, s{S_WAVE}, 12"); a(f"s_add_u32 s50, s50, {LKV + 8*4096}"); a(f"v_add_u32 v{T0}, s50, v{V_L16}")
        for part, r in enumerate((KF, KF+4, VF, VF+4)):
            a(f"ds_write_b128 v{T0}, {V(r,4)} offset:{part*1024}")
        for b, n in ((CK,16),(CV,16),(RK,16),(MK,16),(AK,16),(AV,16),(WF,8*NB)): R.free(b, n)
        AQ = R.alloc(16); CQ = R.alloc(16); QW = R.alloc(16)
        def rd_q(s):
            return [(f"ds_read_b64_tr_b16 v[{QW+(s%4)*4+e*2}:{QW+(s%4)*4+e*2+1}], v{VWQ} offset:{s*1024 + e*256}", 4) for e in range(2)]
        for s in range(2):
            for x, _ in rd_q(s): a(x)
        a(f"s_lshl_b32 s59, s{SJ}, 7"); a(f"s_lshl_b32 s56, s{SI}, 2"); a("s_add_u32 s59, s59, s56"); a(f"s_add_u32 s59, s59, {F_KV}")
        R.free(KF, 8); R.free(VF, 8)
        warm = []
        if self.o.get("warm", 1):
            warm = self.touch_list(S_WO, 448*448*2) + self.touch_list(S_WIN, 448*1792*2)
            if self.o.get("warm_wsp", 0):
                a(f"s_lshl_b32 s71, s{S_XCD}, 20")
                warm += self.touch_list(S_WSP, 1 << 20, base=71)
        qpos = self.o.get("q_touch", [])
        def kv_dma(track):
            a(f"s_lshl_b32 s59, s{SJ}, 18"); a(f"s_add_u32 s59, s59, {KVF}")
            for tt in range(2):
                a(f"s_lshl_b32 s56, s{SI}, 2"); a(f"s_lshl_b32 s57, s{S_WAVE}, 1"); a("s_add_u32 s56, s56, s57"); a(f"s_add_i32 s56, s56, {tt-8}"); a("s_max_i32 s56, s56, 0")
                a("s_lshl_b32 s56, s56, 12"); a("s_add_u32 s56, s56, s59")
                a(f"s_lshl_b32 s57, s{S_WAVE}, 13"); a(f"s_add_u32 s57, s57, {LKV + tt*4096}")
                for part in range(4):
                    a(f"s_add_u32 m0, s57, {part*1024}"); a(f"s_add_u32 s50, s56, {part*1024}")
                    x = f"buffer_load_dwordx4 v{V_L16}, {srd(S_WS)}, s50 offen sc1 lds"
                    if track: vm.issue(x, tag="kv")
                    else: a(x)
        for s in range(28):
            fill = rd_q(s + 2) if s + 2 < 28 else []
            if s in qpos and warm: fill.append(warm[0]); warm = warm[1:]
            self.warm_rest = warm
            a(f"s_waitcnt lgkmcnt({2 if s + 1 < 28 else 0})")
            c = lambda r: '0' if s == 0 else V(r, 16)
            q = V(QW + (s % 4)*4, 4)
            self.sched([f"{MFMA} {V(AQ,16)}, {q}, {A(4*s,4)}, {c(AQ)}", f"{MFMA} {V(CQ,16)}, {q}, {V(ONES,4)}, {c(CQ)}"], fill)
            if not KVS and s == self.o.get("kvflag_at", 12):
                self.set_flag(59)
                self.stamp("A@3")
            if KVS and s == self.o.get("kv_try", 14):
                Lp = a.label("L_nf"); Ld = a.label("L_nfd")
                vm.wait("nf")
                a("s_mov_b32 s70, 0"); a(f"{Lp}:")
                a(f"v_cmp_ne_u32 vcc, s{S_TAG}, v{NF}"); a(f"s_cbranch_vccz {Ld}")
                a(f"s_lshl_b32 s59, s{SJ}, 7"); a(f"s_add_u32 s59, s59, {F_KV}")
                a(f"buffer_load_dword v{NF}, v9, {srd(S_WS)}, s59 offen sc1"); a("s_waitcnt vmcnt(0)")
                a("s_add_u32 s70, s70, 1"); a("s_cmp_lt_u32 s70, 20000"); a(f"s_cbranch_scc1 {Lp}")
                a(f"{Ld}:")
                kv_dma(True)
                self.stamp("A@3")
        RQ = R.alloc(2); QF = R.alloc(8)
        qscale = (28 ** -0.5) * LOG2E
        a(f"v_mul_f32 v{RQ}, {lit(qscale)}, v{RSTD}")
        CD = R.alloc(16); CF = R.alloc(16); CM = R.alloc(16); BS = R.alloc(); NBG = R.alloc()
        a(f"v_lshlrev_b32 v{BS}, 2, v{V_HH}"); a(f"v_sub_u32 v{BS}, v{V_L31}, v{BS}"); a(f"v_mov_b32 v{NBG}, {lit(-1e30)}")
        for r in range(16):
            c = (r & 3) + 8 * (r >> 2)
            a(f"v_cmp_le_i32 vcc, {c}, v{BS}")
            a(f"v_cndmask_b32 v{CD+r}, v{NBG}, 0, vcc"); a(f"v_cndmask_b32 v{CF+r}, 0, v{NBG}, vcc")
        for r in range(0, 16, 2):
            a(f"v_pk_fma_f32 {V(AQ+r,2)}, {V(MEAN,2)}, {V(CQ+r,2)}, {V(AQ+r,2)} op_sel_hi:[0,1,1] neg_lo:[1,0,0] neg_hi:[1,0,0]")
        for r in range(0, 16, 2):
            a(f"v_pk_mul_f32 {V(AQ+r,2)}, {V(AQ+r,2)}, {V(RQ,2)} op_sel_hi:[1,0]")
        for d in range(8): a(f"v_cvt_pk_bf16_f32 v{QF+d}, v{AQ+2*d}, v{AQ+2*d+1}")
        for d in (6, 7): a(f"v_and_b32 v{QF+d}, v{QF+d}, v{MASKH}")
        R.free(AQ, 16); R.free(QW, 16); R.free(CQ, 16)
        if not KVS:
            a(f"s_lshl_b32 s59, s{SJ}, 7"); a(f"s_add_u32 s59, s59, {F_KV}")
            a(f"s_sub_i32 s56, s{SI}, 1"); a("s_max_i32 s56, s56, 0"); a(f"s_sub_i32 s57, s{SI}, 2"); a("s_max_i32 s57, s57, 0")
            a("s_lshl_b32 s56, s56, 2"); a("s_lshl_b32 s57, s57, 2")
            a(f"v_mov_b32 v9, s56"); a(f"v_mov_b32 v{T0}, s57"); a(f"v_cmp_eq_u32 vcc, 0, v{V_HH}"); a(f"v_cndmask_b32 v9, v{T0}, v9, vcc")
            self.poll(59, 2, voff=9)
            self.stamp("A@4")
            kv_dma(True)
        else:
            VV = R.alloc(8); VA = R.alloc()
            a(f"s_lshl_b32 s50, s{S_WAVE}, 13"); a(f"s_add_u32 s50, s50, {LKV}"); a(f"v_add_u32 v{VA}, s50, v{V_L16}")
            Lp = a.label("L_kvv"); Ld = a.label("L_kvd")
            vm.wait("kv")
            self.stamp("A@4")
            a("s_mov_b32 s70, 0"); a(f"{Lp}:")
            for q in range(8): a(f"ds_read_b32 v{VV+q}, v{VA} offset:{q*1024}")
            a("s_waitcnt lgkmcnt(0)")
            a(f"v_max3_u32 v{VV}, v{VV}, v{VV+1}, v{VV+2}"); a(f"v_max3_u32 v{VV+3}, v{VV+3}, v{VV+4}, v{VV+5}"); a(f"v_max3_u32 v{VV}, v{VV}, v{VV+6}, v{VV+7}")
            a(f"v_max_u32 v{VV}, v{VV}, v{VV+3}")
            a(f"v_cmp_eq_u32 vcc, -1, v{VV}"); a(f"s_cbranch_vccz {Ld}")
            kv_dma(False)
            a("s_waitcnt vmcnt(0)")
            a("s_add_u32 s70, s70, 1"); a("s_cmp_lt_u32 s70, 20000"); a(f"s_cbranch_scc1 {Lp}")
            a(f"{Ld}:")
            R.free(VV, 8); R.free(VA)
        if self.o.get("touch_after_kv", 0):
            for f, _ in self.warm_rest: f()
            self.warm_rest = []
        KA = R.alloc()
        a(f"s_lshl_b32 s50, s{S_WAVE}, 12"); a(f"s_add_u32 s50, s50, {LKV}"); a(f"v_add_u32 v{KA}, s50, v{V_L16}")
        a(f"s_sub_i32 s60, 8, s{STQ}"); a("s_max_i32 s60, s60, 0")
        SA = R.alloc(16); SB = R.alloc(16); O = R.alloc(16); PF = R.alloc(16); KR = R.alloc(16); VR = R.alloc(16); MX = R.alloc(2)
        a(f"v_mov_b32 v{MX}, {lit(-1e30)}"); a(f"v_mov_b32 v{MX+1}, {lit(-1e30)}")
        vm.wait("kv"); a("s_barrier")
        self.stamp("A@5")
        rk = lambda u: [(f"ds_read_b128 {V(KR+8*(u%2)+4*h,4)}, v{KA} offset:{u*4096+h*1024}", 4) for h in range(2)]
        rv = lambda u: [(f"ds_read_b128 {V(VR+8*(u%2)+4*h,4)}, v{KA} offset:{u*4096+2048+h*1024}", 4) for h in range(2)]
        def smf(u, c):
            S = SA if u % 2 == 0 else SB; k = KR + 8*(u % 2)
            return [f"{MFMA} {V(S,16)}, {V(k,4)}, {V(QF,4)}, {c}", f"{MFMA} {V(S,16)}, {V(k+4,4)}, {V(QF+4,4)}, {V(S,16)}"]
        def pvm(u):
            P = PF + 8*(u % 2); vr = VR + 8*(u % 2)
            return [f"{MFMA} {V(O,16)}, {V(vr,4)}, {V(P,4)}, {'0' if u == 0 else V(O,16)}", f"{MFMA} {V(O,16)}, {V(vr+4,4)}, {V(P+4,4)}, {V(O,16)}"]
        warm = self.warm_rest
        wo_stage = []
        if self.o.get("wo_in_a", 1):
            VWO = R.alloc(); tw = R.alloc(4, 1)
            self.w128_lane(VWO, 896, tw); R.free(tw, 4)
            self.ct7(100); self.stage_setup(100, 896, 101, 100)
            wo_stage = self.stage_list(S_WO, VWO, 101, 100, self.pairs_small("B"), "wo")
        CB = R.alloc(16)
        for r in range(16): a(f"v_mov_b32 v{CB+r}, {lit(-1e30)}")
        def smf_first(u, c):
            S = SA if u % 2 == 0 else SB; k = KR + 8*(u % 2)
            def f():
                if u == 8:
                    a(f"{MFMA} {V(S,16)}, {V(k,4)}, {V(QF,4)}, {c}"); return
                L1 = a.label("L_m"); L2 = a.label("L_m")
                a(f"s_cmp_gt_u32 s60, {u}"); a(f"s_cbranch_scc1 {L1}")
                a(f"{MFMA} {V(S,16)}, {V(k,4)}, {V(QF,4)}, {c}"); a(f"s_branch {L2}")
                a(f"{L1}:"); a(f"{MFMA} {V(S,16)}, {V(k,4)}, {V(QF,4)}, {V(CB,16)}"); a(f"{L2}:")
            return f
        def smf2(u, c):
            return [smf_first(u, c), smf(u, c)[1]]
        def attention(branchy, warm):
            sm = smf2 if branchy else smf
            wos = list(wo_stage)
            cop1 = lambda u: V(CF,16) if u == 0 else (V(CD,16) if u == 8 else "0")
            for x, _ in rk(0) + rk(1): a(x)
            a("s_waitcnt lgkmcnt(2)")
            for x in sm(0, cop1(0)): self.emit_fill(x)
            for u in range(9):
                S = SA if u % 2 == 0 else SB
                mx = [(f"v_max3_f32 v{MX+(r//2)%2}, v{S+r}, v{S+r+1}, v{MX+(r//2)%2}", 4) for r in range(0, 16, 2)]
                if u + 1 < 9:
                    a("s_waitcnt lgkmcnt(0)")
                    tw_ = warm[:1] if u % 4 == 0 else []; warm = warm[len(tw_):]
                    self.sched(sm(u + 1, cop1(u + 1)), (rk(u + 2) if u + 2 < 9 else []) + tw_ + mx)
                else:
                    for x, _ in mx: a(x)
            self.stamp("p1") if not branchy else None
            self.attn_mid(MX, T0, CM, CD, CF)
            self.stamp("p2") if not branchy else None
            cop2 = lambda u: V(CF,16) if u == 0 else (V(CD,16) if u == 8 else V(CM,16))
            for x, _ in rk(0) + rk(1): a(x)
            a("s_waitcnt lgkmcnt(2)")
            for x in sm(0, cop2(0)): self.emit_fill(x)
            nw = 1
            for u in range(10):
                mf = []; fill = []
                a("s_waitcnt lgkmcnt(0)")
                if u + 1 < 9: mf += sm(u + 1, cop2(u + 1))
                if u >= 1: mf += pvm(u - 1)
                if u < 9:
                    S = SA if u % 2 == 0 else SB; P = PF + 8*(u % 2)
                    fill += rv(u)
                    if u + 2 < 9: fill += rk(u + 2)
                    ex = []
                    for d in range(8):
                        ex += [(f"v_exp_f32 v{S+2*d}, v{S+2*d}", 8), (f"v_exp_f32 v{S+2*d+1}, v{S+2*d+1}", 8)]
                        if d >= 1: ex.append((f"v_cvt_pk_bf16_f32 v{P+d-1}, v{S+2*d-2}, v{S+2*d-1}", 4))
                    ex.append((f"v_cvt_pk_bf16_f32 v{P+7}, v{S+14}, v{S+15}", 4))
                    ws_ = warm[:nw] if u % 2 == 0 else []; warm = warm[len(ws_):]
                    ws_ = ws_ + wos[:2]; wos = wos[2:]
                    step = max(1, len(ex) // (len(ws_) + 1))
                    for n, it in enumerate(ws_): ex.insert((n + 1) * step + n, it)
                    fill += ex
                self.sched(mf, fill)
            for f, _ in warm + wos: self.emit_fill(f)
        Lbr = a.label("L_abr"); Ljn = a.label("L_ajn")
        a("s_cmp_gt_u32 s60, 0"); a(f"s_cbranch_scc1 {Lbr}")
        saved_ops = list(vm.ops)
        attention(False, list(warm))
        a(f"s_branch {Ljn}")
        fast_ops = list(vm.ops); vm.ops = saved_ops
        a(f"{Lbr}:")
        attention(True, list(warm))
        assert len(vm.ops) == len(fast_ops)
        a(f"{Ljn}:")
        warm = []
        for f, _ in warm: self.emit_fill(f)
        self.stamp("p3")
        a(f"v_mov_b32 v{T0}, v{O+12}"); a(f"v_mov_b32 v{MX}, v{O+12}")
        a(f"v_permlane32_swap_b32 v{T0}, v{MX}")
        a(f"v_rcp_f32 v{MX}, v{MX}")
        for r in range(0, 16, 2): a(f"v_pk_mul_f32 {V(O+r,2)}, {V(O+r,2)}, {V(MX,2)} op_sel_hi:[1,0]")
        for d in range(8): a(f"v_cvt_pk_bf16_f32 v{PF+d}, v{O+2*d}, v{O+2*d+1}")
        for d in (6, 7): a(f"v_and_b32 v{PF+d}, v{PF+d}, v{MASKH}")
        a(f"s_lshl_b32 s56, s{STQ}, 4"); a(f"s_add_u32 s56, s56, s{SJ}"); a("s_lshl_b32 s56, s56, 11"); a(f"s_add_u32 s56, s56, {OFR}")
        for h in range(2):
            vm.issue(f"buffer_store_dwordx4 {V(PF+4*h,4)}, v{V_L16}, {srd(S_WS)}, s56 offen offset:{h*1024} sc1")
        a(f"s_lshl_b32 s59, s{SI}, 7"); a(f"s_lshl_b32 s56, s{SJ}, 2"); a("s_add_u32 s59, s59, s56"); a(f"s_add_u32 s59, s59, {F_O}")
        self.set_flag(59)
        self.stamp("A@6")

    def tlb_warm(self):
        a, vm = self.a, self.vm
        a(f"v_lshlrev_b32 v{V_TOUCH}, 21, v{V_LANE}")
        a("s_mov_b64 exec, 0xfff")
        vm.issue(f"buffer_load_dword v{V_DUMMY}, v{V_TOUCH}, {srd(S_WS)}, 0 offen", tag="tlb")
        a("s_mov_b64 exec, 0xf")
        vm.issue(f"buffer_load_dword v{V_DUMMY}, v{V_TOUCH}, {srd(S_WSP)}, 0 offen", tag="tlb")
        a("s_mov_b64 exec, 1")
        for sb in (S_WO, S_WIN, S_WOUT, S_BSP, S_OUT):
            vm.issue(f"buffer_load_dword v{V_DUMMY}, v{V_TOUCH}, {srd(sb)}, 0 offen", tag="tlb")
        a("s_mov_b64 exec, -1")

    def warm_list(self, srdb, nbytes, sreg=69):
        a, vm = self.a, self.vm
        per_wave = nbytes // 128; n = (per_wave + 1023) // 1024; out = []
        for k in range(n):
            def f(k=k):
                if k == 0:
                    a(f"s_lshl_b32 s{sreg}, s{S_SLOT}, 2"); a(f"s_add_u32 s{sreg}, s{sreg}, s{S_WAVE}"); a(f"s_mul_i32 s{sreg}, s{sreg}, {per_wave}")
                elif k % 4 == 0: a(f"s_add_u32 s{sreg}, s{sreg}, 4096")
                vm.issue(f"buffer_load_dwordx4 {V(V_DUMMY,4)}, v{V_L16}, {srd(srdb)}, s{sreg} offen offset:{(k%4)*1024}", tag="warm")
            out.append((f, 8))
        return out

    def attn_mid(self, MX, T0, CM, CD, CF):
        a = self.a
        a(f"v_max_f32 v{MX}, v{MX}, v{MX+1}")
        self.half_op(MX, T0, "v_max_f32")
        for r in range(16): a(f"v_sub_f32 v{CM+r}, 0, v{MX}")
        for r in range(0, 16, 2):
            a(f"v_pk_add_f32 {V(CD+r,2)}, {V(CD+r,2)}, {V(CM,2)}"); a(f"v_pk_add_f32 {V(CF+r,2)}, {V(CF+r,2)}, {V(CM,2)}")

    def touch_list(self, srdb, nbytes, sreg=69, base=None):
        a, vm = self.a, self.vm
        per_wave = (nbytes // 128 + 63) // 64 * 64; n = (per_wave + 4095) // 4096; out = []
        for k in range(n):
            def f(k=k):
                if k == 0:
                    a(f"s_lshl_b32 s{sreg}, s{S_SLOT}, 2"); a(f"s_add_u32 s{sreg}, s{sreg}, s{S_WAVE}"); a(f"s_mul_i32 s{sreg}, s{sreg}, {per_wave}")
                    if base is not None: a(f"s_add_u32 s{sreg}, s{sreg}, s{base}")
                    a(f"v_lshlrev_b32 v{V_TOUCH}, 6, v{V_LANE}")
                else: a(f"s_add_u32 s{sreg}, s{sreg}, 4096")
                vm.issue(f"buffer_load_dword v{V_DUMMY}, v{V_TOUCH}, {srd(srdb)}, s{sreg} offen", tag="warm")
            out.append((f, 12))
        return out

    def idle_prefetch(self, skip, part):
        a = self.a
        Lo = a.label("L_ip")
        a(f"s_branch {Lo}")
        a(f"{skip}:")
        idn = self.o.get("idle_n", [6, 10])
        n = idn[part] if part < 2 else 13
        first = 0 if part != 1 else idn[0]
        if n:
            if part < 2: a(f"s_lshl_b32 s50, s{S_XCD}, 20")
            else: a("s_mov_b32 s50, 0")
            a(f"s_sub_u32 s51, s{S_SLOT}, 28"); a("s_lshl_b32 s51, s51, 2"); a(f"s_add_u32 s51, s51, s{S_WAVE}"); a("s_lshl_b32 s51, s51, 12"); a("s_add_u32 s50, s50, s51")
            a(f"s_add_u32 s50, s50, {first*16*4096}")
            a(f"v_lshlrev_b32 v{V_TOUCH}, 6, v{V_LANE}")
            Ll = a.label("L_il")
            a(f"s_mov_b32 s51, {n}")
            a(f"{Ll}:")
            a(f"buffer_load_dword v{V_DUMMY}, v{V_TOUCH}, {srd(S_WSP if part < 2 else S_WOUT)}, s50 offen")
            a(f"s_add_u32 s50, s50, {16*4096}"); a("s_sub_u32 s51, s51, 1"); a("s_cmp_lg_u32 s51, 0"); a(f"s_cbranch_scc1 {Ll}")
            a("s_waitcnt vmcnt(0)")
        a(f"{Lo}:")

    def dma_by_all(self, items, tagf):
        a, vm = self.a, self.vm
        assert len(items) % 4 == 0
        Lnp = a.label("L_np")
        for wv in range(4):
            Lw = a.label("L_w")
            if wv < 3:
                a(f"s_cmp_lg_u32 s{S_WAVE}, {wv}"); a(f"s_cbranch_scc1 {Lw}")
            state = {}
            for n, it in enumerate(items):
                if n % 4 == wv: it(state)
            if wv < 3:
                a(f"s_branch {Lnp}")
                a(f"{Lw}:")
        a(f"{Lnp}:")
        vm.ops += [tagf(n) for n in range(len(items)) if n % 4 == 0]

    def dma_by_123(self, items, tagf):
        a, vm = self.a, self.vm
        Lnp = a.label("L_np")
        a(f"s_cmp_eq_u32 s{S_WAVE}, 0"); a(f"s_cbranch_scc1 {Lnp}")
        for wv in (1, 2, 3):
            Lw = a.label("L_w")
            if wv < 3:
                a(f"s_cmp_lg_u32 s{S_WAVE}, {wv}"); a(f"s_cbranch_scc1 {Lw}")
            state = {}
            for n, it in enumerate(items):
                if n % 3 == wv - 1: it(state)
            if wv < 3:
                a(f"s_branch {Lnp}")
                a(f"{Lw}:")
        a(f"{Lnp}:")
        mod = [tagf(n) for n in range(len(items)) if n % 3 == 0]
        mod.pop(); vm.ops += mod

    def d_map(self):
        a = self.a
        a(f"s_mul_i32 s50, s{S_SLOT}, 37"); a("s_lshr_b32 s50, s50, 8")
        a("s_mul_i32 s51, s50, 7"); a(f"s_sub_u32 s94, s{S_SLOT}, s51")
        a(f"s_lshl_b32 s95, s{S_XCD}, 2"); a("s_add_u32 s95, s95, s50")
        a(f"s_mul_i32 s96, s50, {self.o.get('rotm', 0)}"); a("s_and_b32 s51, s94, 3"); a(f"s_mul_i32 s51, s51, {self.o.get('rotf', 0)}"); a("s_add_u32 s96, s96, s51")
        a("s_lshl_b32 s97, s95, 18")

    def d_lanes(self, VE, VO, t):
        a = self.a
        a(f"v_lshrrev_b32 v{t}, 3, v{V_LANE}"); a(f"v_and_b32 v{t+1}, 7, v{V_LANE}"); a(f"v_lshrrev_b32 v{t+2}, 4, v{V_LANE}")
        a(f"v_xor_b32 v{t+3}, v{t+1}, v{t+2}"); a(f"v_lshlrev_b32 v{t+3}, 4, v{t+3}"); a(f"v_lshlrev_b32 v{t}, 12, v{t}"); a(f"v_add_u32 v{VE}, v{t}, v{t+3}")
        a(f"v_add_u32 v{t+2}, 4, v{t+2}"); a(f"v_xor_b32 v{t+3}, v{t+1}, v{t+2}"); a(f"v_lshlrev_b32 v{t+3}, 4, v{t+3}"); a(f"v_add_u32 v{VO}, v{t}, v{t+3}")

    @staticmethod
    def d_slot(kh, b):
        b %= 8
        if kh == 1: return 81920 + b*8192
        return b*8192 if b < 7 else 147456

    def d_early_items(self, VE, VO, NS=8):
        a, vm = self.a, self.vm
        out = []
        blocks = [(b, kh) for b in range(NS) for kh in range(2)]
        for (b, kh) in blocks:
            for h in range(2):
                def f(b=b, kh=kh, h=h):
                    if h == 0:
                        a(f"s_add_u32 s98, s96, {b}"); a("s_and_b32 s98, s98, 15"); a("s_lshl_b32 s98, s98, 7"); a("s_add_u32 s98, s98, s97")
                        a(f"s_lshl_b32 s99, s{S_WAVE}, 16"); a("s_add_u32 s98, s98, s99")
                    a(f"s_lshl_b32 s99, s{S_WAVE}, 11"); a(f"s_add_u32 m0, s99, {self.d_slot(kh, b) + h*1024}")
                    a(f"s_add_u32 s99, s98, {kh*2048 + h*8*4096}")
                    vm.issue(f"buffer_load_dwordx4 v{VE if h == 0 else VO}, {srd(S_WSP)}, s99 offen lds", tag=("w", b))
                out.append((f, 28))
        return out, blocks

    def stage_list(self, srdb, VW, sg, sl, pairs, tag, tmp=98):
        a, vm = self.a, self.vm
        out = []
        for (lc, gc) in pairs:
            def f(lc=lc, gc=gc):
                a(f"s_add_u32 m0, s{sl}, {lc}"); a(f"s_add_u32 s{tmp}, s{sg}, {gc}")
                vm.issue(f"buffer_load_dwordx4 v{VW}, {srd(srdb)}, s{tmp} offen lds", tag=tag)
            out.append((f, 12))
        return out
    def pairs_small(self, ph, lds0=0):
        NB = 8 if ph == "B" else 14; rpb = 28 if ph == "B" else 32
        half = NB*4096 if ph == "B" else 81920
        return [(lds0 + kh*half + b*4096, (kh*NB + b)*rpb*896) for b in range(NB) for kh in range(2)]
    def pairs_win(self, img, lds0):
        return [(lds0 + k2*4096, k2*32*3584 + (1792 if img == 0 else 0)) for k2 in range(14)]
    def stage_setup(self, sct, rowbytes, sg, sl):
        a = self.a
        a(f"s_lshl_b32 s{sg}, s{sct}, 7"); a(f"s_mul_i32 s{sl}, s{S_WAVE}, {8*rowbytes}"); a(f"s_add_u32 s{sg}, s{sg}, s{sl}"); a(f"s_lshl_b32 s{sl}, s{S_WAVE}, 10")
    def ct7(self, dst):
        a = self.a
        a(f"s_mul_i32 s50, s{S_SLOT}, 37"); a("s_lshr_b32 s50, s50, 8"); a("s_mul_i32 s50, s50, 7"); a(f"s_sub_u32 s{dst}, s{S_SLOT}, s50")

    def map_BE(self, skip):
        a = self.a
        a(f"s_cmp_ge_u32 s{S_SLOT}, 28"); a(f"s_cbranch_scc1 {skip}")
        a(f"s_mul_i32 s50, s{S_SLOT}, 37"); a("s_lshr_b32 s50, s50, 8")
        a("s_mul_i32 s51, s50, 7"); a(f"s_sub_u32 s49, s{S_SLOT}, s51")
        a(f"s_lshl_b32 s48, s{S_XCD}, 2"); a("s_add_u32 s48, s48, s50")
        a(f"s_and_b32 s52, s{S_WAVE}, 1"); a("s_lshl_b32 s50, s48, 1"); a("s_add_u32 s52, s52, s50"); a(f"s_lshr_b32 s53, s{S_WAVE}, 1")

    def w128_lane(self, dst, rowbytes, t):
        a = self.a
        a(f"v_lshrrev_b32 v{t}, 3, v{V_LANE}"); a(f"v_mul_u32_u24 v{t}, {rowbytes}, v{t}")
        a(f"v_lshrrev_b32 v{t+1}, 4, v{V_LANE}"); a(f"v_and_b32 v{t+1}, 1, v{t+1}"); a(f"v_lshlrev_b32 v{t+1}, 2, v{t+1}")
        a(f"v_and_b32 v{t+2}, 7, v{V_LANE}"); a(f"v_xor_b32 v{t+2}, v{t+2}, v{t+1}"); a(f"v_lshlrev_b32 v{t+2}, 4, v{t+2}")
        a(f"v_add_u32 v{dst}, v{t}, v{t+2}")

    def w128_bases(self, B0, t, wave_bytes_reg=None, const=0):
        a = self.a
        a(f"v_lshrrev_b32 v{t}, 2, v{V_LANE}"); a(f"v_and_b32 v{t}, 3, v{t}")
        a(f"v_lshlrev_b32 v{t+1}, 2, v{V_HH}"); a(f"v_add_u32 v{t+1}, v{t+1}, v{t}"); a(f"v_lshlrev_b32 v{t+1}, 7, v{t+1}")
        a(f"v_lshrrev_b32 v{t+2}, 4, v{V_LANE}"); a(f"v_and_b32 v{t+2}, 1, v{t+2}"); a(f"v_lshlrev_b32 v{t+2}, 5, v{t+2}")
        a(f"v_add_u32 v{t+1}, v{t+1}, v{t+2}")
        a(f"v_and_b32 v{t+2}, 3, v{V_LANE}"); a(f"v_lshlrev_b32 v{t+2}, 3, v{t+2}"); a(f"v_add_u32 v{t+1}, v{t+1}, v{t+2}")
        a(f"v_lshrrev_b32 v{t}, 1, v{t}"); a(f"v_lshlrev_b32 v{t}, 6, v{t}")
        if wave_bytes_reg is not None: a(f"v_add_u32 v{t+1}, s{wave_bytes_reg}, v{t+1}")
        if const: a(f"v_add_u32 v{t+1}, {const}, v{t+1}")
        a(f"v_add_u32 v{B0}, v{t+1}, v{t}")
        a(f"v_xor_b32 v{t}, 64, v{t}"); a(f"v_add_u32 v{B0+1}, v{t+1}, v{t}")

    def small_phase(self, ph):
        a, vm, R = self.a, self.vm, self.R
        R.reset()
        isB = ph == "B"
        NB = 8 if isB else 14
        rows_per_blk = 28 if isB else 32
        SW = S_WO if isB else S_WOUT
        ACTB = OFR if isB else UFR; nact = 16 if isB else 28
        skip = f"L_skip{ph}"
        self.map_BE(skip)
        self.stamp(f"{ph}@0")
        t = R.alloc(4, 1); VW = R.alloc()
        self.w128_lane(VW, 896, t)
        a(f"s_{'mov_b32 s54, s49' if isB else 'lshl_b32 s54, s49, 1'}" if self.o.get("rot_" + ph.lower(), 0) else "s_mov_b32 s54, 0")
        a("s_lshl_b32 s55, s49, 7")
        a(f"s_lshl_b32 s58, s52, {4 if isB else 0}") if isB else a("s_mul_i32 s58, s52, 28")
        a(f"s_mul_i32 s50, s53, {NB}"); a("s_add_u32 s58, s58, s50"); a("s_lshl_b32 s58, s58, 11"); a(f"s_add_u32 s58, s58, {ACTB}")
        if isB:
            if not self.o.get("wo_in_a", 1):
                self.stage_setup(49, 896, 101, 100)
                for f, _ in self.stage_list(S_WO, VW, 101, 100, self.pairs_small("B"), "wo"): f()
            VWI = R.alloc(); self.w128_lane(VWI, 3584, t)
            a(f"s_cmp_ge_u32 s{S_SLOT}, 14"); a("s_cselect_b32 s50, 14, 0"); a(f"s_sub_u32 s99, s{S_SLOT}, s50")
            if self.o.get("img2_late", 1):
                img2 = None
            else:
                a("s_lshl_b32 s101, s99, 7")
                items = []
                for k2 in range(14):
                    for q in range(4):
                        def it(st, k2=k2, q=q):
                            a(f"s_mov_b32 m0, {81920 + k2*4096 + q*1024}"); a(f"s_add_u32 s98, s101, {k2*32*3584 + 1792 + q*8*3584}")
                            a(f"buffer_load_dwordx4 v{VWI}, {srd(S_WIN)}, s98 offen lds")
                        items.append(it)
                self.dma_by_123(items, lambda n: "w2")
        XR = R.alloc(8)
        if isB:
            a(f"v_mul_u32_u24 v{t+3}, 896, v{V_L31}"); a(f"v_lshlrev_b32 v{t+2}, 3, v{V_HH}"); a(f"v_add_u32 v{t+3}, v{t+3}, v{t+2}")
            a(f"s_mul_i32 s54, s52, {32*896}"); a("s_lshl_b32 s50, s49, 7"); a("s_add_u32 s54, s54, s50"); a("s_lshl_b32 s50, s53, 6"); a("s_add_u32 s54, s54, s50")
            for g in range(4):
                vm.issue(f"buffer_load_dwordx2 {V(XR+2*g,2)}, v{t+3}, {srd(S_X)}, s54 offen offset:{g*16}", tag="xr")
        B0 = R.alloc(2, 1)
        a(f"s_mul_i32 s51, s53, {NB*4096 if isB else 81920}")
        self.w128_bases(B0, t, 51)
        if isB:
            a("s_lshr_b32 s55, s48, 1"); a("s_lshl_b32 s55, s55, 7"); a(f"s_add_u32 s55, s55, {F_O}"); self.poll(55, 16, drain=False)
        else:
            a("s_lshl_b32 s55, s48, 7"); a(f"s_add_u32 s55, s55, {F_U}"); self.poll(55, 7, drain=False)
        self.stamp(f"{ph}@1")
        ACT = R.alloc(8 * NB)
        a(f"s_{'mov_b32 s54, s49' if isB else 'lshl_b32 s54, s49, 1'}" if self.o.get("rot_" + ph.lower(), 0) else "s_mov_b32 s54, 0")
        def ld_act(k):
            b, st = k // 2, k % 2
            def f():
                if st == 0:
                    a(f"s_cmp_ge_u32 s54, {NB}"); a(f"s_cselect_b32 s50, {NB}, 0"); a("s_sub_u32 s54, s54, s50")
                    a("s_lshl_b32 s59, s54, 11"); a("s_add_u32 s59, s59, s58"); a("s_add_u32 s54, s54, 1")
                vm.issue(f"buffer_load_dwordx4 {V(ACT+8*b+4*st,4)}, v{V_L16}, {srd(S_WS)}, s59 offen offset:{st*1024} sc1", tag=("act", k))
            return [(f, 16 if st == 0 else 4)]
        PD = self.o.get("pd_small", 6)
        for k in range(PD):
            for f, _ in ld_act(k): f()
        def ld_res():
            a("s_lshl_b32 s50, s49, 1"); a("s_add_u32 s50, s50, s53"); a("s_mul_i32 s51, s52, 14"); a("s_add_u32 s50, s50, s51")
            a("s_lshl_b32 s55, s50, 11"); a(f"s_add_u32 s55, s55, {HFR}")
            for h in range(2):
                vm.issue(f"buffer_load_dwordx4 {V(XR+4*h,4)}, v{V_L16}, {srd(S_WS)}, s55 offen offset:{h*1024} sc1", tag="xr")
        vm.wait("wo" if isB else "wout"); a("s_barrier")
        ACC = R.alloc(32); WF = R.alloc(24)
        nk = 2 * NB
        def rd(k):
            out = []
            for c in range(2):
                for e in range(2):
                    r = WF + (k % 3)*8 + c*4 + e*2
                    out.append((f"ds_read_b64_tr_b16 v[{r}:{r+1}], v{B0+c} offset:{(k//2)*4096 + ((k%2)*16 + 8*e)*128}", 4))
            return out
        for k in range(2):
            for x, _ in rd(k): a(x)
        for k in range(nk):
            a(f"s_waitcnt lgkmcnt({4 if k + 1 < nk else 0})")
            vm.wait(("act", k))
            wb = WF + (k % 3) * 8
            mf = [f"{MFMA} {V(ACC+16*c,16)}, {V(wb+4*c,4)}, {V(ACT+4*k,4)}, {'0' if k == 0 else V(ACC+16*c,16)}" for c in range(2)]
            fill = (ld_act(k + PD) if k + PD < nk else []) + (rd(k + 2) if k + 2 < nk else [])
            if not isB and k == nk - PD: fill.append((ld_res, 32))
            if isB and self.o.get("img2_late", 1):
                if k == nk - PD:
                    self.stage_setup_l = lambda: self.stage_setup(99, 3584, 101, 100)
                    fill.append((self.stage_setup_l, 16))
                    img2l = self.stage_list(S_WIN, VWI, 101, 100, self.pairs_win(0, 81920), "w2")
                if k >= nk - PD:
                    fill += img2l[:3]; img2l = img2l[3:]
            self.sched(mf, fill)
        R.free(WF, 24); R.free(ACT, 8*NB)
        img1 = []
        if isB and self.o.get("img1_in_b", 1):
            if self.o.get("img2_late", 1):
                for f, _ in img2l: f()
            a("s_barrier")
            self.stage_setup(99, 3584, 101, 100)
            img1 = self.stage_list(S_WIN, VWI, 101, 100, self.pairs_win(1, 0), "w")
            for f, _ in img1[:4]: f()
            img1 = img1[4:]
        LEX = 65536 if isB else 57344
        a(f"s_lshl_b32 s50, s{S_WAVE}, 12"); a(f"s_add_u32 s50, s50, {LEX}"); a(f"v_add_u32 v{t}, s50, v{V_L16}")
        a(f"s_xor_b32 s51, s{S_WAVE}, 2"); a("s_lshl_b32 s51, s51, 12"); a(f"s_add_u32 s51, s51, {LEX}"); a(f"v_add_u32 v{t+1}, s51, v{V_L16}")
        La = a.label("L_x"); Lb = a.label("L_x")
        a(f"s_cmp_lt_u32 s{S_WAVE}, 2"); a(f"s_cbranch_scc1 {La}")
        for q in range(4): a(f"ds_write_b128 v{t}, {V(ACC+4*q,4)} offset:{q*1024}")
        a("s_nop 1")
        for r in range(0, 16, 2): a(f"v_pk_mul_f32 {V(ACC+r,2)}, {V(ACC+16+r,2)}, 1.0 op_sel_hi:[1,0]")
        a(f"s_branch {Lb}")
        a(f"{La}:")
        for q in range(4): a(f"ds_write_b128 v{t}, {V(ACC+16+4*q,4)} offset:{q*1024}")
        a(f"{Lb}:")
        a("s_waitcnt lgkmcnt(0)"); a("s_barrier")
        for q in range(4): a(f"ds_read_b128 {V(ACC+16+4*q,4)}, v{t+1} offset:{q*1024}")
        self.stamp(f"{ph}@2")
        T0 = R.alloc(); T1 = R.alloc(); PF = R.alloc(8); XF = R.alloc(16)
        vm.wait("xr")
        for d in range(8):
            a(f"v_lshlrev_b32 v{XF+2*d}, 16, v{XR+d}"); a(f"v_and_b32 v{XF+2*d+1}, 0xffff0000, v{XR+d}")
        for r in range(0, 16, 2): a(f"v_pk_add_f32 {V(ACC+r,2)}, {V(ACC+r,2)}, {V(XF+r,2)}")
        a("s_waitcnt lgkmcnt(0)")
        for r in range(0, 16, 2): a(f"v_pk_add_f32 {V(ACC+r,2)}, {V(ACC+r,2)}, {V(ACC+16+r,2)}")
        for d in range(8): a(f"v_cvt_pk_bf16_f32 v{PF+d}, v{ACC+2*d}, v{ACC+2*d+1}")
        if isB:
            for f, _ in img1[:3]: f()
            img1 = img1[3:]
            a("s_lshl_b32 s50, s49, 1"); a("s_add_u32 s50, s50, s53"); a("s_mul_i32 s51, s52, 14"); a("s_add_u32 s50, s50, s51")
            a("s_lshl_b32 s55, s50, 11"); a(f"s_add_u32 s55, s55, {HFR}")
            for h in range(2):
                vm.issue(f"buffer_store_dwordx4 {V(PF+4*h,4)}, v{V_L16}, {srd(S_WS)}, s55 offen offset:{h*1024} sc1")
            PS = R.alloc(2); P2 = R.alloc(2)
            a(f"v_pk_add_f32 {V(PS,2)}, {V(ACC,2)}, {V(ACC+2,2)}"); a(f"v_pk_mul_f32 {V(P2,2)}, {V(ACC,2)}, {V(ACC,2)}")
            a(f"v_pk_fma_f32 {V(P2,2)}, {V(ACC+2,2)}, {V(ACC+2,2)}, {V(P2,2)}")
            for r in range(4, 16, 2):
                a(f"v_pk_add_f32 {V(PS,2)}, {V(PS,2)}, {V(ACC+r,2)}"); a(f"v_pk_fma_f32 {V(P2,2)}, {V(ACC+r,2)}, {V(ACC+r,2)}, {V(P2,2)}")
            a(f"v_add_f32 v{PS}, v{PS}, v{PS+1}"); a(f"v_add_f32 v{PS+1}, v{P2}, v{P2+1}")
            self.half_op(PS, T0); self.half_op(PS+1, T1)
            a(f"v_lshlrev_b32 v{T0}, 3, v{V_L31}")
            a("s_lshl_b32 s55, s50, 8"); a(f"s_add_u32 s55, s55, {HST}")
            vm.issue(f"buffer_store_dwordx2 {V(PS,2)}, v{T0}, {srd(S_WS)}, s55 offen sc1", tag="hst")
            a("s_lshr_b32 s55, s48, 1"); a("s_lshl_b32 s55, s55, 7"); a("s_and_b32 s50, s48, 1"); a("s_mul_i32 s50, s50, 7"); a("s_add_u32 s50, s50, s49")
            a("s_lshl_b32 s50, s50, 2"); a("s_add_u32 s55, s55, s50"); a(f"s_add_u32 s55, s55, {F_H}")
            for f, _ in img1: f()
            self.set_flag(55, tag="hst")
        else:
            for p in range(2):
                a(f"v_permlane32_swap_b32 v{PF+4*p}, v{PF+4*p+2}"); a(f"v_permlane32_swap_b32 v{PF+4*p+1}, v{PF+4*p+3}")
            a(f"v_mul_u32_u24 v{T0}, 896, v{V_L31}"); a(f"v_lshlrev_b32 v{T1}, 4, v{V_HH}"); a(f"v_add_u32 v{T0}, v{T0}, v{T1}")
            a(f"s_mul_i32 s54, s52, {32*896}"); a("s_lshl_b32 s50, s49, 7"); a("s_add_u32 s54, s54, s50"); a("s_lshl_b32 s50, s53, 6"); a("s_add_u32 s54, s54, s50")
            for p in range(2):
                vm.issue(f"buffer_store_dwordx4 {V(PF+4*p,4)}, v{T0}, {srd(S_OUT)}, s54 offen offset:{p*32}{self.o.get('out_flags', '')}")
        if isB: self.idle_prefetch(skip, 0)
        else: a(f"{skip}:")
        self.stamp(f"{ph}@3")

    def phase_B(self):
        self.a.c("================ phase B : h = x + o @ wo ================"); self.small_phase("B")
    def phase_E(self):
        self.a.c("================ phase E : out = h + u @ w_out ================"); self.small_phase("E")

    def phase_C(self):
        a, vm, R = self.a, self.vm, self.R
        R.reset()
        a.c("================ phase C : z = gelu(LN(h) @ w_in) ================")
        skip = "L_skipC"
        a(f"s_cmp_ge_u32 s{S_SLOT}, 28"); a(f"s_cbranch_scc1 {skip}")
        a(f"s_cmp_ge_u32 s{S_SLOT}, 14"); a("s_cselect_b32 s50, 1, 0")
        a("s_mul_i32 s51, s50, 14"); a(f"s_sub_u32 s49, s{S_SLOT}, s51")
        a(f"s_lshl_b32 s48, s{S_XCD}, 1"); a("s_add_u32 s48, s48, s50")
        a(f"s_lshl_b32 s52, s48, 2"); a(f"s_add_u32 s52, s52, s{S_WAVE}")
        self.stamp("C@0")
        IMG = (81920, 0)
        LCS = 57344; LTR = LCS + 512
        t = R.alloc(4, 1); VW = R.alloc()
        self.w128_lane(VW, 3584, t)
        if not self.o.get("img1_in_b", 1):
            self.stage_setup(49, 3584, 101, 100)
            for f, _ in self.stage_list(S_WIN, VW, 101, 100, self.pairs_win(1, IMG[1]), "w"): f()
        B2 = R.alloc(2, 1); B1 = R.alloc(2, 1)
        self.w128_bases(B2, t, None, IMG[0])
        for c in range(2): a(f"v_subrev_u32 v{B1+c}, {IMG[0] - IMG[1]}, v{B2+c}")
        ONES = R.alloc(4)
        for k in range(4): a(f"v_mov_b32 v{ONES+k}, 0x3f803f80")
        BC = R.alloc(); CSA = R.alloc(16)
        a(f"s_lshr_b32 s50, s{S_WAVE}, 1"); a(f"s_mul_i32 s50, s50, {IMG[0] - IMG[1]}")
        a(f"s_and_b32 s51, s{S_WAVE}, 1"); a("s_cmp_eq_u32 s51, 0")
        a(f"v_mov_b32 v{BC}, v{B2+1}"); a("s_cselect_b64 vcc, -1, 0"); a(f"v_cndmask_b32 v{BC}, v{BC}, v{B2}, vcc"); a(f"v_subrev_u32 v{BC}, s50, v{BC}")
        WC = R.alloc(16)
        self.stamp("Cv")
        vm.wait("w"); a("s_barrier")
        self.stamp("Cw")
        def rdc(k): return [(f"ds_read_b64_tr_b16 v[{WC+(k%4)*4+e*2}:{WC+(k%4)*4+e*2+1}], v{BC} offset:{k*2048 + e*1024}", 4) for e in range(2)]
        for k in range(3):
            for x, _ in rdc(k): a(x)
        for k in range(28):
            a(f"s_waitcnt lgkmcnt({min(4, 2*(27-k))})")
            self.sched([f"{MFMA} {V(CSA,16)}, {V(WC+(k%4)*4,4)}, {V(ONES,4)}, {'0' if k == 0 else V(CSA,16)}"], rdc(k + 3) if k + 3 < 28 else [])
        a(f"v_lshlrev_b32 v{t}, 4, v{V_HH}"); a(f"s_lshl_b32 s50, s{S_WAVE}, 7"); a(f"s_add_u32 s50, s50, {LCS}"); a(f"v_add_u32 v{t}, s50, v{t}")
        a("s_mov_b32 exec_lo, 1"); a("s_mov_b32 exec_hi, 1")
        for gg in range(4): a(f"ds_write_b128 v{t}, {V(CSA+4*gg,4)} offset:{gg*32}")
        a("s_mov_b64 exec, -1")
        a("s_waitcnt lgkmcnt(0)")
        self.stamp("Cc")
        R.free(CSA, 16); R.free(WC, 16)
        a(f"s_lshl_b32 s55, s48, 7"); a(f"s_add_u32 s55, s55, {F_H}")
        self.poll(55, 14, drain=False)
        self.stamp("C@1")
        T0 = R.alloc(); T1 = R.alloc()
        HS = R.alloc(14, 2)
        a("s_mul_i32 s55, s52, 14"); a("s_lshl_b32 s54, s55, 11"); a(f"s_add_u32 s54, s54, {HFR}")
        a("s_lshl_b32 s58, s49, 1" if self.o.get("rot_c", 0) else "s_mov_b32 s58, 0")
        def ld_h(k):
            def f():
                a("s_cmp_ge_u32 s58, 28"); a("s_cselect_b32 s50, 28, 0"); a("s_sub_u32 s58, s58, s50")
                a("s_lshl_b32 s56, s58, 10"); a("s_add_u32 s56, s56, s54")
                vm.issue(f"buffer_load_dwordx4 {A(4*k,4)}, v{V_L16}, {srd(S_WS)}, s56 offen sc1", tag=("act", k))
                a("s_add_u32 s58, s58, 1")
            return [(f, 24)]
        def ld_hs():
            a(f"v_mul_u32_u24 v{T0}, {7*256}, v{V_HH}"); a(f"v_lshlrev_b32 v{T1}, 3, v{V_L31}"); a(f"v_add_u32 v{T0}, v{T0}, v{T1}")
            a("s_lshl_b32 s55, s55, 8"); a(f"s_add_u32 s55, s55, {HST}")
            for q in range(7):
                vm.issue(f"buffer_load_dwordx2 {V(HS+2*q,2)}, v{T0}, {srd(S_WS)}, s55 offen offset:{q*256} sc1", tag="hs")
        PD = self.o.get("pd_c", 10)
        for k in range(PD):
            for f, _ in ld_h(k): f()
        self.stamp("Ci")
        Z = R.alloc(64)
        WG = R.alloc(24)
        def rd(k, B, kk):
            out = []
            for c in range(2):
                for e in range(2):
                    r = WG + (kk % 3)*8 + c*4 + e*2
                    out.append((f"ds_read_b64_tr_b16 v[{r}:{r+1}], v{B+c} offset:{k*2048 + e*1024}", 4))
            return out
        CSR = R.alloc(32); VT = R.alloc()
        a(f"v_lshlrev_b32 v{VT}, 4, v{V_HH}"); a(f"v_add_u32 v{VT}, {LCS}, v{VT}")
        for x, _ in rd(0, B2, 0) + rd(1, B2, 1): a(x)
        MEAN = R.alloc(2); RSTD = MEAN + 1
        K0 = R.alloc(2); S0 = R.alloc(2); Q0 = R.alloc(2); TT = R.alloc(8)
        k0 = -2.0 * LOG2E * math.sqrt(2 / math.pi); k1 = k0 * 0.044715
        pre = [(lambda: vm.wait("hs"), 4), (f"v_mov_b32 v{MEAN}, v{HS}", 4), (f"v_mov_b32 v{RSTD}, v{HS+1}", 4)]
        for q in range(1, 7): pre += [(f"v_add_f32 v{MEAN}, v{MEAN}, v{HS+2*q}", 4), (f"v_add_f32 v{RSTD}, v{RSTD}, v{HS+2*q+1}", 4)]
        pre += [(lambda: self.half_op(MEAN, T0), 16), (lambda: self.half_op(RSTD, T1), 16)]
        pre += [(f"v_mul_f32 v{MEAN}, {lit(1/448)}, v{MEAN}", 4), (f"v_mul_f32 v{RSTD}, {lit(1/448)}, v{RSTD}", 4), (f"v_fma_f32 v{RSTD}, -v{MEAN}, v{MEAN}, v{RSTD}", 4),
                (f"v_max_f32 v{RSTD}, 0, v{RSTD}", 4), (f"v_add_f32 v{RSTD}, {lit(1e-5)}, v{RSTD}", 4), (f"v_rsq_f32 v{RSTD}, v{RSTD}", 8),
                (f"s_mov_b32 s62, {lit(k1)}", 4), (f"s_mov_b32 s63, {lit(k1)}", 4), (f"v_mov_b32 v{K0}, {lit(k0)}", 4), (f"v_mov_b32 v{K0+1}, {lit(k0)}", 4)]
        for k in range(28):
            a(f"s_waitcnt lgkmcnt({4 if k + 1 < 28 else 0})")
            vm.wait(("act", k))
            if k in (0, 7, 14, 21): self.stamp(f"Ck{k}")
            wb = WG + (k % 3) * 8
            fill = (ld_h(k + PD) if k + PD < 28 else []) + (rd(k + 2, B2, k + 2) if k + 2 < 28 else rd(k + 2 - 28, B1, k + 2))
            if k == 28 - PD: fill.append((ld_hs, 48))
            if k == 26: fill += [(f"ds_read_b128 {V(CSR+16*c+4*gg,4)}, v{VT} offset:{c*128+gg*32}", 4) for c in range(2) for gg in range(4)]
            mf = [f"{MFMA} {V(Z+16*c,16)}, {V(wb+4*c,4)}, {A(4*k,4)}, {'0' if k == 0 else V(Z+16*c,16)}" for c in range(2)]
            self.sched(mf, fill)
        for f, _ in pre: self.emit_fill(f)
        a("s_barrier")
        self.stamp("C@2")
        self.d_map(); self.DVE = R.alloc(); self.DVO = R.alloc(); td = R.alloc(4, 1)
        self.d_lanes(self.DVE, self.DVO, td); R.free(td, 4)
        allit, self.d_early_blocks = self.d_early_items(self.DVE, self.DVO)
        now = []; later = []
        for n, (b, kh) in enumerate(self.d_early_blocks):
            (now if (kh == 1 or b == 7) else later).extend(allit[2*n:2*n+2])
        n_g = self.o.get("early_in_gelu", 6)
        if self.o.get("stage_after", 0):
            now = []; later = allit
        touch = now[:n_g]; now = now[n_g:]
        PF = R.alloc(16)
        def gelu_pk(zbase, pack, marks=None):
            nonlocal touch
            ins = []
            for r0 in range(0, 32, 8):
                zs = [zbase + r0 + 2*i for i in range(4)]; cs = [CSR + r0 + 2*i for i in range(4)]
                ins += [f"v_pk_fma_f32 {V(z,2)}, {V(MEAN,2)}, {V(c,2)}, {V(z,2)} op_sel_hi:[0,1,1] neg_lo:[1,0,0] neg_hi:[1,0,0]" for z, c in zip(zs, cs)]
                ins += [f"v_pk_mul_f32 {V(z,2)}, {V(z,2)}, {V(MEAN,2)} op_sel:[0,1] op_sel_hi:[1,1]" for z in zs]
                ins += [f"v_pk_mul_f32 {V(TT+2*i,2)}, {V(z,2)}, {V(z,2)}" for i, z in enumerate(zs)]
                ins += [f"v_pk_fma_f32 {V(TT+2*i,2)}, {V(TT+2*i,2)}, s[62:63], {V(K0,2)}" for i in range(4)]
                ins += [f"v_pk_mul_f32 {V(TT+2*i,2)}, {V(TT+2*i,2)}, {V(z,2)}" for i, z in enumerate(zs)]
                ins += [f"v_exp_f32 v{TT+i}, v{TT+i}" for i in range(8)]
                ins += [f"v_pk_add_f32 {V(TT+2*i,2)}, {V(TT+2*i,2)}, 1.0 op_sel_hi:[1,0]" for i in range(4)]
                ins += [f"v_rcp_f32 v{TT+i}, v{TT+i}" for i in range(8)]
                ins += [f"v_pk_mul_f32 {V(z,2)}, {V(z,2)}, {V(TT+2*i,2)}" for i, z in enumerate(zs)]
                if pack:
                    ins += [f"v_cvt_pk_bf16_f32 v{PF + r0//2 + i}, v{z}, v{z+1}" for i, z in enumerate(zs)]
                else:
                    for i, z in enumerate(zs):
                        if r0 == 0 and i == 0:
                            ins += [f"v_pk_mul_f32 {V(Q0,2)}, {V(z,2)}, {V(z,2)}", f"v_pk_mul_f32 {V(S0,2)}, {V(z,2)}, 1.0 op_sel_hi:[1,0]"]
                        else:
                            ins += [f"v_pk_fma_f32 {V(Q0,2)}, {V(z,2)}, {V(z,2)}, {V(Q0,2)}", f"v_pk_add_f32 {V(S0,2)}, {V(S0,2)}, {V(z,2)}"]
                if marks and r0 in marks: ins.append(marks[r0])
            gap = self.o.get("early_gap", 24)
            for n, x in enumerate(ins):
                self.emit_fill(x)
                if touch and n % gap == gap - 1:
                    self.emit_fill(touch[0][0]); touch = touch[1:]
        a("s_waitcnt lgkmcnt(0)") if False else None
        a("s_waitcnt lgkmcnt(8)")
        a("s_waitcnt lgkmcnt(0)")
        gelu_pk(Z, False)
        G = R.alloc(4)
        a(f"v_add_f32 v{G}, v{S0}, v{S0+1}"); a(f"v_add_f32 v{G+1}, v{Q0}, v{Q0+1}")
        self.half_op(G, T0); self.half_op(G+1, T1)
        a(f"v_mov_b32 v{G+2}, s{S_TAG}"); a(f"v_mov_b32 v{G+3}, s{S_TAG}")
        a("s_mul_i32 s55, s48, 14"); a("s_add_u32 s55, s55, s49"); a("s_lshl_b32 s55, s55, 11"); a(f"s_lshl_b32 s50, s{S_WAVE}, 9"); a("s_add_u32 s55, s55, s50")
        a(f"s_add_u32 s55, s55, {STATS}"); a(f"v_lshlrev_b32 v{T1}, 4, v{V_L31}")
        vm.issue(f"buffer_store_dwordx4 {V(G,4)}, v{T1}, {srd(S_WS)}, s55 offen sc1")
        self.stamp("C@3")
        GR = R.alloc(28)
        a(f"v_mul_u32_u24 v{T0}, {7*2048}, v{V_HH}"); a(f"v_add_u32 v{T1}, v{T1}, v{T0}")
        a("s_mul_i32 s55, s48, 14"); a("s_lshl_b32 s55, s55, 11"); a(f"s_lshl_b32 s50, s{S_WAVE}, 9"); a("s_add_u32 s55, s55, s50"); a(f"s_add_u32 s55, s55, {STATS}")
        def gr_loads():
            a("s_mov_b32 s54, s55")
            for q in range(7):
                if q and q % 2 == 0: a("s_add_u32 s54, s54, 4096")
                vm.issue(f"buffer_load_dwordx4 {V(GR+4*q,4)}, v{T1}, {srd(S_WS)}, s54 offen offset:{(q%2)*2048} sc1", tag="gr")
        WA = R.alloc(4, 1); RA = R.alloc(2, 1); U0 = R.alloc(); U1 = R.alloc(); U2 = R.alloc()
        adr = []
        adr += [f"s_lshl_b32 s68, s{S_WAVE}, 12", f"s_add_u32 s68, s68, {LTR}",
                f"v_lshrrev_b32 v{U0}, 1, v{V_L31}", f"v_and_b32 v{U0}, 7, v{U0}", f"v_xor_b32 v{U0}, v{U0}, v{V_HH}", f"v_lshlrev_b32 v{U0}, 3, v{U0}",
                f"v_lshlrev_b32 v{WA}, 6, v{V_L31}", f"v_add_u32 v{WA}, v{WA}, v{U0}", f"v_add_u32 v{WA}, s68, v{WA}"]
        adr += [f"v_xor_b32 v{WA+g}, {g<<4}, v{WA}" for g in range(1, 4)]
        adr += [f"v_lshrrev_b32 v{U0}, 2, v{V_LANE}", f"v_and_b32 v{U0}, 3, v{U0}", f"v_lshlrev_b32 v{U1}, 3, v{V_HH}", f"v_add_u32 v{U1}, v{U1}, v{U0}", f"v_lshlrev_b32 v{RA}, 6, v{U1}",
                f"v_lshrrev_b32 v{U0}, 1, v{U0}", f"v_lshlrev_b32 v{U1}, 2, v{V_HH}", f"v_add_u32 v{U0}, v{U0}, v{U1}",
                f"v_lshrrev_b32 v{U1}, 4, v{V_LANE}", f"v_and_b32 v{U1}, 1, v{U1}", f"v_lshlrev_b32 v{U1}, 2, v{U1}", f"v_and_b32 v{U2}, 3, v{V_LANE}", f"v_add_u32 v{U1}, v{U1}, v{U2}",
                f"v_xor_b32 v{U0}, v{U0}, v{U1}", f"v_lshlrev_b32 v{U0}, 3, v{U0}", f"v_add_u32 v{RA}, v{RA}, v{U0}", f"v_add_u32 v{RA}, s68, v{RA}", f"v_xor_b32 v{RA+1}, 16, v{RA}"]
        adr = [(x, 4) for x in adr]
        KSPLIT = self.o.get("z1_split", 20)
        def z1_steps(k0_, k1_):
          nonlocal touch, adr
          for k in range(k0_, k1_):
            kk = k + 28
            a(f"s_waitcnt lgkmcnt({4 if (k + 1 < 28 and k > 0 and k != KSPLIT) else 0})")
            wb = WG + (kk % 3) * 8
            fill = rd(k + 2, B1, kk + 2) if k + 2 < 28 else []
            if k == min(self.o.get("gr_at", 12), KSPLIT - 6): fill.append((gr_loads, 40))
            if k == 24: fill += [(f"ds_read_b128 {V(CSR+16*c+4*gg,4)}, v{VT} offset:{256+c*128+gg*32}", 4) for c in range(2) for gg in range(4)]
            fill += adr[:3]; adr = adr[3:]
            if k == 0: touch = touch + now
            if touch and k >= self.o.get("early_k0", 2) and k < KSPLIT: fill.append(touch[0]); touch = touch[1:]
            mf = [f"{MFMA} {V(Z+32+16*c,16)}, {V(wb+4*c,4)}, {A(4*k,4)}, {'0' if k == 0 else V(Z+32+16*c,16)}" for c in range(2)]
            self.sched(mf, fill)
        z1_steps(0, KSPLIT)
        for f, _ in adr: self.emit_fill(f)
        for f, _ in touch: self.emit_fill(f)
        touch = []
        R.free(HS, 14)
        self.stamp("C@4")
        Lp = a.label("L_sp"); Ld = a.label("L_sd")
        vm.wait("gr")
        a("s_mov_b32 s70, 0"); a(f"{Lp}:")
        a(f"v_xor_b32 v{T0}, s{S_TAG}, v{GR+2}")
        for q in range(1, 7):
            a(f"v_xor_b32 v{G}, s{S_TAG}, v{GR+4*q+2}"); a(f"v_or_b32 v{T0}, v{T0}, v{G}")
        a(f"v_cmp_ne_u32 vcc, 0, v{T0}"); a(f"s_cbranch_vccz {Ld}")
        a("s_mov_b32 s54, s55")
        for q in range(7):
            if q and q % 2 == 0: a("s_add_u32 s54, s54, 4096")
            a(f"buffer_load_dwordx4 {V(GR+4*q,4)}, v{T1}, {srd(S_WS)}, s54 offen offset:{(q%2)*2048} sc1")
        a("s_waitcnt vmcnt(0)")
        a("s_add_u32 s70, s70, 1"); a("s_cmp_lt_u32 s70, 20000"); a(f"s_cbranch_scc1 {Lp}")
        a(f"{Ld}:")
        self.stamp("C@s")
        for q in range(1, 7): a(f"v_pk_add_f32 {V(GR,2)}, {V(GR,2)}, {V(GR+4*q,2)}")
        self.half_op(GR, T0); self.half_op(GR+1, G)
        M3, R3 = GR, GR+1
        a(f"v_mul_f32 v{M3}, {lit(1/896)}, v{M3}"); a(f"v_mul_f32 v{R3}, {lit(1/896)}, v{R3}")
        a(f"v_fma_f32 v{R3}, -v{M3}, v{M3}, v{R3}"); a(f"v_max_f32 v{R3}, 0, v{R3}")
        a(f"v_add_f32 v{R3}, {lit(1e-5)}, v{R3}"); a(f"v_rsq_f32 v{R3}, v{R3}")
        a("s_nop 0")
        a(f"v_mul_f32 v{M3}, v{M3}, v{R3}")
        PZ = GR + 4
        for c in range(2):
            for r in range(0, 16, 2): a(f"v_pk_fma_f32 {V(Z+16*c+r,2)}, {V(Z+16*c+r,2)}, {V(M3,2)}, {V(M3,2)} op_sel:[0,1,0] op_sel_hi:[1,1,0] neg_lo:[0,0,1] neg_hi:[0,0,1]")
            for d in range(8): a(f"v_cvt_pk_bf16_f32 v{PZ+8*c+d}, v{Z+16*c+2*d}, v{Z+16*c+2*d+1}")
            for g in range(4): a(f"ds_write_b64 v{WA+g}, {V(PZ+8*c+2*g,2)} offset:{c*2048}")
        a("s_waitcnt lgkmcnt(0)")
        for c in range(2):
            for st in range(2):
                for e in range(2):
                    r = PZ + 8*c + 4*st + 2*e
                    a(f"ds_read_b64_tr_b16 v[{r}:{r+1}], v{RA+e} offset:{c*2048 + st*1024 + e*256}")
        for c in range(2):
            a("s_lshl_b32 s55, s49, 1"); a(f"s_add_u32 s55, s55, {c}"); a("s_lshl_b32 s55, s55, 6"); a("s_add_u32 s55, s55, s52"); a("s_lshl_b32 s55, s55, 11"); a(f"s_add_u32 s55, s55, {Z2F}")
            a(f"s_waitcnt lgkmcnt({4 if c == 0 else 0})")
            for st in range(2):
                vm.issue(f"buffer_store_dwordx4 {V(PZ+8*c+4*st,4)}, v{V_L16}, {srd(S_WS)}, s55 offen offset:{st*1024} sc1", tag="z2st")
        z1_steps(KSPLIT, 28)
        R.free(WG, 24)
        a("s_waitcnt lgkmcnt(0)")
        a("s_barrier")
        touch = later
        a("s_lshl_b32 s55, s49, 7"); a("s_lshl_b32 s50, s48, 2"); a("s_add_u32 s55, s55, s50"); a(f"s_add_u32 s55, s55, {F_Z}")
        def flag_now():
            self.set_flag(55, tag="z2st"); self.stamp("C@5")
        gelu_pk(Z + 32, True, {self.o.get("zflag_at", 0): flag_now})
        a("s_mul_i32 s56, s52, 28"); a("s_lshl_b32 s50, s49, 1"); a("s_add_u32 s56, s56, s50"); a("s_lshl_b32 s56, s56, 11"); a(f"s_add_u32 s56, s56, {Z1F}")
        for q in range(4):
            vm.issue(f"buffer_store_dwordx4 {V(PF+4*q,4)}, v{V_L16}, {srd(S_WS)}, s56 offen offset:{q*1024} sc1", tag="z1st")
        for f, _ in touch: self.emit_fill(f)
        self.idle_prefetch(skip, 1)
        self.stamp("C@6")

    def phase_D(self):
        a, vm, R = self.a, self.vm, self.R
        R.reset()
        a.c("================ phase D : g = w_sp @ z2n + b ; u = z1*g ================")
        skip = "L_skipD"
        a(f"s_cmp_ge_u32 s{S_SLOT}, 28"); a(f"s_cbranch_scc1 {skip}")
        self.d_map()
        a("s_mov_b32 s49, s94"); a("s_mov_b32 s48, s95"); a("s_mov_b32 s54, s96")
        self.stamp("D@0")
        NS = 8
        a(f"s_lshr_b32 s53, s{S_WAVE}, 1"); a(f"s_and_b32 s52, s{S_WAVE}, 1")
        t = R.alloc(4, 1); VE = R.alloc(); VO = R.alloc()
        self.d_lanes(VE, VO, t)
        a("s_lshl_b32 s55, s48, 18"); a("s_lshl_b32 s50, s53, 11"); a("s_add_u32 s55, s55, s50"); a("s_lshl_b32 s50, s52, 17"); a("s_add_u32 s55, s55, s50")
        a("s_mul_i32 s57, s53, 81920"); a("s_lshl_b32 s50, s52, 12"); a("s_add_u32 s57, s57, s50")
        a("s_mov_b32 s67, 147456"); a("s_cmp_eq_u32 s53, 0"); a(f"s_cselect_b32 s67, s67, {81920 + 7*8192}"); a("s_add_u32 s67, s67, s50")
        def blk_idx(b, dst):
            a(f"s_add_u32 s{dst}, s54, {b}"); a(f"s_and_b32 s{dst}, s{dst}, 15")
        def dma(b):
            out = []
            def pre(): blk_idx(b, 58); a("s_lshl_b32 s58, s58, 7"); a("s_add_u32 s58, s58, s55")
            out.append((pre, 16))
            for q in range(4):
                def f(q=q):
                    if b % NS < 7: a(f"s_add_u32 m0, s57, {(b%NS)*8192 + q*1024}")
                    else: a(f"s_add_u32 m0, s67, {q*1024}")
                    a(f"s_add_u32 s56, s58, {q*8*4096}")
                    vm.issue(f"buffer_load_dwordx4 v{VE if q%2==0 else VO}, {srd(S_WSP)}, s56 offen lds", tag=("w", b))
                out.append((f, 16))
            return out
        early = set(self.d_early_blocks) if self.o.get("early_d", 1) else set()
        NPRE = NS if early else self.o.get("npre", 4)
        a("s_lshl_b32 s61, s48, 18")
        items = []; tags = []
        for b in range(NPRE):
            for kh_ in range(2):
                if (b, kh_) in early: continue
                for q in range(8):
                    def it(st, b=b, kh_=kh_, q=q):
                        if st.get("b") != b:
                            blk_idx(b, 58); a("s_lshl_b32 s58, s58, 7"); a("s_add_u32 s58, s58, s61"); st["b"] = b
                        a(f"s_mov_b32 m0, {self.d_slot(kh_, b) + q*1024}"); a(f"s_add_u32 s56, s58, {kh_*2048 + q*8*4096}")
                        a(f"buffer_load_dwordx4 v{VE if q%2==0 else VO}, {srd(S_WSP)}, s56 offen lds")
                    items.append(it); tags.append(("w", b))
        if items: self.dma_by_123(items, lambda n: tags[n])
        FA = R.alloc(4, 1)
        a(f"v_lshrrev_b32 v{t}, 1, v{V_L31}"); a(f"v_and_b32 v{t}, 7, v{t}"); a(f"v_xor_b32 v{t}, v{t}, v{V_HH}"); a(f"v_lshlrev_b32 v{t}, 4, v{t}")
        a(f"v_lshlrev_b32 v{FA}, 7, v{V_L31}"); a(f"v_add_u32 v{FA}, v{FA}, v{t}")
        FA7 = R.alloc(4, 1)
        a("s_lshl_b32 s50, s52, 12"); a("s_sub_u32 s51, s67, s50"); a(f"v_add_u32 v{FA7}, s51, v{FA}")
        a("s_sub_u32 s51, s57, s50"); a(f"v_add_u32 v{FA}, s51, v{FA}")
        for s in range(1, 4): a(f"v_xor_b32 v{FA+s}, {s*32}, v{FA}"); a(f"v_xor_b32 v{FA7+s}, {s*32}, v{FA7}")
        BI = R.alloc()
        a(f"v_lshlrev_b32 v{t}, 1, v{V_L31}"); a("s_lshl_b32 s50, s48, 7"); a("s_lshl_b32 s51, s53, 6"); a("s_add_u32 s50, s50, s51")
        vm.issue(f"buffer_load_ushort v{BI}, v{t}, {srd(S_BSP)}, s50 offen", tag="bi")
        VZ = R.alloc(2, 1)
        a("s_lshl_b32 s50, s49, 2"); a("s_lshl_b32 s51, s52, 1"); a("s_add_u32 s50, s50, s51"); a("s_lshl_b32 s50, s50, 6"); a("s_lshl_b32 s51, s53, 5"); a("s_add_u32 s50, s50, s51")
        a("s_lshl_b32 s50, s50, 11"); a(f"s_add_u32 s50, s50, {Z2F}"); a(f"v_add_u32 v{VZ}, s50, v{V_L16}"); a(f"v_add_u32 v{VZ+1}, {64*2048}, v{VZ}")
        a(f"v_and_b32 v9, 7, v{V_LANE}"); a("v_lshlrev_b32 v9, 2, v9")
        a("s_lshl_b32 s66, s49, 1"); a("s_add_u32 s66, s66, s52"); a("s_lshl_b32 s66, s66, 7"); a("s_lshl_b32 s50, s53, 5"); a("s_add_u32 s66, s66, s50"); a(f"s_add_u32 s66, s66, {F_Z}")
        if self.o.get("prog_d", 1):
            self.gate_first(0)
        else:
            a(f"v_and_b32 v9, 15, v{V_LANE}"); a("v_lshlrev_b32 v9, 2, v9"); a(f"v_lshrrev_b32 v{t}, 4, v{V_LANE}"); a(f"v_and_b32 v{t}, 1, v{t}"); a(f"v_lshlrev_b32 v{t}, 7, v{t}"); a(f"v_add_u32 v9, v9, v{t}")
            a("s_lshl_b32 s59, s49, 8"); a(f"s_add_u32 s59, s59, {F_Z}")
            self.poll(59, 32, voff=9, drain=False)
        self.stamp("D@1")
        ND = self.o.get("nd", 12)
        ZR = R.alloc(8 * ND); WF = R.alloc(24); Z1 = R.alloc(16); VWO = R.alloc(); tw = R.alloc(4, 1)
        def ldz(k):
            out = []
            b, sp = k // 4, k % 4
            if self.o.get("prog_d", 1):
                if k % 8 == 0 and k > 0:
                    def chk(k=k):
                        self.gate_update(); self.gate_check(k // 8)
                    out.append((chk, 16))
                if k % 8 == 3 and k // 8 + 1 < 8: out.append((self.gate_refresh, 8))
            if sp == 0:
                def pre():
                    blk_idx(b, 60 + (b % 4)); a(f"s_lshl_b32 s{60 + (b % 4)}, s{60 + (b % 4)}, 12")
                    if self.o.get("d_fake"): a(f"s_and_b32 s{60 + (b % 4)}, s{60 + (b % 4)}, {self.o['d_fake']}")
                out.append((pre, 12))
            for c in range(2):
                def f(c=c):
                    r = ZR + 8*(k % ND) + 4*c
                    vm.issue(f"buffer_load_dwordx4 {V(r,4)}, v{VZ+c}, {srd(S_WS)}, s{60 + (b % 4)} offen offset:{sp*1024} sc1", tag=("z", k))
                out.append((f, 8))
            return out
        def rdw(k):
            b, sp = k // 4, k % 4
            if b % NS == 7: return [(f"ds_read_b128 {V(WF+(k%3)*8+tc*4,4)}, v{FA7+sp} offset:{tc*4096}", 4) for tc in range(2)]
            return [(f"ds_read_b128 {V(WF+(k%3)*8+tc*4,4)}, v{FA+sp} offset:{(b%NS)*8192 + tc*4096}", 4) for tc in range(2)]
        INIT = 4
        for k in range(INIT):
            for f, _ in ldz(k): f()
        nz = INIT
        wout = []
        vm.wait(("w", 0)); a("s_barrier")
        def z1flag():
            Lz = a.label("L_z1f")
            a(f"s_cmp_lg_u32 s{S_WAVE}, 0"); a(f"s_cbranch_scc1 {Lz}")
            a(f"s_cmp_ge_u32 s{S_SLOT}, 14"); a("s_cselect_b32 s50, 1, 0"); a("s_mul_i32 s51, s50, 14"); a(f"s_sub_u32 s51, s{S_SLOT}, s51")
            a(f"s_lshl_b32 s68, s{S_XCD}, 1"); a("s_add_u32 s50, s50, s68"); a("s_lshl_b32 s50, s50, 2"); a("s_lshl_b32 s51, s51, 7"); a("s_add_u32 s50, s50, s51"); a(f"s_add_u32 s50, s50, {F_Z1}")
            a(f"v_mov_b32 v{t}, s{S_TAG}"); a(f"v_mov_b32 v{t+1}, 0"); a("s_mov_b64 exec, 1")
            a(f"buffer_store_dword v{t}, v{t+1}, {srd(S_WS)}, s50 offen sc1")
            a("s_mov_b64 exec, -1"); a(f"{Lz}:")
        for k in range(2):
            for x, _ in rdw(k): a(x)
        nbw = NPRE
        for k in range(64):
            b, sp = k // 4, k % 4
            fill = []
            a(f"s_waitcnt lgkmcnt({2 if k + 1 < 64 else 0})")
            vm.wait(("z", k))
            if k + 2 < 64:
                if (k + 2) % 4 == 0:
                    nb = (k + 2) // 4
                    def rdy(nb=nb):
                        if nb == 3: vm.wait("z1st")
                        vm.wait(("w", nb)); a("s_barrier")
                        if nb == 3: z1flag()
                    fill.append((rdy, 8))
                fill += rdw(k + 2)
            for _ in range(2):
                if nz < 64 and nz <= k + ND - 1:
                    fill += ldz(nz); nz += 1
            if k == 59:
                def z1loads():
                    self.gate_update(); self.gate_check(0)
                    a("s_lshl_b32 s50, s48, 1"); a("s_add_u32 s50, s50, s53"); a("s_mul_i32 s50, s50, 28"); a("s_lshl_b32 s51, s49, 2"); a("s_add_u32 s50, s50, s51"); a("s_lshl_b32 s51, s52, 1"); a("s_add_u32 s50, s50, s51")
                    a("s_lshl_b32 s69, s50, 11"); a(f"s_add_u32 s50, s69, {Z1F}")
                    for q in range(4):
                        vm.issue(f"buffer_load_dwordx4 {V(Z1+4*q,4)}, v{V_L16}, {srd(S_WS)}, s50 offen offset:{q*1024} sc1", tag="z1")
                fill.append((z1loads, 64))
            if k == 48:
                def wosetup():
                    self.w128_lane(VWO, 896, tw); self.stage_setup(49, 896, 101, 100)
                fill.append((wosetup, 60))
                wo_items = self.stage_list(S_WOUT, VWO, 101, 100, self.pairs_small("E"), "wout")
                wo_next = 0
            if k >= 52 and self.o.get("wout_in_loop", 0):
                lim = 16 if k < 55 else (20 if k < 59 else (24 if k < 63 else 28))
                n = 0
                while wo_next < lim and n < 3:
                    fill.append(wo_items[wo_next]); wo_next += 1; n += 1
            if k == 54:
                def z1gate():
                    a("s_lshr_b32 s50, s48, 1"); a("s_lshl_b32 s50, s50, 2"); a("s_lshl_b32 s66, s49, 1"); a("s_add_u32 s66, s66, s52"); a("s_lshl_b32 s66, s66, 7")
                    a("s_add_u32 s66, s66, s50"); a(f"s_add_u32 s66, s66, {F_Z1}"); a("v_mov_b32 v9, 0"); self.gate_refresh()
                fill.append((z1gate, 32))
            if sp in (1, 3) and nbw < 16 and (nbw < NS or (sp == 3 and nbw - NS <= b - 1)) and not self.o.get("d_now"):
                fill += dma(nbw); nbw += 1
            wb = WF + (k % 3) * 8; zb = ZR + 8*(k % ND)
            mf = []
            for c in range(2):
                for tc in range(2):
                    acc = A(32*c + 16*tc, 16)
                    mf.append(f"{MFMA} {acc}, {V(zb+4*c,4)}, {V(wb+4*tc,4)}, {'0' if k == 0 else acc}")
            self.sched(mf, fill)
        self.stamp("D@2")
        R.free(ZR, 8*ND); R.free(WF, 24)
        a("s_barrier")
        wo_items = wo_items[wo_next:]
        cnt = [0]
        gap = self.o.get("tail_gap", 12)
        def e(x):
            nonlocal wo_items
            a(x); cnt[0] += 1
            if cnt[0] % gap == 0 and wo_items:
                wo_items[0][0](); wo_items = wo_items[1:]
        a("s_lshl_b32 s50, s52, 13"); a("s_add_u32 s50, s50, 57344"); a("s_mul_i32 s51, s53, 81920"); a("s_add_u32 s51, s51, s50"); a(f"v_add_u32 v{t}, s51, v{V_L16}")
        a("s_xor_b32 s51, s53, 1"); a("s_mul_i32 s51, s51, 81920"); a("s_add_u32 s51, s51, s50"); a(f"v_add_u32 v{t+1}, s51, v{V_L16}")
        G = R.alloc(32); TM = R.alloc(32)
        La = a.label("L_x"); Lb = a.label("L_x")
        a("s_cmp_eq_u32 s53, 0"); a(f"s_cbranch_scc1 {La}")
        for c in range(2):
            for q in range(4): a(f"ds_write_b128 v{t}, {A(32*c+4*q,4)} offset:{c*4096+q*1024}")
        for c in range(2):
            for r in range(16): a(f"v_accvgpr_read_b32 v{G+16*c+r}, a{32*c+16+r}")
        a(f"s_branch {Lb}")
        a(f"{La}:")
        for c in range(2):
            for q in range(4): a(f"ds_write_b128 v{t}, {A(32*c+16+4*q,4)} offset:{c*4096+q*1024}")
        for c in range(2):
            for r in range(16): a(f"v_accvgpr_read_b32 v{G+16*c+r}, a{32*c+r}")
        a(f"{Lb}:")
        for _ in range(min(3, len(wo_items))):
            wo_items[0][0](); wo_items = wo_items[1:]
        BP = R.alloc(2); ZF = R.alloc(32)
        vm.wait("z1")
        a(f"v_lshlrev_b32 v{BP}, 16, v{BI}")
        for d in range(16):
            e(f"v_lshlrev_b32 v{ZF+2*d}, 16, v{Z1+d}"); e(f"v_and_b32 v{ZF+2*d+1}, 0xffff0000, v{Z1+d}")
        for r in range(0, 32, 2): e(f"v_pk_add_f32 {V(G+r,2)}, {V(G+r,2)}, {V(BP,2)} op_sel_hi:[1,0]")
        a("s_waitcnt lgkmcnt(0)"); a("s_barrier")
        for q in range(8): e(f"ds_read_b128 {V(TM+4*q,4)}, v{t+1} offset:{q*1024}")
        a(f"s_add_u32 s50, s69, {UFR}")
        for c in range(2):
            a(f"s_waitcnt lgkmcnt({4 if c == 0 else 0})")
            for r in range(16*c, 16*c+16, 2): e(f"v_pk_add_f32 {V(G+r,2)}, {V(G+r,2)}, {V(TM+r,2)}")
            for r in range(16*c, 16*c+16, 2): e(f"v_pk_mul_f32 {V(G+r,2)}, {V(G+r,2)}, {V(ZF+r,2)}")
            for d in range(8*c, 8*c+8): a(f"v_cvt_pk_bf16_f32 v{Z1+d}, v{G+2*d}, v{G+2*d+1}")
            for q in range(2*c, 2*c+2):
                vm.issue(f"buffer_store_dwordx4 {V(Z1+4*q,4)}, v{V_L16}, {srd(S_WS)}, s50 offen offset:{q*1024} sc1", tag="ust")
        a("s_lshl_b32 s55, s48, 7"); a("s_lshl_b32 s50, s49, 2"); a("s_add_u32 s55, s55, s50"); a(f"s_add_u32 s55, s55, {F_U}")
        npost = self.o.get("tail_post", 8)
        for f, _ in wo_items[:npost]: f()
        wo_items = wo_items[npost:]
        self.set_flag(55, tag="ust")
        for f, _ in wo_items: f()
        self.idle_prefetch(skip, 2)
        self.stamp("D@3")

    def build(self):
        self.prologue()
        for ph in "ABCDE":
            getattr(self, "phase_" + ph)()
            if ph == self.stop_after: break
        self.epilogue()
        body = pad_hazards(self.a.lines)
        hdr = open("cdna_kernels/" + NAME[:-7] + ".s.ref").read().split("; Override")[0]
        s = hdr + f"; @launch grid=(256,1,1) block=(256,1,1) lds={LDS_BYTES}\n"
        s += '.amdgcn_target "amdgcn-amd-amdhsa--gfx950"\n.text\n'
        s += f".set CODE_SLICE, ((L_code_end - {NAME} + 32*128 - 1) / (32*128)) * 128\n"
        s += f".set CODE_BYTES, L_code_end - {NAME} - 32\n"
        s += f".globl {NAME}\n.p2align 8\n.type {NAME},@function\n{NAME}:\n" + "\n".join(body) + "\nL_code_end:\n"
        s += f""".section .rodata,"a"
.p2align 6
.amdhsa_kernel {NAME}
  .amdhsa_next_free_vgpr 512
  .amdhsa_next_free_sgpr 102
  .amdhsa_accum_offset 256
  .amdhsa_group_segment_fixed_size 0
  .amdhsa_kernarg_size 88
  .amdhsa_user_sgpr_count 2
  .amdhsa_user_sgpr_kernarg_segment_ptr 1
  .amdhsa_system_sgpr_workgroup_id_x 1
.end_amdhsa_kernel
"""
        return s

if __name__ == "__main__":
    import json
    out = sys.argv[1]; stop = sys.argv[2] if len(sys.argv) > 2 else "E"
    stamps = sys.argv[3] if len(sys.argv) > 3 and sys.argv[3] != "0" else ""
    opts = json.loads(sys.argv[4]) if len(sys.argv) > 4 else {}
    g = Gen(stop, stamps, opts)
    open(out, "w").write(g.build())
    open(out + ".stamps", "w").write(" ".join(g.stamp_names))
```

```python
import sys, math, struct
from asmlib import Asm, pad_hazards

NAME = "sequential_preLN__sliding_block__mixer_gmlp__prompt_kernel"
WS_EPOCH = 0
F_KV = 0x1000; F_O = 0x2000; F_H = 0x3000; F_Z = 0x4000; F_U = 0x5000; F_Z1 = 0x6000
STATS = 0x10000
HST = 0x80000
STAT1 = 0xC0000
KVF = 0x100000; OFR = 0x500000; HFR = 0x700000; Z1F = 0x900000; Z2F = 0xD00000; UFR = 0x1100000
DBG = 0x1600000

S_X, S_WQKV, S_WO, S_WIN, S_WSP, S_BSP, S_WOUT, S_OUT, S_WS = 8, 12, 16, 20, 24, 28, 32, 36, 40
S_TAG, S_WAVE, S_XCD, S_SLOT = 44, 45, 46, 47
V_LANE, V_L16, V_L31, V_HH = 1, 2, 3, 4
V_DUMMY = 252
V_TOUCH = 251
LOG2E = 1.4426950408889634
MFMA = "v_mfma_f32_32x32x16_bf16"
LDS_BYTES = 163840

def f2u(x): return struct.unpack("<I", struct.pack("<f", x))[0]
def lit(x): return "0x%08x" % f2u(x)
def srd(b): return f"s[{b}:{b+3}]"
def V(b, n=1): return f"v{b}" if n == 1 else f"v[{b}:{b+n-1}]"
def A(b, n=1): return f"a{b}" if n == 1 else f"a[{b}:{b+n-1}]"

class Regs:
    def __init__(self, lo, hi): self.lo, self.hi = lo, hi; self.used = set()
    def alloc(self, n=1, align=None):
        if align is None: align = 4 if n >= 4 else (2 if n >= 2 else 1)
        b = (self.lo + align - 1) // align * align
        while b + n <= self.hi:
            if not any((b + k) in self.used for k in range(n)):
                for k in range(n): self.used.add(b + k)
                return b
            b += align
        raise RuntimeError(f"out of registers for {n}")
    def free(self, b, n=1):
        for k in range(n): self.used.discard(b + k)
    def reset(self): self.used = set()

class VM:
    def __init__(self, a): self.a = a; self.ops = []
    def issue(self, text, tag=None): self.a(text); self.ops.append(tag)
    def wait(self, tag):
        idx = [k for k, t in enumerate(self.ops) if t == tag]
        if not idx: return
        last = idx[-1]; n = len(self.ops) - 1 - last
        assert n <= 63, n
        self.a(f"s_waitcnt vmcnt({n})"); self.ops = self.ops[last + 1:]
    def wait_all(self): self.a("s_waitcnt vmcnt(0)"); self.ops = []

def interleave(a, main, fill):
    n = len(main); m = len(fill); k = 0
    for i, x in enumerate(main):
        a(x)
        tgt = (i + 1) * m // n
        while k < tgt: a(fill[k]); k += 1

class Gen:
    def __init__(self, stop_after="E", stamps="", opts=None):
        self.a = Asm(); self.vm = VM(self.a); self.stop_after = stop_after; self.stamps = stamps
        self.nstamp = 0; self.stamp_names = []; self.R = Regs(10, 251); self.o = opts or {}

    def stamp(self, tag):
        if not self.stamps: return
        sel = self.stamps.split(",")
        coarse = ("A@0", "A@3", "A@6", "B@1", "B@3", "C@1", "C@5", "D@1", "D@3", "E@1", "E@3")
        if not (tag in sel or tag[0] in sel or ("c" in sel and tag in coarse)): return
        self.stamp_names.append(tag)
        k = self.nstamp; self.nstamp += 1
        assert k < 15
        self.a(f"s_memtime s[{72+2*k}:{73+2*k}]")

    def prologue(self):
        a = self.a
        if self.stamps and self.o.get("dbgout"):
            a("s_memrealtime s[100:101]"); a("s_memtime s[72:73]"); self.nstamp = 1; self.stamp_names.append("start")
            a("s_waitcnt lgkmcnt(0)"); a("s_mov_b32 s3, s100")
        a("s_getpc_b64 s[4:5]")
        a("s_load_dwordx16 s[48:63], s[0:1], 0")
        a("s_load_dwordx4 s[64:67], s[0:1], 64")
        a("s_load_dwordx2 s[68:69], s[0:1], 80")
        a("s_cmp_ge_u32 s2, 256"); a("s_cbranch_scc1 L_end")
        a(f"s_lshr_b32 s{S_SLOT}, s2, 3")
        a(f"s_mul_i32 s6, s{S_SLOT}, CODE_SLICE")
        a("v_lshlrev_b32 v5, 4, v0")
        a("v_cmp_gt_u32 vcc, CODE_SLICE, v5")
        a("s_mov_b64 s[70:71], vcc")
        a("v_add_u32 v5, s6, v5")
        a("v_cmp_gt_u32 vcc, CODE_BYTES, v5")
        a("s_and_b64 vcc, vcc, s[70:71]")
        a("s_and_saveexec_b64 s[6:7], vcc")
        if self.o.get("codepf", 1): a(f"global_load_dwordx4 {V(V_DUMMY,4)}, v5, s[4:5]")
        a("s_mov_b64 exec, s[6:7]")
        self.vm.ops.append("code")
        a(f"v_and_b32 v{V_LANE}, 63, v0"); a("v_lshrrev_b32 v5, 6, v0")
        a(f"v_lshlrev_b32 v{V_L16}, 4, v{V_LANE}"); a(f"v_and_b32 v{V_L31}, 31, v{V_LANE}"); a(f"v_lshrrev_b32 v{V_HH}, 5, v{V_LANE}")
        a(f"v_readfirstlane_b32 s{S_WAVE}, v5")
        a(f"s_and_b32 s{S_XCD}, s2, 7")
        self.phase_A_pre()
        a("s_waitcnt lgkmcnt(0)")
        a(f"s_load_dword s{S_TAG}, s[68:69], {WS_EPOCH}")
        def mk(base, lo, size):
            a(f"s_mov_b32 s{base}, s{lo}"); a(f"s_and_b32 s{base+1}, s{lo+1}, 0xffff")
            a(f"s_mov_b32 s{base+2}, {size}"); a(f"s_mov_b32 s{base+3}, 0x20000")
        mk(S_X, 48, 2048*448*2); mk(S_WQKV, 50, 448*1344*2); mk(S_WS, 68, 0x10000000); mk(S_WO, 52, 448*448*2)
        mk(S_WIN, 56, 448*1792*2); mk(S_WSP, 58, 2048*2048*2); mk(S_BSP, 60, 2048*2)
        mk(S_WOUT, 62, 896*448*2); mk(S_OUT, 64, 2048*448*2)
        self.tag_pending = True

    def tag_ready(self):
        if self.tag_pending:
            self.a("s_waitcnt lgkmcnt(0)"); self.a(f"s_add_u32 s{S_TAG}, s{S_TAG}, 1"); self.tag_pending = False

    def epilogue(self):
        a = self.a
        a("s_cmp_lg_u32 s2, 0"); a("s_cbranch_scc1 L_noepoch")
        a(f"s_cmp_lg_u32 s{S_WAVE}, 0"); a("s_cbranch_scc1 L_noepoch")
        a(f"v_mov_b32 v5, s{S_TAG}"); a(f"v_mov_b32 v6, {WS_EPOCH}")
        a("s_mov_b64 exec, 1")
        a(f"buffer_store_dword v5, v6, {srd(S_WS)}, 0 offen sc1")
        a("s_mov_b64 exec, -1")
        a("L_noepoch:")
        if self.stamps:
            a("s_waitcnt lgkmcnt(0)")
            a(f"s_lshl_b32 s48, s2, 2"); a(f"s_add_u32 s48, s48, s{S_WAVE}"); a("s_lshl_b32 s48, s48, 6"); a(f"s_add_u32 s48, s48, {DBG}")
            a("v_mov_b32 v6, 0"); a("s_mov_b64 exec, 1")
            for k in range(self.nstamp):
                a(f"v_mov_b32 v5, s{72+2*k}")
                a(f"buffer_store_dword v5, v6, {srd(S_WS)}, s48 offen offset:{4*k}")
            a("s_mov_b64 exec, -1")
        if self.stamps and self.o.get("dbgout"):
            a("s_memrealtime s[6:7]")
            a("s_load_dwordx2 s[50:51], s[0:1], 72")
            a("s_waitcnt lgkmcnt(0)")
            a(f"s_cmp_lg_u32 s2, {self.o['dbgout']}"); a("s_cbranch_scc1 L_end")
            a(f"s_cmp_lg_u32 s{S_WAVE}, 0"); a("s_cbranch_scc1 L_end")
            a("s_mov_b32 s52, s50"); a("s_and_b32 s53, s51, 0xffff"); a("s_mov_b32 s54, 256"); a("s_mov_b32 s55, 0x20000")
            a("v_mov_b32 v6, 0"); a("s_mov_b64 exec, 1")
            for k in range(1, self.nstamp):
                a(f"s_sub_u32 s56, s{72+2*k}, s{72+2*(k-1)}"); a("v_mov_b32 v5, s56")
                a(f"buffer_store_dword v5, v6, s[52:55], 0 offen offset:{4*(k-1)}")
            a("s_sub_u32 s56, s6, s3"); a("v_mov_b32 v5, s56")
            a(f"buffer_store_dword v5, v6, s[52:55], 0 offen offset:60")
            a("s_mov_b64 exec, -1")
        a("L_end:"); a("s_endpgm")

    def set_flag(self, soff, tag=None):
        a = self.a
        if self.o.get("nodrain_experiment"): pass
        elif tag is None: self.vm.wait_all()
        else: self.vm.wait(tag)
        a("s_barrier")
        L = a.label("L_nf")
        a(f"s_cmp_lg_u32 s{S_WAVE}, 0"); a(f"s_cbranch_scc1 {L}")
        a(f"v_mov_b32 v5, s{S_TAG}"); a("v_mov_b32 v6, 0"); a("s_mov_b64 exec, 1")
        a(f"buffer_store_dword v5, v6, {srd(S_WS)}, s{soff} offen sc1")
        a("s_mov_b64 exec, -1"); a(f"{L}:")

    def poll(self, soff, nflags, voff=None, drain=True):
        a = self.a
        if voff is None:
            a(f"v_min_u32 v9, {nflags-1}, v{V_LANE}"); a("v_lshlrev_b32 v9, 2, v9"); voff = 9
        Lp = a.label("L_poll"); Ld = a.label("L_pd"); Lo = a.label("L_po")
        a(f"s_cmp_lg_u32 s{S_WAVE}, 0"); a(f"s_cbranch_scc1 {Lo}")
        ld = lambda r: a(f"buffer_load_dword v{r}, v{voff}, {srd(S_WS)}, s{soff} offen sc1")
        for r in (5, 6, 7):
            ld(r); a("s_sleep 1")
        ld(8)
        a("s_mov_b32 s70, 0"); a(f"{Lp}:")
        for r in (5, 6, 7, 8):
            a("s_waitcnt vmcnt(3)")
            a(f"v_cmp_ne_u32 vcc, s{S_TAG}, v{r}")
            a(f"s_cbranch_vccz {Ld}")
            ld(r)
        a("s_add_u32 s70, s70, 1"); a("s_cmp_lt_u32 s70, 20000"); a(f"s_cbranch_scc1 {Lp}")
        a(f"s_branch {Ld}")
        a(f"{Lo}:")
        if drain: a("s_waitcnt vmcnt(0)")
        a(f"{Ld}:")
        a("s_barrier")
        if drain: self.vm.ops = ["p", "p", "p"]

    def gate_first(self, bit):
        a = self.a
        Lp = a.label("L_gp"); Ld = a.label("L_gd")
        ld = lambda r: a(f"buffer_load_dword v{r}, v9, {srd(S_WS)}, s66 offen sc1")
        for r in (5, 6, 7):
            ld(r); a("s_sleep 1")
        ld(8)
        a("s_mov_b32 s70, 0"); a(f"{Lp}:")
        for r in (5, 6, 7, 8):
            a("s_waitcnt vmcnt(3)")
            a(f"v_cmp_eq_u32 s[64:65], s{S_TAG}, v{r}")
            a("s_nop 1")
            a(f"s_bitcmp1_b32 s64, {bit}"); a(f"s_cbranch_scc1 {Ld}")
            ld(r)
        a("s_add_u32 s70, s70, 1"); a("s_cmp_lt_u32 s70, 20000"); a(f"s_cbranch_scc1 {Lp}")
        a(f"{Ld}:")
        self.vm.ops += ["p", "p", "p"]

    def gate_refresh(self):
        self.vm.issue(f"buffer_load_dword v5, v9, {srd(S_WS)}, s66 offen sc1", tag="fl")
    def gate_update(self):
        self.vm.wait("fl")
        self.a(f"v_cmp_eq_u32 s[64:65], s{S_TAG}, v5"); self.a("s_nop 1")
    def gate_check(self, bit):
        a = self.a
        Lp = a.label("L_gs"); Ld = a.label("L_go")
        a(f"s_bitcmp1_b32 s64, {bit}"); a(f"s_cbranch_scc1 {Ld}")
        a("s_mov_b32 s70, 0"); a(f"{Lp}:")
        a(f"buffer_load_dword v5, v9, {srd(S_WS)}, s66 offen sc1"); a("s_waitcnt vmcnt(0)")
        a(f"v_cmp_eq_u32 s[64:65], s{S_TAG}, v5"); a("s_nop 1")
        a(f"s_bitcmp1_b32 s64, {bit}"); a(f"s_cbranch_scc1 {Ld}")
        a("s_add_u32 s70, s70, 1"); a("s_cmp_lt_u32 s70, 20000"); a(f"s_cbranch_scc1 {Lp}")
        a(f"{Ld}:")

    def half_op(self, v, t, op="v_add_f32"):
        a = self.a
        a(f"v_mov_b32 v{t}, v{v}"); a(f"v_permlane32_swap_b32 v{v}, v{t}"); a(f"{op} v{v}, v{v}, v{t}")

    def warm(self, srdb, nbytes, base_s=None):
        a, vm = self.a, self.vm
        per_wg = nbytes // 32; per_wave = per_wg // 4
        n = (per_wave + 1023) // 1024
        a(f"s_lshl_b32 s70, s{S_SLOT}, 2"); a(f"s_add_u32 s70, s70, s{S_WAVE}"); a(f"s_mul_i32 s70, s70, {per_wave}")
        if base_s is not None: a(f"s_add_u32 s70, s70, s{base_s}")
        for k in range(n):
            if k and k % 4 == 0: a("s_add_u32 s70, s70, 4096")
            vm.issue(f"buffer_load_dwordx4 {V(V_DUMMY,4)}, v{V_L16}, {srd(srdb)}, s70 offen offset:{(k%4)*1024}", tag="warm")

    def tr_base(self, dst, rowbytes, hhrows, t0, t1):
        a = self.a
        a(f"v_lshrrev_b32 v{t0}, 2, v{V_LANE}"); a(f"v_and_b32 v{t0}, 3, v{t0}")
        a(f"v_mul_u32_u24 v{t1}, {hhrows}, v{V_HH}"); a(f"v_add_u32 v{t0}, v{t0}, v{t1}"); a(f"v_mul_u32_u24 v{t0}, {rowbytes}, v{t0}")
        a(f"v_lshrrev_b32 v{t1}, 4, v{V_LANE}"); a(f"v_and_b32 v{t1}, 1, v{t1}"); a(f"v_lshlrev_b32 v{t1}, 5, v{t1}")
        a(f"v_add_u32 v{t0}, v{t0}, v{t1}")
        a(f"v_and_b32 v{t1}, 3, v{V_LANE}"); a(f"v_lshlrev_b32 v{t1}, 3, v{t1}")
        a(f"v_add_u32 v{dst}, v{t0}, v{t1}")

    def sched(self, mf, fill, lead=0):
        a = self.a
        tot = sum(c for _, c in fill); n = len(mf); k = 0; done = 0
        for i, x in enumerate(mf):
            self.emit_fill(x)
            tgt = tot * (i + 1) / n
            while k < len(fill) and (done + fill[k][1] / 2 <= tgt or i == n - 1):
                self.emit_fill(fill[k][0]); done += fill[k][1]; k += 1

    def emit_fill(self, x):
        if callable(x): x()
        else: self.a(x)

    def phase_A_pre(self):
        a, R = self.a, self.R
        R.reset()
        P = self.PA = {}
        P["VW0"] = VW0 = R.alloc(3, 1); P["VXE"] = VXE = R.alloc(); P["VXO"] = VXO = R.alloc(); P["t"] = t = R.alloc(4, 1); P["VSR"] = VSR = R.alloc()
        SI, SJ, STQ, SMM = 48, 49, 58, 62
        a(f"v_mul_u32_u24 v{t}, 896, v{V_HH}"); a(f"v_lshlrev_b32 v{t+1}, 4, v{V_L31}"); a(f"v_add_u32 v{t}, v{t}, v{t+1}")
        a(f"v_cmp_gt_u32 vcc, 28, v{V_L31}"); a(f"v_mov_b32 v{t+1}, 0x7ffffff0"); a(f"v_cndmask_b32 v{VSR}, v{t+1}, v{t}, vcc")
        a(f"v_lshrrev_b32 v{t}, 3, v{V_LANE}"); a(f"v_and_b32 v{t+1}, 7, v{V_LANE}"); a(f"v_lshrrev_b32 v{t+2}, 4, v{V_LANE}")
        a(f"v_xor_b32 v{t+3}, v{t+1}, v{t+2}"); a(f"v_lshlrev_b32 v{t+3}, 4, v{t+3}"); a(f"v_mul_u32_u24 v{t}, 896, v{t}"); a(f"v_add_u32 v{VXE}, v{t}, v{t+3}")
        a(f"v_add_u32 v{t+2}, 4, v{t+2}"); a(f"v_xor_b32 v{t+3}, v{t+1}, v{t+2}"); a(f"v_lshlrev_b32 v{t+3}, 4, v{t+3}"); a(f"v_add_u32 v{VXO}, v{t}, v{t+3}")
        a(f"v_lshrrev_b32 v{t}, 3, v{V_LANE}"); a(f"v_lshrrev_b32 v{t+1}, 4, v{V_LANE}"); a(f"v_lshrrev_b32 v{t+2}, 2, v{V_LANE}")
        a(f"v_xor_b32 v{t+1}, v{t+1}, v{t+2}"); a(f"v_and_b32 v{t+1}, 1, v{t+1}"); a(f"v_mul_u32_u24 v{t+1}, 896, v{t+1}")
        a(f"v_mul_u32_u24 v{t}, 2688, v{t}"); a(f"v_and_b32 v{t+3}, 3, v{V_LANE}"); a(f"v_lshlrev_b32 v{t+3}, 4, v{t+3}")
        a(f"v_add3_u32 v{VW0}, v{t}, v{t+1}, v{t+3}"); a(f"v_add_u32 v{VW0}, 896, v{VW0}")
        a(f"v_mul_u32_u24 v{t+2}, 2688, v{t+2}"); a(f"v_add_u32 v{VW0+1}, v{t+2}, v{t+3}")

    def phase_A(self):
        a, vm, R = self.a, self.vm, self.R
        a.c("================ phase A : LN1 + QKV + attention ================")
        P = self.PA; VW0, VXE, VXO, t, VSR = P["VW0"], P["VXE"], P["VXO"], P["t"], P["VSR"]
        SI, SJ, SXB, SWB, SLX, SLW, STQ = 48, 49, 52, 53, 54, 55, 58
        SMM = 62
        a(f"s_lshr_b32 s50, s{S_XCD}, 1"); a("s_lshl_b32 s50, s50, 2"); a(f"s_lshr_b32 s51, s{S_SLOT}, 3"); a(f"s_add_u32 s{SI}, s50, s51")
        a(f"s_and_b32 s50, s{S_XCD}, 1"); a("s_lshl_b32 s50, s50, 3"); a(f"s_and_b32 s71, s{S_SLOT}, 7"); a(f"s_add_u32 s{SJ}, s50, s71")
        a(f"s_lshl_b32 s{STQ}, s{SI}, 2"); a(f"s_add_u32 s{STQ}, s{STQ}, s{S_WAVE}"); a(f"s_mul_i32 s{SXB}, s{STQ}, {32*896}")
        self.stamp("A@0")
        LW = 0; LQ = 57344; LX = 86016; LPW = 151552; LKV = 102400
        SR = R.alloc(8)
        a(f"s_lshl_b32 s50, s{SI}, 7"); a(f"s_lshl_b32 s70, s{SJ}, 3"); a("s_add_u32 s50, s50, s70"); a(f"s_lshl_b32 s70, s{S_WAVE}, 1"); a("s_add_u32 s59, s50, s70")
        a("s_mul_i32 s50, s59, 896")
        vm.issue(f"buffer_load_dwordx4 {V(SR,4)}, v{VSR}, {srd(S_X)}, s50 offen", tag="sr")
        vm.issue(f"buffer_load_dwordx4 {V(SR+4,4)}, v{VSR}, {srd(S_X)}, s50 offen offset:448", tag="sr")
        a(f"s_lshl_b32 s51, s51, 1"); a(f"s_add_u32 s51, s51, s{SJ}"); a("s_mul_i32 s50, s51, 37"); a("s_lshr_b32 s50, s50, 8"); a("s_mul_i32 s50, s50, 7"); a("s_sub_u32 s51, s51, s50")
        if not self.o.get("rot_a", 1): a("s_mov_b32 s51, 0")
        a(f"s_lshl_b32 s{SMM}, s51, 7")
        a(f"s_lshl_b32 s{SLX}, s{S_WAVE}, 14"); a(f"s_add_u32 s{SLX}, s{SLX}, {LX}")
        a(f"s_mul_i32 s{SWB}, s{SJ}, 56"); a(f"s_mul_i32 s50, s{S_WAVE}, {16*2688}"); a(f"s_add_u32 s{SWB}, s{SWB}, s50")
        a(f"s_lshl_b32 s{SLW}, s{S_WAVE}, 11")
        smm_done = {0}
        def smm(m):
            for q in range(1, m + 1):
                if q not in smm_done:
                    a(f"s_add_u32 s{SMM+q}, s{SMM+q-1}, 128"); a(f"s_cmp_ge_u32 s{SMM+q}, 896"); a("s_cselect_b32 s71, 896, 0"); a(f"s_sub_u32 s{SMM+q}, s{SMM+q}, s71")
                    smm_done.add(q)
        def dma_x(m):
            out = [(lambda: (smm(m), a(f"s_add_u32 s57, s{SXB}, s{SMM+m}")), 8)]
            for q in range(4):
                def f(q=q):
                    a(f"s_add_u32 m0, s{SLX}, {(m%4)*4096 + q*1024}"); a(f"s_add_u32 s56, s57, {q*7168}")
                    vm.issue(f"buffer_load_dwordx4 v{VXE if q%2==0 else VXO}, {srd(S_X)}, s56 offen lds", tag=("x", m))
                out.append((f, 16))
            return out
        def dma_w(m):
            out = [(lambda: (smm(m), a(f"s_mul_i32 s61, s{SMM+m}, 1344"), a(f"s_add_u32 s61, s61, s{SWB}")), 12)]
            for p in range(2):
                def f(p=p):
                    a(f"s_add_u32 m0, s{SLW}, {LW + m*8192 + p*1024}"); a(f"s_add_u32 s56, s61, {p*8*2688}")
                    vm.issue(f"buffer_load_dwordx4 v{VW0}, {srd(S_WQKV)}, s56 offen lds", tag=("w", m))
                out.append((f, 16))
            return out
        LWA = self.o.get("w_ahead", 2)
        def dma_q(m):
            def f():
                smm(m)
                a(f"s_mul_i32 s61, s{SMM+m}, 1344"); a(f"s_add_u32 s61, s61, s{SWB}")
                a(f"s_lshr_b32 s56, s{SLW}, 1"); a(f"s_add_u32 m0, s56, {LQ + m*4096}"); a("s_nop 0")
                vm.issue(f"buffer_load_dwordx4 v{VW0+1}, {srd(S_WQKV)}, s61 offen lds", tag="q")
            return [(f, 24)]
        for f, _ in dma_x(0) + dma_w(0) + dma_x(1) + sum([dma_w(m) for m in range(1, LWA)], []): f()
        if self.o.get("tlb", 0): self.tlb_warm()
        KVS = self.o.get("kv_sentinel", 0)
        SN = R.alloc(4)
        def clear_kv():
            for k in range(4): a(f"v_mov_b32 v{SN+k}, -1")
            a(f"s_lshl_b32 s56, s{SJ}, 6"); a(f"s_add_u32 s56, s56, s{STQ}"); a("s_lshl_b32 s56, s56, 12"); a(f"s_add_u32 s56, s56, {KVF}")
            for part in range(4):
                vm.issue(f"buffer_store_dwordx4 {V(SN,4)}, v{V_L16}, {srd(S_WS)}, s56 offen offset:{part*1024} sc1", tag="clr")
        CLR_AT = self.o.get("clr_at", 8)
        CLR_FLAG = self.o.get("clr_flag", 5)
        self.stamp("A@1")
        ONES = R.alloc(4); S0 = R.alloc(); Q0 = R.alloc(); T0 = R.alloc(); T1 = R.alloc()
        for k in range(4): a(f"v_mov_b32 v{ONES+k}, 0x3f803f80")
        a(f"v_mov_b32 v{S0}, 0"); a(f"v_mov_b32 v{Q0}, 0")
        VXA = R.alloc(4, 1)
        a(f"v_lshrrev_b32 v{t}, 1, v{V_L31}"); a(f"v_and_b32 v{t}, 7, v{t}"); a(f"v_xor_b32 v{t}, v{t}, v{V_HH}"); a(f"v_lshlrev_b32 v{t}, 4, v{t}")
        a(f"v_lshlrev_b32 v{VXA}, 7, v{V_L31}"); a(f"v_add_u32 v{VXA}, v{VXA}, v{t}"); a(f"v_add_u32 v{VXA}, s{SLX}, v{VXA}")
        for s in range(1, 4): a(f"v_xor_b32 v{VXA+s}, {s*32}, v{VXA}")
        VWK = R.alloc(); VWV = R.alloc(); VWQ = R.alloc()
        self.tr_base(VWK, 128, 8, t, t+1)
        a(f"v_lshrrev_b32 v{t}, 3, v{V_LANE}"); a(f"v_and_b32 v{t}, 1, v{t}"); a(f"v_lshlrev_b32 v{t}, 6, v{t}")
        a(f"v_xor_b32 v{t+1}, 64, v{t}"); a(f"v_add_u32 v{VWV}, v{VWK}, v{t+1}"); a(f"v_add_u32 v{VWK}, v{VWK}, v{t}")
        self.tr_base(VWQ, 64, 8, t, t+1)
        a(f"v_add_u32 v{VWQ}, {LQ}, v{VWQ}")
        AK = R.alloc(16); AV = R.alloc(16); CK = R.alloc(16); CV = R.alloc(16)
        vm.wait("sr")
        for d in range(8):
            a(f"v_dot2_f32_bf16 v{S0}, v{SR+d}, v{ONES}, v{S0}"); a(f"v_dot2_f32_bf16 v{Q0}, v{SR+d}, v{SR+d}, v{Q0}")
        for rr in (8, 4, 2, 1):
            for v in (S0, Q0): a(f"v_add_f32_dpp v{v}, v{v}, v{v} row_ror:{rr} row_mask:0xf bank_mask:0xf")
        a(f"v_mov_b32 v{T0}, v{S0}"); a(f"v_mov_b32 v{T1}, v{Q0}")
        a(f"v_permlane16_swap_b32 v{S0}, v{T0}"); a(f"v_permlane16_swap_b32 v{Q0}, v{T1}")
        a(f"v_add_f32 v{S0}, v{S0}, v{T0}"); a(f"v_add_f32 v{Q0}, v{Q0}, v{T1}")
        a(f"v_mul_f32 v{S0}, {lit(1/448)}, v{S0}"); a(f"v_mul_f32 v{Q0}, {lit(1/448)}, v{Q0}")
        a(f"v_fma_f32 v{Q0}, -v{S0}, v{S0}, v{Q0}"); a(f"v_max_f32 v{Q0}, 0, v{Q0}")
        a(f"v_add_f32 v{Q0}, {lit(1e-5)}, v{Q0}"); a(f"v_rsq_f32 v{Q0}, v{Q0}")
        self.tag_ready()
        a(f"v_mov_b32 v{SR}, v{S0}"); a(f"v_mov_b32 v{SR+2}, s{S_TAG}"); a(f"v_mov_b32 v{SR+3}, s{S_TAG}"); a(f"v_mov_b32 v{SR+1}, v{Q0}")
        a(f"v_lshlrev_b32 v{T0}, 4, v{V_HH}"); a(f"s_lshl_b32 s50, s59, 4"); a(f"s_add_u32 s50, s50, {STAT1}")
        a("s_mov_b32 exec_lo, 1"); a("s_mov_b32 exec_hi, 1")
        vm.issue(f"buffer_store_dwordx4 {V(SR,4)}, v{T0}, {srd(S_WS)}, s50 offen sc1", tag="st1")
        a("s_mov_b64 exec, -1")
        NB = 2
        WF = R.alloc(8 * NB)
        def rd_x(m): return [(f"ds_read_b128 {A(16*m+4*s,4)}, v{VXA+s} offset:{(m%4)*4096}", 4) for s in range(4)]
        def rd_w(s):
            buf = s % NB; out = []
            for g, base in enumerate((VWK, VWV)):
                for e in range(2):
                    r = WF + buf*8 + g*4 + e*2
                    out.append((f"ds_read_b64_tr_b16 v[{r}:{r+1}], v{base} offset:{LW + s*2048 + e*512}", 4))
            return out
        def chunk_ready(m):
            if KVS and m == CLR_FLAG: vm.wait("clr")
            vm.wait(("w", m)); vm.wait(("x", m)); a("s_barrier")
            if KVS and m == CLR_FLAG:
                self.tag_ready()
                L = a.label("L_cf")
                a(f"s_cmp_lg_u32 s{S_WAVE}, 0"); a(f"s_cbranch_scc1 {L}")
                a(f"s_lshl_b32 s50, s{SJ}, 7"); a(f"s_lshl_b32 s70, s{SI}, 2"); a("s_add_u32 s50, s50, s70"); a(f"s_add_u32 s50, s50, {F_KV}")
                a(f"v_mov_b32 v5, s{S_TAG}"); a("v_mov_b32 v6, 0"); a("s_mov_b64 exec, 1")
                a(f"buffer_store_dword v5, v6, {srd(S_WS)}, s50 offen sc1")
                a("s_mov_b64 exec, -1"); a(f"{L}:")
        SG = R.alloc(4); RK = R.alloc(16); MK = R.alloc(16); MR = R.alloc()
        NF = R.alloc()
        chunk_ready(0)
        self.stamp("g0")
        for x, _ in rd_x(0) + rd_w(0): a(x)
        pend = []
        qleft = list(range(7))
        for s in range(28):
            m, sp = s // 4, s % 4
            fill = []
            if sp == 0:
                pend = (dma_x(m + 2) if m + 2 < 7 else []) + (dma_w(m + LWA) if m + LWA < 7 else [])
                if m + LWA >= 7 and not self.o.get("q_late", 1):
                    nq = 2 if len(qleft) > 1 else len(qleft)
                    if m == 6: nq = len(qleft)
                    pend += sum([dma_q(mq) for mq in qleft[:nq]], []); qleft = qleft[nq:]
            a("s_waitcnt lgkmcnt(0)")
            if s + 1 < 28:
                if sp == 3:
                    fill.append((lambda m=m: chunk_ready(m + 1), 8)); fill += rd_x(m + 1)
                fill += rd_w(s + 1)
            take = 2 if sp < 3 else len(pend)
            fill += pend[:take]; pend = pend[take:]
            if s == CLR_AT and KVS: fill.append((clear_kv, 40))
            if s == 25 and KVS:
                def nf():
                    a(f"s_lshl_b32 s59, s{SJ}, 7"); a(f"s_add_u32 s59, s59, {F_KV}")
                    a(f"s_sub_i32 s56, s{SI}, 1"); a("s_max_i32 s56, s56, 0"); a(f"s_sub_i32 s50, s{SI}, 2"); a("s_max_i32 s50, s50, 0")
                    a("s_lshl_b32 s56, s56, 2"); a("s_lshl_b32 s50, s50, 2")
                    a(f"v_mov_b32 v9, s56"); a(f"v_mov_b32 v{T1}, s50"); a(f"v_cmp_eq_u32 vcc, 0, v{V_HH}"); a(f"v_cndmask_b32 v9, v{T1}, v9, vcc")
                    vm.issue(f"buffer_load_dword v{NF}, v9, {srd(S_WS)}, s59 offen sc1", tag="nf")
                fill.append((nf, 48))
            if s == 20:
                def sg():
                    a(f"v_lshlrev_b32 v{T0}, 4, v{V_L31}"); a(f"s_lshl_b32 s50, s{STQ}, 9"); a(f"s_add_u32 s60, s50, {STAT1}")
                    vm.issue(f"buffer_load_dwordx4 {V(SG,4)}, v{T0}, {srd(S_WS)}, s60 offen sc1", tag="sg")
                fill.append((sg, 16))
            x = A(16*m + 4*sp, 4); wb = WF + (s % NB) * 8
            c = lambda r: '0' if s == 0 else V(r, 16)
            mf = [f"{MFMA} {V(AK,16)}, {V(wb,4)}, {x}, {c(AK)}", f"{MFMA} {V(AV,16)}, {x}, {V(wb+4,4)}, {c(AV)}",
                  f"{MFMA} {V(CK,16)}, {V(wb,4)}, {V(ONES,4)}, {c(CK)}", f"{MFMA} {V(CV,16)}, {V(ONES,4)}, {V(wb+4,4)}, {c(CV)}"]
            self.sched(mf, fill)
        self.stamp("A@2")
        Lp = a.label("L_sg"); Ld = a.label("L_sgd")
        vm.wait("sg")
        a("s_mov_b32 s70, 0"); a(f"{Lp}:")
        a(f"v_cmp_ne_u32 vcc, s{S_TAG}, v{SG+2}"); a(f"s_cbranch_vccz {Ld}")
        a(f"v_lshlrev_b32 v{T0}, 4, v{V_L31}")
        a(f"buffer_load_dwordx4 {V(SG,4)}, v{T0}, {srd(S_WS)}, s60 offen sc1"); a("s_waitcnt vmcnt(0)")
        a("s_add_u32 s70, s70, 1"); a("s_cmp_lt_u32 s70, 20000"); a(f"s_cbranch_scc1 {Lp}")
        a(f"{Ld}:")
        MEAN, RSTD = SG, SG + 1
        a(f"v_mul_f32 v{MR}, v{MEAN}, v{RSTD}")
        a(f"v_lshlrev_b32 v{T1}, 2, v{V_L31}"); a(f"s_lshl_b32 s57, s{S_WAVE}, 8"); a(f"s_add_u32 s57, s57, {LPW}"); a(f"v_add_u32 v{T0}, s57, v{T1}")
        a(f"ds_write_b32 v{T0}, v{RSTD}"); a(f"ds_write_b32 v{T0}, v{MR} offset:128")
        a(f"v_lshlrev_b32 v{T0}, 4, v{V_HH}"); a(f"v_add_u32 v{T0}, s57, v{T0}")
        a("s_waitcnt lgkmcnt(0)")
        for gg in range(4):
            a(f"ds_read_b128 {V(RK+4*gg,4)}, v{T0} offset:{gg*32}"); a(f"ds_read_b128 {V(MK+4*gg,4)}, v{T0} offset:{128+gg*32}")
        KF = R.alloc(8); VF = R.alloc(8); MASKH = R.alloc(); MASKD = R.alloc(); ONED = R.alloc()
        a(f"v_cmp_eq_u32 vcc, 0, v{V_HH}"); a(f"v_cndmask_b32 v{MASKH}, 0, -1, vcc")
        a(f"v_cmp_gt_u32 vcc, 28, v{V_L31}"); a(f"v_cndmask_b32 v{MASKD}, 0, -1, vcc")
        a(f"v_cmp_eq_u32 vcc, 28, v{V_L31}"); a(f"v_cndmask_b32 v{ONED}, 0, v{ONES}, vcc")
        for r in range(0, 16, 2):
            a(f"v_pk_fma_f32 {V(AK+r,2)}, {V(MEAN,2)}, {V(CK+r,2)}, {V(AK+r,2)} op_sel_hi:[0,1,1] neg_lo:[1,0,0] neg_hi:[1,0,0]")
        for r in range(0, 16, 2):
            a(f"v_pk_mul_f32 {V(AK+r,2)}, {V(AK+r,2)}, {V(MEAN,2)} op_sel:[0,1] op_sel_hi:[1,1]")
        for d in range(8): a(f"v_cvt_pk_bf16_f32 v{KF+d}, v{AK+2*d}, v{AK+2*d+1}")
        for d in (6, 7): a(f"v_and_b32 v{KF+d}, v{KF+d}, v{MASKH}")
        a(f"s_lshl_b32 s56, s{SJ}, 6"); a(f"s_add_u32 s56, s56, s{STQ}"); a("s_lshl_b32 s56, s56, 12"); a(f"s_add_u32 s56, s56, {KVF}")
        for part, r in enumerate((KF, KF+4)):
            vm.issue(f"buffer_store_dwordx4 {V(r,4)}, v{V_L16}, {srd(S_WS)}, s56 offen offset:{part*1024} sc1")
        a("s_waitcnt lgkmcnt(0)")
        for r in range(0, 16, 2):
            a(f"v_pk_mul_f32 {V(MK+r,2)}, {V(MK+r,2)}, {V(CV+r,2)}")
            a(f"v_pk_fma_f32 {V(AV+r,2)}, {V(AV+r,2)}, {V(RK+r,2)}, {V(MK+r,2)} neg_lo:[0,0,1] neg_hi:[0,0,1]")
        for d in range(8): a(f"v_cvt_pk_bf16_f32 v{VF+d}, v{AV+2*d}, v{AV+2*d+1}")
        for d in range(8): a(f"v_and_or_b32 v{VF+d}, v{VF+d}, v{MASKD}, v{ONED}")
        for part, r in enumerate((VF, VF+4)):
            vm.issue(f"buffer_store_dwordx4 {V(r,4)}, v{V_L16}, {srd(S_WS)}, s56 offen offset:{2048+part*1024} sc1", tag="kvst")
        if self.o.get("q_late", 1):
            for mq in range(7):
                for f, _ in dma_q(mq): f()
        else:
            vm.wait("q")
        a("s_barrier")
        a(f"s_lshl_b32 s50, s{S_WAVE}, 12"); a(f"s_add_u32 s50, s50, {LKV + 8*4096}"); a(f"v_add_u32 v{T0}, s50, v{V_L16}")
        for part, r in enumerate((KF, KF+4, VF, VF+4)):
            a(f"ds_write_b128 v{T0}, {V(r,4)} offset:{part*1024}")
        for b, n in ((CK,16),(CV,16),(RK,16),(MK,16),(AK,16),(AV,16),(WF,8*NB)): R.free(b, n)
        AQ = R.alloc(16); CQ = R.alloc(16); QW = R.alloc(16)
        def rd_q(s):
            return [(f"ds_read_b64_tr_b16 v[{QW+(s%4)*4+e*2}:{QW+(s%4)*4+e*2+1}], v{VWQ} offset:{s*1024 + e*256}", 4) for e in range(2)]
        a(f"s_lshl_b32 s59, s{SJ}, 7"); a(f"s_lshl_b32 s56, s{SI}, 2"); a("s_add_u32 s59, s59, s56"); a(f"s_add_u32 s59, s59, {F_KV}")
        if self.o.get("q_late", 1):
            a("s_waitcnt lgkmcnt(0)")
            if not KVS:
                self.set_flag(59, tag="kvst"); self.stamp("A@3")
            vm.wait("q"); a("s_barrier")
        for s in range(2):
            for x, _ in rd_q(s): a(x)
        R.free(KF, 8); R.free(VF, 8)
        warm = []
        if self.o.get("warm", 1):
            warm = self.touch_list(S_WO, 448*448*2) + self.touch_list(S_WIN, 448*1792*2)
            if self.o.get("warm_wsp", 0):
                a(f"s_lshl_b32 s71, s{S_XCD}, 20")
                warm += self.touch_list(S_WSP, 1 << 20, base=71)
        qpos = self.o.get("q_touch", [])
        def kv_dma(track):
            a(f"s_lshl_b32 s59, s{SJ}, 18"); a(f"s_add_u32 s59, s59, {KVF}")
            for tt in range(2):
                a(f"s_lshl_b32 s56, s{SI}, 2"); a(f"s_lshl_b32 s57, s{S_WAVE}, 1"); a("s_add_u32 s56, s56, s57"); a(f"s_add_i32 s56, s56, {tt-8}"); a("s_max_i32 s56, s56, 0")
                a("s_lshl_b32 s56, s56, 12"); a("s_add_u32 s56, s56, s59")
                a(f"s_lshl_b32 s57, s{S_WAVE}, 13"); a(f"s_add_u32 s57, s57, {LKV + tt*4096}")
                for part in range(4):
                    a(f"s_add_u32 m0, s57, {part*1024}"); a(f"s_add_u32 s50, s56, {part*1024}")
                    x = f"buffer_load_dwordx4 v{V_L16}, {srd(S_WS)}, s50 offen sc1 lds"
                    if track: vm.issue(x, tag="kv")
                    else: a(x)
        for s in range(28):
            fill = rd_q(s + 2) if s + 2 < 28 else []
            if s in qpos and warm: fill.append(warm[0]); warm = warm[1:]
            self.warm_rest = warm
            a(f"s_waitcnt lgkmcnt({2 if s + 1 < 28 else 0})")
            c = lambda r: '0' if s == 0 else V(r, 16)
            q = V(QW + (s % 4)*4, 4)
            self.sched([f"{MFMA} {V(AQ,16)}, {q}, {A(4*s,4)}, {c(AQ)}", f"{MFMA} {V(CQ,16)}, {q}, {V(ONES,4)}, {c(CQ)}"], fill)
            if not KVS and not self.o.get("q_late", 1) and s == self.o.get("kvflag_at", 12):
                self.set_flag(59)
                self.stamp("A@3")
            if KVS and s == self.o.get("kv_try", 14):
                Lp = a.label("L_nf"); Ld = a.label("L_nfd")
                vm.wait("nf")
                a("s_mov_b32 s70, 0"); a(f"{Lp}:")
                a(f"v_cmp_ne_u32 vcc, s{S_TAG}, v{NF}"); a(f"s_cbranch_vccz {Ld}")
                a(f"s_lshl_b32 s59, s{SJ}, 7"); a(f"s_add_u32 s59, s59, {F_KV}")
                a(f"buffer_load_dword v{NF}, v9, {srd(S_WS)}, s59 offen sc1"); a("s_waitcnt vmcnt(0)")
                a("s_add_u32 s70, s70, 1"); a("s_cmp_lt_u32 s70, 20000"); a(f"s_cbranch_scc1 {Lp}")
                a(f"{Ld}:")
                kv_dma(True)
                self.stamp("A@3")
        RQ = R.alloc(2); QF = R.alloc(8)
        qscale = (28 ** -0.5) * LOG2E
        a(f"v_mul_f32 v{RQ}, {lit(qscale)}, v{RSTD}")
        CD = R.alloc(16); CF = R.alloc(16); CM = R.alloc(16); BS = R.alloc(); NBG = R.alloc()
        a(f"v_lshlrev_b32 v{BS}, 2, v{V_HH}"); a(f"v_sub_u32 v{BS}, v{V_L31}, v{BS}"); a(f"v_mov_b32 v{NBG}, {lit(-1e30)}")
        for r in range(16):
            c = (r & 3) + 8 * (r >> 2)
            a(f"v_cmp_le_i32 vcc, {c}, v{BS}")
            a(f"v_cndmask_b32 v{CD+r}, v{NBG}, 0, vcc"); a(f"v_cndmask_b32 v{CF+r}, 0, v{NBG}, vcc")
        for r in range(0, 16, 2):
            a(f"v_pk_fma_f32 {V(AQ+r,2)}, {V(MEAN,2)}, {V(CQ+r,2)}, {V(AQ+r,2)} op_sel_hi:[0,1,1] neg_lo:[1,0,0] neg_hi:[1,0,0]")
        for r in range(0, 16, 2):
            a(f"v_pk_mul_f32 {V(AQ+r,2)}, {V(AQ+r,2)}, {V(RQ,2)} op_sel_hi:[1,0]")
        for d in range(8): a(f"v_cvt_pk_bf16_f32 v{QF+d}, v{AQ+2*d}, v{AQ+2*d+1}")
        for d in (6, 7): a(f"v_and_b32 v{QF+d}, v{QF+d}, v{MASKH}")
        R.free(AQ, 16); R.free(QW, 16); R.free(CQ, 16)
        if not KVS:
            a(f"s_lshl_b32 s59, s{SJ}, 7"); a(f"s_add_u32 s59, s59, {F_KV}")
            a(f"s_sub_i32 s56, s{SI}, 1"); a("s_max_i32 s56, s56, 0"); a(f"s_sub_i32 s57, s{SI}, 2"); a("s_max_i32 s57, s57, 0")
            a("s_lshl_b32 s56, s56, 2"); a("s_lshl_b32 s57, s57, 2")
            a(f"v_mov_b32 v9, s56"); a(f"v_mov_b32 v{T0}, s57"); a(f"v_cmp_eq_u32 vcc, 0, v{V_HH}"); a(f"v_cndmask_b32 v9, v{T0}, v9, vcc")
            self.poll(59, 2, voff=9)
            self.stamp("A@4")
            kv_dma(True)
        else:
            VV = R.alloc(8); VA = R.alloc()
            a(f"s_lshl_b32 s50, s{S_WAVE}, 13"); a(f"s_add_u32 s50, s50, {LKV}"); a(f"v_add_u32 v{VA}, s50, v{V_L16}")
            Lp = a.label("L_kvv"); Ld = a.label("L_kvd")
            vm.wait("kv")
            self.stamp("A@4")
            a("s_mov_b32 s70, 0"); a(f"{Lp}:")
            for q in range(8): a(f"ds_read_b32 v{VV+q}, v{VA} offset:{q*1024}")
            a("s_waitcnt lgkmcnt(0)")
            a(f"v_max3_u32 v{VV}, v{VV}, v{VV+1}, v{VV+2}"); a(f"v_max3_u32 v{VV+3}, v{VV+3}, v{VV+4}, v{VV+5}"); a(f"v_max3_u32 v{VV}, v{VV}, v{VV+6}, v{VV+7}")
            a(f"v_max_u32 v{VV}, v{VV}, v{VV+3}")
            a(f"v_cmp_eq_u32 vcc, -1, v{VV}"); a(f"s_cbranch_vccz {Ld}")
            kv_dma(False)
            a("s_waitcnt vmcnt(0)")
            a("s_add_u32 s70, s70, 1"); a("s_cmp_lt_u32 s70, 20000"); a(f"s_cbranch_scc1 {Lp}")
            a(f"{Ld}:")
            R.free(VV, 8); R.free(VA)
        if self.o.get("touch_after_kv", 0):
            for f, _ in self.warm_rest: f()
            self.warm_rest = []
        KA = R.alloc()
        a(f"s_lshl_b32 s50, s{S_WAVE}, 12"); a(f"s_add_u32 s50, s50, {LKV}"); a(f"v_add_u32 v{KA}, s50, v{V_L16}")
        a(f"s_sub_i32 s60, 8, s{STQ}"); a("s_max_i32 s60, s60, 0")
        SA = R.alloc(16); SB = R.alloc(16); O = R.alloc(16); PF = R.alloc(16); KR = R.alloc(16); VR = R.alloc(16); MX = R.alloc(2)
        a(f"v_mov_b32 v{MX}, {lit(-1e30)}"); a(f"v_mov_b32 v{MX+1}, {lit(-1e30)}")
        vm.wait("kv"); a("s_barrier")
        self.stamp("A@5")
        rk = lambda u: [(f"ds_read_b128 {V(KR+8*(u%2)+4*h,4)}, v{KA} offset:{u*4096+h*1024}", 4) for h in range(2)]
        rv = lambda u: [(f"ds_read_b128 {V(VR+8*(u%2)+4*h,4)}, v{KA} offset:{u*4096+2048+h*1024}", 4) for h in range(2)]
        def smf(u, c):
            S = SA if u % 2 == 0 else SB; k = KR + 8*(u % 2)
            return [f"{MFMA} {V(S,16)}, {V(k,4)}, {V(QF,4)}, {c}", f"{MFMA} {V(S,16)}, {V(k+4,4)}, {V(QF+4,4)}, {V(S,16)}"]
        def pvm(u):
            P = PF + 8*(u % 2); vr = VR + 8*(u % 2)
            return [f"{MFMA} {V(O,16)}, {V(vr,4)}, {V(P,4)}, {'0' if u == 0 else V(O,16)}", f"{MFMA} {V(O,16)}, {V(vr+4,4)}, {V(P+4,4)}, {V(O,16)}"]
        warm = self.warm_rest
        wo_stage = []
        if self.o.get("wo_in_a", 0):
            VWO = R.alloc(); tw = R.alloc(4, 1)
            self.w128_lane(VWO, 896, tw); R.free(tw, 4)
            self.ct7(100); self.stage_setup(100, 896, 101, 100)
            wo_stage = self.stage_list(S_WO, VWO, 101, 100, self.pairs_small("B"), "wo")
        CB = R.alloc(16)
        for r in range(16): a(f"v_mov_b32 v{CB+r}, {lit(-1e30)}")
        def smf_first(u, c):
            S = SA if u % 2 == 0 else SB; k = KR + 8*(u % 2)
            def f():
                if u == 8:
                    a(f"{MFMA} {V(S,16)}, {V(k,4)}, {V(QF,4)}, {c}"); return
                L1 = a.label("L_m"); L2 = a.label("L_m")
                a(f"s_cmp_gt_u32 s60, {u}"); a(f"s_cbranch_scc1 {L1}")
                a(f"{MFMA} {V(S,16)}, {V(k,4)}, {V(QF,4)}, {c}"); a(f"s_branch {L2}")
                a(f"{L1}:"); a(f"{MFMA} {V(S,16)}, {V(k,4)}, {V(QF,4)}, {V(CB,16)}"); a(f"{L2}:")
            return f
        def smf2(u, c):
            return [smf_first(u, c), smf(u, c)[1]]
        def attention(branchy, warm):
            sm = smf2 if branchy else smf
            wos = list(wo_stage)
            cop1 = lambda u: V(CF,16) if u == 0 else (V(CD,16) if u == 8 else "0")
            for x, _ in rk(0) + rk(1): a(x)
            a("s_waitcnt lgkmcnt(2)")
            for x in sm(0, cop1(0)): self.emit_fill(x)
            for u in range(9):
                S = SA if u % 2 == 0 else SB
                mx = [(f"v_max3_f32 v{MX+(r//2)%2}, v{S+r}, v{S+r+1}, v{MX+(r//2)%2}", 4) for r in range(0, 16, 2)]
                if u + 1 < 9:
                    a("s_waitcnt lgkmcnt(0)")
                    tw_ = warm[:1] if u % 4 == 0 else []; warm = warm[len(tw_):]
                    self.sched(sm(u + 1, cop1(u + 1)), (rk(u + 2) if u + 2 < 9 else []) + tw_ + mx)
                else:
                    for x, _ in mx: a(x)
            self.stamp("p1") if not branchy else None
            self.attn_mid(MX, T0, CM, CD, CF)
            self.stamp("p2") if not branchy else None
            cop2 = lambda u: V(CF,16) if u == 0 else (V(CD,16) if u == 8 else V(CM,16))
            for x, _ in rk(0) + rk(1): a(x)
            a("s_waitcnt lgkmcnt(2)")
            for x in sm(0, cop2(0)): self.emit_fill(x)
            nw = 1
            for u in range(10):
                mf = []; fill = []
                a("s_waitcnt lgkmcnt(0)")
                if u + 1 < 9: mf += sm(u + 1, cop2(u + 1))
                if u >= 1: mf += pvm(u - 1)
                if u < 9:
                    S = SA if u % 2 == 0 else SB; P = PF + 8*(u % 2)
                    fill += rv(u)
                    if u + 2 < 9: fill += rk(u + 2)
                    ex = []
                    for d in range(8):
                        ex += [(f"v_exp_f32 v{S+2*d}, v{S+2*d}", 8), (f"v_exp_f32 v{S+2*d+1}, v{S+2*d+1}", 8)]
                        if d >= 1: ex.append((f"v_cvt_pk_bf16_f32 v{P+d-1}, v{S+2*d-2}, v{S+2*d-1}", 4))
                    ex.append((f"v_cvt_pk_bf16_f32 v{P+7}, v{S+14}, v{S+15}", 4))
                    ws_ = warm[:nw] if u % 2 == 0 else []; warm = warm[len(ws_):]
                    ws_ = ws_ + wos[:2]; wos = wos[2:]
                    step = max(1, len(ex) // (len(ws_) + 1))
                    for n, it in enumerate(ws_): ex.insert((n + 1) * step + n, it)
                    fill += ex
                self.sched(mf, fill)
            for f, _ in warm + wos: self.emit_fill(f)
        Lbr = a.label("L_abr"); Ljn = a.label("L_ajn")
        a("s_cmp_gt_u32 s60, 0"); a(f"s_cbranch_scc1 {Lbr}")
        saved_ops = list(vm.ops)
        attention(False, list(warm))
        a(f"s_branch {Ljn}")
        fast_ops = list(vm.ops); vm.ops = saved_ops
        a(f"{Lbr}:")
        attention(True, list(warm))
        assert len(vm.ops) == len(fast_ops)
        a(f"{Ljn}:")
        warm = []
        for f, _ in warm: self.emit_fill(f)
        self.stamp("p3")
        a(f"v_mov_b32 v{T0}, v{O+12}"); a(f"v_mov_b32 v{MX}, v{O+12}")
        a(f"v_permlane32_swap_b32 v{T0}, v{MX}")
        a(f"v_rcp_f32 v{MX}, v{MX}")
        for r in range(0, 16, 2): a(f"v_pk_mul_f32 {V(O+r,2)}, {V(O+r,2)}, {V(MX,2)} op_sel_hi:[1,0]")
        for d in range(8): a(f"v_cvt_pk_bf16_f32 v{PF+d}, v{O+2*d}, v{O+2*d+1}")
        for d in (6, 7): a(f"v_and_b32 v{PF+d}, v{PF+d}, v{MASKH}")
        a(f"s_lshl_b32 s56, s{STQ}, 4"); a(f"s_add_u32 s56, s56, s{SJ}"); a("s_lshl_b32 s56, s56, 11"); a(f"s_add_u32 s56, s56, {OFR}")
        for h in range(2):
            vm.issue(f"buffer_store_dwordx4 {V(PF+4*h,4)}, v{V_L16}, {srd(S_WS)}, s56 offen offset:{h*1024} sc1")
        a(f"s_lshl_b32 s59, s{SI}, 7"); a(f"s_lshl_b32 s56, s{SJ}, 2"); a("s_add_u32 s59, s59, s56"); a(f"s_add_u32 s59, s59, {F_O}")
        self.set_flag(59)
        self.stamp("A@6")

    def tlb_warm(self):
        a, vm = self.a, self.vm
        a(f"v_lshlrev_b32 v{V_TOUCH}, 21, v{V_LANE}")
        a("s_mov_b64 exec, 0xfff")
        vm.issue(f"buffer_load_dword v{V_DUMMY}, v{V_TOUCH}, {srd(S_WS)}, 0 offen", tag="tlb")
        a("s_mov_b64 exec, 0xf")
        vm.issue(f"buffer_load_dword v{V_DUMMY}, v{V_TOUCH}, {srd(S_WSP)}, 0 offen", tag="tlb")
        a("s_mov_b64 exec, 1")
        for sb in (S_WO, S_WIN, S_WOUT, S_BSP, S_OUT):
            vm.issue(f"buffer_load_dword v{V_DUMMY}, v{V_TOUCH}, {srd(sb)}, 0 offen", tag="tlb")
        a("s_mov_b64 exec, -1")

    def warm_list(self, srdb, nbytes, sreg=69):
        a, vm = self.a, self.vm
        per_wave = nbytes // 128; n = (per_wave + 1023) // 1024; out = []
        for k in range(n):
            def f(k=k):
                if k == 0:
                    a(f"s_lshl_b32 s{sreg}, s{S_SLOT}, 2"); a(f"s_add_u32 s{sreg}, s{sreg}, s{S_WAVE}"); a(f"s_mul_i32 s{sreg}, s{sreg}, {per_wave}")
                elif k % 4 == 0: a(f"s_add_u32 s{sreg}, s{sreg}, 4096")
                vm.issue(f"buffer_load_dwordx4 {V(V_DUMMY,4)}, v{V_L16}, {srd(srdb)}, s{sreg} offen offset:{(k%4)*1024}", tag="warm")
            out.append((f, 8))
        return out

    def attn_mid(self, MX, T0, CM, CD, CF):
        a = self.a
        a(f"v_max_f32 v{MX}, v{MX}, v{MX+1}")
        self.half_op(MX, T0, "v_max_f32")
        for r in range(16): a(f"v_sub_f32 v{CM+r}, 0, v{MX}")
        for r in range(0, 16, 2):
            a(f"v_pk_add_f32 {V(CD+r,2)}, {V(CD+r,2)}, {V(CM,2)}"); a(f"v_pk_add_f32 {V(CF+r,2)}, {V(CF+r,2)}, {V(CM,2)}")

    def touch_list(self, srdb, nbytes, sreg=69, base=None):
        a, vm = self.a, self.vm
        per_wave = (nbytes // 128 + 63) // 64 * 64; n = (per_wave + 4095) // 4096; out = []
        for k in range(n):
            def f(k=k):
                if k == 0:
                    a(f"s_lshl_b32 s{sreg}, s{S_SLOT}, 2"); a(f"s_add_u32 s{sreg}, s{sreg}, s{S_WAVE}"); a(f"s_mul_i32 s{sreg}, s{sreg}, {per_wave}")
                    if base is not None: a(f"s_add_u32 s{sreg}, s{sreg}, s{base}")
                    a(f"v_lshlrev_b32 v{V_TOUCH}, 6, v{V_LANE}")
                else: a(f"s_add_u32 s{sreg}, s{sreg}, 4096")
                vm.issue(f"buffer_load_dword v{V_DUMMY}, v{V_TOUCH}, {srd(srdb)}, s{sreg} offen", tag="warm")
            out.append((f, 12))
        return out

    def idle_prefetch(self, skip, part):
        a = self.a
        Lo = a.label("L_ip")
        a(f"s_branch {Lo}")
        a(f"{skip}:")
        idn = self.o.get("idle_n", [6, 10])
        n = idn[part] if part < 2 else 13
        first = 0 if part != 1 else idn[0]
        if n:
            if part < 2: a(f"s_lshl_b32 s50, s{S_XCD}, 20")
            else: a("s_mov_b32 s50, 0")
            a(f"s_sub_u32 s51, s{S_SLOT}, 28"); a("s_lshl_b32 s51, s51, 2"); a(f"s_add_u32 s51, s51, s{S_WAVE}"); a("s_lshl_b32 s51, s51, 12"); a("s_add_u32 s50, s50, s51")
            a(f"s_add_u32 s50, s50, {first*16*4096}")
            a(f"v_lshlrev_b32 v{V_TOUCH}, 6, v{V_LANE}")
            Ll = a.label("L_il")
            a(f"s_mov_b32 s51, {n}")
            a(f"{Ll}:")
            a(f"buffer_load_dword v{V_DUMMY}, v{V_TOUCH}, {srd(S_WSP if part < 2 else S_WOUT)}, s50 offen")
            a(f"s_add_u32 s50, s50, {16*4096}"); a("s_sub_u32 s51, s51, 1"); a("s_cmp_lg_u32 s51, 0"); a(f"s_cbranch_scc1 {Ll}")
            a("s_waitcnt vmcnt(0)")
        a(f"{Lo}:")

    def dma_by_all(self, items, tagf):
        a, vm = self.a, self.vm
        assert len(items) % 4 == 0
        Lnp = a.label("L_np")
        for wv in range(4):
            Lw = a.label("L_w")
            if wv < 3:
                a(f"s_cmp_lg_u32 s{S_WAVE}, {wv}"); a(f"s_cbranch_scc1 {Lw}")
            state = {}
            for n, it in enumerate(items):
                if n % 4 == wv: it(state)
            if wv < 3:
                a(f"s_branch {Lnp}")
                a(f"{Lw}:")
        a(f"{Lnp}:")
        vm.ops += [tagf(n) for n in range(len(items)) if n % 4 == 0]

    def dma_by_123(self, items, tagf):
        a, vm = self.a, self.vm
        Lnp = a.label("L_np")
        a(f"s_cmp_eq_u32 s{S_WAVE}, 0"); a(f"s_cbranch_scc1 {Lnp}")
        for wv in (1, 2, 3):
            Lw = a.label("L_w")
            if wv < 3:
                a(f"s_cmp_lg_u32 s{S_WAVE}, {wv}"); a(f"s_cbranch_scc1 {Lw}")
            state = {}
            for n, it in enumerate(items):
                if n % 3 == wv - 1: it(state)
            if wv < 3:
                a(f"s_branch {Lnp}")
                a(f"{Lw}:")
        a(f"{Lnp}:")
        mod = [tagf(n) for n in range(len(items)) if n % 3 == 0]
        mod.pop(); vm.ops += mod

    def d_map(self):
        a = self.a
        a(f"s_mul_i32 s50, s{S_SLOT}, 37"); a("s_lshr_b32 s50, s50, 8")
        a("s_mul_i32 s51, s50, 7"); a(f"s_sub_u32 s94, s{S_SLOT}, s51")
        a(f"s_lshl_b32 s95, s{S_XCD}, 2"); a("s_add_u32 s95, s95, s50")
        a(f"s_mul_i32 s96, s50, {self.o.get('rotm', 0)}"); a("s_and_b32 s51, s94, 3"); a(f"s_mul_i32 s51, s51, {self.o.get('rotf', 0)}"); a("s_add_u32 s96, s96, s51")
        a("s_lshl_b32 s97, s95, 18")

    def d_lanes(self, VE, VO, t):
        a = self.a
        a(f"v_lshrrev_b32 v{t}, 3, v{V_LANE}"); a(f"v_and_b32 v{t+1}, 7, v{V_LANE}"); a(f"v_lshrrev_b32 v{t+2}, 4, v{V_LANE}")
        a(f"v_xor_b32 v{t+3}, v{t+1}, v{t+2}"); a(f"v_lshlrev_b32 v{t+3}, 4, v{t+3}"); a(f"v_lshlrev_b32 v{t}, 12, v{t}"); a(f"v_add_u32 v{VE}, v{t}, v{t+3}")
        a(f"v_add_u32 v{t+2}, 4, v{t+2}"); a(f"v_xor_b32 v{t+3}, v{t+1}, v{t+2}"); a(f"v_lshlrev_b32 v{t+3}, 4, v{t+3}"); a(f"v_add_u32 v{VO}, v{t}, v{t+3}")

    @staticmethod
    def d_slot(kh, b):
        b %= 8
        if kh == 1: return 81920 + b*8192
        return b*8192 if b < 7 else 147456

    def d_early_items(self, VE, VO, NS=8):
        a, vm = self.a, self.vm
        out = []
        blocks = [(b, kh) for b in range(NS) for kh in range(2)]
        for (b, kh) in blocks:
            for h in range(2):
                def f(b=b, kh=kh, h=h):
                    if h == 0:
                        a(f"s_add_u32 s98, s96, {b}"); a("s_and_b32 s98, s98, 15"); a("s_lshl_b32 s98, s98, 7"); a("s_add_u32 s98, s98, s97")
                        a(f"s_lshl_b32 s99, s{S_WAVE}, 16"); a("s_add_u32 s98, s98, s99")
                    a(f"s_lshl_b32 s99, s{S_WAVE}, 11"); a(f"s_add_u32 m0, s99, {self.d_slot(kh, b) + h*1024}")
                    a(f"s_add_u32 s99, s98, {kh*2048 + h*8*4096}")
                    vm.issue(f"buffer_load_dwordx4 v{VE if h == 0 else VO}, {srd(S_WSP)}, s99 offen lds", tag=("w", b))
                out.append((f, 28))
        return out, blocks

    def stage_list(self, srdb, VW, sg, sl, pairs, tag, tmp=98):
        a, vm = self.a, self.vm
        out = []
        for (lc, gc) in pairs:
            def f(lc=lc, gc=gc):
                a(f"s_add_u32 m0, s{sl}, {lc}"); a(f"s_add_u32 s{tmp}, s{sg}, {gc}")
                vm.issue(f"buffer_load_dwordx4 v{VW}, {srd(srdb)}, s{tmp} offen lds", tag=tag)
            out.append((f, 12))
        return out
    def pairs_small(self, ph, lds0=0):
        NB = 8 if ph == "B" else 14; rpb = 28 if ph == "B" else 32
        half = NB*4096 if ph == "B" else 81920
        return [(lds0 + kh*half + b*4096, (kh*NB + b)*rpb*896) for b in range(NB) for kh in range(2)]
    def pairs_win(self, img, lds0):
        return [(lds0 + k2*4096, k2*32*3584 + (1792 if img == 0 else 0)) for k2 in range(14)]
    def stage_setup(self, sct, rowbytes, sg, sl):
        a = self.a
        a(f"s_lshl_b32 s{sg}, s{sct}, 7"); a(f"s_mul_i32 s{sl}, s{S_WAVE}, {8*rowbytes}"); a(f"s_add_u32 s{sg}, s{sg}, s{sl}"); a(f"s_lshl_b32 s{sl}, s{S_WAVE}, 10")
    def ct7(self, dst):
        a = self.a
        a(f"s_mul_i32 s50, s{S_SLOT}, 37"); a("s_lshr_b32 s50, s50, 8"); a("s_mul_i32 s50, s50, 7"); a(f"s_sub_u32 s{dst}, s{S_SLOT}, s50")

    def map_BE(self, skip):
        a = self.a
        a(f"s_cmp_ge_u32 s{S_SLOT}, 28"); a(f"s_cbranch_scc1 {skip}")
        a(f"s_mul_i32 s50, s{S_SLOT}, 37"); a("s_lshr_b32 s50, s50, 8")
        a("s_mul_i32 s51, s50, 7"); a(f"s_sub_u32 s49, s{S_SLOT}, s51")
        a(f"s_lshl_b32 s48, s{S_XCD}, 2"); a("s_add_u32 s48, s48, s50")
        a(f"s_and_b32 s52, s{S_WAVE}, 1"); a("s_lshl_b32 s50, s48, 1"); a("s_add_u32 s52, s52, s50"); a(f"s_lshr_b32 s53, s{S_WAVE}, 1")

    def w128_lane(self, dst, rowbytes, t):
        a = self.a
        a(f"v_lshrrev_b32 v{t}, 3, v{V_LANE}"); a(f"v_mul_u32_u24 v{t}, {rowbytes}, v{t}")
        a(f"v_lshrrev_b32 v{t+1}, 4, v{V_LANE}"); a(f"v_and_b32 v{t+1}, 1, v{t+1}"); a(f"v_lshlrev_b32 v{t+1}, 2, v{t+1}")
        a(f"v_and_b32 v{t+2}, 7, v{V_LANE}"); a(f"v_xor_b32 v{t+2}, v{t+2}, v{t+1}"); a(f"v_lshlrev_b32 v{t+2}, 4, v{t+2}")
        a(f"v_add_u32 v{dst}, v{t}, v{t+2}")

    def w128_bases(self, B0, t, wave_bytes_reg=None, const=0):
        a = self.a
        a(f"v_lshrrev_b32 v{t}, 2, v{V_LANE}"); a(f"v_and_b32 v{t}, 3, v{t}")
        a(f"v_lshlrev_b32 v{t+1}, 2, v{V_HH}"); a(f"v_add_u32 v{t+1}, v{t+1}, v{t}"); a(f"v_lshlrev_b32 v{t+1}, 7, v{t+1}")
        a(f"v_lshrrev_b32 v{t+2}, 4, v{V_LANE}"); a(f"v_and_b32 v{t+2}, 1, v{t+2}"); a(f"v_lshlrev_b32 v{t+2}, 5, v{t+2}")
        a(f"v_add_u32 v{t+1}, v{t+1}, v{t+2}")
        a(f"v_and_b32 v{t+2}, 3, v{V_LANE}"); a(f"v_lshlrev_b32 v{t+2}, 3, v{t+2}"); a(f"v_add_u32 v{t+1}, v{t+1}, v{t+2}")
        a(f"v_lshrrev_b32 v{t}, 1, v{t}"); a(f"v_lshlrev_b32 v{t}, 6, v{t}")
        if wave_bytes_reg is not None: a(f"v_add_u32 v{t+1}, s{wave_bytes_reg}, v{t+1}")
        if const: a(f"v_add_u32 v{t+1}, {const}, v{t+1}")
        a(f"v_add_u32 v{B0}, v{t+1}, v{t}")
        a(f"v_xor_b32 v{t}, 64, v{t}"); a(f"v_add_u32 v{B0+1}, v{t+1}, v{t}")

    def small_phase(self, ph):
        a, vm, R = self.a, self.vm, self.R
        R.reset()
        isB = ph == "B"
        NB = 8 if isB else 14
        rows_per_blk = 28 if isB else 32
        SW = S_WO if isB else S_WOUT
        ACTB = OFR if isB else UFR; nact = 16 if isB else 28
        skip = f"L_skip{ph}"
        self.map_BE(skip)
        self.stamp(f"{ph}@0")
        t = R.alloc(4, 1); VW = R.alloc()
        self.w128_lane(VW, 896, t)
        a(f"s_{'mov_b32 s54, s49' if isB else 'lshl_b32 s54, s49, 1'}" if self.o.get("rot_" + ph.lower(), 0) else "s_mov_b32 s54, 0")
        a("s_lshl_b32 s55, s49, 7")
        a(f"s_lshl_b32 s58, s52, {4 if isB else 0}") if isB else a("s_mul_i32 s58, s52, 28")
        a(f"s_mul_i32 s50, s53, {NB}"); a("s_add_u32 s58, s58, s50"); a("s_lshl_b32 s58, s58, 11"); a(f"s_add_u32 s58, s58, {ACTB}")
        if isB:
            if not self.o.get("wo_in_a", 0):
                self.stage_setup(49, 896, 101, 100)
                for f, _ in self.stage_list(S_WO, VW, 101, 100, self.pairs_small("B"), "wo"): f()
            VWI = R.alloc(); self.w128_lane(VWI, 3584, t)
            a(f"s_cmp_ge_u32 s{S_SLOT}, 14"); a("s_cselect_b32 s50, 14, 0"); a(f"s_sub_u32 s99, s{S_SLOT}, s50")
            if self.o.get("img2_late", 1):
                img2 = None
            else:
                a("s_lshl_b32 s101, s99, 7")
                items = []
                for k2 in range(14):
                    for q in range(4):
                        def it(st, k2=k2, q=q):
                            a(f"s_mov_b32 m0, {81920 + k2*4096 + q*1024}"); a(f"s_add_u32 s98, s101, {k2*32*3584 + 1792 + q*8*3584}")
                            a(f"buffer_load_dwordx4 v{VWI}, {srd(S_WIN)}, s98 offen lds")
                        items.append(it)
                self.dma_by_123(items, lambda n: "w2")
        XR = R.alloc(8)
        if isB:
            a(f"v_mul_u32_u24 v{t+3}, 896, v{V_L31}"); a(f"v_lshlrev_b32 v{t+2}, 3, v{V_HH}"); a(f"v_add_u32 v{t+3}, v{t+3}, v{t+2}")
            a(f"s_mul_i32 s54, s52, {32*896}"); a("s_lshl_b32 s50, s49, 7"); a("s_add_u32 s54, s54, s50"); a("s_lshl_b32 s50, s53, 6"); a("s_add_u32 s54, s54, s50")
            for g in range(4):
                vm.issue(f"buffer_load_dwordx2 {V(XR+2*g,2)}, v{t+3}, {srd(S_X)}, s54 offen offset:{g*16}", tag="xr")
        B0 = R.alloc(2, 1)
        a(f"s_mul_i32 s51, s53, {NB*4096 if isB else 81920}")
        self.w128_bases(B0, t, 51)
        if isB:
            a("s_lshr_b32 s55, s48, 1"); a("s_lshl_b32 s55, s55, 7"); a(f"s_add_u32 s55, s55, {F_O}"); self.poll(55, 16, drain=False)
        else:
            a("s_lshl_b32 s55, s48, 7"); a(f"s_add_u32 s55, s55, {F_U}"); self.poll(55, 7, drain=False)
        self.stamp(f"{ph}@1")
        ACT = R.alloc(8 * NB)
        a(f"s_{'mov_b32 s54, s49' if isB else 'lshl_b32 s54, s49, 1'}" if self.o.get("rot_" + ph.lower(), 0) else "s_mov_b32 s54, 0")
        def ld_act(k):
            b, st = k // 2, k % 2
            def f():
                if st == 0:
                    a(f"s_cmp_ge_u32 s54, {NB}"); a(f"s_cselect_b32 s50, {NB}, 0"); a("s_sub_u32 s54, s54, s50")
                    a("s_lshl_b32 s59, s54, 11"); a("s_add_u32 s59, s59, s58"); a("s_add_u32 s54, s54, 1")
                vm.issue(f"buffer_load_dwordx4 {V(ACT+8*b+4*st,4)}, v{V_L16}, {srd(S_WS)}, s59 offen offset:{st*1024} sc1", tag=("act", k))
            return [(f, 16 if st == 0 else 4)]
        PD = self.o.get("pd_small", 6)
        for k in range(PD):
            for f, _ in ld_act(k): f()
        def ld_res():
            a("s_lshl_b32 s50, s49, 1"); a("s_add_u32 s50, s50, s53"); a("s_mul_i32 s51, s52, 14"); a("s_add_u32 s50, s50, s51")
            a("s_lshl_b32 s55, s50, 11"); a(f"s_add_u32 s55, s55, {HFR}")
            for h in range(2):
                vm.issue(f"buffer_load_dwordx4 {V(XR+4*h,4)}, v{V_L16}, {srd(S_WS)}, s55 offen offset:{h*1024} sc1", tag="xr")
        vm.wait("wo" if isB else "wout"); a("s_barrier")
        ACC = R.alloc(32); WF = R.alloc(24)
        nk = 2 * NB
        def rd(k):
            out = []
            for c in range(2):
                for e in range(2):
                    r = WF + (k % 3)*8 + c*4 + e*2
                    out.append((f"ds_read_b64_tr_b16 v[{r}:{r+1}], v{B0+c} offset:{(k//2)*4096 + ((k%2)*16 + 8*e)*128}", 4))
            return out
        for k in range(2):
            for x, _ in rd(k): a(x)
        for k in range(nk):
            a(f"s_waitcnt lgkmcnt({4 if k + 1 < nk else 0})")
            vm.wait(("act", k))
            wb = WF + (k % 3) * 8
            mf = [f"{MFMA} {V(ACC+16*c,16)}, {V(wb+4*c,4)}, {V(ACT+4*k,4)}, {'0' if k == 0 else V(ACC+16*c,16)}" for c in range(2)]
            fill = (ld_act(k + PD) if k + PD < nk else []) + (rd(k + 2) if k + 2 < nk else [])
            if not isB and k == nk - PD: fill.append((ld_res, 32))
            if isB and self.o.get("img2_late", 1):
                if k == nk - PD:
                    self.stage_setup_l = lambda: self.stage_setup(99, 3584, 101, 100)
                    fill.append((self.stage_setup_l, 16))
                    img2l = self.stage_list(S_WIN, VWI, 101, 100, self.pairs_win(0, 81920), "w2")
                if k >= nk - PD:
                    fill += img2l[:3]; img2l = img2l[3:]
            self.sched(mf, fill)
        R.free(WF, 24); R.free(ACT, 8*NB)
        img1 = []
        if isB and self.o.get("img1_in_b", 1):
            if self.o.get("img2_late", 1):
                for f, _ in img2l: f()
            a("s_barrier")
            self.stage_setup(99, 3584, 101, 100)
            img1 = self.stage_list(S_WIN, VWI, 101, 100, self.pairs_win(1, 0), "w")
            for f, _ in img1[:4]: f()
            img1 = img1[4:]
        LEX = 65536 if isB else 57344
        a(f"s_lshl_b32 s50, s{S_WAVE}, 12"); a(f"s_add_u32 s50, s50, {LEX}"); a(f"v_add_u32 v{t}, s50, v{V_L16}")
        a(f"s_xor_b32 s51, s{S_WAVE}, 2"); a("s_lshl_b32 s51, s51, 12"); a(f"s_add_u32 s51, s51, {LEX}"); a(f"v_add_u32 v{t+1}, s51, v{V_L16}")
        La = a.label("L_x"); Lb = a.label("L_x")
        a(f"s_cmp_lt_u32 s{S_WAVE}, 2"); a(f"s_cbranch_scc1 {La}")
        for q in range(4): a(f"ds_write_b128 v{t}, {V(ACC+4*q,4)} offset:{q*1024}")
        a("s_nop 1")
        for r in range(0, 16, 2): a(f"v_pk_mul_f32 {V(ACC+r,2)}, {V(ACC+16+r,2)}, 1.0 op_sel_hi:[1,0]")
        a(f"s_branch {Lb}")
        a(f"{La}:")
        for q in range(4): a(f"ds_write_b128 v{t}, {V(ACC+16+4*q,4)} offset:{q*1024}")
        a(f"{Lb}:")
        a("s_waitcnt lgkmcnt(0)"); a("s_barrier")
        for q in range(4): a(f"ds_read_b128 {V(ACC+16+4*q,4)}, v{t+1} offset:{q*1024}")
        self.stamp(f"{ph}@2")
        T0 = R.alloc(); T1 = R.alloc(); PF = R.alloc(8); XF = R.alloc(16)
        vm.wait("xr")
        for d in range(8):
            a(f"v_lshlrev_b32 v{XF+2*d}, 16, v{XR+d}"); a(f"v_and_b32 v{XF+2*d+1}, 0xffff0000, v{XR+d}")
        for r in range(0, 16, 2): a(f"v_pk_add_f32 {V(ACC+r,2)}, {V(ACC+r,2)}, {V(XF+r,2)}")
        a("s_waitcnt lgkmcnt(0)")
        for r in range(0, 16, 2): a(f"v_pk_add_f32 {V(ACC+r,2)}, {V(ACC+r,2)}, {V(ACC+16+r,2)}")
        for d in range(8): a(f"v_cvt_pk_bf16_f32 v{PF+d}, v{ACC+2*d}, v{ACC+2*d+1}")
        if isB:
            for f, _ in img1[:3]: f()
            img1 = img1[3:]
            a("s_lshl_b32 s50, s49, 1"); a("s_add_u32 s50, s50, s53"); a("s_mul_i32 s51, s52, 14"); a("s_add_u32 s50, s50, s51")
            a("s_lshl_b32 s55, s50, 11"); a(f"s_add_u32 s55, s55, {HFR}")
            for h in range(2):
                vm.issue(f"buffer_store_dwordx4 {V(PF+4*h,4)}, v{V_L16}, {srd(S_WS)}, s55 offen offset:{h*1024} sc1")
            PS = R.alloc(2); P2 = R.alloc(2)
            a(f"v_pk_add_f32 {V(PS,2)}, {V(ACC,2)}, {V(ACC+2,2)}"); a(f"v_pk_mul_f32 {V(P2,2)}, {V(ACC,2)}, {V(ACC,2)}")
            a(f"v_pk_fma_f32 {V(P2,2)}, {V(ACC+2,2)}, {V(ACC+2,2)}, {V(P2,2)}")
            for r in range(4, 16, 2):
                a(f"v_pk_add_f32 {V(PS,2)}, {V(PS,2)}, {V(ACC+r,2)}"); a(f"v_pk_fma_f32 {V(P2,2)}, {V(ACC+r,2)}, {V(ACC+r,2)}, {V(P2,2)}")
            a(f"v_add_f32 v{PS}, v{PS}, v{PS+1}"); a(f"v_add_f32 v{PS+1}, v{P2}, v{P2+1}")
            self.half_op(PS, T0); self.half_op(PS+1, T1)
            a(f"v_lshlrev_b32 v{T0}, 3, v{V_L31}")
            a("s_lshl_b32 s55, s50, 8"); a(f"s_add_u32 s55, s55, {HST}")
            vm.issue(f"buffer_store_dwordx2 {V(PS,2)}, v{T0}, {srd(S_WS)}, s55 offen sc1", tag="hst")
            a("s_lshr_b32 s55, s48, 1"); a("s_lshl_b32 s55, s55, 7"); a("s_and_b32 s50, s48, 1"); a("s_mul_i32 s50, s50, 7"); a("s_add_u32 s50, s50, s49")
            a("s_lshl_b32 s50, s50, 2"); a("s_add_u32 s55, s55, s50"); a(f"s_add_u32 s55, s55, {F_H}")
            for f, _ in img1: f()
            self.set_flag(55, tag="hst")
        else:
            for p in range(2):
                a(f"v_permlane32_swap_b32 v{PF+4*p}, v{PF+4*p+2}"); a(f"v_permlane32_swap_b32 v{PF+4*p+1}, v{PF+4*p+3}")
            a(f"v_mul_u32_u24 v{T0}, 896, v{V_L31}"); a(f"v_lshlrev_b32 v{T1}, 4, v{V_HH}"); a(f"v_add_u32 v{T0}, v{T0}, v{T1}")
            a(f"s_mul_i32 s54, s52, {32*896}"); a("s_lshl_b32 s50, s49, 7"); a("s_add_u32 s54, s54, s50"); a("s_lshl_b32 s50, s53, 6"); a("s_add_u32 s54, s54, s50")
            for p in range(2):
                vm.issue(f"buffer_store_dwordx4 {V(PF+4*p,4)}, v{T0}, {srd(S_OUT)}, s54 offen offset:{p*32}{self.o.get('out_flags', '')}")
        if isB: self.idle_prefetch(skip, 0)
        else: a(f"{skip}:")
        self.stamp(f"{ph}@3")

    def phase_B(self):
        self.a.c("================ phase B : h = x + o @ wo ================"); self.small_phase("B")
    def phase_E(self):
        self.a.c("================ phase E : out = h + u @ w_out ================"); self.small_phase("E")

    def phase_C(self):
        a, vm, R = self.a, self.vm, self.R
        R.reset()
        a.c("================ phase C : z = gelu(LN(h) @ w_in) ================")
        skip = "L_skipC"
        a(f"s_cmp_ge_u32 s{S_SLOT}, 28"); a(f"s_cbranch_scc1 {skip}")
        a(f"s_cmp_ge_u32 s{S_SLOT}, 14"); a("s_cselect_b32 s50, 1, 0")
        a("s_mul_i32 s51, s50, 14"); a(f"s_sub_u32 s49, s{S_SLOT}, s51")
        a(f"s_lshl_b32 s48, s{S_XCD}, 1"); a("s_add_u32 s48, s48, s50")
        a(f"s_lshl_b32 s52, s48, 2"); a(f"s_add_u32 s52, s52, s{S_WAVE}")
        self.stamp("C@0")
        IMG = (81920, 0)
        LCS = 57344; LTR = LCS + 512
        t = R.alloc(4, 1); VW = R.alloc()
        self.w128_lane(VW, 3584, t)
        if not self.o.get("img1_in_b", 1):
            self.stage_setup(49, 3584, 101, 100)
            for f, _ in self.stage_list(S_WIN, VW, 101, 100, self.pairs_win(1, IMG[1]), "w"): f()
        B2 = R.alloc(2, 1); B1 = R.alloc(2, 1)
        self.w128_bases(B2, t, None, IMG[0])
        for c in range(2): a(f"v_subrev_u32 v{B1+c}, {IMG[0] - IMG[1]}, v{B2+c}")
        ONES = R.alloc(4)
        for k in range(4): a(f"v_mov_b32 v{ONES+k}, 0x3f803f80")
        BC = R.alloc(); CSA = R.alloc(16)
        a(f"s_lshr_b32 s50, s{S_WAVE}, 1"); a(f"s_mul_i32 s50, s50, {IMG[0] - IMG[1]}")
        a(f"s_and_b32 s51, s{S_WAVE}, 1"); a("s_cmp_eq_u32 s51, 0")
        a(f"v_mov_b32 v{BC}, v{B2+1}"); a("s_cselect_b64 vcc, -1, 0"); a(f"v_cndmask_b32 v{BC}, v{BC}, v{B2}, vcc"); a(f"v_subrev_u32 v{BC}, s50, v{BC}")
        WC = R.alloc(16)
        self.stamp("Cv")
        vm.wait("w"); a("s_barrier")
        self.stamp("Cw")
        def rdc(k): return [(f"ds_read_b64_tr_b16 v[{WC+(k%4)*4+e*2}:{WC+(k%4)*4+e*2+1}], v{BC} offset:{k*2048 + e*1024}", 4) for e in range(2)]
        for k in range(3):
            for x, _ in rdc(k): a(x)
        for k in range(28):
            a(f"s_waitcnt lgkmcnt({min(4, 2*(27-k))})")
            self.sched([f"{MFMA} {V(CSA,16)}, {V(WC+(k%4)*4,4)}, {V(ONES,4)}, {'0' if k == 0 else V(CSA,16)}"], rdc(k + 3) if k + 3 < 28 else [])
        a(f"v_lshlrev_b32 v{t}, 4, v{V_HH}"); a(f"s_lshl_b32 s50, s{S_WAVE}, 7"); a(f"s_add_u32 s50, s50, {LCS}"); a(f"v_add_u32 v{t}, s50, v{t}")
        a("s_mov_b32 exec_lo, 1"); a("s_mov_b32 exec_hi, 1")
        for gg in range(4): a(f"ds_write_b128 v{t}, {V(CSA+4*gg,4)} offset:{gg*32}")
        a("s_mov_b64 exec, -1")
        a("s_waitcnt lgkmcnt(0)")
        self.stamp("Cc")
        R.free(CSA, 16); R.free(WC, 16)
        a(f"s_lshl_b32 s55, s48, 7"); a(f"s_add_u32 s55, s55, {F_H}")
        self.poll(55, 14, drain=False)
        self.stamp("C@1")
        T0 = R.alloc(); T1 = R.alloc()
        HS = R.alloc(14, 2)
        a("s_mul_i32 s55, s52, 14"); a("s_lshl_b32 s54, s55, 11"); a(f"s_add_u32 s54, s54, {HFR}")
        a("s_lshl_b32 s58, s49, 1" if self.o.get("rot_c", 0) else "s_mov_b32 s58, 0")
        def ld_h(k):
            def f():
                a("s_cmp_ge_u32 s58, 28"); a("s_cselect_b32 s50, 28, 0"); a("s_sub_u32 s58, s58, s50")
                a("s_lshl_b32 s56, s58, 10"); a("s_add_u32 s56, s56, s54")
                vm.issue(f"buffer_load_dwordx4 {A(4*k,4)}, v{V_L16}, {srd(S_WS)}, s56 offen sc1", tag=("act", k))
                a("s_add_u32 s58, s58, 1")
            return [(f, 24)]
        def ld_hs():
            a(f"v_mul_u32_u24 v{T0}, {7*256}, v{V_HH}"); a(f"v_lshlrev_b32 v{T1}, 3, v{V_L31}"); a(f"v_add_u32 v{T0}, v{T0}, v{T1}")
            a("s_lshl_b32 s55, s55, 8"); a(f"s_add_u32 s55, s55, {HST}")
            for q in range(7):
                vm.issue(f"buffer_load_dwordx2 {V(HS+2*q,2)}, v{T0}, {srd(S_WS)}, s55 offen offset:{q*256} sc1", tag="hs")
        PD = self.o.get("pd_c", 10)
        for k in range(PD):
            for f, _ in ld_h(k): f()
        self.stamp("Ci")
        Z = R.alloc(64)
        WG = R.alloc(24)
        def rd(k, B, kk):
            out = []
            for c in range(2):
                for e in range(2):
                    r = WG + (kk % 3)*8 + c*4 + e*2
                    out.append((f"ds_read_b64_tr_b16 v[{r}:{r+1}], v{B+c} offset:{k*2048 + e*1024}", 4))
            return out
        CSR = R.alloc(32); VT = R.alloc()
        a(f"v_lshlrev_b32 v{VT}, 4, v{V_HH}"); a(f"v_add_u32 v{VT}, {LCS}, v{VT}")
        for x, _ in rd(0, B2, 0) + rd(1, B2, 1): a(x)
        MEAN = R.alloc(2); RSTD = MEAN + 1
        K0 = R.alloc(2); S0 = R.alloc(2); Q0 = R.alloc(2); TT = R.alloc(8)
        k0 = -2.0 * LOG2E * math.sqrt(2 / math.pi); k1 = k0 * 0.044715
        pre = [(lambda: vm.wait("hs"), 4), (f"v_mov_b32 v{MEAN}, v{HS}", 4), (f"v_mov_b32 v{RSTD}, v{HS+1}", 4)]
        for q in range(1, 7): pre += [(f"v_add_f32 v{MEAN}, v{MEAN}, v{HS+2*q}", 4), (f"v_add_f32 v{RSTD}, v{RSTD}, v{HS+2*q+1}", 4)]
        pre += [(lambda: self.half_op(MEAN, T0), 16), (lambda: self.half_op(RSTD, T1), 16)]
        pre += [(f"v_mul_f32 v{MEAN}, {lit(1/448)}, v{MEAN}", 4), (f"v_mul_f32 v{RSTD}, {lit(1/448)}, v{RSTD}", 4), (f"v_fma_f32 v{RSTD}, -v{MEAN}, v{MEAN}, v{RSTD}", 4),
                (f"v_max_f32 v{RSTD}, 0, v{RSTD}", 4), (f"v_add_f32 v{RSTD}, {lit(1e-5)}, v{RSTD}", 4), (f"v_rsq_f32 v{RSTD}, v{RSTD}", 8),
                (f"s_mov_b32 s62, {lit(k1)}", 4), (f"s_mov_b32 s63, {lit(k1)}", 4), (f"v_mov_b32 v{K0}, {lit(k0)}", 4), (f"v_mov_b32 v{K0+1}, {lit(k0)}", 4)]
        for k in range(28):
            a(f"s_waitcnt lgkmcnt({4 if k + 1 < 28 else 0})")
            vm.wait(("act", k))
            if k in (0, 7, 14, 21): self.stamp(f"Ck{k}")
            wb = WG + (k % 3) * 8
            fill = (ld_h(k + PD) if k + PD < 28 else []) + (rd(k + 2, B2, k + 2) if k + 2 < 28 else rd(k + 2 - 28, B1, k + 2))
            if k == 28 - PD: fill.append((ld_hs, 48))
            if k == 26: fill += [(f"ds_read_b128 {V(CSR+16*c+4*gg,4)}, v{VT} offset:{c*128+gg*32}", 4) for c in range(2) for gg in range(4)]
            mf = [f"{MFMA} {V(Z+16*c,16)}, {V(wb+4*c,4)}, {A(4*k,4)}, {'0' if k == 0 else V(Z+16*c,16)}" for c in range(2)]
            self.sched(mf, fill)
        for f, _ in pre: self.emit_fill(f)
        a("s_barrier")
        self.stamp("C@2")
        self.d_map(); self.DVE = R.alloc(); self.DVO = R.alloc(); td = R.alloc(4, 1)
        self.d_lanes(self.DVE, self.DVO, td); R.free(td, 4)
        allit, self.d_early_blocks = self.d_early_items(self.DVE, self.DVO)
        now = []; later = []
        for n, (b, kh) in enumerate(self.d_early_blocks):
            (now if (kh == 1 or b == 7) else later).extend(allit[2*n:2*n+2])
        n_g = self.o.get("early_in_gelu", 6)
        if self.o.get("stage_after", 0):
            now = []; later = allit
        touch = now[:n_g]; now = now[n_g:]
        PF = R.alloc(16)
        def gelu_pk(zbase, pack, marks=None):
            nonlocal touch
            ins = []
            for r0 in range(0, 32, 8):
                zs = [zbase + r0 + 2*i for i in range(4)]; cs = [CSR + r0 + 2*i for i in range(4)]
                ins += [f"v_pk_fma_f32 {V(z,2)}, {V(MEAN,2)}, {V(c,2)}, {V(z,2)} op_sel_hi:[0,1,1] neg_lo:[1,0,0] neg_hi:[1,0,0]" for z, c in zip(zs, cs)]
                ins += [f"v_pk_mul_f32 {V(z,2)}, {V(z,2)}, {V(MEAN,2)} op_sel:[0,1] op_sel_hi:[1,1]" for z in zs]
                ins += [f"v_pk_mul_f32 {V(TT+2*i,2)}, {V(z,2)}, {V(z,2)}" for i, z in enumerate(zs)]
                ins += [f"v_pk_fma_f32 {V(TT+2*i,2)}, {V(TT+2*i,2)}, s[62:63], {V(K0,2)}" for i in range(4)]
                ins += [f"v_pk_mul_f32 {V(TT+2*i,2)}, {V(TT+2*i,2)}, {V(z,2)}" for i, z in enumerate(zs)]
                ins += [f"v_exp_f32 v{TT+i}, v{TT+i}" for i in range(8)]
                ins += [f"v_pk_add_f32 {V(TT+2*i,2)}, {V(TT+2*i,2)}, 1.0 op_sel_hi:[1,0]" for i in range(4)]
                ins += [f"v_rcp_f32 v{TT+i}, v{TT+i}" for i in range(8)]
                ins += [f"v_pk_mul_f32 {V(z,2)}, {V(z,2)}, {V(TT+2*i,2)}" for i, z in enumerate(zs)]
                if pack:
                    ins += [f"v_cvt_pk_bf16_f32 v{PF + r0//2 + i}, v{z}, v{z+1}" for i, z in enumerate(zs)]
                else:
                    for i, z in enumerate(zs):
                        if r0 == 0 and i == 0:
                            ins += [f"v_pk_mul_f32 {V(Q0,2)}, {V(z,2)}, {V(z,2)}", f"v_pk_mul_f32 {V(S0,2)}, {V(z,2)}, 1.0 op_sel_hi:[1,0]"]
                        else:
                            ins += [f"v_pk_fma_f32 {V(Q0,2)}, {V(z,2)}, {V(z,2)}, {V(Q0,2)}", f"v_pk_add_f32 {V(S0,2)}, {V(S0,2)}, {V(z,2)}"]
                if marks and r0 in marks: ins.append(marks[r0])
            gap = self.o.get("early_gap", 24)
            for n, x in enumerate(ins):
                self.emit_fill(x)
                if touch and n % gap == gap - 1:
                    self.emit_fill(touch[0][0]); touch = touch[1:]
        a("s_waitcnt lgkmcnt(0)") if False else None
        a("s_waitcnt lgkmcnt(8)")
        a("s_waitcnt lgkmcnt(0)")
        gelu_pk(Z, False)
        G = R.alloc(4)
        a(f"v_add_f32 v{G}, v{S0}, v{S0+1}"); a(f"v_add_f32 v{G+1}, v{Q0}, v{Q0+1}")
        self.half_op(G, T0); self.half_op(G+1, T1)
        a(f"v_mov_b32 v{G+2}, s{S_TAG}"); a(f"v_mov_b32 v{G+3}, s{S_TAG}")
        a("s_mul_i32 s55, s48, 14"); a("s_add_u32 s55, s55, s49"); a("s_lshl_b32 s55, s55, 11"); a(f"s_lshl_b32 s50, s{S_WAVE}, 9"); a("s_add_u32 s55, s55, s50")
        a(f"s_add_u32 s55, s55, {STATS}"); a(f"v_lshlrev_b32 v{T1}, 4, v{V_L31}")
        vm.issue(f"buffer_store_dwordx4 {V(G,4)}, v{T1}, {srd(S_WS)}, s55 offen sc1")
        self.stamp("C@3")
        GR = R.alloc(28)
        a(f"v_mul_u32_u24 v{T0}, {7*2048}, v{V_HH}"); a(f"v_add_u32 v{T1}, v{T1}, v{T0}")
        a("s_mul_i32 s55, s48, 14"); a("s_lshl_b32 s55, s55, 11"); a(f"s_lshl_b32 s50, s{S_WAVE}, 9"); a("s_add_u32 s55, s55, s50"); a(f"s_add_u32 s55, s55, {STATS}")
        def gr_loads():
            a("s_mov_b32 s54, s55")
            for q in range(7):
                if q and q % 2 == 0: a("s_add_u32 s54, s54, 4096")
                vm.issue(f"buffer_load_dwordx4 {V(GR+4*q,4)}, v{T1}, {srd(S_WS)}, s54 offen offset:{(q%2)*2048} sc1", tag="gr")
        WA = R.alloc(4, 1); RA = R.alloc(2, 1); U0 = R.alloc(); U1 = R.alloc(); U2 = R.alloc()
        adr = []
        adr += [f"s_lshl_b32 s68, s{S_WAVE}, 12", f"s_add_u32 s68, s68, {LTR}",
                f"v_lshrrev_b32 v{U0}, 1, v{V_L31}", f"v_and_b32 v{U0}, 7, v{U0}", f"v_xor_b32 v{U0}, v{U0}, v{V_HH}", f"v_lshlrev_b32 v{U0}, 3, v{U0}",
                f"v_lshlrev_b32 v{WA}, 6, v{V_L31}", f"v_add_u32 v{WA}, v{WA}, v{U0}", f"v_add_u32 v{WA}, s68, v{WA}"]
        adr += [f"v_xor_b32 v{WA+g}, {g<<4}, v{WA}" for g in range(1, 4)]
        adr += [f"v_lshrrev_b32 v{U0}, 2, v{V_LANE}", f"v_and_b32 v{U0}, 3, v{U0}", f"v_lshlrev_b32 v{U1}, 3, v{V_HH}", f"v_add_u32 v{U1}, v{U1}, v{U0}", f"v_lshlrev_b32 v{RA}, 6, v{U1}",
                f"v_lshrrev_b32 v{U0}, 1, v{U0}", f"v_lshlrev_b32 v{U1}, 2, v{V_HH}", f"v_add_u32 v{U0}, v{U0}, v{U1}",
                f"v_lshrrev_b32 v{U1}, 4, v{V_LANE}", f"v_and_b32 v{U1}, 1, v{U1}", f"v_lshlrev_b32 v{U1}, 2, v{U1}", f"v_and_b32 v{U2}, 3, v{V_LANE}", f"v_add_u32 v{U1}, v{U1}, v{U2}",
                f"v_xor_b32 v{U0}, v{U0}, v{U1}", f"v_lshlrev_b32 v{U0}, 3, v{U0}", f"v_add_u32 v{RA}, v{RA}, v{U0}", f"v_add_u32 v{RA}, s68, v{RA}", f"v_xor_b32 v{RA+1}, 16, v{RA}"]
        adr = [(x, 4) for x in adr]
        KSPLIT = self.o.get("z1_split", 20)
        def z1_steps(k0_, k1_):
          nonlocal touch, adr
          for k in range(k0_, k1_):
            kk = k + 28
            a(f"s_waitcnt lgkmcnt({4 if (k + 1 < 28 and k > 0 and k != KSPLIT) else 0})")
            wb = WG + (kk % 3) * 8
            fill = rd(k + 2, B1, kk + 2) if k + 2 < 28 else []
            if k == min(self.o.get("gr_at", 12), KSPLIT - 6): fill.append((gr_loads, 40))
            if k == 24: fill += [(f"ds_read_b128 {V(CSR+16*c+4*gg,4)}, v{VT} offset:{256+c*128+gg*32}", 4) for c in range(2) for gg in range(4)]
            fill += adr[:3]; adr = adr[3:]
            if k == 0: touch = touch + now
            if touch and k >= self.o.get("early_k0", 2) and k < KSPLIT: fill.append(touch[0]); touch = touch[1:]
            mf = [f"{MFMA} {V(Z+32+16*c,16)}, {V(wb+4*c,4)}, {A(4*k,4)}, {'0' if k == 0 else V(Z+32+16*c,16)}" for c in range(2)]
            self.sched(mf, fill)
        z1_steps(0, KSPLIT)
        for f, _ in adr: self.emit_fill(f)
        for f, _ in touch: self.emit_fill(f)
        touch = []
        R.free(HS, 14)
        self.stamp("C@4")
        Lp = a.label("L_sp"); Ld = a.label("L_sd")
        vm.wait("gr")
        a("s_mov_b32 s70, 0"); a(f"{Lp}:")
        a(f"v_xor_b32 v{T0}, s{S_TAG}, v{GR+2}")
        for q in range(1, 7):
            a(f"v_xor_b32 v{G}, s{S_TAG}, v{GR+4*q+2}"); a(f"v_or_b32 v{T0}, v{T0}, v{G}")
        a(f"v_cmp_ne_u32 vcc, 0, v{T0}"); a(f"s_cbranch_vccz {Ld}")
        a("s_mov_b32 s54, s55")
        for q in range(7):
            if q and q % 2 == 0: a("s_add_u32 s54, s54, 4096")
            a(f"buffer_load_dwordx4 {V(GR+4*q,4)}, v{T1}, {srd(S_WS)}, s54 offen offset:{(q%2)*2048} sc1")
        a("s_waitcnt vmcnt(0)")
        a("s_add_u32 s70, s70, 1"); a("s_cmp_lt_u32 s70, 20000"); a(f"s_cbranch_scc1 {Lp}")
        a(f"{Ld}:")
        self.stamp("C@s")
        for q in range(1, 7): a(f"v_pk_add_f32 {V(GR,2)}, {V(GR,2)}, {V(GR+4*q,2)}")
        self.half_op(GR, T0); self.half_op(GR+1, G)
        M3, R3 = GR, GR+1
        a(f"v_mul_f32 v{M3}, {lit(1/896)}, v{M3}"); a(f"v_mul_f32 v{R3}, {lit(1/896)}, v{R3}")
        a(f"v_fma_f32 v{R3}, -v{M3}, v{M3}, v{R3}"); a(f"v_max_f32 v{R3}, 0, v{R3}")
        a(f"v_add_f32 v{R3}, {lit(1e-5)}, v{R3}"); a(f"v_rsq_f32 v{R3}, v{R3}")
        a("s_nop 0")
        a(f"v_mul_f32 v{M3}, v{M3}, v{R3}")
        PZ = GR + 4
        for c in range(2):
            for r in range(0, 16, 2): a(f"v_pk_fma_f32 {V(Z+16*c+r,2)}, {V(Z+16*c+r,2)}, {V(M3,2)}, {V(M3,2)} op_sel:[0,1,0] op_sel_hi:[1,1,0] neg_lo:[0,0,1] neg_hi:[0,0,1]")
            for d in range(8): a(f"v_cvt_pk_bf16_f32 v{PZ+8*c+d}, v{Z+16*c+2*d}, v{Z+16*c+2*d+1}")
            for g in range(4): a(f"ds_write_b64 v{WA+g}, {V(PZ+8*c+2*g,2)} offset:{c*2048}")
        a("s_waitcnt lgkmcnt(0)")
        for c in range(2):
            for st in range(2):
                for e in range(2):
                    r = PZ + 8*c + 4*st + 2*e
                    a(f"ds_read_b64_tr_b16 v[{r}:{r+1}], v{RA+e} offset:{c*2048 + st*1024 + e*256}")
        for c in range(2):
            a("s_lshl_b32 s55, s49, 1"); a(f"s_add_u32 s55, s55, {c}"); a("s_lshl_b32 s55, s55, 6"); a("s_add_u32 s55, s55, s52"); a("s_lshl_b32 s55, s55, 11"); a(f"s_add_u32 s55, s55, {Z2F}")
            a(f"s_waitcnt lgkmcnt({4 if c == 0 else 0})")
            for st in range(2):
                vm.issue(f"buffer_store_dwordx4 {V(PZ+8*c+4*st,4)}, v{V_L16}, {srd(S_WS)}, s55 offen offset:{st*1024} sc1", tag="z2st")
        z1_steps(KSPLIT, 28)
        R.free(WG, 24)
        a("s_waitcnt lgkmcnt(0)")
        a("s_barrier")
        touch = later
        a("s_lshl_b32 s55, s49, 7"); a("s_lshl_b32 s50, s48, 2"); a("s_add_u32 s55, s55, s50"); a(f"s_add_u32 s55, s55, {F_Z}")
        def flag_now():
            self.set_flag(55, tag="z2st"); self.stamp("C@5")
        gelu_pk(Z + 32, True, {self.o.get("zflag_at", 0): flag_now})
        a("s_mul_i32 s56, s52, 28"); a("s_lshl_b32 s50, s49, 1"); a("s_add_u32 s56, s56, s50"); a("s_lshl_b32 s56, s56, 11"); a(f"s_add_u32 s56, s56, {Z1F}")
        for q in range(4):
            vm.issue(f"buffer_store_dwordx4 {V(PF+4*q,4)}, v{V_L16}, {srd(S_WS)}, s56 offen offset:{q*1024} sc1", tag="z1st")
        for f, _ in touch: self.emit_fill(f)
        self.idle_prefetch(skip, 1)
        self.stamp("C@6")

    def phase_D(self):
        a, vm, R = self.a, self.vm, self.R
        R.reset()
        a.c("================ phase D : g = w_sp @ z2n + b ; u = z1*g ================")
        skip = "L_skipD"
        a(f"s_cmp_ge_u32 s{S_SLOT}, 28"); a(f"s_cbranch_scc1 {skip}")
        self.d_map()
        a("s_mov_b32 s49, s94"); a("s_mov_b32 s48, s95"); a("s_mov_b32 s54, s96")
        self.stamp("D@0")
        NS = 8
        a(f"s_lshr_b32 s53, s{S_WAVE}, 1"); a(f"s_and_b32 s52, s{S_WAVE}, 1")
        t = R.alloc(4, 1); VE = R.alloc(); VO = R.alloc()
        self.d_lanes(VE, VO, t)
        a("s_lshl_b32 s55, s48, 18"); a("s_lshl_b32 s50, s53, 11"); a("s_add_u32 s55, s55, s50"); a("s_lshl_b32 s50, s52, 17"); a("s_add_u32 s55, s55, s50")
        a("s_mul_i32 s57, s53, 81920"); a("s_lshl_b32 s50, s52, 12"); a("s_add_u32 s57, s57, s50")
        a("s_mov_b32 s67, 147456"); a("s_cmp_eq_u32 s53, 0"); a(f"s_cselect_b32 s67, s67, {81920 + 7*8192}"); a("s_add_u32 s67, s67, s50")
        def blk_idx(b, dst):
            a(f"s_add_u32 s{dst}, s54, {b}"); a(f"s_and_b32 s{dst}, s{dst}, 15")
        def dma(b):
            out = []
            def pre(): blk_idx(b, 58); a("s_lshl_b32 s58, s58, 7"); a("s_add_u32 s58, s58, s55")
            out.append((pre, 16))
            for q in range(4):
                def f(q=q):
                    if b % NS < 7: a(f"s_add_u32 m0, s57, {(b%NS)*8192 + q*1024}")
                    else: a(f"s_add_u32 m0, s67, {q*1024}")
                    a(f"s_add_u32 s56, s58, {q*8*4096}")
                    vm.issue(f"buffer_load_dwordx4 v{VE if q%2==0 else VO}, {srd(S_WSP)}, s56 offen lds", tag=("w", b))
                out.append((f, 16))
            return out
        early = set(self.d_early_blocks) if self.o.get("early_d", 1) else set()
        NPRE = NS if early else self.o.get("npre", 4)
        a("s_lshl_b32 s61, s48, 18")
        items = []; tags = []
        for b in range(NPRE):
            for kh_ in range(2):
                if (b, kh_) in early: continue
                for q in range(8):
                    def it(st, b=b, kh_=kh_, q=q):
                        if st.get("b") != b:
                            blk_idx(b, 58); a("s_lshl_b32 s58, s58, 7"); a("s_add_u32 s58, s58, s61"); st["b"] = b
                        a(f"s_mov_b32 m0, {self.d_slot(kh_, b) + q*1024}"); a(f"s_add_u32 s56, s58, {kh_*2048 + q*8*4096}")
                        a(f"buffer_load_dwordx4 v{VE if q%2==0 else VO}, {srd(S_WSP)}, s56 offen lds")
                    items.append(it); tags.append(("w", b))
        if items: self.dma_by_123(items, lambda n: tags[n])
        FA = R.alloc(4, 1)
        a(f"v_lshrrev_b32 v{t}, 1, v{V_L31}"); a(f"v_and_b32 v{t}, 7, v{t}"); a(f"v_xor_b32 v{t}, v{t}, v{V_HH}"); a(f"v_lshlrev_b32 v{t}, 4, v{t}")
        a(f"v_lshlrev_b32 v{FA}, 7, v{V_L31}"); a(f"v_add_u32 v{FA}, v{FA}, v{t}")
        FA7 = R.alloc(4, 1)
        a("s_lshl_b32 s50, s52, 12"); a("s_sub_u32 s51, s67, s50"); a(f"v_add_u32 v{FA7}, s51, v{FA}")
        a("s_sub_u32 s51, s57, s50"); a(f"v_add_u32 v{FA}, s51, v{FA}")
        for s in range(1, 4): a(f"v_xor_b32 v{FA+s}, {s*32}, v{FA}"); a(f"v_xor_b32 v{FA7+s}, {s*32}, v{FA7}")
        BI = R.alloc()
        a(f"v_lshlrev_b32 v{t}, 1, v{V_L31}"); a("s_lshl_b32 s50, s48, 7"); a("s_lshl_b32 s51, s53, 6"); a("s_add_u32 s50, s50, s51")
        vm.issue(f"buffer_load_ushort v{BI}, v{t}, {srd(S_BSP)}, s50 offen", tag="bi")
        VZ = R.alloc(2, 1)
        a("s_lshl_b32 s50, s49, 2"); a("s_lshl_b32 s51, s52, 1"); a("s_add_u32 s50, s50, s51"); a("s_lshl_b32 s50, s50, 6"); a("s_lshl_b32 s51, s53, 5"); a("s_add_u32 s50, s50, s51")
        a("s_lshl_b32 s50, s50, 11"); a(f"s_add_u32 s50, s50, {Z2F}"); a(f"v_add_u32 v{VZ}, s50, v{V_L16}"); a(f"v_add_u32 v{VZ+1}, {64*2048}, v{VZ}")
        a(f"v_and_b32 v9, 7, v{V_LANE}"); a("v_lshlrev_b32 v9, 2, v9")
        a("s_lshl_b32 s66, s49, 1"); a("s_add_u32 s66, s66, s52"); a("s_lshl_b32 s66, s66, 7"); a("s_lshl_b32 s50, s53, 5"); a("s_add_u32 s66, s66, s50"); a(f"s_add_u32 s66, s66, {F_Z}")
        if self.o.get("prog_d", 1):
            self.gate_first(0)
        else:
            a(f"v_and_b32 v9, 15, v{V_LANE}"); a("v_lshlrev_b32 v9, 2, v9"); a(f"v_lshrrev_b32 v{t}, 4, v{V_LANE}"); a(f"v_and_b32 v{t}, 1, v{t}"); a(f"v_lshlrev_b32 v{t}, 7, v{t}"); a(f"v_add_u32 v9, v9, v{t}")
            a("s_lshl_b32 s59, s49, 8"); a(f"s_add_u32 s59, s59, {F_Z}")
            self.poll(59, 32, voff=9, drain=False)
        self.stamp("D@1")
        ND = self.o.get("nd", 12)
        ZR = R.alloc(8 * ND); WF = R.alloc(24); Z1 = R.alloc(16); VWO = R.alloc(); tw = R.alloc(4, 1)
        def ldz(k):
            out = []
            b, sp = k // 4, k % 4
            if self.o.get("prog_d", 1):
                if k % 8 == 0 and k > 0:
                    def chk(k=k):
                        self.gate_update(); self.gate_check(k // 8)
                    out.append((chk, 16))
                if k % 8 == 3 and k // 8 + 1 < 8: out.append((self.gate_refresh, 8))
            if sp == 0:
                def pre():
                    blk_idx(b, 60 + (b % 4)); a(f"s_lshl_b32 s{60 + (b % 4)}, s{60 + (b % 4)}, 12")
                    if self.o.get("d_fake"): a(f"s_and_b32 s{60 + (b % 4)}, s{60 + (b % 4)}, {self.o['d_fake']}")
                out.append((pre, 12))
            for c in range(2):
                def f(c=c):
                    r = ZR + 8*(k % ND) + 4*c
                    vm.issue(f"buffer_load_dwordx4 {V(r,4)}, v{VZ+c}, {srd(S_WS)}, s{60 + (b % 4)} offen offset:{sp*1024} sc1", tag=("z", k))
                out.append((f, 8))
            return out
        def rdw(k):
            b, sp = k // 4, k % 4
            if b % NS == 7: return [(f"ds_read_b128 {V(WF+(k%3)*8+tc*4,4)}, v{FA7+sp} offset:{tc*4096}", 4) for tc in range(2)]
            return [(f"ds_read_b128 {V(WF+(k%3)*8+tc*4,4)}, v{FA+sp} offset:{(b%NS)*8192 + tc*4096}", 4) for tc in range(2)]
        INIT = 4
        for k in range(INIT):
            for f, _ in ldz(k): f()
        nz = INIT
        wout = []
        vm.wait(("w", 0)); a("s_barrier")
        def z1flag():
            Lz = a.label("L_z1f")
            a(f"s_cmp_lg_u32 s{S_WAVE}, 0"); a(f"s_cbranch_scc1 {Lz}")
            a(f"s_cmp_ge_u32 s{S_SLOT}, 14"); a("s_cselect_b32 s50, 1, 0"); a("s_mul_i32 s51, s50, 14"); a(f"s_sub_u32 s51, s{S_SLOT}, s51")
            a(f"s_lshl_b32 s68, s{S_XCD}, 1"); a("s_add_u32 s50, s50, s68"); a("s_lshl_b32 s50, s50, 2"); a("s_lshl_b32 s51, s51, 7"); a("s_add_u32 s50, s50, s51"); a(f"s_add_u32 s50, s50, {F_Z1}")
            a(f"v_mov_b32 v{t}, s{S_TAG}"); a(f"v_mov_b32 v{t+1}, 0"); a("s_mov_b64 exec, 1")
            a(f"buffer_store_dword v{t}, v{t+1}, {srd(S_WS)}, s50 offen sc1")
            a("s_mov_b64 exec, -1"); a(f"{Lz}:")
        for k in range(2):
            for x, _ in rdw(k): a(x)
        nbw = NPRE
        for k in range(64):
            b, sp = k // 4, k % 4
            fill = []
            a(f"s_waitcnt lgkmcnt({2 if k + 1 < 64 else 0})")
            vm.wait(("z", k))
            if k + 2 < 64:
                if (k + 2) % 4 == 0:
                    nb = (k + 2) // 4
                    def rdy(nb=nb):
                        if nb == 3: vm.wait("z1st")
                        vm.wait(("w", nb)); a("s_barrier")
                        if nb == 3: z1flag()
                    fill.append((rdy, 8))
                fill += rdw(k + 2)
            for _ in range(2):
                if nz < 64 and nz <= k + ND - 1:
                    fill += ldz(nz); nz += 1
            if k == 59:
                def z1loads():
                    self.gate_update(); self.gate_check(0)
                    a("s_lshl_b32 s50, s48, 1"); a("s_add_u32 s50, s50, s53"); a("s_mul_i32 s50, s50, 28"); a("s_lshl_b32 s51, s49, 2"); a("s_add_u32 s50, s50, s51"); a("s_lshl_b32 s51, s52, 1"); a("s_add_u32 s50, s50, s51")
                    a("s_lshl_b32 s69, s50, 11"); a(f"s_add_u32 s50, s69, {Z1F}")
                    for q in range(4):
                        vm.issue(f"buffer_load_dwordx4 {V(Z1+4*q,4)}, v{V_L16}, {srd(S_WS)}, s50 offen offset:{q*1024} sc1", tag="z1")
                fill.append((z1loads, 64))
            if k == 48:
                def wosetup():
                    self.w128_lane(VWO, 896, tw); self.stage_setup(49, 896, 101, 100)
                fill.append((wosetup, 60))
                wo_items = self.stage_list(S_WOUT, VWO, 101, 100, self.pairs_small("E"), "wout")
                wo_next = 0
            if k >= 52 and self.o.get("wout_in_loop", 0):
                lim = 16 if k < 55 else (20 if k < 59 else (24 if k < 63 else 28))
                n = 0
                while wo_next < lim and n < 3:
                    fill.append(wo_items[wo_next]); wo_next += 1; n += 1
            if k == 54:
                def z1gate():
                    a("s_lshr_b32 s50, s48, 1"); a("s_lshl_b32 s50, s50, 2"); a("s_lshl_b32 s66, s49, 1"); a("s_add_u32 s66, s66, s52"); a("s_lshl_b32 s66, s66, 7")
                    a("s_add_u32 s66, s66, s50"); a(f"s_add_u32 s66, s66, {F_Z1}"); a("v_mov_b32 v9, 0"); self.gate_refresh()
                fill.append((z1gate, 32))
            if sp in (1, 3) and nbw < 16 and (nbw < NS or (sp == 3 and nbw - NS <= b - 1)) and not self.o.get("d_now"):
                fill += dma(nbw); nbw += 1
            wb = WF + (k % 3) * 8; zb = ZR + 8*(k % ND)
            mf = []
            for c in range(2):
                for tc in range(2):
                    acc = A(32*c + 16*tc, 16)
                    mf.append(f"{MFMA} {acc}, {V(zb+4*c,4)}, {V(wb+4*tc,4)}, {'0' if k == 0 else acc}")
            self.sched(mf, fill)
        self.stamp("D@2")
        R.free(ZR, 8*ND); R.free(WF, 24)
        a("s_barrier")
        wo_items = wo_items[wo_next:]
        cnt = [0]
        gap = self.o.get("tail_gap", 12)
        def e(x):
            nonlocal wo_items
            a(x); cnt[0] += 1
            if cnt[0] % gap == 0 and wo_items:
                wo_items[0][0](); wo_items = wo_items[1:]
        a("s_lshl_b32 s50, s52, 13"); a("s_add_u32 s50, s50, 57344"); a("s_mul_i32 s51, s53, 81920"); a("s_add_u32 s51, s51, s50"); a(f"v_add_u32 v{t}, s51, v{V_L16}")
        a("s_xor_b32 s51, s53, 1"); a("s_mul_i32 s51, s51, 81920"); a("s_add_u32 s51, s51, s50"); a(f"v_add_u32 v{t+1}, s51, v{V_L16}")
        G = R.alloc(32); TM = R.alloc(32)
        La = a.label("L_x"); Lb = a.label("L_x")
        a("s_cmp_eq_u32 s53, 0"); a(f"s_cbranch_scc1 {La}")
        for c in range(2):
            for q in range(4): a(f"ds_write_b128 v{t}, {A(32*c+4*q,4)} offset:{c*4096+q*1024}")
        for c in range(2):
            for r in range(16): a(f"v_accvgpr_read_b32 v{G+16*c+r}, a{32*c+16+r}")
        a(f"s_branch {Lb}")
        a(f"{La}:")
        for c in range(2):
            for q in range(4): a(f"ds_write_b128 v{t}, {A(32*c+16+4*q,4)} offset:{c*4096+q*1024}")
        for c in range(2):
            for r in range(16): a(f"v_accvgpr_read_b32 v{G+16*c+r}, a{32*c+r}")
        a(f"{Lb}:")
        for _ in range(min(3, len(wo_items))):
            wo_items[0][0](); wo_items = wo_items[1:]
        BP = R.alloc(2); ZF = R.alloc(32)
        vm.wait("z1")
        a(f"v_lshlrev_b32 v{BP}, 16, v{BI}")
        for d in range(16):
            e(f"v_lshlrev_b32 v{ZF+2*d}, 16, v{Z1+d}"); e(f"v_and_b32 v{ZF+2*d+1}, 0xffff0000, v{Z1+d}")
        for r in range(0, 32, 2): e(f"v_pk_add_f32 {V(G+r,2)}, {V(G+r,2)}, {V(BP,2)} op_sel_hi:[1,0]")
        a("s_waitcnt lgkmcnt(0)"); a("s_barrier")
        for q in range(8): e(f"ds_read_b128 {V(TM+4*q,4)}, v{t+1} offset:{q*1024}")
        a(f"s_add_u32 s50, s69, {UFR}")
        for c in range(2):
            a(f"s_waitcnt lgkmcnt({4 if c == 0 else 0})")
            for r in range(16*c, 16*c+16, 2): e(f"v_pk_add_f32 {V(G+r,2)}, {V(G+r,2)}, {V(TM+r,2)}")
            for r in range(16*c, 16*c+16, 2): e(f"v_pk_mul_f32 {V(G+r,2)}, {V(G+r,2)}, {V(ZF+r,2)}")
            for d in range(8*c, 8*c+8): a(f"v_cvt_pk_bf16_f32 v{Z1+d}, v{G+2*d}, v{G+2*d+1}")
            for q in range(2*c, 2*c+2):
                vm.issue(f"buffer_store_dwordx4 {V(Z1+4*q,4)}, v{V_L16}, {srd(S_WS)}, s50 offen offset:{q*1024} sc1", tag="ust")
        a("s_lshl_b32 s55, s48, 7"); a("s_lshl_b32 s50, s49, 2"); a("s_add_u32 s55, s55, s50"); a(f"s_add_u32 s55, s55, {F_U}")
        npost = self.o.get("tail_post", 8)
        for f, _ in wo_items[:npost]: f()
        wo_items = wo_items[npost:]
        self.set_flag(55, tag="ust")
        for f, _ in wo_items: f()
        self.idle_prefetch(skip, 2)
        self.stamp("D@3")

    def build(self):
        self.prologue()
        for ph in "ABCDE":
            getattr(self, "phase_" + ph)()
            if ph == self.stop_after: break
        self.epilogue()
        body = pad_hazards(self.a.lines)
        hdr = open("cdna_kernels/" + NAME[:-7] + ".s.ref").read().split("; Override")[0]
        s = hdr + f"; @launch grid=(256,1,1) block=(256,1,1) lds={LDS_BYTES}\n"
        s += '.amdgcn_target "amdgcn-amd-amdhsa--gfx950"\n.text\n'
        s += f".set CODE_SLICE, ((L_code_end - {NAME} + 32*128 - 1) / (32*128)) * 128\n"
        s += f".set CODE_BYTES, L_code_end - {NAME} - 32\n"
        s += f".globl {NAME}\n.p2align 8\n.type {NAME},@function\n{NAME}:\n" + "\n".join(body) + "\nL_code_end:\n"
        s += f""".section .rodata,"a"
.p2align 6
.amdhsa_kernel {NAME}
  .amdhsa_next_free_vgpr 512
  .amdhsa_next_free_sgpr 102
  .amdhsa_accum_offset 256
  .amdhsa_group_segment_fixed_size 0
  .amdhsa_kernarg_size 88
  .amdhsa_user_sgpr_count 2
  .amdhsa_user_sgpr_kernarg_segment_ptr 1
  .amdhsa_system_sgpr_workgroup_id_x 1
.end_amdhsa_kernel
"""
        return s

if __name__ == "__main__":
    import json
    out = sys.argv[1]; stop = sys.argv[2] if len(sys.argv) > 2 else "E"
    stamps = sys.argv[3] if len(sys.argv) > 3 and sys.argv[3] != "0" else ""
    opts = json.loads(sys.argv[4]) if len(sys.argv) > 4 else {}
    g = Gen(stop, stamps, opts)
    open(out, "w").write(g.build())
    open(out + ".stamps", "w").write(" ".join(g.stamp_names))
```
